```python
import torch

def _softmax(x, axis=-1):
    return torch.softmax(x, dim=axis)
def _gelu(x):
    return torch.nn.functional.gelu(x, approximate="tanh")
def _silu(x):
    return torch.nn.functional.silu(x)
def _sigmoid(x):
    return torch.sigmoid(x)
def _layernorm(x, axis=-1, eps=1e-5):
    m = x.mean(dim=axis, keepdim=True)
    v = x.var(dim=axis, keepdim=True, unbiased=False)
    return (x - m) / torch.sqrt(v + eps)
def _scatter_add(tgt, idx, src, axis=0):
    return tgt.clone().index_add_(axis, idx, src)
def _segment_sum(src, seg, n):
    out = torch.zeros((n,) + src.shape[1:], dtype=src.dtype)
    return out.index_add_(0, seg, src)
def _pad(x, pw):
    flat = tuple(v for pair in reversed(pw) for v in pair)
    return torch.nn.functional.pad(x, flat)

kernel_name = 'gather_scatter__edge_featured_mpnn_egc__graph'

def setup_inputs():

    _w = (lambda a: (lambda t: t.to(torch.bfloat16) if t.is_floating_point() else t)(torch.as_tensor(a)))
    N, deg, D, De = 25000, 16, 128, max(4, 1)
    E = N * deg
    return {
        "x": _w((lambda *s: torch.randn(*s, dtype=torch.bfloat16) * 0.1)(N, D)),
        "e_attr": _w((lambda *s: torch.randn(*s, dtype=torch.bfloat16) * 0.1)(E, De)),
        "src": _w((lambda lo, hi, *s: torch.randint(lo, hi, s))(0, N, E).to(torch.int64)),
        "dst": _w((lambda lo, hi, *s: torch.randint(lo, hi, s))(0, N, E).to(torch.int64)),
        "u_w": _w((lambda *s: torch.randn(*s, dtype=torch.bfloat16) * 0.05)(D, D)),
        "v_w": _w((lambda *s: torch.randn(*s, dtype=torch.bfloat16) * 0.05)(D, D)),
        "g_w": _w((lambda *s: torch.randn(*s, dtype=torch.bfloat16) * 0.1)(2 * D + De, D)),
    }

def reference(x, e_attr, src, dst, u_w, v_w, g_w):
    N, D = x.shape
    g_in = torch.concatenate([x[dst], x[src], e_attr], axis=-1)
    eta = _sigmoid(g_in @ g_w)
    hv = x @ v_w
    msg = eta * hv[src]
    agg = _segment_sum(msg, dst, N)
    return _silu(x @ u_w + agg)
```

```python
import sys

N = 25000
E = 400000
NB = 64
BN = 391
CH = 3200
NCH = 125
PS = 25008 * 128
P_OFF = 0
AU_OFF = 0x1000000
KEY_OFF = 0x2000000
EAT_OFF = 0x2200000
DESC_OFF = 0x2800000
WS_USED = 0x2900000
NL2E = 0xBFB8AA3B
MAGIC = 85817

HEADER = """; Kernarg layout for this problem (80 bytes, ptrs only, base s[0:1]):
"""


class A:
    def __init__(self):
        self.l = []

    def __call__(self, s):
        for x in s.strip().split("\n"):
            self.l.append("    " + x.strip())

    def lab(self, s):
        self.l.append(s + ":")

    def c(self, s):
        self.l.append("    ; " + s)


def vr(b, n=1):
    return f"v{b}" if n == 1 else f"v[{b}:{b+n-1}]"


def sr(b, n=1):
    return f"s{b}" if n == 1 else f"s[{b}:{b+n-1}]"


def srd(a, d, base, size, off=0):
    if off:
        a(f"s_add_u32 s{d}, s{base}, {off}")
        a(f"s_addc_u32 s{d+1}, s{base+1}, 0")
    else:
        a(f"s_mov_b32 s{d}, s{base}")
        a(f"s_mov_b32 s{d+1}, s{base+1}")
    a(f"s_mov_b32 s{d+2}, {size}")
    a(f"s_mov_b32 s{d+3}, 0x20000")


def scan64(a, v):
    for sh in (1, 2, 4, 8):
        a("s_nop 1")
        a(f"v_add_u32_dpp v{v}, v{v}, v{v} row_shr:{sh} row_mask:0xf bank_mask:0xf bound_ctrl:0")
    a("s_nop 1")
    a(f"v_add_u32_dpp v{v}, v{v}, v{v} row_bcast:15 row_mask:0xa bank_mask:0xf")
    a("s_nop 1")
    a(f"v_add_u32_dpp v{v}, v{v}, v{v} row_bcast:31 row_mask:0xc bank_mask:0xf")


K1_W = 0
K1_X = 65536
K1_SCR = 118784
K1_STK = K1_SCR
K1_STE = K1_SCR + 12800
K1_CNT = K1_SCR + 38400
K1_START = K1_CNT + 512
K1_LDS = K1_START + 512
K1_TILES = 13


def gen_k1(a):
    sW, sPair, sNode0, sT0, sT1, sT2, sT3 = 22, 23, 24, 25, 26, 27, 28
    sEx = 30
    SD, SS, SE, SWS, SX, SWT = 32, 36, 40, 44, 48, 52
    sScale, sOut = 56, 57
    vLane = 1
    a.lab("k1_kernel")
    a("s_cmp_ge_u32 s2, 256")
    a("s_cbranch_scc1 K1_END")
    a("s_load_dwordx16 s[4:19], s[0:1], 0")
    a("s_load_dwordx2 s[20:21], s[0:1], 72")
    a("v_lshrrev_b32 v2, 6, v0")
    a(f"v_and_b32 v{vLane}, 63, v0")
    a(f"v_readfirstlane_b32 s{sW}, v2")
    a.c("pair = (wg>>3)&1 ; blk = (wg&7) | ((wg>>4)<<3) ; node0 = blk*208")
    a(f"s_lshr_b32 s{sPair}, s2, 3")
    a(f"s_and_b32 s{sPair}, s{sPair}, 1")
    a(f"s_lshr_b32 s{sT0}, s2, 4")
    a(f"s_lshl_b32 s{sT0}, s{sT0}, 3")
    a(f"s_and_b32 s{sT1}, s2, 7")
    a(f"s_or_b32 s{sT0}, s{sT0}, s{sT1}")
    a(f"s_mul_i32 s{sNode0}, s{sT0}, {K1_TILES*16}")
    a("v_lshlrev_b32 v2, 4, v0")
    a("v_lshlrev_b32 v3, 5, v0")
    a(f"v_lshrrev_b32 v4, 2, v{vLane}")
    a("v_lshlrev_b32 v4, 8, v4")
    a(f"v_and_b32 v5, 3, v{vLane}")
    a("v_lshl_or_b32 v4, v5, 4, v4")
    a(f"v_lshrrev_b32 v6, 3, v{vLane}")
    a("v_and_b32 v7, 6, v6")
    a(f"v_and_b32 v8, 7, v{vLane}")
    a("v_xor_b32 v7, v7, v8")
    a("v_lshlrev_b32 v7, 4, v7")
    a("v_lshl_or_b32 v5, v6, 8, v7")
    a("s_waitcnt lgkmcnt(0)")
    srd(a, SD, 10, E * 4)
    srd(a, SS, 8, E * 4)
    srd(a, SE, 6, E * 8)
    srd(a, SWS, 20, WS_USED)
    srd(a, SX, 4, N * 256)
    a.c("W srd: mat = w>>3 ; mat0: pair0 g_w+32768, pair1 g_w ; mat1: pair0 v_w, pair1 u_w")
    a(f"s_add_u32 s{sT0}, s16, 32768")
    a(f"s_addc_u32 s{sT1}, s17, 0")
    a(f"s_cmp_eq_u32 s{sPair}, 0")
    a(f"s_cselect_b32 s{sT0}, s{sT0}, s16")
    a(f"s_cselect_b32 s{sT1}, s{sT1}, s17")
    a(f"s_cselect_b32 s{sT2}, s14, s12")
    a(f"s_cselect_b32 s{sT3}, s15, s13")
    a(f"s_cselect_b32 s{sScale}, {hex(NL2E)}, 1.0")
    a(f"s_cselect_b32 s{sOut}, {P_OFF}, {AU_OFF}")
    a(f"s_cmp_lt_u32 s{sW}, 8")
    a(f"s_cselect_b32 s{SWT}, s{sT0}, s{sT2}")
    a(f"s_cselect_b32 s{SWT+1}, s{sT1}, s{sT3}")
    a(f"s_mov_b32 s{SWT+2}, 32768")
    a(f"s_mov_b32 s{SWT+3}, 0x20000")
    a("s_cmp_ge_u32 s2, 125")
    a("s_cbranch_scc1 K1_NOEDGE")
    a(f"s_cmp_ge_u32 s{sW}, 13")
    a("s_cbranch_scc1 K1_NOEDGE")
    a("v_cmp_gt_u32 vcc, 800, v0")
    a(f"s_mul_i32 s{sT0}, s2, {CH*4}")
    a(f"s_mul_i32 s{sT1}, s2, {CH*8}")
    a(f"s_mov_b64 s[{sEx}:{sEx+1}], vcc")
    a("s_mov_b64 exec, vcc")
    a(f"buffer_load_dwordx4 v[16:19], v2, s[{SD}:{SD+3}], s{sT0} offen")
    a(f"buffer_load_dwordx4 v[20:23], v2, s[{SS}:{SS+3}], s{sT0} offen")
    a(f"buffer_load_dwordx4 v[24:27], v3, s[{SE}:{SE+3}], s{sT1} offen")
    a(f"buffer_load_dwordx4 v[28:31], v3, s[{SE}:{SE+3}], s{sT1} offen offset:16")
    a("s_mov_b64 exec, -1")
    a.lab("K1_NOEDGE")
    a(f"s_lshl_b32 s{sT0}, s{sW}, 12")
    a(f"s_mov_b32 m0, s{sT0}")
    a(f"s_and_b32 s{sT0}, s{sW}, 1")
    a(f"s_lshl_b32 s{sT0}, s{sT0}, 14")
    a(f"s_lshr_b32 s{sT1}, s{sW}, 1")
    a(f"s_and_b32 s{sT1}, s{sT1}, 3")
    a(f"s_lshl_b32 s{sT1}, s{sT1}, 6")
    a(f"s_add_u32 s{sT0}, s{sT0}, s{sT1}")
    for i in range(4):
        a(f"buffer_load_dwordx4 v4, s[{SWT}:{SWT+3}], s{sT0} offen offset:{i*1024} lds")
        if i < 3:
            a(f"s_add_u32 s{sT0}, s{sT0}, 3072")
    a(f"s_lshr_b32 s{sT0}, s{sW}, 2")
    a(f"s_lshl_b32 s{sT0}, s{sT0}, 12")
    a(f"s_lshr_b32 s{sT1}, s{sW}, 1")
    a(f"s_and_b32 s{sT1}, s{sT1}, 1")
    a(f"s_and_b32 s{sT2}, s{sW}, 1")
    a(f"s_lshl_b32 s{sT3}, s{sT1}, 11")
    a(f"s_add_u32 s{sT3}, s{sT3}, s{sT0}")
    a(f"s_lshl_b32 s58, s{sT2}, 10")
    a(f"s_add_u32 s{sT3}, s{sT3}, s58")
    a(f"s_add_u32 s{sT3}, s{sT3}, {K1_X}")
    a(f"s_lshl_b32 s{sT2}, s{sT2}, 11")
    a(f"s_lshl_b32 s{sT1}, s{sT1}, 7")
    a(f"s_add_u32 s{sT0}, s{sT0}, s{sT2}")
    a(f"s_add_u32 s{sT0}, s{sT0}, s{sT1}")
    a(f"s_lshl_b32 s{sT1}, s{sNode0}, 8")
    a(f"s_add_u32 s{sT0}, s{sT0}, s{sT1}")
    for i in range(4):
        if i == 3:
            a(f"s_cmp_ge_u32 s{sW}, 4")
            a("s_cbranch_scc1 K1_XDONE")
        a(f"s_mov_b32 m0, s{sT3}")
        a(f"s_add_u32 s{sT3}, s{sT3}, 16384")
        a(f"buffer_load_dwordx4 v5, s[{SX}:{SX+3}], s{sT0} offen lds")
        a(f"s_add_u32 s{sT0}, s{sT0}, 16384")
    a.lab("K1_XDONE")
    a("s_cmp_ge_u32 s2, 125")
    a("s_cbranch_scc1 K1_NOPART")
    a(f"v_lshlrev_b32 v6, 2, v{vLane}")
    a(f"v_add_u32 v6, {K1_CNT}, v6")
    a("v_mov_b32 v7, 0")
    a(f"s_cmp_lg_u32 s{sW}, 0")
    a("s_cbranch_scc1 K1_P1")
    a("ds_write_b32 v6, v7")
    a("ds_write_b32 v6, v7 offset:256")
    a("s_waitcnt lgkmcnt(0)")
    a.lab("K1_P1")
    a("s_barrier")
    a(f"s_cmp_ge_u32 s{sW}, 13")
    a("s_cbranch_scc1 K1_P2")
    a(f"s_mov_b32 s{sT0}, {MAGIC}")
    a(f"s_mov_b32 s{sT1}, {-BN & 0xffffffff}")
    a("v_mov_b32 v7, 1")
    a(f"s_mov_b64 exec, s[{sEx}:{sEx+1}]")
    a("s_waitcnt vmcnt(7)")
    for i in range(4):
        a(f"v_mul_u32_u24 v{32+i}, s{sT0}, v{16+i}")
    for i in range(4):
        a(f"v_lshrrev_b32 v{32+i}, 25, v{32+i}")
    for i in range(4):
        a(f"v_mad_i32_i24 v{16+i}, v{32+i}, s{sT1}, v{16+i}")
    for i in range(4):
        a(f"v_lshlrev_b32 v{32+i}, 2, v{32+i}")
    for i in range(4):
        a(f"v_add_u32 v{32+i}, {K1_CNT}, v{32+i}")
    for i in range(4):
        a(f"ds_add_rtn_u32 v{36+i}, v{32+i}, v7")
    for i in range(4):
        a(f"v_lshl_or_b32 v{20+i}, v{16+i}, 18, v{20+i}")
    a("s_waitcnt lgkmcnt(0)")
    a("s_mov_b64 exec, -1")
    a.lab("K1_P2")
    a("s_barrier")
    a(f"s_cmp_ge_u32 s{sW}, 13")
    a("s_cbranch_scc1 K1_P3")
    a("ds_read_b32 v8, v6")
    a("s_waitcnt lgkmcnt(0)")
    a("v_mov_b32 v9, v8")
    scan64(a, 9)
    a("v_sub_u32 v9, v9, v8")
    a("ds_write_b32 v6, v9 offset:512")
    a(f"s_cmp_lg_u32 s{sW}, 0")
    a("s_cbranch_scc1 K1_P2B")
    a("v_lshl_or_b32 v10, v8, 16, v9")
    a(f"v_lshlrev_b32 v11, 2, v{vLane}")
    a(f"s_lshl_b32 s{sT0}, s2, 8")
    a(f"s_add_u32 s{sT0}, s{sT0}, {DESC_OFF}")
    a(f"buffer_store_dword v10, v11, s[{SWS}:{SWS+3}], s{sT0} offen")
    a.lab("K1_P2B")
    a(f"s_mov_b64 exec, s[{sEx}:{sEx+1}]")
    for i in range(4):
        a(f"ds_read_b32 v{32+i}, v{32+i} offset:512")
    a("s_waitcnt lgkmcnt(0)")
    for i in range(4):
        a(f"v_add_u32 v{32+i}, v{32+i}, v{36+i}")
    for i in range(4):
        a(f"v_lshlrev_b32 v{36+i}, 2, v{32+i}")
        a(f"v_lshlrev_b32 v{32+i}, 3, v{32+i}")
    for i in range(4):
        a(f"v_add_u32 v{36+i}, {K1_STK}, v{36+i}")
        a(f"v_add_u32 v{32+i}, {K1_STE}, v{32+i}")
    for i in range(4):
        a(f"ds_write_b32 v{36+i}, v{20+i}")
        a(f"ds_write_b64 v{32+i}, v[{24+2*i}:{25+2*i}]")
    a("s_waitcnt lgkmcnt(0)")
    a("s_mov_b64 exec, -1")
    a.lab("K1_P3")
    a("s_barrier")
    a(f"s_cmp_ge_u32 s{sW}, 13")
    a("s_cbranch_scc1 K1_NOPART")
    a(f"s_mov_b64 exec, s[{sEx}:{sEx+1}]")
    a(f"v_add_u32 v6, {K1_STK}, v2")
    a("ds_read_b128 v[16:19], v6")
    a("ds_read_b128 v[20:23], v6 offset:12800")
    a("ds_read_b128 v[24:27], v6 offset:25600")
    a(f"s_mul_i32 s{sT0}, s2, {CH*4}")
    a(f"s_add_u32 s{sT0}, s{sT0}, {KEY_OFF}")
    a(f"s_mul_i32 s{sT1}, s2, {CH*8}")
    a(f"s_add_u32 s{sT1}, s{sT1}, {EAT_OFF}")
    a(f"s_add_u32 s{sT2}, s{sT1}, 12800")
    a("s_waitcnt lgkmcnt(2)")
    a(f"buffer_store_dwordx4 v[16:19], v2, s[{SWS}:{SWS+3}], s{sT0} offen")
    a("s_waitcnt lgkmcnt(1)")
    a(f"buffer_store_dwordx4 v[20:23], v2, s[{SWS}:{SWS+3}], s{sT1} offen")
    a("s_waitcnt lgkmcnt(0)")
    a(f"buffer_store_dwordx4 v[24:27], v2, s[{SWS}:{SWS+3}], s{sT2} offen")
    a("s_mov_b64 exec, -1")
    a("s_waitcnt vmcnt(3)")
    a("s_branch K1_GEMM")
    a.lab("K1_NOPART")
    a("s_waitcnt vmcnt(0)")
    a.lab("K1_GEMM")
    sS, sQ = 58, 59
    a(f"s_and_b32 s{sS}, s{sW}, 3")
    a(f"s_lshr_b32 s{sQ}, s{sW}, 2")
    a(f"v_lshrrev_b32 v2, 4, v{vLane}")
    a(f"v_and_b32 v3, 15, v{vLane}")
    a("v_lshrrev_b32 v4, 2, v3")
    a("v_lshl_add_u32 v4, v2, 3, v4")
    a("v_lshlrev_b32 v4, 6, v4")
    a(f"v_and_b32 v5, 3, v{vLane}")
    a("v_lshl_add_u32 v4, v5, 3, v4")
    a(f"s_lshl_b32 s{sT0}, s{sS}, 13")
    a(f"v_add_u32 v4, s{sT0}, v4")
    a("v_and_b32 v5, 6, v3")
    a("v_xor_b32 v5, v5, v2")
    a("v_lshlrev_b32 v5, 4, v5")
    a("v_lshl_add_u32 v5, v3, 7, v5")
    a(f"s_lshl_b32 s{sT0}, s{sQ}, 12")
    a(f"s_add_u32 s{sT0}, s{sT0}, {K1_X}")
    a(f"v_add_u32 v5, s{sT0}, v5")
    a("v_xor_b32 v6, 64, v5")
    a("v_and_b32 v7, 7, v3")
    a("v_xor_b32 v7, v7, v2")
    a("v_lshlrev_b32 v7, 4, v7")
    a("v_lshl_add_u32 v7, v3, 7, v7")
    a(f"s_lshl_b32 s{sT0}, s{sW}, 11")
    a(f"s_add_u32 s{sT0}, s{sT0}, {K1_SCR}")
    a(f"v_add_u32 v7, s{sT0}, v7")
    a("v_xor_b32 v8, 64, v7")
    a(f"v_lshlrev_b32 v9, 4, v{vLane}")
    a(f"v_add_u32 v9, s{sT0}, v9")
    a(f"v_lshrrev_b32 v10, 3, v{vLane}")
    a(f"v_and_b32 v11, 7, v{vLane}")
    a("v_xor_b32 v11, v11, v10")
    a("v_lshlrev_b32 v11, 4, v11")
    a("v_lshl_add_u32 v10, v10, 7, v11")
    a(f"s_mul_i32 s{sT0}, s{sS}, {PS}")
    a(f"s_add_u32 s{sOut}, s{sOut}, s{sT0}")
    a(f"s_lshl_b32 s{sT3}, s{sQ}, 4")
    a(f"s_add_u32 s{sT3}, s{sT3}, s{sNode0}")
    a(f"s_lshl_b32 s{sT0}, s{sT3}, 7")
    a(f"s_add_u32 s{sOut}, s{sOut}, s{sT0}")
    a("s_barrier")
    WF = 64

    def wf(mat, ct, ks):
        return WF + ((mat * 2 + ct) * 4 + ks) * 4
    for ks in range(4):
        for mat in range(2):
            for ct in range(2):
                b = wf(mat, ct, ks)
                off = mat * 32768 + ks * 2048 + ct * 32
                a(f"ds_read_b64_tr_b16 v[{b}:{b+1}], v4 offset:{off}")
                a(f"ds_read_b64_tr_b16 v[{b+2}:{b+3}], v4 offset:{off+256}")
    XF = [32, 48]

    def xread(buf, i):
        for ks in range(4):
            av = 5 if ks % 2 == 0 else 6
            off = i * 16384 + (ks >> 1) * 2048
            a(f"ds_read_b128 v[{XF[buf]+4*ks}:{XF[buf]+4*ks+3}], v{av} offset:{off}")
    xread(0, 0)
    for i in range(4):
        if i == 3:
            a(f"s_cmp_lg_u32 s{sQ}, 0")
            a("s_cbranch_scc1 K1_END")
        a(f"s_cmp_ge_u32 s{sT3}, 25008")
        a("s_cbranch_scc1 K1_END")
        buf = i & 1
        if i < 3:
            xread(buf ^ 1, i + 1)
            a("s_waitcnt lgkmcnt(4)")
        else:
            a("s_waitcnt lgkmcnt(0)")
        for ks in range(4):
            for mat in range(2):
                for ct in range(2):
                    d = 16 + (mat * 2 + ct) * 4
                    b = wf(mat, ct, ks)
                    cin = "0" if ks == 0 else f"v[{d}:{d+3}]"
                    a(f"v_mfma_f32_16x16x32_bf16 v[{d}:{d+3}], v[{b}:{b+3}], v[{XF[buf]+4*ks}:{XF[buf]+4*ks+3}], {cin}")
        a("s_nop 7")
        for ct in range(2):
            for j in range(4):
                a(f"v_fma_mixlo_f16 v{24+4*ct+j}, v{16+4*ct+j}, s{sScale}, 0")
        a("ds_write_b128 v7, v[24:27]")
        a("ds_write_b128 v8, v[28:31]")
        a("ds_read_b128 v[12:15], v9")
        a("ds_read_b128 v[16:19], v9 offset:1024")
        a("s_waitcnt lgkmcnt(1)")
        a(f"buffer_store_dwordx4 v[12:15], v10, s[{SWS}:{SWS+3}], s{sOut} offen")
        a("s_waitcnt lgkmcnt(0)")
        a(f"buffer_store_dwordx4 v[16:19], v10, s[{SWS}:{SWS+3}], s{sOut} offen offset:1024")
        a(f"s_add_u32 s{sOut}, s{sOut}, 8192")
        a(f"s_add_u32 s{sT3}, s{sT3}, 64")
        a("s_nop 1")
    a.lab("K1_END")
    a("s_endpgm")


CAP = 8192
L_AU = 0
L_SRC = 53248
L_EA = L_SRC + CAP * 4
L_CNT = L_EA + CAP * 8
L_ORD = L_CNT + 2048
L_DH = L_ORD + 2048
L_BST = L_DH + 256
L_BINFO = L_BST + 256
L_CTR = L_BINFO + 256
L_FLAG = L_CTR + 4
K2_LDS = L_CTR + 64
DUMMY_SRC = 0x40000000
DUMMY_NODE = 400 * 128
NBATCH = (BN + 15) // 16


def gen_k2(a):
    sW, sSl, sBk = 22, 23, 24
    sT0, sT1, sT2, sT3 = 25, 26, 27, 28
    sK = 29
    SWS, SP, SO, SG = 32, 36, 40, 44
    sD = 48
    sM = 56
    sSp = 74
    sOvf = 82
    sSteps, sBatch = 75, 76
    sOutOff = 77
    sKK = 78
    sSave = 80
    SA = 84
    SF0, SF1, SF2 = 88, 92, 96
    vLane, vC8, vG8 = 1, 2, 3
    a.lab("k2_kernel")
    a("s_cmp_ge_u32 s2, 256")
    a("s_cbranch_scc1 K2_END")
    a("s_load_dwordx16 s[4:19], s[0:1], 0")
    a("s_load_dwordx2 s[20:21], s[0:1], 72")
    a("v_lshrrev_b32 v2, 6, v0")
    a(f"v_and_b32 v{vLane}, 63, v0")
    a(f"v_readfirstlane_b32 s{sW}, v2")
    a(f"s_and_b32 s{sSl}, s2, 3")
    a(f"s_lshr_b32 s{sBk}, s2, 3")
    a(f"s_lshl_b32 s{sBk}, s{sBk}, 1")
    a(f"s_lshr_b32 s{sT0}, s2, 2")
    a(f"s_and_b32 s{sT0}, s{sT0}, 1")
    a(f"s_or_b32 s{sBk}, s{sBk}, s{sT0}")
    a(f"s_lshl_b32 s{sT0}, s{sW}, 11")
    a(f"s_lshl_b32 s{sT1}, s{sBk}, 2")
    a(f"s_add_u32 s{sT0}, s{sT0}, s{sT1}")
    a(f"s_add_u32 s{sT0}, s{sT0}, {DESC_OFF}")
    a("s_waitcnt lgkmcnt(0)")
    a(f"s_add_u32 s{sT2}, s20, s{sT0}")
    a(f"s_addc_u32 s{sT3}, s21, 0")
    a(f"s_mov_b32 s30, s{sT2}")
    a(f"s_mov_b32 s31, s{sT3}")
    for i in range(8):
        a(f"s_load_dword s{sD+i}, s[30:31], {i*256}")
    srd(a, SWS, 20, WS_USED)
    a(f"s_mul_i32 s{sT0}, s{sSl}, {PS}")
    a(f"s_add_u32 s{SP}, s20, s{sT0}")
    a(f"s_addc_u32 s{SP+1}, s21, 0")
    a(f"s_mov_b32 s{SP+2}, {N*128}")
    a(f"s_mov_b32 s{SP+3}, 0x20000")
    a(f"s_add_u32 s{SA}, s{SP}, {AU_OFF}")
    a(f"s_addc_u32 s{SA+1}, s{SP+1}, 0")
    a(f"s_mov_b32 s{SA+2}, {N*128}")
    a(f"s_mov_b32 s{SA+3}, 0x20000")
    srd(a, SO, 18, N * 256)
    srd(a, SG, 16, 260 * 256)
    a(f"s_mov_b32 s{sK}, {hex(NL2E)}")
    a(f"s_mov_b32 s{sKK}, {hex(NL2E)}")
    a(f"s_mov_b32 s{sKK+1}, {hex(NL2E)}")
    a(f"v_and_b32 v{vC8}, 7, v{vLane}")
    a(f"v_lshlrev_b32 v{vC8}, 4, v{vC8}")
    a(f"v_lshrrev_b32 v{vG8}, 3, v{vLane}")
    a(f"v_lshlrev_b32 v{vG8}, 3, v{vG8}")
    a(f"v_lshrrev_b32 v12, 1, v{vC8}")
    a(f"s_lshl_b32 s{sT0}, s{sSl}, 6")
    a(f"s_add_u32 s{sT0}, s{sT0}, 65536")
    for k in range(4):
        a(f"buffer_load_dwordx2 v[{4+2*k}:{5+2*k}], v12, s[{SG}:{SG+3}], s{sT0} offen offset:{k*256}")
    a("v_lshlrev_b32 v13, 4, v0")
    a(f"v_add_u32 v14, {L_SRC}, v13")
    for i in range(4):
        a(f"v_mov_b32 v{16+i}, {hex(DUMMY_SRC)}")
        a(f"v_mov_b32 v{20+i}, 0")
        a(f"v_mov_b32 v{24+i}, {DUMMY_NODE}")
    a("ds_write_b128 v14, v[16:19]")
    a("ds_write_b128 v14, v[16:19] offset:16384")
    a(f"v_add_u32 v14, {L_EA}, v13")
    for i in range(4):
        a(f"ds_write_b128 v14, v[20:23] offset:{i*16384}")
    a(f"s_cmp_ge_u32 s{sW}, 5")
    a("s_cbranch_scc1 K2_INIT_DONE")
    a(f"v_add_u32 v14, {L_CNT}, v13")
    a(f"s_lshr_b32 s{sT0}, s{sW}, 1")
    a(f"s_cmp_eq_u32 s{sT0}, 1")
    a("s_cbranch_scc1 K2_INIT_ORD")
    a(f"s_cmp_eq_u32 s{sW}, 4")
    a("s_cbranch_scc0 K2_INIT_Z")
    a("s_bfm_b64 exec, 52, 0")
    a.lab("K2_INIT_Z")
    a("ds_write_b128 v14, v[20:23]")
    a("s_mov_b64 exec, -1")
    a("s_branch K2_INIT_DONE")
    a.lab("K2_INIT_ORD")
    a("ds_write_b128 v14, v[24:27]")
    a.lab("K2_INIT_DONE")
    a(f"v_lshlrev_b32 v13, 2, v{vLane}")
    a(f"v_lshlrev_b32 v14, 3, v{vLane}")
    a("s_waitcnt lgkmcnt(0)")
    KEYR, EAR, RK = 16, 32, 50
    a(f"s_cmp_lt_u32 s{sW}, 15")
    a("s_cbranch_scc1 K2_DOK")
    for i in (5, 6, 7):
        a(f"s_mov_b32 s{sD+i}, 0")
    a.lab("K2_DOK")
    a(f"s_mul_i32 s{sT3}, s{sW}, {8*CH}")
    for i in range(8):
        a(f"s_and_b32 s{sT0}, s{sD+i}, 0xffff")
        a(f"s_add_u32 s{sT0}, s{sT0}, s{sT3}")
        if i:
            a(f"s_add_u32 s{sT0}, s{sT0}, {i*CH}")
        a(f"s_lshl_b32 s{sT0}, s{sT0}, 2")
        a(f"s_add_u32 s{sM+2*i}, s{sT0}, {KEY_OFF}")
        a(f"buffer_load_dword v{KEYR+i}, v13, s[{SWS}:{SWS+3}], s{sM+2*i} offen")
    for i in range(8):
        a(f"s_lshl_b32 s{sT0}, s{sM+2*i}, 1")
        a(f"s_add_u32 s{sM+2*i+1}, s{sT0}, {(EAT_OFF - 2*KEY_OFF) & 0xffffffff}")
        a(f"buffer_load_dwordx2 v[{EAR+2*i}:{EAR+2*i+1}], v14, s[{SWS}:{SWS+3}], s{sM+2*i+1} offen")
    a(f"s_mov_b32 s{sSp}, 0")
    a(f"s_mov_b32 s{sOvf}, 0")
    for i in range(8):
        a(f"s_lshr_b32 s{sD+i}, s{sD+i}, 16")
        a(f"s_cmp_gt_u32 s{sD+i}, 64")
        a(f"s_cbranch_scc1 K2_TAIL{i}")
        a.lab(f"K2_TAILR{i}")
    a(f"s_mul_i32 s{sT0}, s{sBk}, {BN*128}")
    a(f"s_lshl_b32 s{sT1}, s{sW}, 10")
    a(f"s_add_u32 s{sT0}, s{sT0}, s{sT1}")
    a(f"v_lshlrev_b32 v15, 4, v{vLane}")
    for i in range(4):
        if i == 3:
            a(f"s_cmp_lg_u32 s{sW}, 0")
            a("s_cbranch_scc1 K2_AUDONE")
        a(f"s_mov_b32 m0, s{sT1}")
        a(f"s_add_u32 s{sT1}, s{sT1}, 16384")
        a(f"buffer_load_dwordx4 v15, s[{SA}:{SA+3}], s{sT0} offen lds")
        a(f"s_add_u32 s{sT0}, s{sT0}, 16384")
    a.lab("K2_AUDONE")
    for i in range(8):
        a(f"v_cmp_gt_u32 s[{sM+2*i}:{sM+2*i+1}], s{sD+i}, v{vLane}")
    a(f"v_cmp_gt_u32 s[{sM+16}:{sM+17}], s{sSp}, v{vLane}")
    a("v_mov_b32 v12, 1")
    a("s_barrier")
    WB = 112
    a(f"s_cmp_eq_u32 s{sOvf}, 0")
    a("s_cbranch_scc1 K2_NOOVF")
    a(f"v_mov_b32 v60, {L_FLAG}")
    a("ds_write_b32 v60, v12")
    a.lab("K2_NOOVF")
    a.c("histogram")
    a(f"s_cmp_lg_u32 s{sSp}, 0")
    a("s_cbranch_scc1 K2_WAITALL")
    a("s_waitcnt vmcnt(11)")
    a("s_branch K2_HIST")
    a.lab("K2_WAITALL")
    a("s_waitcnt vmcnt(3)")
    a.lab("K2_HIST")
    for i in range(9):
        a(f"v_lshrrev_b32 v{60+i}, 16, v{KEYR+i}")
        a(f"v_add_u32 v{60+i}, {L_CNT}, v{60+i}")
    for i in range(9):
        a(f"s_mov_b64 exec, s[{sM+2*i}:{sM+2*i+1}]")
        a(f"ds_add_rtn_u32 v{RK+i}, v{60+i}, v12")
    a("s_mov_b64 exec, -1")
    a(f"s_mov_b32 s{sT0}, 0x05040100")
    a(f"s_mov_b32 s{sT1}, 0x07060302")
    for m in range(4):
        sel = sT0 if m % 2 == 0 else sT1
        h = m >> 1
        a(f"v_perm_b32 v{WB+2*m}, v{4+2+h}, v{4+h}, s{sel}")
        a(f"v_perm_b32 v{WB+2*m+1}, v{4+6+h}, v{4+4+h}, s{sel}")
    a("s_waitcnt lgkmcnt(0)")
    a("s_barrier")
    a.c("node phase A")
    a(f"s_cmp_ge_u32 s{sW}, 7")
    a("s_cbranch_scc1 K2_NA_DONE")
    a(f"v_cmp_gt_u32 vcc, {BN}, v0")
    a("s_nop 0")
    a(f"s_mov_b64 s[{sSave}:{sSave+1}], vcc")
    a("v_lshlrev_b32 v4, 2, v0")
    a(f"v_add_u32 v4, {L_CNT}, v4")
    a(f"s_mov_b64 exec, s[{sSave}:{sSave+1}]")
    a("ds_read_b32 v5, v4")
    a("s_waitcnt lgkmcnt(0)")
    a("v_min_u32 v6, 63, v5")
    a("v_sub_u32 v6, 63, v6")
    a("v_lshlrev_b32 v6, 2, v6")
    a(f"v_add_u32 v8, {L_DH}, v6")
    a("ds_add_rtn_u32 v7, v8, v12")
    a("s_waitcnt lgkmcnt(0)")
    a("s_mov_b64 exec, -1")
    a.lab("K2_NA_DONE")
    a("s_barrier")
    a.c("node phase B")
    a(f"s_cmp_ge_u32 s{sW}, 7")
    a("s_cbranch_scc1 K2_NB_DONE")
    a(f"v_add_u32 v8, {L_DH}, v13")
    a("ds_read_b32 v9, v8")
    a("s_waitcnt lgkmcnt(0)")
    a("v_mov_b32 v10, v9")
    scan64(a, 10)
    a("v_sub_u32 v10, v10, v9")
    a("s_nop 0")
    a("ds_bpermute_b32 v11, v6, v10")
    a("s_waitcnt lgkmcnt(0)")
    a(f"s_mov_b64 exec, s[{sSave}:{sSave+1}]")
    a("v_add_u32 v7, v7, v11")
    a("v_lshlrev_b32 v8, 2, v7")
    a(f"v_add_u32 v8, {L_ORD}, v8")
    a("v_lshlrev_b32 v9, 7, v0")
    a("ds_write_b32 v8, v9")
    a("v_and_b32 v10, 15, v7")
    a("v_lshrrev_b32 v11, 4, v7")
    a("v_lshlrev_b32 v11, 2, v11")
    a(f"v_add_u32 v8, {L_BST}, v11")
    a("v_add_u32 v9, 1, v5")
    a("v_lshrrev_b32 v9, 1, v9")
    a("ds_max_u32 v8, v9")
    a("s_waitcnt lgkmcnt(0)")
    a("s_mov_b64 exec, -1")
    a.lab("K2_NB_DONE")
    a("s_barrier")
    a.c("node phase C")
    a(f"s_cmp_ge_u32 s{sW}, 7")
    a("s_cbranch_scc1 K2_NC_DONE")
    a(f"v_add_u32 v8, {L_BST}, v13")
    a("ds_read_b32 v9, v8")
    a("s_waitcnt lgkmcnt(0)")
    a("v_min_u32 v9, 0x7fff, v9")
    a("v_lshlrev_b32 v5, 5, v9")
    a("v_mov_b32 v6, v5")
    scan64(a, 6)
    a("s_nop 0")
    a(f"v_readlane_b32 s{sT0}, v6, 63")
    a("v_sub_u32 v6, v6, v5")
    a("v_lshl_or_b32 v9, v9, 16, v6")
    a(f"ds_write_b32 v8, v9 offset:{L_BINFO-L_BST}")
    a("ds_bpermute_b32 v11, v11, v6")
    a(f"s_cmp_le_u32 s{sT0}, {CAP}")
    a("s_cbranch_scc1 K2_NC_OK")
    a(f"v_mov_b32 v8, {L_FLAG}")
    a("ds_write_b32 v8, v12")
    a.lab("K2_NC_OK")
    a("s_waitcnt lgkmcnt(0)")
    a(f"s_mov_b64 exec, s[{sSave}:{sSave+1}]")
    a("v_lshl_add_u32 v11, v10, 1, v11")
    a("ds_write_b32 v4, v11")
    a("s_waitcnt lgkmcnt(0)")
    a("s_mov_b64 exec, -1")
    a.lab("K2_NC_DONE")
    a("s_barrier")
    a.c("scatter")
    a(f"v_mov_b32 v8, {L_FLAG}")
    a("ds_read_b32 v9, v8")
    for i in range(9):
        a(f"s_mov_b64 exec, s[{sM+2*i}:{sM+2*i+1}]")
        a(f"ds_read_b32 v{60+i}, v{60+i}")
    a("s_mov_b64 exec, -1")
    a("s_waitcnt lgkmcnt(9)")
    a(f"v_readfirstlane_b32 s{sT0}, v9")
    a("s_nop 3")
    a(f"s_cmp_lg_u32 s{sT0}, 0")
    a("s_cbranch_scc1 K2_FALLBACK")
    a("s_waitcnt vmcnt(3) lgkmcnt(0)")
    for i in range(9):
        a(f"v_lshrrev_b32 v4, 1, v{RK+i}")
        a(f"v_lshl_add_u32 v4, v4, 5, v{60+i}")
        a(f"v_and_or_b32 v4, v{RK+i}, 1, v4")
        a(f"v_lshlrev_b32 v{60+i}, 2, v4")
        a(f"v_lshlrev_b32 v{RK+i}, 3, v4")
        a(f"v_add_u32 v{60+i}, {L_SRC}, v{60+i}")
        a(f"v_add_u32 v{RK+i}, {L_EA}, v{RK+i}")
        a(f"v_lshlrev_b32_sdwa v{KEYR+i}, 7, v{KEYR+i} dst_sel:DWORD dst_unused:UNUSED_PAD src0_sel:DWORD src1_sel:WORD_0")
        a(f"s_mov_b64 exec, s[{sM+2*i}:{sM+2*i+1}]")
        a(f"ds_write_b32 v{60+i}, v{KEYR+i}")
        a(f"ds_write_b64 v{RK+i}, v[{EAR+2*i}:{EAR+2*i+1}]")
        a("s_mov_b64 exec, -1")
    vRec = 4
    vCo = 5
    vKn = 6
    vCtr = 7
    vOne = 12
    a(f"v_lshrrev_b32 v{vRec}, 1, v{vG8}")
    a(f"v_and_b32 v8, 3, v{vLane}")
    a(f"v_add_u32 v{vRec}, v{vRec}, v8")
    a(f"v_lshrrev_b32 v{vCo}, 1, v{vC8}")
    a(f"v_mov_b32 v{vCtr}, {L_CTR}")
    a(f"s_mul_i32 s{sOutOff}, s{sBk}, {BN*256}")
    a(f"s_lshl_b32 s{sT0}, s{sSl}, 6")
    a(f"s_add_u32 s{sOutOff}, s{sOutOff}, s{sT0}")
    a(f"s_mov_b32 s{sBatch}, s{sW}")
    a("s_waitcnt vmcnt(0) lgkmcnt(0)")
    a("s_barrier")

    NA, NBn = 8, 9
    vSp, vEp = 10, 11
    S0, S1 = 13, 14
    vT = 15
    ACC = 16
    AC = 24
    D = 40
    PA, PB = 56, 72
    R = 88
    E0, E1 = 96, 98
    AD = 100

    def mfmas(Ereg):
        for m in range(4):
            a(f"v_mfma_f32_4x4x4_16b_bf16 v[{D+4*m}:{D+4*m+3}], v[{Ereg}:{Ereg+1}], v[{WB+2*m}:{WB+2*m+1}], v[{AC+4*m}:{AC+4*m+3}]")

    def gathers(Sreg, P):
        for j in range(4):
            a(f"v_add_u32_dpp v{AD+j}, v{Sreg}, v{vC8} quad_perm:[{j},{j},{j},{j}] row_mask:0xf bank_mask:0xf")
        for j in range(4):
            a(f"buffer_load_dwordx4 v[{P+4*j}:{P+4*j+3}], v{AD+j}, s[{SP}:{SP+3}], 0 offen")

    def compute(P):
        for m in range(4):
            for j in range(4):
                a(f"v_fma_mix_f32 v{D+4*m+j}, v{D+4*m+j}, s{sK}, v{P+4*j+m} op_sel_hi:[0,0,1]")
        for i in range(16):
            a(f"v_exp_f32 v{D+i}, v{D+i}")
        for i in range(8):
            a(f"v_pk_add_f32 v[{D+2*i}:{D+2*i+1}], v[{D+2*i}:{D+2*i+1}], 1.0 op_sel_hi:[1,0]")
        for j in range(4):
            r = R + 4 * (j & 1)
            for m in range(4):
                a(f"v_rcp_f32 v{r+m}, v{D+4*m+j}")
            acc = ACC + 4 * (j >> 1)
            a(f"v_pk_fma_f32 v[{acc}:{acc+1}], v[{P+4*j}:{P+4*j+1}], v[{r}:{r+1}], v[{acc}:{acc+1}]")
            a(f"v_pk_fma_f32 v[{acc+2}:{acc+3}], v[{P+4*j+2}:{P+4*j+3}], v[{r+2}:{r+3}], v[{acc+2}:{acc+3}]")

    a.lab("K2_BATCH")
    a(f"s_lshl_b32 s{sT0}, s{sBatch}, 6")
    a(f"s_add_u32 s{sT0}, s{sT0}, {L_ORD}")
    a(f"v_add_u32 v{vT}, s{sT0}, v{vG8}")
    a(f"ds_read_b64 v[{NA}:{NA+1}], v{vT}")
    a(f"s_lshl_b32 s{sT0}, s{sBatch}, 2")
    a(f"s_add_u32 s{sT0}, s{sT0}, {L_BINFO}")
    a(f"v_mov_b32 v{vT}, s{sT0}")
    a(f"ds_read_b32 v{vT}, v{vT}")
    a("s_mov_b64 exec, 1")
    a(f"ds_add_rtn_u32 v{vKn}, v{vCtr}, v{vOne}")
    a("s_mov_b64 exec, -1")
    a("s_waitcnt lgkmcnt(1)")
    a(f"v_add_u32 v{AD}, v{NA}, v{vC8}")
    a(f"v_add_u32 v{AD+1}, v{NBn}, v{vC8}")
    a(f"v_readfirstlane_b32 s{sT0}, v{vT}")
    a(f"ds_read_b128 v[{ACC}:{ACC+3}], v{AD}")
    a(f"ds_read_b128 v[{ACC+4}:{ACC+7}], v{AD+1}")
    a(f"s_lshr_b32 s{sSteps}, s{sT0}, 16")
    a(f"s_and_b32 s{sT0}, s{sT0}, 0xffff")
    a(f"v_add_u32 v{vT}, s{sT0}, v{vRec}")
    a(f"v_lshlrev_b32 v{vSp}, 2, v{vT}")
    a(f"v_lshlrev_b32 v{vEp}, 3, v{vT}")
    a(f"v_add_u32 v{vSp}, {L_SRC}, v{vSp}")
    a(f"v_add_u32 v{vEp}, {L_EA}, v{vEp}")
    a(f"ds_read_b32 v{S0}, v{vSp}")
    a(f"ds_read_b32 v{S1}, v{vSp} offset:128")
    a(f"ds_read_b64 v[{E0}:{E0+1}], v{vEp}")
    a(f"s_cmp_eq_u32 s{sSteps}, 0")
    a("s_cbranch_scc1 K2_EPI0")
    a("s_waitcnt lgkmcnt(2)")
    a("s_nop 0")
    gathers(S0, PA)
    for m in range(4):
        a(f"v_cvt_f32_f16 v{AC+4*m}, v{ACC+m}")
        a(f"v_cvt_f32_f16 v{AC+4*m+2}, v{ACC+4+m}")
    for m in range(4):
        a(f"v_mov_b32 v{AC+4*m+1}, v{AC+4*m}")
        a(f"v_mov_b32 v{AC+4*m+3}, v{AC+4*m+2}")
    a.lab("K2_LA")
    a("s_waitcnt lgkmcnt(0)")
    a(f"s_cmp_eq_u32 s{sSteps}, 1")
    mfmas(E0)
    a("s_cbranch_scc1 K2_TA")
    gathers(S1, PB)
    a(f"ds_read_b32 v{S0}, v{vSp} offset:256")
    a(f"ds_read_b64 v[{E1}:{E1+1}], v{vEp} offset:256")
    a("s_waitcnt vmcnt(4)")
    compute(PA)
    a("s_waitcnt lgkmcnt(0)")
    a(f"s_cmp_eq_u32 s{sSteps}, 2")
    mfmas(E1)
    a("s_cbranch_scc1 K2_TB")
    gathers(S0, PA)
    a(f"ds_read_b32 v{S1}, v{vSp} offset:384")
    a(f"ds_read_b64 v[{E0}:{E0+1}], v{vEp} offset:512")
    a(f"v_add_u32 v{vSp}, 256, v{vSp}")
    a(f"v_add_u32 v{vEp}, 512, v{vEp}")
    a(f"s_sub_u32 s{sSteps}, s{sSteps}, 2")
    a("s_waitcnt vmcnt(4)")
    compute(PB)
    a("s_branch K2_LA")
    a.lab("K2_TA")
    a("s_waitcnt vmcnt(0)")
    a("s_nop 1")
    compute(PA)
    a("s_branch K2_EPI")
    a.lab("K2_TB")
    a("s_waitcnt vmcnt(0)")
    a("s_nop 1")
    compute(PB)
    a("s_branch K2_EPI")
    a.lab("K2_EPI0")
    a("s_waitcnt lgkmcnt(0)")
    a.lab("K2_EPI")

    def epilogue(acc, tmp, nregs):
        for i in range(0, nregs, 2):
            a(f"v_pk_mul_f32 v[{tmp+i}:{tmp+i+1}], v[{acc+i}:{acc+i+1}], s[{sKK}:{sKK+1}]")
        for i in range(nregs):
            a(f"v_exp_f32 v{tmp+i}, v{tmp+i}")
        a("s_nop 0")
        for i in range(0, nregs, 2):
            a(f"v_pk_add_f32 v[{tmp+i}:{tmp+i+1}], v[{tmp+i}:{tmp+i+1}], 1.0 op_sel_hi:[1,0]")
        for i in range(nregs):
            a(f"v_rcp_f32 v{tmp+i}, v{tmp+i}")
        a("s_nop 0")
        for i in range(0, nregs, 2):
            a(f"v_pk_mul_f32 v[{tmp+i}:{tmp+i+1}], v[{tmp+i}:{tmp+i+1}], v[{acc+i}:{acc+i+1}]")
        for i in range(0, nregs, 2):
            a(f"v_cvt_pk_bf16_f32 v{tmp+i//2}, v{tmp+i}, v{tmp+i+1}")
    epilogue(ACC, D, 8)
    a(f"v_lshl_add_u32 v{AD}, v{NA}, 1, v{vCo}")
    a(f"v_lshl_add_u32 v{AD+1}, v{NBn}, 1, v{vCo}")
    a(f"v_cmp_gt_u32 vcc, {BN*128}, v{NA}")
    a("s_mov_b64 exec, vcc")
    a(f"buffer_store_dwordx2 v[{D}:{D+1}], v{AD}, s[{SO}:{SO+3}], s{sOutOff} offen")
    a("s_mov_b64 exec, -1")
    a(f"v_cmp_gt_u32 vcc, {BN*128}, v{NBn}")
    a(f"v_readfirstlane_b32 s{sBatch}, v{vKn}")
    a("s_mov_b64 exec, vcc")
    a(f"buffer_store_dwordx2 v[{D+2}:{D+3}], v{AD+1}, s[{SO}:{SO+3}], s{sOutOff} offen")
    a("s_mov_b64 exec, -1")
    a(f"s_add_u32 s{sBatch}, s{sBatch}, 16")
    a(f"s_cmp_lt_u32 s{sBatch}, {NBATCH}")
    a("s_cbranch_scc1 K2_BATCH")
    a("s_endpgm")

    for i in range(8):
        a.lab(f"K2_TAIL{i}")
        a(f"s_sub_u32 s{sT0}, s{sD+i}, 64")
        a(f"s_add_u32 s{sT1}, s{sSp}, s{sT0}")
        a(f"s_cmp_gt_u32 s{sT1}, 63")
        a(f"s_cbranch_scc1 K2_TAILF{i}")
        a(f"s_bfm_b64 s[{sSave}:{sSave+1}], s{sT0}, s{sSp}")
        a(f"s_sub_u32 s{sT0}, 64, s{sSp}")
        a(f"s_lshl_b32 s{sT2}, s{sT0}, 2")
        a(f"s_add_u32 s{sT2}, s{sT2}, s{sM+2*i}")
        a(f"s_lshl_b32 s{sT3}, s{sT0}, 3")
        a(f"s_add_u32 s{sT3}, s{sT3}, s{sM+2*i+1}")
        a(f"s_mov_b64 exec, s[{sSave}:{sSave+1}]")
        a(f"buffer_load_dword v{KEYR+8}, v13, s[{SWS}:{SWS+3}], s{sT2} offen")
        a(f"buffer_load_dwordx2 v[{EAR+16}:{EAR+17}], v14, s[{SWS}:{SWS+3}], s{sT3} offen")
        a("s_mov_b64 exec, -1")
        a(f"s_mov_b32 s{sSp}, s{sT1}")
        a(f"s_branch K2_TAILR{i}")
        a.lab(f"K2_TAILF{i}")
        a(f"s_mov_b32 s{sOvf}, 1")
        a(f"s_branch K2_TAILR{i}")

    a.lab("K2_FALLBACK")
    a("s_waitcnt vmcnt(0) lgkmcnt(0)")
    a("s_barrier")
    srd(a, SF0, 10, E * 4)
    srd(a, SF1, 8, E * 4)
    srd(a, SF2, 6, E * 8)
    a(f"s_mul_i32 s{sT3}, s{sBk}, {BN}")
    a(f"s_lshl_b32 s{sT0}, s{sW}, 5")
    a(f"v_lshrrev_b32 v4, 1, v{vG8}")
    a.lab("K2_FB_LOOP")
    a(f"s_lshl_b32 s{sT1}, s{sT0}, 1")
    a(f"buffer_load_dword v5, v4, s[{SF0}:{SF0+3}], s{sT0} offen")
    a(f"buffer_load_dword v6, v4, s[{SF1}:{SF1+3}], s{sT0} offen")
    a(f"buffer_load_dwordx2 v[8:9], v{vG8}, s[{SF2}:{SF2+3}], s{sT1} offen")
    a("s_waitcnt vmcnt(0)")
    a(f"v_subrev_u32 v5, s{sT3}, v5")
    a(f"v_cmp_gt_u32 vcc, {BN}, v5")
    a("s_mov_b64 exec, vcc")
    a("s_cbranch_execz K2_FB_NEXT")
    a(f"v_lshl_add_u32 v6, v6, 7, v{vC8}")
    a(f"v_lshl_add_u32 v5, v5, 7, v{vC8}")
    a(f"buffer_load_dwordx4 v[16:19], v6, s[{SP}:{SP+3}], 0 offen")
    a("ds_read_b128 v[20:23], v5")
    a(f"v_add_u32 v5, {L_EA}, v5")
    a("s_waitcnt vmcnt(0) lgkmcnt(0)")
    for m in range(4):
        a(f"v_cvt_f32_f16 v{20+m}, v{20+m}")
    for m in range(4):
        a(f"v_dot2_f32_bf16 v{20+m}, v8, v{WB+2*m}, v{20+m}")
    for m in range(4):
        a(f"v_dot2_f32_bf16 v{20+m}, v9, v{WB+2*m+1}, v{20+m}")
    a("s_nop 3")
    for m in range(4):
        a(f"v_fma_mix_f32 v{20+m}, v{20+m}, s{sK}, v{16+m} op_sel_hi:[0,0,1]")
    for m in range(4):
        a(f"v_exp_f32 v{20+m}, v{20+m}")
    a("s_nop 0")
    for m in range(4):
        a(f"v_add_f32 v{20+m}, 1.0, v{20+m}")
    for m in range(4):
        a(f"v_rcp_f32 v{20+m}, v{20+m}")
    a("s_nop 0")
    for m in range(4):
        a(f"v_mul_f32 v{20+m}, v{20+m}, v{16+m}")
    for m in range(4):
        a(f"ds_add_f32 v5, v{20+m} offset:{4*m}")
    a.lab("K2_FB_NEXT")
    a("s_mov_b64 exec, -1")
    a(f"s_add_u32 s{sT0}, s{sT0}, 512")
    a(f"s_cmp_lt_u32 s{sT0}, {E*4}")
    a("s_cbranch_scc1 K2_FB_LOOP")
    a("s_waitcnt lgkmcnt(0)")
    a("s_barrier")
    a(f"s_mul_i32 s{sOutOff}, s{sBk}, {BN*256}")
    a(f"s_lshl_b32 s{sT0}, s{sSl}, 6")
    a(f"s_add_u32 s{sOutOff}, s{sOutOff}, s{sT0}")
    a(f"s_lshl_b32 s{sT0}, s{sW}, 10")
    a(f"v_lshlrev_b32 v4, 4, v{vG8}")
    a(f"v_lshrrev_b32 v7, 1, v{vC8}")
    a.lab("K2_FB_OUT")
    a(f"v_add_u32 v5, s{sT0}, v4")
    a(f"v_add_u32 v6, v5, v{vC8}")
    a("ds_read_b128 v[16:19], v6")
    a(f"v_add_u32 v6, {L_EA}, v6")
    a("ds_read_b128 v[20:23], v6")
    a("s_waitcnt lgkmcnt(0)")
    for m in range(4):
        a(f"v_add_f32 v{16+m}, v{16+m}, v{20+m}")
    epilogue(16, 24, 4)
    a("v_lshl_add_u32 v6, v5, 1, v7")
    a(f"v_cmp_gt_u32 vcc, {BN*128}, v5")
    a("s_mov_b64 exec, vcc")
    a(f"buffer_store_dwordx2 v[24:25], v6, s[{SO}:{SO+3}], s{sOutOff} offen")
    a("s_mov_b64 exec, -1")
    a(f"s_add_u32 s{sT0}, s{sT0}, 16384")
    a(f"s_cmp_lt_u32 s{sT0}, {BN*128}")
    a("s_cbranch_scc1 K2_FB_OUT")
    a.lab("K2_END")
    a("s_endpgm")


def kd(name, vgpr, sgpr, extra=""):
    acc = (vgpr + 3) // 4 * 4
    return f""".amdhsa_kernel {name}
  .amdhsa_next_free_vgpr {vgpr}
  .amdhsa_next_free_sgpr {sgpr}
  .amdhsa_accum_offset {acc}
  .amdhsa_group_segment_fixed_size 0
  .amdhsa_kernarg_size 80
  .amdhsa_user_sgpr_count 2
  .amdhsa_user_sgpr_kernarg_segment_ptr 1
  .amdhsa_system_sgpr_workgroup_id_x 1
{extra}.end_amdhsa_kernel
"""


def main():
    out = HEADER
    out += f"; @launch kernel=k1_kernel grid=(256,1,1) block=(1024,1,1) lds={K1_LDS}\n"
    out += f"; @launch kernel=k2_kernel grid=(256,1,1) block=(1024,1,1) lds={K2_LDS}\n"
    out += '.amdgcn_target "amdgcn-amd-amdhsa--gfx950"\n.text\n'
    for name, g in (("k1_kernel", gen_k1), ("k2_kernel", gen_k2)):
        a = A()
        g(a)
        out += f".globl {name}\n.p2align 8\n.type {name},@function\n" + "\n".join(a.l) + "\n"
    out += '.section .rodata,"a"\n.p2align 6\n'
    out += kd("k1_kernel", 128, 64, "  .amdhsa_fp16_overflow 1\n")
    out += ".p2align 6\n"
    out += kd("k2_kernel", 120, 102)
    path = sys.argv[1] if len(sys.argv) > 1 else "gather_scatter__edge_featured_mpnn_egc__graph.s"
    open(path, "w").write(out)


if __name__ == "__main__":
    main()
```

```python
import sys

N = 25000
E = 400000
NB = 64
BN = 391
CH = 3200
NCH = 125
PS = 25008 * 128
P_OFF = 0
AU_OFF = 0x1000000
KEY_OFF = 0x2000000
EAT_OFF = 0x2200000
DESC_OFF = 0x2800000
WS_USED = 0x2900000
NL2E = 0xBFB8AA3B
MAGIC = 85817

OPTS = set(sys.argv[2:])
STAMPS = "stamps" in OPTS
STAMP_OFF = 0x3000000
K1_ST = ""
for o in OPTS:
    if o.startswith("k1st="):
        K1_ST = " " + o[5:].replace("+", " ")

HEADER = """; Kernarg layout for this problem (80 bytes, ptrs only, base s[0:1]):
"""


class A:
    def __init__(self):
        self.l = []
        self.vst = None

    def __call__(self, s):
        for x in s.strip().split("\n"):
            self.l.append("    " + x.strip())

    def lab(self, s):
        self.l.append(s + ":")

    def c(self, s):
        self.l.append("    ; " + s)

    def stamp(self, idx):
        if not STAMPS:
            return
        self("s_memrealtime s[100:101]")
        self("s_waitcnt lgkmcnt(0)")
        self(f"v_writelane_b32 v{self.vst}, s100, {idx}")

    def stampc(self, idx):
        if not STAMPS:
            return
        self("s_memtime s[100:101]")
        self("s_waitcnt lgkmcnt(0)")
        self(f"v_writelane_b32 v{self.vst}, s100, {idx}")

    def stamp_flush(self, kidx, sw):
        if not STAMPS:
            return
        self("s_mov_b64 exec, -1")
        self(f"s_add_u32 s96, s20, {STAMP_OFF + kidx*0x100000}")
        self("s_addc_u32 s97, s21, 0")
        self("s_mov_b32 s98, 0x100000")
        self("s_mov_b32 s99, 0x20000")
        self("s_lshl_b32 s100, s2, 12")
        self(f"v_mbcnt_lo_u32_b32 v{self.vst+1}, -1, 0")
        self(f"v_mbcnt_hi_u32_b32 v{self.vst+1}, -1, v{self.vst+1}")
        self(f"v_lshlrev_b32 v{self.vst+1}, 2, v{self.vst+1}")
        self(f"s_lshl_b32 s101, s{sw}, 8")
        self("s_add_u32 s100, s100, s101")
        self(f"buffer_store_dword v{self.vst}, v{self.vst+1}, s[96:99], s100 offen")


def srd(a, d, base, size, off=0):
    if off:
        a(f"s_add_u32 s{d}, s{base}, {off}")
        a(f"s_addc_u32 s{d+1}, s{base+1}, 0")
    else:
        a(f"s_mov_b32 s{d}, s{base}")
        a(f"s_mov_b32 s{d+1}, s{base+1}")
    a(f"s_mov_b32 s{d+2}, {size}")
    a(f"s_mov_b32 s{d+3}, 0x20000")


def scan64(a, v):
    for sh in (1, 2, 4, 8):
        a("s_nop 1")
        a(f"v_add_u32_dpp v{v}, v{v}, v{v} row_shr:{sh} row_mask:0xf bank_mask:0xf bound_ctrl:0")
    a("s_nop 1")
    a(f"v_add_u32_dpp v{v}, v{v}, v{v} row_bcast:15 row_mask:0xa bank_mask:0xf")
    a("s_nop 1")
    a(f"v_add_u32_dpp v{v}, v{v}, v{v} row_bcast:31 row_mask:0xc bank_mask:0xf")


K1_X = 65536
K1_SCR = 131072
T_LIGHT, T_HEAVY = 9, 16
K1_STK = K1_X + T_LIGHT * 4096
K1_STE = K1_STK + 12800
K1_CNT = K1_STK + 38400
K1_LDS = 163840


def gen_k1(a):
    sW, sPair, sTile0, sT0, sT1, sT2, sT3 = 22, 23, 24, 25, 26, 27, 28
    sNT = 29
    sEx = 30
    SD, SS, SE, SWS, SX, SWL, SWH = 32, 36, 40, 44, 48, 52, 56
    sScale, sOut, sS, sQ, sG, sStr, sNG = 60, 61, 62, 63, 64, 65, 66
    vLane = 1
    a.lab("k1_kernel")
    a.vst = 11
    a("s_cmp_ge_u32 s2, 256")
    a("s_cbranch_scc1 K1_END2")
    a.stamp(0)
    a("s_load_dwordx16 s[4:19], s[0:1], 0")
    a("s_load_dwordx2 s[20:21], s[0:1], 72")
    a("v_lshrrev_b32 v2, 6, v0")
    a(f"v_and_b32 v{vLane}, 63, v0")
    a(f"v_readfirstlane_b32 s{sW}, v2")
    a.c("pair = (wg>>3)&1 ; blk = (wg&7) | ((wg>>4)<<3) ; light (blk<64): 9 tiles, heavy: 16 tiles")
    a(f"s_lshr_b32 s{sPair}, s2, 3")
    a(f"s_and_b32 s{sPair}, s{sPair}, 1")
    a(f"s_lshr_b32 s{sT0}, s2, 4")
    a(f"s_lshl_b32 s{sT0}, s{sT0}, 3")
    a(f"s_and_b32 s{sT1}, s2, 7")
    a(f"s_or_b32 s{sT0}, s{sT0}, s{sT1}")
    a(f"s_mul_i32 s{sT1}, s{sT0}, {T_LIGHT}")
    a(f"s_lshl_b32 s{sT2}, s{sT0}, 4")
    a(f"s_sub_u32 s{sT2}, s{sT2}, {64*T_HEAVY - 64*T_LIGHT}")
    a("s_cmp_lt_u32 s2, 128")
    a(f"s_cselect_b32 s{sTile0}, s{sT1}, s{sT2}")
    a(f"s_cselect_b32 s{sNT}, {T_LIGHT}, {T_HEAVY}")
    a(f"s_add_u32 s{sNG}, s{sNT}, 16")
    a("v_lshlrev_b32 v2, 4, v0")
    a("v_lshlrev_b32 v3, 5, v0")
    a(f"v_lshrrev_b32 v4, 4, v{vLane}")
    a(f"v_and_b32 v5, 15, v{vLane}")
    a("v_lshrrev_b32 v6, 1, v5")
    a("v_xor_b32 v6, v6, v4")
    a("v_lshlrev_b32 v6, 5, v6")
    a("v_lshl_add_u32 v6, v4, 8, v6")
    a(f"v_and_b32 v7, 1, v{vLane}")
    a("v_lshl_add_u32 v40, v7, 4, v6")
    a("v_xor_b32 v41, 0x80, v40")
    a("v_xor_b32 v6, v5, v4")
    a("v_lshlrev_b32 v6, 4, v6")
    a("v_lshl_add_u32 v42, v4, 8, v6")
    a("v_xor_b32 v43, 64, v42")
    a("v_xor_b32 v44, 0x80, v42")
    a("v_xor_b32 v45, 0xc0, v42")
    a("s_waitcnt lgkmcnt(0)")
    a.stamp(1)
    srd(a, SD, 10, E * 4)
    srd(a, SS, 8, E * 4)
    srd(a, SE, 6, E * 8)
    a("s_cmp_ge_u32 s2, 125")
    a("s_cbranch_scc1 K1_NOEDGE")
    a(f"s_cmp_ge_u32 s{sW}, 13")
    a("s_cbranch_scc1 K1_NOEDGE")
    a("v_cmp_gt_u32 vcc, 800, v0")
    a(f"s_mul_i32 s{sT0}, s2, {CH*4}")
    a(f"s_mul_i32 s{sT1}, s2, {CH*8}")
    a(f"s_mov_b64 s[{sEx}:{sEx+1}], vcc")
    a("s_mov_b64 exec, vcc")
    a(f"buffer_load_dwordx4 v[16:19], v2, s[{SD}:{SD+3}], s{sT0} offen")
    a(f"buffer_load_dwordx4 v[20:23], v2, s[{SS}:{SS+3}], s{sT0} offen")
    a(f"buffer_load_dwordx4 v[24:27], v3, s[{SE}:{SE+3}], s{sT1} offen")
    a(f"buffer_load_dwordx4 v[28:31], v3, s[{SE}:{SE+3}], s{sT1} offen offset:16")
    a("s_mov_b64 exec, -1")
    a.lab("K1_NOEDGE")
    srd(a, SWS, 20, WS_USED)
    srd(a, SX, 4, N * 256)
    a(f"s_add_u32 s{sT0}, s16, 32768")
    a(f"s_addc_u32 s{sT1}, s17, 0")
    a(f"s_cmp_eq_u32 s{sPair}, 0")
    a(f"s_cselect_b32 s{SWL}, s{sT0}, s16")
    a(f"s_cselect_b32 s{SWL+1}, s{sT1}, s17")
    a(f"s_cselect_b32 s{SWH}, s14, s12")
    a(f"s_cselect_b32 s{SWH+1}, s15, s13")
    a(f"s_cselect_b32 s{sScale}, {hex(NL2E)}, 1.0")
    a(f"s_cselect_b32 s{sOut}, {P_OFF}, {AU_OFF}")
    a(f"s_mov_b32 s{SWL+2}, 32768")
    a(f"s_mov_b32 s{SWL+3}, 0x20000")
    a(f"s_mov_b32 s{SWH+2}, 32768")
    a(f"s_mov_b32 s{SWH+3}, 0x20000")
    a(f"s_mov_b32 s{sG}, s{sW}")
    a(f"s_mov_b32 s{sStr}, 16")
    a("s_cmp_ge_u32 s2, 125")
    a("s_cbranch_scc1 K1_DMA")
    a(f"s_cmp_lt_u32 s{sW}, 13")
    a("s_cbranch_scc1 K1_DMADONE")
    a(f"s_sub_u32 s{sG}, s{sW}, 13")
    a(f"s_mov_b32 s{sStr}, 3")
    a.lab("K1_DMA")
    a(f"s_lshl_b32 s{sT0}, s{sG}, 12")
    a(f"s_mov_b32 m0, s{sT0}")
    a(f"s_cmp_ge_u32 s{sG}, 16")
    a("s_cbranch_scc1 K1_DMAX")
    a(f"s_and_b32 s{sT0}, s{sT0}, 0x7fff")
    a(f"s_cmp_ge_u32 s{sG}, 8")
    a("s_cbranch_scc1 K1_DMAH")
    for pp in range(4):
        a(f"buffer_load_dwordx4 v{40+(pp>>1)}, s[{SWL}:{SWL+3}], s{sT0} offen offset:{pp*1024} lds")
    a("s_branch K1_DMAN")
    a.lab("K1_DMAH")
    for pp in range(4):
        a(f"buffer_load_dwordx4 v{40+(pp>>1)}, s[{SWH}:{SWH+3}], s{sT0} offen offset:{pp*1024} lds")
    a("s_branch K1_DMAN")
    a.lab("K1_DMAX")
    a(f"s_add_u32 s{sT0}, s{sG}, s{sTile0}")
    a(f"s_sub_u32 s{sT0}, s{sT0}, 16")
    a(f"s_lshl_b32 s{sT0}, s{sT0}, 12")
    for pp in range(4):
        a(f"buffer_load_dwordx4 v{42+pp}, s[{SX}:{SX+3}], s{sT0} offen offset:{pp*1024} lds")
    a.lab("K1_DMAN")
    a(f"s_add_u32 s{sG}, s{sG}, s{sStr}")
    a(f"s_cmp_lt_u32 s{sG}, s{sNG}")
    a("s_cbranch_scc1 K1_DMA")
    a.lab("K1_DMADONE")
    a.stamp(2)
    a("s_cmp_ge_u32 s2, 125")
    a("s_cbranch_scc1 K1_NOPART")
    a(f"v_lshlrev_b32 v6, 2, v{vLane}")
    a(f"v_add_u32 v6, {K1_CNT}, v6")
    a("v_mov_b32 v7, 0")
    a(f"s_cmp_lg_u32 s{sW}, 0")
    a("s_cbranch_scc1 K1_P1")
    a("ds_write_b32 v6, v7")
    a("ds_write_b32 v6, v7 offset:256")
    a("s_waitcnt lgkmcnt(0)")
    a.lab("K1_P1")
    a("s_barrier")
    a(f"s_cmp_ge_u32 s{sW}, 13")
    a("s_cbranch_scc1 K1_P2")
    a(f"s_mov_b32 s{sT0}, {MAGIC}")
    a(f"s_mov_b32 s{sT1}, {-BN & 0xffffffff}")
    a("v_mov_b32 v7, 1")
    a(f"s_mov_b64 exec, s[{sEx}:{sEx+1}]")
    a("s_waitcnt vmcnt(3)")
    a.stamp(3)
    for i in range(4):
        a(f"v_mul_u32_u24 v{32+i}, s{sT0}, v{16+i}")
    for i in range(4):
        a(f"v_lshrrev_b32 v{32+i}, 25, v{32+i}")
    for i in range(4):
        a(f"v_mad_i32_i24 v{16+i}, v{32+i}, s{sT1}, v{16+i}")
    for i in range(4):
        a(f"v_lshlrev_b32 v{32+i}, 2, v{32+i}")
    for i in range(4):
        a(f"v_add_u32 v{32+i}, {K1_CNT}, v{32+i}")
    for i in range(4):
        a(f"ds_add_rtn_u32 v{36+i}, v{32+i}, v7")
    for i in range(4):
        a(f"v_lshlrev_b32 v{16+i}, 2, v{16+i}")
    a("s_waitcnt vmcnt(2)")
    for i in range(4):
        a(f"v_lshl_or_b32 v{20+i}, v{20+i}, 16, v{16+i}")
    a("s_waitcnt lgkmcnt(0)")
    a("s_mov_b64 exec, -1")
    a.lab("K1_P2")
    a("s_barrier")
    a.stamp(4)
    a(f"s_cmp_ge_u32 s{sW}, 13")
    a("s_cbranch_scc1 K1_P3")
    a("ds_read_b32 v8, v6")
    a("s_waitcnt lgkmcnt(0)")
    a("v_mov_b32 v9, v8")
    scan64(a, 9)
    a("v_sub_u32 v9, v9, v8")
    a("ds_write_b32 v6, v9 offset:512")
    a(f"s_cmp_lg_u32 s{sW}, 0")
    a("s_cbranch_scc1 K1_P2B")
    a("v_lshl_or_b32 v10, v8, 16, v9")
    a(f"v_lshlrev_b32 v12, 2, v{vLane}")
    a(f"s_lshl_b32 s{sT0}, s2, 8")
    a(f"s_add_u32 s{sT0}, s{sT0}, {DESC_OFF}")
    a(f"buffer_store_dword v10, v12, s[{SWS}:{SWS+3}], s{sT0} offen")
    a.lab("K1_P2B")
    a(f"s_mov_b64 exec, s[{sEx}:{sEx+1}]")
    for i in range(4):
        a(f"ds_read_b32 v{32+i}, v{32+i} offset:512")
    a("s_waitcnt lgkmcnt(0)")
    for i in range(4):
        a(f"v_add_u32 v{32+i}, v{32+i}, v{36+i}")
    for i in range(4):
        a(f"v_lshlrev_b32 v{36+i}, 2, v{32+i}")
        a(f"v_lshlrev_b32 v{32+i}, 3, v{32+i}")
    for i in range(4):
        a(f"v_add_u32 v{36+i}, {K1_STK}, v{36+i}")
        a(f"v_add_u32 v{32+i}, {K1_STE}, v{32+i}")
    for i in range(4):
        a(f"ds_write_b32 v{36+i}, v{20+i}")
    a("s_waitcnt vmcnt(0)")
    for i in range(4):
        a(f"ds_write_b64 v{32+i}, v[{24+2*i}:{25+2*i}]")
    a("s_waitcnt lgkmcnt(0)")
    a("s_mov_b64 exec, -1")
    a.lab("K1_P3")
    a("s_barrier")
    a.stamp(5)
    a(f"s_cmp_ge_u32 s{sW}, 13")
    a("s_cbranch_scc1 K1_NOPART")
    a(f"s_mov_b64 exec, s[{sEx}:{sEx+1}]")
    a(f"v_add_u32 v6, {K1_STK}, v2")
    a("ds_read_b128 v[16:19], v6")
    a("ds_read_b128 v[20:23], v6 offset:12800")
    a("ds_read_b128 v[24:27], v6 offset:25600")
    a(f"s_mul_i32 s{sT0}, s2, {CH*4}")
    a(f"s_add_u32 s{sT0}, s{sT0}, {KEY_OFF}")
    a(f"s_mul_i32 s{sT1}, s2, {CH*8}")
    a(f"s_add_u32 s{sT1}, s{sT1}, {EAT_OFF}")
    a(f"s_add_u32 s{sT2}, s{sT1}, 12800")
    a("s_waitcnt lgkmcnt(2)")
    a(f"buffer_store_dwordx4 v[16:19], v2, s[{SWS}:{SWS+3}], s{sT0} offen{K1_ST}")
    a("s_waitcnt lgkmcnt(1)")
    a(f"buffer_store_dwordx4 v[20:23], v2, s[{SWS}:{SWS+3}], s{sT1} offen{K1_ST}")
    a("s_waitcnt lgkmcnt(0)")
    a(f"buffer_store_dwordx4 v[24:27], v2, s[{SWS}:{SWS+3}], s{sT2} offen{K1_ST}")
    a("s_mov_b64 exec, -1")
    a("s_branch K1_GEMM")
    a.lab("K1_NOPART")
    a("s_waitcnt vmcnt(0)")
    a.lab("K1_GEMM")
    a.stamp(6)
    a(f"s_and_b32 s{sS}, s{sW}, 3")
    a(f"s_lshr_b32 s{sQ}, s{sW}, 2")
    a(f"v_lshrrev_b32 v2, 4, v{vLane}")
    a(f"v_and_b32 v3, 15, v{vLane}")
    a("v_lshrrev_b32 v4, 2, v3")
    a("v_and_b32 v5, 1, v2")
    a("v_lshl_or_b32 v5, v5, 2, v4")
    a(f"s_lshl_b32 s{sT0}, s{sS}, 1")
    a(f"v_xor_b32 v5, s{sT0}, v5")
    a("v_lshlrev_b32 v5, 5, v5")
    a("v_lshl_add_u32 v4, v2, 3, v4")
    a("v_lshl_add_u32 v4, v4, 8, v5")
    a(f"v_and_b32 v5, 3, v{vLane}")
    a("v_lshl_add_u32 v4, v5, 3, v4")
    a("v_xor_b32 v5, 32, v4")
    a("v_xor_b32 v6, v2, v3")
    a("v_lshlrev_b32 v6, 4, v6")
    a("v_lshl_add_u32 v6, v3, 8, v6")
    a(f"s_lshl_b32 s{sT0}, s{sQ}, 12")
    a(f"s_add_u32 s{sT0}, s{sT0}, {K1_X}")
    a(f"v_add_u32 v6, s{sT0}, v6")
    a("v_xor_b32 v7, 64, v6")
    a("v_xor_b32 v8, 0x80, v6")
    a("v_xor_b32 v9, 0xc0, v6")
    a("v_and_b32 v10, 7, v3")
    a("v_xor_b32 v10, v10, v2")
    a("v_lshlrev_b32 v10, 4, v10")
    a("v_lshl_add_u32 v10, v3, 7, v10")
    a(f"s_lshl_b32 s{sT0}, s{sW}, 11")
    a(f"s_add_u32 s{sT0}, s{sT0}, {K1_SCR}")
    a(f"v_add_u32 v10, s{sT0}, v10")
    a("v_xor_b32 v0, 64, v10")
    a(f"v_lshlrev_b32 v2, 4, v{vLane}")
    a(f"v_add_u32 v2, s{sT0}, v2")
    a(f"v_lshrrev_b32 v3, 3, v{vLane}")
    a(f"v_and_b32 v12, 7, v{vLane}")
    a("v_xor_b32 v12, v12, v3")
    a("v_lshlrev_b32 v12, 4, v12")
    a("v_lshl_add_u32 v3, v3, 7, v12")
    a(f"s_mul_i32 s{sT0}, s{sS}, {PS}")
    a(f"s_add_u32 s{sOut}, s{sOut}, s{sT0}")
    a(f"s_add_u32 s{sT3}, s{sQ}, s{sTile0}")
    a(f"s_lshl_b32 s{sT0}, s{sT3}, 11")
    a(f"s_add_u32 s{sOut}, s{sOut}, s{sT0}")
    a(f"s_add_u32 s{sT2}, s{sTile0}, s{sNT}")
    a(f"s_min_u32 s{sT2}, s{sT2}, 1563")
    a("s_barrier")
    a.stamp(7)
    a(f"s_cmp_ge_u32 s{sT3}, s{sT2}")
    a("s_cbranch_scc1 K1_END")
    WF = 64

    def wf(mat, ct, ks):
        return WF + ((mat * 2 + ct) * 4 + ks) * 4
    XF = [32, 48]

    def xread(buf, i):
        for ks in range(4):
            a(f"ds_read_b128 v[{XF[buf]+4*ks}:{XF[buf]+4*ks+3}], v{6+ks} offset:{i*16384}")
    xread(0, 0)
    for ks in range(4):
        for mat in range(2):
            for ct in range(2):
                b = wf(mat, ct, ks)
                off = mat * 32768 + ks * 8192
                a(f"ds_read_b64_tr_b16 v[{b}:{b+1}], v{4+ct} offset:{off}")
                a(f"ds_read_b64_tr_b16 v[{b+2}:{b+3}], v{4+ct} offset:{off+1024}")
    for i in range(4):
        buf = i & 1
        for ks in range(4):
            if i == 0:
                a(f"s_waitcnt lgkmcnt({min(15, 24 - 8*ks)})")
            for mat in range(2):
                for ct in range(2):
                    d = 16 + (mat * 2 + ct) * 4
                    b = wf(mat, ct, ks)
                    cin = "0" if ks == 0 else f"v[{d}:{d+3}]"
                    a(f"v_mfma_f32_16x16x32_bf16 v[{d}:{d+3}], v[{b}:{b+3}], v[{XF[buf]+4*ks}:{XF[buf]+4*ks+3}], {cin}")
            if ks == 0 and i < 3:
                if i > 0:
                    xread(buf ^ 1, i + 1)
        if i == 0:
            xread(1, 1)
        a("s_nop 7")
        for ct in range(2):
            for j in range(4):
                a(f"v_fma_mixlo_f16 v{24+4*ct+j}, v{16+4*ct+j}, s{sScale}, 0")
        a("ds_write_b128 v10, v[24:27]")
        a("ds_write_b128 v0, v[28:31]")
        a("ds_read_b128 v[12:15], v2")
        a("ds_read_b128 v[16:19], v2 offset:1024")
        a("s_waitcnt lgkmcnt(1)")
        a(f"buffer_store_dwordx4 v[12:15], v3, s[{SWS}:{SWS+3}], s{sOut} offen{K1_ST}")
        a("s_waitcnt lgkmcnt(0)")
        a(f"buffer_store_dwordx4 v[16:19], v3, s[{SWS}:{SWS+3}], s{sOut} offen offset:1024{K1_ST}")
        a.stamp(8 + i)
        if i < 3:
            a(f"s_add_u32 s{sOut}, s{sOut}, 8192")
            a(f"s_add_u32 s{sT3}, s{sT3}, 4")
            a(f"s_cmp_ge_u32 s{sT3}, s{sT2}")
            a("s_cbranch_scc1 K1_END")
    a.lab("K1_END")
    if STAMPS:
        a("s_waitcnt vmcnt(0)")
    a.stamp(12)
    a.stamp_flush(0, sW)
    a.lab("K1_END2")
    a("s_endpgm")


CAP = 8192
L_CNT = 0
L_ORD = 2048
L_DH = 4096
L_BST = 4352
L_BINFO = 4608
L_FLAG = 4864
L_ELL = 5120
L_DUM = L_ELL + CAP * 4
L_EA = L_DUM + 512
EA_TAIL = 128 * 64
EA_ZERO = EA_TAIL + 16 * 64
L_STG = L_EA + EA_ZERO * 8 + 512
K2_LDS = L_STG + 16 * 2048
DUMMY = 0xFFFF0000 | EA_ZERO
DUMMY_NODE = 400 * 128
NBATCH = (BN + 15) // 16


def gen_k2(a):
    sW, sSl, sBk = 22, 23, 24
    sT0, sT1, sT2, sT3 = 25, 26, 27, 28
    sK = 29
    SWS, SP, SO, SG = 32, 36, 40, 44
    sD = 48
    sM = 56
    sSp, sOvf, sOutOff, sK2 = 74, 75, 76, 77
    sKK, sSave, sRet = 78, 80, 82
    SA = 84
    SF0, SF1, SF2 = 88, 92, 96
    sEO = 88
    sA, sCntS, sNxtA, sNxtCnt, sRem, sN2, sK1 = 48, 49, 50, 51, 52, 53, 54
    vLane, vC8, vG8, vRec4, vCo, vS, vSrc, vEa, vT = 1, 2, 3, 4, 5, 6, 7, 8, 9
    NA, N2, EE = 10, 12, 14
    ACC, AC, D = 16, 24, 40
    PP = [56, 72, 88]
    R, WB, vStg = 104, 112, 122
    AD = R
    KEYR, RK, HA = 24, 33, 42
    a.lab("k2_kernel")
    a.vst = 120
    a("s_cmp_ge_u32 s2, 256")
    a("s_cbranch_scc1 K2_END")
    a.stamp(0)
    a("s_load_dwordx2 s[20:21], s[0:1], 72")
    a("s_load_dwordx16 s[4:19], s[0:1], 0")
    a("v_lshrrev_b32 v2, 6, v0")
    a(f"v_and_b32 v{vLane}, 63, v0")
    a(f"v_readfirstlane_b32 s{sW}, v2")
    a(f"s_and_b32 s{sSl}, s2, 3")
    a(f"s_lshr_b32 s{sBk}, s2, 3")
    a(f"s_lshl_b32 s{sBk}, s{sBk}, 1")
    a(f"s_lshr_b32 s{sT0}, s2, 2")
    a(f"s_and_b32 s{sT0}, s{sT0}, 1")
    a(f"s_or_b32 s{sBk}, s{sBk}, s{sT0}")
    a(f"s_lshl_b32 s{sT0}, s{sW}, 11")
    a(f"s_lshl_b32 s{sT1}, s{sBk}, 2")
    a(f"s_add_u32 s{sT0}, s{sT0}, s{sT1}")
    a(f"s_add_u32 s{sT0}, s{sT0}, {DESC_OFF}")
    a("v_lshlrev_b32 v51, 4, v0")
    for i in range(4):
        a(f"v_mov_b32 v{52+i}, {hex(DUMMY)}")
        a(f"v_mov_b32 v{56+i}, 0")
        a(f"v_mov_b32 v{60+i}, {DUMMY_NODE}")
    a("s_waitcnt lgkmcnt(0)")
    a.stamp(1)
    a(f"s_add_u32 s30, s20, s{sT0}")
    a("s_addc_u32 s31, s21, 0")
    for i in range(8):
        a(f"s_load_dword s{sD+i}, s[30:31], {i*256}")
    a(f"ds_write_b128 v51, v[52:55] offset:{L_ELL}")
    a(f"ds_write_b128 v51, v[52:55] offset:{L_ELL+16384}")
    a(f"s_cmp_ge_u32 s{sW}, 6")
    a("s_cbranch_scc1 K2_INIT_DONE")
    a(f"s_cmp_eq_u32 s{sW}, 5")
    a("s_cbranch_scc1 K2_INIT_5")
    a(f"s_lshr_b32 s{sT0}, s{sW}, 1")
    a(f"s_cmp_eq_u32 s{sT0}, 1")
    a("s_cbranch_scc1 K2_INIT_ORD")
    a("ds_write_b128 v51, v[56:59]")
    a("s_branch K2_INIT_DONE")
    a.lab("K2_INIT_ORD")
    a("ds_write_b128 v51, v[60:63]")
    a("s_branch K2_INIT_DONE")
    a.lab("K2_INIT_5")
    a(f"v_mov_b32 v64, {L_EA + EA_ZERO*8}")
    a("ds_write_b64 v64, v[56:57]")
    a("s_bfm_b64 exec, 32, 0")
    a(f"ds_write_b128 v51, v[52:55] offset:{L_DUM - 5*1024}")
    a("s_mov_b64 exec, -1")
    a.lab("K2_INIT_DONE")
    srd(a, SWS, 20, WS_USED)
    a(f"s_mul_i32 s{sT0}, s{sSl}, {PS}")
    a(f"s_add_u32 s{SP}, s20, s{sT0}")
    a(f"s_addc_u32 s{SP+1}, s21, 0")
    a(f"s_mov_b32 s{SP+2}, {N*128}")
    a(f"s_mov_b32 s{SP+3}, 0x20000")
    a(f"s_add_u32 s{SA}, s{SP}, {AU_OFF}")
    a(f"s_addc_u32 s{SA+1}, s{SP+1}, 0")
    a(f"s_mov_b32 s{SA+2}, {N*128}")
    a(f"s_mov_b32 s{SA+3}, 0x20000")
    srd(a, SO, 18, N * 256)
    srd(a, SG, 16, 260 * 256)
    a(f"s_mov_b32 s{sK}, {hex(NL2E)}")
    a(f"s_mov_b32 s{sKK}, {hex(NL2E)}")
    a(f"s_mov_b32 s{sKK+1}, {hex(NL2E)}")
    a(f"v_and_b32 v{vC8}, 7, v{vLane}")
    a(f"v_lshlrev_b32 v{vC8}, 4, v{vC8}")
    a(f"v_lshrrev_b32 v{vG8}, 3, v{vLane}")
    a(f"v_lshlrev_b32 v{vG8}, 3, v{vG8}")
    a(f"v_lshrrev_b32 v{vCo}, 1, v{vC8}")
    a(f"v_and_b32 v64, 2, v{vLane}")
    a(f"v_lshl_add_u32 v{vRec4}, v64, 1, v{vG8}")
    a(f"v_and_b32 v64, 1, v{vLane}")
    a(f"v_lshl_add_u32 v{vRec4}, v64, 6, v{vRec4}")
    a(f"v_lshlrev_b32 v65, 2, v{vLane}")
    a(f"v_lshlrev_b32 v66, 4, v{vLane}")
    a(f"s_lshl_b32 s{sT0}, s{sW}, 11")
    a(f"s_add_u32 s{sT0}, s{sT0}, {L_STG}")
    a(f"v_add_u32 v{vStg}, s{sT0}, v66")
    a(f"s_lshl_b32 s{sT0}, s{sW}, 9")
    a(f"v_add_u32 v67, s{sT0}, v{vLane}")
    a("v_mov_b32 v68, 64")
    a(f"s_and_b32 s{sT0}, s{sW}, 3")
    a(f"s_and_b32 s{sT1}, s{sW}, 12")
    a(f"s_add_u32 s{sT2}, s{sT1}, s{sT0}")
    a(f"s_add_u32 s{sT3}, s{sT1}, 3")
    a(f"s_sub_u32 s{sT3}, s{sT3}, s{sT0}")
    a(f"s_bitcmp1_b32 s{sW}, 2")
    a(f"s_cselect_b32 s{sOutOff}, s{sT3}, s{sT2}")
    a(f"s_add_u32 s{sK2}, s{sOutOff}, 16")
    a(f"s_add_u32 s{sT3}, s{sT3}, 16")
    a(f"s_cmp_ge_u32 s{sW}, 8")
    a(f"s_cselect_b32 s{sK2}, s{sT3}, s{sK2}")
    a(f"s_mul_i32 s{sT3}, s{sW}, {8*CH}")
    a(f"s_mov_b32 s{sSp}, 0")
    a(f"s_mov_b32 s{sOvf}, 0")
    a(f"s_mov_b64 s[{sM+16}:{sM+17}], 0")
    a("s_waitcnt lgkmcnt(0)")
    a.stamp(2)
    a(f"s_cmp_lt_u32 s{sW}, 15")
    a("s_cbranch_scc1 K2_DOK")
    for i in (5, 6, 7):
        a(f"s_mov_b32 s{sD+i}, 0")
    a.lab("K2_DOK")
    for i in range(8):
        a(f"s_and_b32 s{sT0}, s{sD+i}, 0xffff")
        a(f"s_add_u32 s{sT0}, s{sT0}, s{sT3}")
        a(f"s_lshl_b32 s{sT0}, s{sT0}, 2")
        a(f"s_add_u32 s{sEO+i}, s{sT0}, {KEY_OFF + i*CH*4}")
        a(f"buffer_load_dword v{KEYR+i}, v65, s[{SWS}:{SWS+3}], s{sEO+i} offen")
    for i in range(8):
        a(f"s_lshr_b32 s{sD+i}, s{sD+i}, 16")
        a(f"v_cmp_gt_u32 s[{sM+2*i}:{sM+2*i+1}], s{sD+i}, v{vLane}")
        a(f"s_cmp_gt_u32 s{sD+i}, 64")
        a(f"s_cbranch_scc1 K2_TAIL{i}")
        a.lab(f"K2_TAILR{i}")
    a.stamp(3)
    a("s_barrier")
    a.stamp(4)
    a(f"s_lshl_b32 s{sT3}, s{sW}, 12")
    a(f"s_add_u32 s{sT3}, s{sT3}, {L_EA}")
    for i in range(8):
        a(f"s_mov_b32 m0, s{sT3}")
        a(f"s_add_u32 s{sT0}, s{sD+i}, 1")
        a(f"s_lshr_b32 s{sT0}, s{sT0}, 1")
        a(f"s_min_u32 s{sT0}, s{sT0}, 32")
        a(f"s_max_u32 s{sT0}, s{sT0}, 1")
        a(f"s_bfm_b64 exec, s{sT0}, 0")
        a(f"s_lshl_b32 s{sT1}, s{sEO+i}, 1")
        a(f"s_add_u32 s{sT1}, s{sT1}, {(EAT_OFF - 2*KEY_OFF) & 0xffffffff}")
        a(f"buffer_load_dwordx4 v66, s[{SWS}:{SWS+3}], s{sT1} offen lds")
        if i < 7:
            a(f"s_add_u32 s{sT3}, s{sT3}, 512")
    a("s_mov_b64 exec, -1")
    a(f"s_lshl_b32 s{sT0}, s{sSl}, 6")
    a(f"s_add_u32 s{sT0}, s{sT0}, 65536")
    for k in range(4):
        a(f"buffer_load_dwordx2 v[{72+2*k}:{73+2*k}], v{vCo}, s[{SG}:{SG+3}], s{sT0} offen offset:{k*256}")
    a(f"s_cmp_eq_u32 s{sOvf}, 0")
    a("s_cbranch_scc1 K2_NOOVF")
    a(f"v_mov_b32 v64, {L_FLAG}")
    a("ds_write_b32 v64, v68")
    a.lab("K2_NOOVF")
    a("s_waitcnt vmcnt(12)")
    a.stamp(5)
    for i in range(9):
        a(f"v_and_b32 v{HA+i}, 0xffff, v{KEYR+i}")
        a(f"s_mov_b64 exec, s[{sM+2*i}:{sM+2*i+1}]")
        a(f"ds_add_rtn_u32 v{RK+i}, v{HA+i}, v68")
        a("s_mov_b64 exec, -1")
    for i in range(9):
        if i == 8:
            a(f"s_lshl_b32 s{sT0}, s{sW}, 6")
            a(f"s_add_u32 s{sT0}, s{sT0}, {EA_TAIL}")
            a(f"v_add_u32 v67, s{sT0}, v{vLane}")
        a(f"v_mov_b32_sdwa v{KEYR+i}, v67 dst_sel:WORD_0 dst_unused:UNUSED_PRESERVE src0_sel:DWORD")
        if i < 7:
            a("v_add_u32 v67, 64, v67")
    a("s_waitcnt lgkmcnt(0)")
    a("s_barrier")
    a.stamp(6)
    a.c("node phase A : v51 = tid*4 ; v52 = deg ; v53 = bin*4 ; v54 = r2")
    a(f"s_cmp_ge_u32 s{sW}, 7")
    a("s_cbranch_scc1 K2_NA_DONE")
    a(f"v_cmp_gt_u32 vcc, {BN}, v0")
    a("v_lshlrev_b32 v51, 2, v0")
    a("v_mov_b32 v55, 1")
    a(f"s_mov_b64 s[{sSave}:{sSave+1}], vcc")
    a("s_mov_b64 exec, vcc")
    a("ds_read_b32 v52, v51")
    a("s_waitcnt lgkmcnt(0)")
    a("v_lshrrev_b32 v52, 6, v52")
    a("v_min_u32 v53, 63, v52")
    a("v_sub_u32 v53, 63, v53")
    a("v_lshlrev_b32 v53, 2, v53")
    a(f"ds_add_rtn_u32 v54, v53, v55 offset:{L_DH}")
    a("s_waitcnt lgkmcnt(0)")
    a("s_mov_b64 exec, -1")
    a.lab("K2_NA_DONE")
    a("s_barrier")
    a.stamp(7)
    a.c("node phase B")
    a(f"s_cmp_ge_u32 s{sW}, 7")
    a("s_cbranch_scc1 K2_NB_DONE")
    a(f"ds_read_b32 v56, v65 offset:{L_DH}")
    a("v_add_u32 v58, 1, v52")
    a("v_lshrrev_b32 v58, 1, v58")
    a("v_max_u32 v58, 1, v58")
    a("v_lshlrev_b32 v59, 7, v0")
    a("s_waitcnt lgkmcnt(0)")
    a("v_mov_b32 v57, v56")
    scan64(a, 57)
    a("v_sub_u32 v57, v57, v56")
    a("s_nop 0")
    a("ds_bpermute_b32 v60, v53, v57")
    a("s_waitcnt lgkmcnt(0)")
    a(f"s_mov_b64 exec, s[{sSave}:{sSave+1}]")
    a("v_add_u32 v54, v54, v60")
    a("v_lshlrev_b32 v60, 2, v54")
    a(f"ds_write_b32 v60, v59 offset:{L_ORD}")
    a("v_lshrrev_b32 v61, 4, v54")
    a("v_lshlrev_b32 v61, 2, v61")
    a(f"ds_max_u32 v61, v58 offset:{L_BST}")
    a("v_and_b32 v60, 60, v60")
    a("s_waitcnt lgkmcnt(0)")
    a("s_mov_b64 exec, -1")
    a.lab("K2_NB_DONE")
    a("s_barrier")
    a.stamp(8)
    a.c("AU loads for this wave's batches")
    a(f"s_lshl_b32 s{sT0}, s{sOutOff}, 6")
    a(f"v_add_u32 v62, s{sT0}, v{vG8}")
    a(f"ds_read_b64 v[{NA}:{NA+1}], v62 offset:{L_ORD}")
    a(f"s_min_u32 s{sT0}, s{sK2}, 25")
    a(f"s_lshl_b32 s{sT0}, s{sT0}, 6")
    a(f"v_add_u32 v62, s{sT0}, v{vG8}")
    a(f"ds_read_b64 v[{N2}:{N2+1}], v62 offset:{L_ORD}")
    a(f"ds_read_b32 v56, v65 offset:{L_BST}")
    a(f"s_mul_i32 s{sT1}, s{sBk}, {BN*128}")
    a(f"s_lshl_b32 s{sT0}, s{sW}, 11")
    a(f"s_add_u32 s{sT0}, s{sT0}, {L_STG}")
    a(f"s_mov_b32 m0, s{sT0}")
    a("s_waitcnt lgkmcnt(1)")
    a(f"v_add_u32 v62, v{NA}, v{vC8}")
    a(f"v_add_u32 v63, v{NA+1}, v{vC8}")
    a(f"v_add_u32 v64, v{N2}, v{vC8}")
    a(f"v_add_u32 v69, v{N2+1}, v{vC8}")
    a(f"buffer_load_dwordx4 v[{ACC}:{ACC+3}], v62, s[{SA}:{SA+3}], s{sT1} offen")
    a(f"buffer_load_dwordx4 v[{ACC+4}:{ACC+7}], v63, s[{SA}:{SA+3}], s{sT1} offen")
    a(f"s_cmp_ge_u32 s{sK2}, {NBATCH}")
    a("s_cbranch_scc1 K2_NOAU2")
    a(f"buffer_load_dwordx4 v64, s[{SA}:{SA+3}], s{sT1} offen lds")
    a(f"s_add_u32 s{sT0}, s{sT0}, 1024")
    a(f"s_mov_b32 m0, s{sT0}")
    a("s_nop 0")
    a(f"buffer_load_dwordx4 v69, s[{SA}:{SA+3}], s{sT1} offen lds")
    a.lab("K2_NOAU2")
    a.c("node phase C (every wave computes the batch scan)")
    a("s_waitcnt lgkmcnt(0)")
    a("v_min_u32 v56, 0x1ff, v56")
    a("v_lshlrev_b32 v57, 7, v56")
    a("v_mov_b32 v58, v57")
    scan64(a, 58)
    a("s_nop 0")
    a(f"v_readlane_b32 s{sT0}, v58, 63")
    a("v_sub_u32 v58, v58, v57")
    a(f"v_add_u32 v58, {L_ELL}, v58")
    a("s_nop 0")
    a(f"v_readlane_b32 s{sA}, v58, s{sOutOff}")
    a(f"v_readlane_b32 s{sRem}, v56, s{sOutOff}")
    a(f"v_readlane_b32 s{sNxtA}, v58, s{sK2}")
    a(f"v_readlane_b32 s{sN2}, v56, s{sK2}")
    a(f"s_cmp_gt_u32 s{sT0}, {CAP*4}")
    a(f"s_cselect_b32 s{sOvf}, 1, 0")
    a(f"s_cmp_ge_u32 s{sW}, 7")
    a("s_cbranch_scc1 K2_NC_DONE")
    a("ds_bpermute_b32 v61, v61, v58")
    a("s_waitcnt lgkmcnt(0)")
    a(f"s_mov_b64 exec, s[{sSave}:{sSave+1}]")
    a("v_add_u32 v61, v61, v60")
    a("ds_write_b32 v51, v61")
    a("s_waitcnt lgkmcnt(0)")
    a("s_mov_b64 exec, -1")
    a.lab("K2_NC_DONE")
    a("s_barrier")
    a.stamp(9)
    a.c("scatter")
    a(f"v_mov_b32 v64, {L_FLAG}")
    a("ds_read_b32 v64, v64")
    for i in range(9):
        a(f"s_mov_b64 exec, s[{sM+2*i}:{sM+2*i+1}]")
        a(f"ds_read_b32 v{HA+i}, v{HA+i}")
    a("s_mov_b64 exec, -1")
    a("s_waitcnt lgkmcnt(9)")
    a(f"v_readfirstlane_b32 s{sT0}, v64")
    a(f"s_sub_u32 s{sRem}, s{sRem}, 1")
    a(f"s_mov_b32 s{sCntS}, s{sRem}")
    a(f"s_sub_u32 s{sNxtCnt}, s{sN2}, 1")
    a(f"s_cmp_eq_u32 s{sN2}, 0")
    a(f"s_cselect_b32 s{sNxtA}, {L_DUM}, s{sNxtA}")
    a(f"s_cselect_b32 s{sNxtCnt}, 100, s{sNxtCnt}")
    a(f"s_or_b32 s{sT0}, s{sT0}, s{sOvf}")
    a(f"s_cmp_lg_u32 s{sT0}, 0")
    a("s_cbranch_scc1 K2_FALLBACK")
    a("s_waitcnt lgkmcnt(0)")
    for i in range(9):
        a(f"v_add_u32 v{HA+i}, v{HA+i}, v{RK+i}")
        a(f"s_mov_b64 exec, s[{sM+2*i}:{sM+2*i+1}]")
        a(f"ds_write_b32 v{HA+i}, v{KEYR+i}")
        a("s_mov_b64 exec, -1")
    a(f"s_mul_i32 s{sOutOff}, s{sBk}, {BN*256}")
    a(f"s_lshl_b32 s{sT0}, s{sSl}, 6")
    a(f"s_add_u32 s{sOutOff}, s{sOutOff}, s{sT0}")
    a(f"s_mov_b32 s{sT0}, 0x05040100")
    a(f"s_mov_b32 s{sT1}, 0x07060302")
    a.stamp(10)
    a("s_waitcnt vmcnt(2) lgkmcnt(0)")
    a.stamp(11)
    for m in range(4):
        sel = sT0 if m % 2 == 0 else sT1
        h = m >> 1
        a(f"v_perm_b32 v{WB+2*m}, v{72+2+h}, v{72+h}, s{sel}")
        a(f"v_perm_b32 v{WB+2*m+1}, v{72+6+h}, v{72+4+h}, s{sel}")
    a("s_barrier")
    a.stamp(13)
    a.stampc(30)

    sw_sites = []

    def advance(tag):
        a(f"s_add_u32 s{sA}, s{sA}, 128")
        a(f"s_sub_u32 s{sCntS}, s{sCntS}, 1")
        a(f"s_cbranch_scc1 K2_SW{tag}")
        a.lab(f"K2_SWR{tag}")
        sw_sites.append(tag)

    def gathers(P):
        for j in range(4):
            a(f"v_add_u32_dpp v{AD+j}, v{vSrc}, v{vC8} quad_perm:[{j},{j},{j},{j}] row_mask:0xf bank_mask:0xf")
        for j in range(4):
            a(f"buffer_load_dwordx4 v[{P+4*j}:{P+4*j+3}], v{AD+j}, s[{SP}:{SP+3}], 0 offen")

    def split(S):
        a(f"v_lshlrev_b32_sdwa v{vSrc}, 7, v{S} dst_sel:DWORD dst_unused:UNUSED_PAD src0_sel:DWORD src1_sel:WORD_1")
        a(f"v_lshlrev_b32_sdwa v{vEa}, 3, v{S} dst_sel:DWORD dst_unused:UNUSED_PAD src0_sel:DWORD src1_sel:WORD_0")

    def setup_ac():
        for m in range(4):
            a(f"v_cvt_f32_f16 v{AC+4*m}, v{ACC+m}")
            a(f"v_cvt_f32_f16 v{AC+4*m+2}, v{ACC+4+m}")
        for m in range(4):
            a(f"v_mov_b32 v{AC+4*m+1}, v{AC+4*m}")
            a(f"v_mov_b32 v{AC+4*m+3}, v{AC+4*m+2}")

    def compute(P):
        for m in range(4):
            for j in range(4):
                a(f"v_fma_mix_f32 v{D+4*m+j}, v{D+4*m+j}, s{sK}, v{P+4*j+m} op_sel_hi:[0,0,1]")
        for i in range(16):
            a(f"v_exp_f32 v{D+i}, v{D+i}")
        for i in range(8):
            a(f"v_pk_add_f32 v[{D+2*i}:{D+2*i+1}], v[{D+2*i}:{D+2*i+1}], 1.0 op_sel_hi:[1,0]")
        for j in range(4):
            r = R + 4 * (j & 1)
            for m in range(4):
                a(f"v_rcp_f32 v{r+m}, v{D+4*m+j}")
            acc = ACC + 4 * (j >> 1)
            a(f"v_pk_fma_f32 v[{acc}:{acc+1}], v[{P+4*j}:{P+4*j+1}], v[{r}:{r+1}], v[{acc}:{acc+1}]")
            a(f"v_pk_fma_f32 v[{acc+2}:{acc+3}], v[{P+4*j+2}:{P+4*j+3}], v[{r+2}:{r+3}], v[{acc+2}:{acc+3}]")

    a(f"v_add_u32 v{vT}, s{sA}, v{vRec4}")
    a(f"ds_read_b32 v{D}, v{vT}")
    advance("F0")
    a(f"v_add_u32 v{vT}, s{sA}, v{vRec4}")
    a(f"ds_read_b32 v{D+1}, v{vT}")
    advance("F1")
    a(f"v_add_u32 v{vT}, s{sA}, v{vRec4}")
    a(f"ds_read_b32 v{vS}, v{vT}")
    a("s_waitcnt lgkmcnt(2)")
    split(D)
    a("s_nop 0")
    a(f"ds_read_b64 v[{EE}:{EE+1}], v{vEa} offset:{L_EA}")
    gathers(PP[0])
    a("s_waitcnt lgkmcnt(2)")
    split(D + 1)
    a("s_nop 1")
    gathers(PP[1])
    a("s_waitcnt vmcnt(8)")
    setup_ac()
    a.lab("K2_LOOP")
    for ph in range(3):
        a("s_waitcnt lgkmcnt(0)")
        for m in range(4):
            a(f"v_mfma_f32_4x4x4_16b_bf16 v[{D+4*m}:{D+4*m+3}], v[{EE}:{EE+1}], v[{WB+2*m}:{WB+2*m+1}], v[{AC+4*m}:{AC+4*m+3}]")
        a(f"ds_read_b64 v[{EE}:{EE+1}], v{vEa} offset:{L_EA}")
        split(vS)
        advance(f"L{ph}")
        gathers(PP[(ph + 2) % 3])
        a(f"v_add_u32 v{vT}, s{sA}, v{vRec4}")
        a(f"ds_read_b32 v{vS}, v{vT}")
        a("s_waitcnt vmcnt(8)")
        compute(PP[ph])
        a(f"s_sub_u32 s{sRem}, s{sRem}, 1")
        if ph < 2:
            a(f"s_cbranch_scc0 K2_C{ph}")
            a(f"s_call_b64 s[{sRet}:{sRet+1}], K2_EPI")
            a.lab(f"K2_C{ph}")
        else:
            a("s_cbranch_scc0 K2_LOOP")
            a(f"s_call_b64 s[{sRet}:{sRet+1}], K2_EPI")
            a("s_branch K2_LOOP")

    def epilogue(acc, tmp, nregs):
        for i in range(0, nregs, 2):
            a(f"v_pk_mul_f32 v[{tmp+i}:{tmp+i+1}], v[{acc+i}:{acc+i+1}], s[{sKK}:{sKK+1}]")
        for i in range(nregs):
            a(f"v_exp_f32 v{tmp+i}, v{tmp+i}")
        a("s_nop 0")
        for i in range(0, nregs, 2):
            a(f"v_pk_add_f32 v[{tmp+i}:{tmp+i+1}], v[{tmp+i}:{tmp+i+1}], 1.0 op_sel_hi:[1,0]")
        for i in range(nregs):
            a(f"v_rcp_f32 v{tmp+i}, v{tmp+i}")
        a("s_nop 0")
        for i in range(0, nregs, 2):
            a(f"v_pk_mul_f32 v[{tmp+i}:{tmp+i+1}], v[{tmp+i}:{tmp+i+1}], v[{acc+i}:{acc+i+1}]")
        for i in range(0, nregs, 2):
            a(f"v_cvt_pk_bf16_f32 v{tmp+i//2}, v{tmp+i}, v{tmp+i+1}")

    a.lab("K2_EPI")
    epilogue(ACC, D, 8)
    a(f"ds_read_b128 v[{ACC}:{ACC+3}], v{vStg}")
    a(f"ds_read_b128 v[{ACC+4}:{ACC+7}], v{vStg} offset:1024")
    a(f"v_lshl_add_u32 v{AD}, v{NA}, 1, v{vCo}")
    a(f"v_lshl_add_u32 v{AD+1}, v{NA+1}, 1, v{vCo}")
    a(f"v_cmp_gt_u32 vcc, {BN*128}, v{NA}")
    a("s_mov_b64 exec, vcc")
    a(f"buffer_store_dwordx2 v[{D}:{D+1}], v{AD}, s[{SO}:{SO+3}], s{sOutOff} offen")
    a("s_mov_b64 exec, -1")
    a(f"v_cmp_gt_u32 vcc, {BN*128}, v{NA+1}")
    a("s_mov_b64 exec, vcc")
    a(f"buffer_store_dwordx2 v[{D+2}:{D+3}], v{AD+1}, s[{SO}:{SO+3}], s{sOutOff} offen")
    a("s_mov_b64 exec, -1")
    a(f"s_cmp_eq_u32 s{sN2}, 0")
    a("s_cbranch_scc1 K2_FIN")
    a.stamp(14)
    a(f"s_sub_u32 s{sRem}, s{sN2}, 1")
    a(f"s_mov_b32 s{sN2}, 0")
    a(f"v_mov_b32 v{NA}, v{N2}")
    a(f"v_mov_b32 v{NA+1}, v{N2+1}")
    a("s_waitcnt lgkmcnt(0)")
    setup_ac()
    a(f"s_setpc_b64 s[{sRet}:{sRet+1}]")
    a.lab("K2_FIN")
    a.stamp(15)
    a.stampc(31)
    a.stamp_flush(1, sW)
    a("s_endpgm")

    for tag in sw_sites:
        a.lab(f"K2_SW{tag}")
        a(f"s_mov_b32 s{sA}, s{sNxtA}")
        a(f"s_mov_b32 s{sCntS}, s{sNxtCnt}")
        a(f"s_mov_b32 s{sNxtA}, {L_DUM}")
        a(f"s_mov_b32 s{sNxtCnt}, 100")
        a(f"s_branch K2_SWR{tag}")

    for i in range(8):
        a.lab(f"K2_TAIL{i}")
        a(f"s_sub_u32 s{sT0}, s{sD+i}, 64")
        a(f"s_add_u32 s{sT1}, s{sSp}, s{sT0}")
        a(f"s_cmp_gt_u32 s{sT1}, 62")
        a(f"s_cbranch_scc1 K2_TAILF{i}")
        a(f"s_bfm_b64 s[{sSave}:{sSave+1}], s{sT0}, s{sSp}")
        a(f"s_or_b64 s[{sM+16}:{sM+17}], s[{sM+16}:{sM+17}], s[{sSave}:{sSave+1}]")
        a(f"s_sub_u32 s{sT2}, 64, s{sSp}")
        a(f"s_lshl_b32 s{sT2}, s{sT2}, 2")
        a(f"s_add_u32 s{sT2}, s{sT2}, s{sEO+i}")
        a(f"s_mov_b64 exec, s[{sSave}:{sSave+1}]")
        a(f"buffer_load_dword v{KEYR+8}, v65, s[{SWS}:{SWS+3}], s{sT2} offen")
        a(f"s_add_u32 s{sT0}, s{sT0}, 1")
        a(f"s_lshr_b32 s{sT0}, s{sT0}, 1")
        a(f"s_lshr_b32 s{sT1}, s{sSp}, 1")
        a(f"s_bfm_b64 exec, s{sT0}, s{sT1}")
        a(f"s_lshl_b32 s{sT0}, s{sT0}, 1")
        a(f"s_add_u32 s{sSp}, s{sSp}, s{sT0}")
        a(f"s_lshl_b32 s{sT0}, s{sW}, 9")
        a(f"s_add_u32 s{sT0}, s{sT0}, {L_EA + EA_TAIL*8}")
        a(f"s_mov_b32 m0, s{sT0}")
        a(f"s_lshl_b32 s{sT2}, s{sT2}, 1")
        a(f"s_add_u32 s{sT2}, s{sT2}, {(EAT_OFF - 2*KEY_OFF) & 0xffffffff}")
        a(f"buffer_load_dwordx4 v66, s[{SWS}:{SWS+3}], s{sT2} offen lds")
        a("s_mov_b64 exec, -1")
        a(f"s_branch K2_TAILR{i}")
        a.lab(f"K2_TAILF{i}")
        a(f"s_mov_b32 s{sOvf}, 1")
        a(f"s_branch K2_TAILR{i}")

    L_AGG = L_EA
    a.lab("K2_FALLBACK")
    a("s_waitcnt vmcnt(0) lgkmcnt(0)")
    a(f"s_mov_b32 s{sT0}, 0x05040100")
    a(f"s_mov_b32 s{sT1}, 0x07060302")
    for m in range(4):
        sel = sT0 if m % 2 == 0 else sT1
        h = m >> 1
        a(f"v_perm_b32 v{WB+2*m}, v{72+2+h}, v{72+h}, s{sel}")
        a(f"v_perm_b32 v{WB+2*m+1}, v{72+6+h}, v{72+4+h}, s{sel}")
    a("s_barrier")
    a("v_lshlrev_b32 v51, 4, v0")
    a(f"v_add_u32 v51, {L_AGG}, v51")
    for i in range(4):
        a(f"v_mov_b32 v{56+i}, 0")
    for i in range(4):
        a(f"ds_write_b128 v51, v[56:59] offset:{i*16384}")
    a("s_waitcnt lgkmcnt(0)")
    a("s_barrier")
    srd(a, SF0, 10, E * 4)
    srd(a, SF1, 8, E * 4)
    srd(a, SF2, 6, E * 8)
    a(f"s_mul_i32 s{sT3}, s{sBk}, {BN}")
    a(f"s_mul_i32 s{sT2}, s{sBk}, {BN*128}")
    a(f"s_lshl_b32 s{sT0}, s{sW}, 5")
    a(f"v_lshrrev_b32 v51, 1, v{vG8}")
    a.lab("K2_FB_LOOP")
    a(f"s_lshl_b32 s{sT1}, s{sT0}, 1")
    a(f"buffer_load_dword v52, v51, s[{SF0}:{SF0+3}], s{sT0} offen")
    a(f"buffer_load_dword v53, v51, s[{SF1}:{SF1+3}], s{sT0} offen")
    a(f"buffer_load_dwordx2 v[54:55], v{vG8}, s[{SF2}:{SF2+3}], s{sT1} offen")
    a("s_waitcnt vmcnt(0)")
    a(f"v_subrev_u32 v52, s{sT3}, v52")
    a(f"v_cmp_gt_u32 vcc, {BN}, v52")
    a("s_mov_b64 exec, vcc")
    a("s_cbranch_execz K2_FB_NEXT")
    a(f"v_lshl_add_u32 v53, v53, 7, v{vC8}")
    a(f"v_lshl_add_u32 v52, v52, 7, v{vC8}")
    a(f"buffer_load_dwordx4 v[16:19], v53, s[{SP}:{SP+3}], 0 offen")
    a(f"buffer_load_dwordx4 v[20:23], v52, s[{SA}:{SA+3}], s{sT2} offen")
    a(f"v_add_u32 v52, {L_AGG}, v52")
    a("s_waitcnt vmcnt(0)")
    for m in range(4):
        a(f"v_cvt_f32_f16 v{20+m}, v{20+m}")
    for m in range(4):
        a(f"v_dot2_f32_bf16 v{20+m}, v54, v{WB+2*m}, v{20+m}")
    for m in range(4):
        a(f"v_dot2_f32_bf16 v{20+m}, v55, v{WB+2*m+1}, v{20+m}")
    a("s_nop 3")
    for m in range(4):
        a(f"v_fma_mix_f32 v{20+m}, v{20+m}, s{sK}, v{16+m} op_sel_hi:[0,0,1]")
    for m in range(4):
        a(f"v_exp_f32 v{20+m}, v{20+m}")
    a("s_nop 0")
    for m in range(4):
        a(f"v_add_f32 v{20+m}, 1.0, v{20+m}")
    for m in range(4):
        a(f"v_rcp_f32 v{20+m}, v{20+m}")
    a("s_nop 0")
    for m in range(4):
        a(f"v_mul_f32 v{20+m}, v{20+m}, v{16+m}")
    for m in range(4):
        a(f"ds_add_f32 v52, v{20+m} offset:{4*m}")
    a.lab("K2_FB_NEXT")
    a("s_mov_b64 exec, -1")
    a(f"s_add_u32 s{sT0}, s{sT0}, 512")
    a(f"s_cmp_lt_u32 s{sT0}, {E*4}")
    a("s_cbranch_scc1 K2_FB_LOOP")
    a("s_waitcnt lgkmcnt(0)")
    a("s_barrier")
    a(f"s_mul_i32 s{sOutOff}, s{sBk}, {BN*256}")
    a(f"s_lshl_b32 s{sT0}, s{sSl}, 6")
    a(f"s_add_u32 s{sOutOff}, s{sOutOff}, s{sT0}")
    a(f"s_lshl_b32 s{sT0}, s{sW}, 10")
    a(f"v_lshlrev_b32 v51, 4, v{vG8}")
    a.lab("K2_FB_OUT")
    a(f"v_add_u32 v52, s{sT0}, v51")
    a(f"v_add_u32 v53, v52, v{vC8}")
    a(f"buffer_load_dwordx4 v[16:19], v53, s[{SA}:{SA+3}], s{sT2} offen")
    a(f"v_add_u32 v53, {L_AGG}, v53")
    a("ds_read_b128 v[20:23], v53")
    a("s_waitcnt vmcnt(0) lgkmcnt(0)")
    for m in range(4):
        a(f"v_add_f32 v{16+m}, v{16+m}, v{20+m}")
    epilogue(16, 24, 4)
    a(f"v_lshl_add_u32 v53, v52, 1, v{vCo}")
    a(f"v_cmp_gt_u32 vcc, {BN*128}, v52")
    a("s_mov_b64 exec, vcc")
    a(f"buffer_store_dwordx2 v[24:25], v53, s[{SO}:{SO+3}], s{sOutOff} offen")
    a("s_mov_b64 exec, -1")
    a(f"s_add_u32 s{sT0}, s{sT0}, 16384")
    a(f"s_cmp_lt_u32 s{sT0}, {BN*128}")
    a("s_cbranch_scc1 K2_FB_OUT")
    a.lab("K2_END")
    a("s_endpgm")


def kd(name, vgpr, sgpr, extra=""):
    acc = (vgpr + 3) // 4 * 4
    return f""".amdhsa_kernel {name}
  .amdhsa_next_free_vgpr {vgpr}
  .amdhsa_next_free_sgpr {sgpr}
  .amdhsa_accum_offset {acc}
  .amdhsa_group_segment_fixed_size 0
  .amdhsa_kernarg_size 80
  .amdhsa_user_sgpr_count 2
  .amdhsa_user_sgpr_kernarg_segment_ptr 1
  .amdhsa_system_sgpr_workgroup_id_x 1
{extra}.end_amdhsa_kernel
"""


def main():
    out = HEADER
    out += f"; @launch kernel=k1_kernel grid=(256,1,1) block=(1024,1,1) lds={K1_LDS}\n"
    out += f"; @launch kernel=k2_kernel grid=(256,1,1) block=(1024,1,1) lds={K2_LDS}\n"
    out += '.amdgcn_target "amdgcn-amd-amdhsa--gfx950"\n.text\n'
    for name, g in (("k1_kernel", gen_k1), ("k2_kernel", gen_k2)):
        a = A()
        g(a)
        out += f".globl {name}\n.p2align 8\n.type {name},@function\n" + "\n".join(a.l) + "\n"
    out += '.section .rodata,"a"\n.p2align 6\n'
    out += kd("k1_kernel", 128, 102 if STAMPS else 72, "  .amdhsa_fp16_overflow 1\n")
    out += ".p2align 6\n"
    out += kd("k2_kernel", 128, 102)
    path = sys.argv[1] if len(sys.argv) > 1 else "gather_scatter__edge_featured_mpnn_egc__graph.s"
    open(path, "w").write(out)


if __name__ == "__main__":
    main()
```

```python
import sys

N = 25000
E = 400000
NB = 64
BN = 391
CH = 3200
NCH = 125
PS = 25040 * 128
P_OFF = 0
AU_OFF = 0x1000000
KEY_OFF = 0x2000000
EAT_OFF = 0x2200000
DESC_OFF = 0x2800000
GCNT_OFF = 0x2810000
WS_USED = 0x2900000
NL2E = 0xBFB8AA3B
MAGIC = 85817

OPTS = set(sys.argv[2:])
STAMPS = "stamps" in OPTS
STAMP_OFF = 0x3000000
K1_ST = ""
K2_ST = ""
NT_E = "" if "noent" in OPTS else " nt"
NT_X = "" if "noxnt" in OPTS else " nt"
FUSED = "split" not in OPTS
K1_ST = " sc1"
LD = " sc1" if FUSED else ""
KNAME = "gather_scatter__edge_featured_mpnn_egc__graph_kernel"
SDB = 96
for o in OPTS:
    if o.startswith("k1st="):
        K1_ST = " " + o[5:].replace("+", " ")
    if o.startswith("k2st="):
        K2_ST = " " + o[5:].replace("+", " ")

HEADER = """; Kernarg layout for this problem (80 bytes, ptrs only, base s[0:1]):
"""


class A:
    def __init__(self):
        self.l = []
        self.vst = None

    def __call__(self, s):
        for x in s.strip().split("\n"):
            self.l.append("    " + x.strip())

    def lab(self, s):
        self.l.append(s + ":")

    def c(self, s):
        self.l.append("    ; " + s)

    def stamp(self, idx):
        if not STAMPS:
            return
        self("s_memrealtime s[100:101]")
        self("s_waitcnt lgkmcnt(0)")
        self(f"v_writelane_b32 v{self.vst}, s100, {idx}")

    def stampc(self, idx):
        if not STAMPS:
            return
        self("s_memtime s[100:101]")
        self("s_waitcnt lgkmcnt(0)")
        self(f"v_writelane_b32 v{self.vst}, s100, {idx}")

    def stamp_flush(self, kidx, sw):
        if not STAMPS:
            return
        self("s_mov_b64 exec, -1")
        self(f"s_add_u32 s92, s20, {STAMP_OFF + kidx*0x100000}")
        self("s_addc_u32 s93, s21, 0")
        self("s_mov_b32 s94, 0x100000")
        self("s_mov_b32 s95, 0x20000")
        self("s_lshl_b32 s100, s2, 12")
        self(f"v_mbcnt_lo_u32_b32 v{self.vst+1}, -1, 0")
        self(f"v_mbcnt_hi_u32_b32 v{self.vst+1}, -1, v{self.vst+1}")
        self(f"v_lshlrev_b32 v{self.vst+1}, 2, v{self.vst+1}")
        self(f"s_lshl_b32 s101, s{sw}, 8")
        self("s_add_u32 s100, s100, s101")
        self(f"buffer_store_dword v{self.vst}, v{self.vst+1}, s[92:95], s100 offen")


def srd(a, d, base, size, off=0):
    if off:
        a(f"s_add_u32 s{d}, s{base}, {off}")
        a(f"s_addc_u32 s{d+1}, s{base+1}, 0")
    else:
        a(f"s_mov_b32 s{d}, s{base}")
        a(f"s_mov_b32 s{d+1}, s{base+1}")
    a(f"s_mov_b32 s{d+2}, {size}")
    a(f"s_mov_b32 s{d+3}, 0x20000")


def scan64(a, v):
    for sh in (1, 2, 4, 8):
        a("s_nop 1")
        a(f"v_add_u32_dpp v{v}, v{v}, v{v} row_shr:{sh} row_mask:0xf bank_mask:0xf bound_ctrl:0")
    a("s_nop 1")
    a(f"v_add_u32_dpp v{v}, v{v}, v{v} row_bcast:15 row_mask:0xa bank_mask:0xf")
    a("s_nop 1")
    a(f"v_add_u32_dpp v{v}, v{v}, v{v} row_bcast:31 row_mask:0xc bank_mask:0xf")


K1_WP = 98304
K1_WAU = 102400
K1_CNT = 118784
K1_STK = K1_CNT + 2048
K1_STE = K1_STK + 12800
K1_SCR = 131072
L_AUR = 112640
K1_LDS = 163840
assert K1_STE + 25600 <= K1_LDS


def poll(a, tag, vP, off, val=None, slp=2):
    a("s_mov_b32 s101, 0x40000")
    a("s_mov_b64 exec, 1")
    a.lab(f"POLL{tag}")
    a(f"buffer_load_dword v{vP}, off, s[{SDB}:{SDB+3}], 0 offset:{off} sc1")
    a("s_waitcnt vmcnt(0)")
    a(f"v_cmp_ne_u32 vcc, 0, v{vP}" if val is None else f"v_cmp_eq_u32 vcc, {val}, v{vP}")
    a("s_sub_u32 s101, s101, 1")
    a(f"s_cbranch_scc1 POLLD{tag}")
    a(f"s_cbranch_vccnz POLLD{tag}")
    a(f"s_sleep {slp}")
    a(f"s_branch POLL{tag}")
    a.lab(f"POLLD{tag}")
    a("s_mov_b64 exec, -1")


def gen_k1(a):
    sW, sSl, sBk, sT0, sT1, sT2, sT3 = 22, 23, 24, 25, 26, 27, 28
    sG = 29
    sEx = 30
    SD, SS, SE, SWS, SX, SWL, SWH = 32, 36, 40, 44, 48, 52, 56
    sScale, sOut, sS, sQ, sX0, sDl, sJ, sSlot = 60, 61, 62, 63, 64, 65, 66, 67
    vLane = 1
    VX = 40
    VW = 44
    a.lab(KNAME)
    a.vst = 11
    a("s_cmp_ge_u32 s2, 256")
    a("s_cbranch_scc1 K1_END2")
    a.stamp(0)
    a.stampc(30)
    a("s_load_dwordx16 s[4:19], s[0:1], 0")
    a("s_load_dwordx2 s[20:21], s[0:1], 72")
    a(f"s_load_dwordx2 s[{SDB}:{SDB+1}], s[0:1], 64")
    a("v_lshrrev_b32 v2, 6, v0")
    a(f"v_and_b32 v{vLane}, 63, v0")
    a(f"v_readfirstlane_b32 s{sW}, v2")
    a(f"s_mov_b32 s{SDB+2}, 256")
    a(f"s_mov_b32 s{SDB+3}, 0x20000")
    a(f"s_and_b32 s{sSl}, s2, 3")
    a(f"s_lshr_b32 s{sT0}, s2, 2")
    a(f"s_mov_b32 s{sBk}, s{sT0}")
    a(f"s_lshl_b32 s{sG}, s{sT0}, 1")
    a(f"s_add_u32 s{sG}, s{sG}, s{sSl}")
    a(f"s_mul_i32 s{sX0}, s{sBk}, {BN*256}")
    a(f"s_cmp_eq_u32 s{sSl}, 2")
    a(f"s_cselect_b32 s{sDl}, 1, 0")
    a("v_lshlrev_b32 v2, 4, v0")
    a("v_lshlrev_b32 v3, 5, v0")
    a(f"v_lshrrev_b32 v4, 4, v{vLane}")
    a(f"v_and_b32 v5, 15, v{vLane}")
    a("v_xor_b32 v6, v5, v4")
    a("v_lshlrev_b32 v6, 4, v6")
    a(f"v_lshl_add_u32 v{VX}, v4, 8, v6")
    a(f"v_xor_b32 v{VX+1}, 64, v{VX}")
    a(f"v_xor_b32 v{VX+2}, 0x80, v{VX}")
    a(f"v_xor_b32 v{VX+3}, 0xc0, v{VX}")
    a("v_lshrrev_b32 v6, 1, v5")
    a("v_xor_b32 v6, v6, v4")
    a("v_lshlrev_b32 v6, 5, v6")
    a("v_lshl_add_u32 v6, v4, 8, v6")
    a(f"v_and_b32 v7, 1, v{vLane}")
    a(f"v_lshl_add_u32 v{VW}, v7, 4, v6")
    a(f"v_xor_b32 v{VW+1}, 0x80, v{VW}")
    a(f"v_lshrrev_b32 v6, 2, v{vLane}")
    a("v_lshlrev_b32 v6, 8, v6")
    a(f"v_and_b32 v7, 3, v{vLane}")
    a(f"v_lshl_add_u32 v{VW+2}, v7, 4, v6")
    a("s_waitcnt lgkmcnt(0)")
    a.stamp(1)
    srd(a, SX, 4, N * 256)
    a(f"s_cmp_ge_u32 s{sSl}, 2")
    a("s_cbranch_scc1 K1_TB")

    def xdma(slot_sgpr, tag):
        a(f"s_lshl_b32 s{sT0}, s{slot_sgpr}, 12")
        a(f"s_mov_b32 m0, s{sT0}")
        a(f"s_sub_u32 s{sT1}, s{slot_sgpr}, s{sDl}")
        a(f"s_cselect_b32 s{sT1}, 24, s{sT1}")
        a(f"s_lshl_b32 s{sT1}, s{sT1}, 12")
        a(f"s_add_u32 s{sT1}, s{sT1}, s{sX0}")
        for pp in range(4):
            a(f"buffer_load_dwordx4 v{VX+pp}, s[{SX}:{SX+3}], s{sT1} offen offset:{pp*1024}{NT_X} lds")

    def waudma(piece_sgpr):
        a(f"s_lshl_b32 s{sT0}, s{piece_sgpr}, 10")
        a(f"s_add_u32 s{sT0}, s{sT0}, {K1_WAU}")
        a(f"s_mov_b32 m0, s{sT0}")
        a(f"s_and_b32 s{sT1}, s{piece_sgpr}, 7")
        a(f"s_lshl_b32 s{sT1}, s{sT1}, 12")
        a(f"s_lshl_b32 s{sT0}, s{sSl}, 6")
        a(f"s_add_u32 s{sT1}, s{sT1}, s{sT0}")
        a(f"s_cmp_lt_u32 s{piece_sgpr}, 8")
        a(f"s_cselect_b32 s{SWL}, s16, s12")
        a(f"s_cselect_b32 s{SWL+1}, s17, s13")
        a(f"s_mov_b32 s{SWL+2}, 32768")
        a(f"s_mov_b32 s{SWL+3}, 0x20000")
        a(f"buffer_load_dwordx4 v{VW+2}, s[{SWL}:{SWL+3}], s{sT1} offen lds")

    a(f"s_cmp_ge_u32 s{sG}, {NCH}")
    a("s_cbranch_scc1 K1_NOEDGE")
    a(f"s_cmp_ge_u32 s{sW}, 13")
    a("s_cbranch_scc1 K1_NOEDGE")
    srd(a, SD, 10, E * 4)
    srd(a, SS, 8, E * 4)
    srd(a, SE, 6, E * 8)
    a("v_cmp_gt_u32 vcc, 800, v0")
    a(f"s_mul_i32 s{sT0}, s{sG}, {CH*4}")
    a(f"s_mul_i32 s{sT1}, s{sG}, {CH*8}")
    a(f"s_mov_b64 s[{sEx}:{sEx+1}], vcc")
    a("s_mov_b64 exec, vcc")
    a(f"buffer_load_dwordx4 v[16:19], v2, s[{SD}:{SD+3}], s{sT0} offen{NT_E}")
    a(f"buffer_load_dwordx4 v[20:23], v2, s[{SS}:{SS+3}], s{sT0} offen{NT_E}")
    a(f"buffer_load_dwordx4 v[24:27], v3, s[{SE}:{SE+3}], s{sT1} offen{NT_E}")
    a(f"buffer_load_dwordx4 v[28:31], v3, s[{SE}:{SE+3}], s{sT1} offen offset:16{NT_E}")
    a("s_mov_b64 exec, -1")
    a.lab("K1_NOEDGE")
    srd(a, SWS, 20, WS_USED)
    a(f"v_lshlrev_b32 v6, 2, v{vLane}")
    a(f"v_add_u32 v6, {K1_CNT}, v6")
    a("v_mov_b32 v7, 0")
    a(f"v_mov_b32 v12, {K1_CNT+1024}")
    a(f"s_cmp_lg_u32 s{sW}, 0")
    a("s_cbranch_scc1 K1_P1")
    a("ds_write_b32 v6, v7")
    a("ds_write_b32 v6, v7 offset:256")
    a("ds_write_b32 v6, v7 offset:1024")
    a("s_waitcnt lgkmcnt(0)")
    a.lab("K1_P1")
    a("s_barrier")
    a(f"s_cmp_lt_u32 s{sW}, 13")
    a("s_cbranch_scc1 K1_PW")
    a.c("loader waves 13..15 : W_AU pieces and x tiles by LDS-DMA")
    a(f"s_sub_u32 s{sJ}, s{sW}, 13")
    a.lab("K1_LA1")
    waudma(sJ)
    a(f"s_add_u32 s{sJ}, s{sJ}, 3")
    a(f"s_cmp_lt_u32 s{sJ}, 16")
    a("s_cbranch_scc1 K1_LA1")
    a(f"s_sub_u32 s{sJ}, s{sW}, 13")
    a.lab("K1_LA2")
    xdma(sJ, "A")
    a(f"s_add_u32 s{sJ}, s{sJ}, 3")
    a(f"s_cmp_lt_u32 s{sJ}, 25")
    a("s_cbranch_scc1 K1_LA2")
    a.stamp(2)
    a("s_waitcnt vmcnt(0)")
    a.stamp(13)
    a("s_branch K1_AU")
    a.lab("K1_PW")
    a(f"s_cmp_ge_u32 s{sG}, {NCH}")
    a("s_cbranch_scc1 K1_AU")

    def sb(k, tag):
        a("s_waitcnt lgkmcnt(0)")
        a("s_mov_b64 exec, 1")
        a(f"ds_add_u32 v12, v7 offset:{4+4*k}")
        a("s_mov_b64 exec, -1")
        a.lab(f"K1_SB{tag}")
        a(f"ds_read_b32 v13, v12 offset:{4+4*k}")
        a("s_waitcnt lgkmcnt(0)")
        a("v_cmp_gt_u32 vcc, 13, v13")
        a(f"s_cbranch_vccnz K1_SB{tag}")
    a(f"s_mov_b32 s{sT0}, {MAGIC}")
    a(f"s_mov_b32 s{sT1}, {-BN & 0xffffffff}")
    a("v_mov_b32 v7, 1")
    a(f"s_mov_b64 exec, s[{sEx}:{sEx+1}]")
    a("s_waitcnt vmcnt(3)")
    a.stamp(3)
    for i in range(4):
        a(f"v_mul_u32_u24 v{32+i}, s{sT0}, v{16+i}")
    for i in range(4):
        a(f"v_lshrrev_b32 v{32+i}, 25, v{32+i}")
    for i in range(4):
        a(f"v_mad_i32_i24 v{16+i}, v{32+i}, s{sT1}, v{16+i}")
    for i in range(4):
        a(f"v_lshlrev_b32 v{32+i}, 2, v{32+i}")
    for i in range(4):
        a(f"v_add_u32 v{32+i}, {K1_CNT}, v{32+i}")
    for i in range(4):
        a(f"ds_add_rtn_u32 v{36+i}, v{32+i}, v7")
    for i in range(4):
        a(f"v_lshlrev_b32 v{16+i}, 2, v{16+i}")
    a("s_waitcnt vmcnt(2)")
    for i in range(4):
        a(f"v_lshl_or_b32 v{20+i}, v{20+i}, 16, v{16+i}")
    sb(0, "2")
    a.stamp(4)
    a("ds_read_b32 v8, v6")
    a("s_waitcnt lgkmcnt(0)")
    a("v_mov_b32 v9, v8")
    scan64(a, 9)
    a("v_sub_u32 v9, v9, v8")
    a("ds_write_b32 v6, v9 offset:512")
    a("v_lshl_or_b32 v8, v8, 16, v9")
    a(f"s_mov_b64 exec, s[{sEx}:{sEx+1}]")
    for i in range(4):
        a(f"ds_read_b32 v{32+i}, v{32+i} offset:512")
    a("s_waitcnt lgkmcnt(0)")
    for i in range(4):
        a(f"v_add_u32 v{32+i}, v{32+i}, v{36+i}")
    for i in range(4):
        a(f"v_lshlrev_b32 v{36+i}, 2, v{32+i}")
        a(f"v_lshlrev_b32 v{32+i}, 3, v{32+i}")
    for i in range(4):
        a(f"v_add_u32 v{36+i}, {K1_STK}, v{36+i}")
        a(f"v_add_u32 v{32+i}, {K1_STE}, v{32+i}")
    for i in range(4):
        a(f"ds_write_b32 v{36+i}, v{20+i}")
    a("s_waitcnt vmcnt(0)")
    for i in range(4):
        a(f"ds_write_b64 v{32+i}, v[{24+2*i}:{25+2*i}]")
    sb(1, "3")
    a.stamp(5)
    a(f"s_mov_b64 exec, s[{sEx}:{sEx+1}]")
    a(f"v_add_u32 v6, {K1_STK}, v2")
    a("ds_read_b128 v[16:19], v6")
    a("ds_read_b128 v[20:23], v6 offset:12800")
    a("ds_read_b128 v[24:27], v6 offset:25600")
    a(f"s_mul_i32 s{sT0}, s{sG}, {CH*4}")
    a(f"s_add_u32 s{sT0}, s{sT0}, {KEY_OFF}")
    a(f"s_mul_i32 s{sT1}, s{sG}, {CH*8}")
    a(f"s_add_u32 s{sT1}, s{sT1}, {EAT_OFF}")
    a(f"s_add_u32 s{sT2}, s{sT1}, 12800")
    a("s_waitcnt lgkmcnt(2)")
    a(f"buffer_store_dwordx4 v[16:19], v2, s[{SWS}:{SWS+3}], s{sT0} offen{K1_ST}")
    a("s_waitcnt lgkmcnt(1)")
    a(f"buffer_store_dwordx4 v[20:23], v2, s[{SWS}:{SWS+3}], s{sT1} offen{K1_ST}")
    a("s_waitcnt lgkmcnt(0)")
    a(f"buffer_store_dwordx4 v[24:27], v2, s[{SWS}:{SWS+3}], s{sT2} offen{K1_ST}")
    a("s_mov_b64 exec, -1")
    a(f"s_cmp_lg_u32 s{sW}, 0")
    a("s_cbranch_scc1 K1_P2B")
    a(f"v_lshlrev_b32 v9, 2, v{vLane}")
    a(f"s_lshl_b32 s{sT0}, s{sG}, 8")
    a(f"s_add_u32 s{sT0}, s{sT0}, {DESC_OFF}")
    a(f"buffer_store_dword v8, v9, s[{SWS}:{SWS+3}], s{sT0} offen{K1_ST}")
    a("s_cmp_lg_u32 s2, 0")
    a("s_cbranch_scc1 K1_P2B")
    a("v_mov_b32 v10, 0")
    a(f"s_mov_b32 s{sT0}, {GCNT_OFF}")
    a(f"buffer_store_dword v10, v9, s[{SWS}:{SWS+3}], s{sT0} offen{K1_ST}")
    a.lab("K1_P2B")
    a.c("publish the partition: the last of the 13 storing waves counts this workgroup into R")
    a("s_waitcnt vmcnt(0)")
    a("s_mov_b64 exec, 1")
    a("ds_add_rtn_u32 v14, v12, v7")
    a("s_waitcnt lgkmcnt(0)")
    a("v_cmp_eq_u32 vcc, 12, v14")
    a("s_cbranch_vccz K1_NOR2")
    a(f"buffer_atomic_add v7, off, s[{SDB}:{SDB+3}], 0 sc1")
    a.lab("K1_NOR2")
    a("s_mov_b64 exec, -1")
    a.stamp(6)
    a("s_branch K1_AU")

    a.lab("K1_TB")
    a(f"s_add_u32 s{sT0}, s16, 32768")
    a(f"s_addc_u32 s{sT1}, s17, 0")
    a(f"s_cmp_lt_u32 s{sW}, 8")
    a(f"s_cselect_b32 s{SWH}, s{sT0}, s14")
    a(f"s_cselect_b32 s{SWH+1}, s{sT1}, s15")
    a(f"s_mov_b32 s{SWH+2}, 32768")
    a(f"s_mov_b32 s{SWH+3}, 0x20000")
    a(f"s_lshl_b32 s{sT0}, s{sW}, 12")
    a(f"s_add_u32 s{sT1}, s{sT0}, {K1_WP}")
    a(f"s_mov_b32 m0, s{sT1}")
    a(f"s_and_b32 s{sT0}, s{sT0}, 0x7fff")
    for pp in range(4):
        a(f"buffer_load_dwordx4 v{VW+(pp>>1)}, s[{SWH}:{SWH+3}], s{sT0} offen offset:{pp*1024} lds")
    srd(a, SWS, 20, WS_USED)
    a(f"s_cmp_ge_u32 s{sW}, 13")
    a("s_cbranch_scc1 K1_B0")
    a(f"s_lshl_b32 s{sJ}, s{sW}, 1")
    a(f"s_add_u32 s{sJ}, s{sJ}, 1")
    a(f"s_cmp_eq_u32 s{sW}, 12")
    a(f"s_cselect_b32 s{sJ}, 0, s{sJ}")
    xdma(sJ, "B")
    a.lab("K1_B0")
    a(f"s_and_b32 s{sS}, s{sW}, 3")
    a(f"s_lshr_b32 s{sQ}, s{sW}, 2")
    a(f"v_lshrrev_b32 v2, 4, v{vLane}")
    a(f"v_and_b32 v3, 15, v{vLane}")
    a("v_lshrrev_b32 v48, 2, v3")
    a("v_and_b32 v49, 1, v2")
    a("v_lshl_or_b32 v49, v49, 2, v48")
    a(f"s_lshl_b32 s{sT0}, s{sS}, 1")
    a(f"v_xor_b32 v49, s{sT0}, v49")
    a("v_lshlrev_b32 v49, 5, v49")
    a("v_lshl_add_u32 v48, v2, 3, v48")
    a("v_lshl_add_u32 v48, v48, 8, v49")
    a(f"v_and_b32 v49, 3, v{vLane}")
    a("v_lshl_add_u32 v48, v49, 3, v48")
    a(f"v_add_u32 v48, {K1_WP}, v48")
    a("v_xor_b32 v49, 32, v48")
    a("v_and_b32 v10, 7, v3")
    a("v_xor_b32 v10, v10, v2")
    a("v_lshlrev_b32 v10, 4, v10")
    a("v_lshl_add_u32 v10, v3, 7, v10")
    a(f"s_lshl_b32 s{sT0}, s{sW}, 11")
    a(f"s_add_u32 s{sT0}, s{sT0}, {K1_SCR}")
    a(f"v_add_u32 v10, s{sT0}, v10")
    a("v_xor_b32 v0, 64, v10")
    a(f"v_lshlrev_b32 v2, 4, v{vLane}")
    a(f"v_add_u32 v2, s{sT0}, v2")
    a(f"v_lshrrev_b32 v3, 3, v{vLane}")
    a(f"v_and_b32 v28, 7, v{vLane}")
    a("v_xor_b32 v28, v28, v3")
    a("v_lshlrev_b32 v28, 4, v28")
    a("v_lshl_add_u32 v3, v3, 7, v28")
    a(f"s_mov_b32 s{sScale}, {hex(NL2E)}")
    a(f"s_cmp_ge_u32 s{sW}, 13")
    a("s_cbranch_scc1 K1_B1")
    a("s_waitcnt vmcnt(4)")
    a("s_branch K1_B2")
    a.lab("K1_B1")
    a("s_waitcnt vmcnt(0)")
    a.lab("K1_B2")
    a.stamp(2)
    a("s_barrier")
    WF = 64

    def wf(mat, ct, ks):
        return WF + ((mat * 2 + ct) * 4 + ks) * 4
    for ks in range(4):
        for mat in range(2):
            for ct in range(2):
                b = wf(mat, ct, ks)
                off = mat * 32768 + ks * 8192
                a(f"ds_read_b64_tr_b16 v[{b}:{b+1}], v{48+ct} offset:{off}")
                a(f"ds_read_b64_tr_b16 v[{b+2}:{b+3}], v{48+ct} offset:{off+1024}")
    a("s_waitcnt lgkmcnt(0)")
    a.stamp(3)
    a("s_barrier")
    waudma(sW)
    a(f"s_cmp_ge_u32 s{sW}, 12")
    a("s_cbranch_scc1 K1_B3")
    a(f"s_lshl_b32 s{sJ}, s{sW}, 1")
    a(f"s_add_u32 s{sJ}, s{sJ}, 2")
    xdma(sJ, "C")
    a("s_waitcnt vmcnt(5)")
    a("s_branch K1_B4")
    a.lab("K1_B3")
    a("s_waitcnt vmcnt(1)")
    a.lab("K1_B4")
    XF = [32, 48]

    def xconst():
        a(f"v_lshrrev_b32 v4, 4, v{vLane}")
        a(f"v_and_b32 v5, 15, v{vLane}")
        a("v_xor_b32 v4, v4, v5")
        a("v_lshlrev_b32 v4, 4, v4")
        a("v_lshl_add_u32 v5, v5, 8, v4")

    def xread(buf, slot_sgpr):
        a(f"s_lshl_b32 s{sT0}, s{slot_sgpr}, 12")
        a(f"v_add_u32 v6, s{sT0}, v5")
        a("v_xor_b32 v7, 64, v6")
        a("v_xor_b32 v8, 0x80, v6")
        a("v_xor_b32 v9, 0xc0, v6")
        for ks in range(4):
            a(f"ds_read_b128 v[{XF[buf]+4*ks}:{XF[buf]+4*ks+3}], v{6+ks}")

    def mfmas(buf, mid=None):
        for ks in range(4):
            for mat in range(2):
                for ct in range(2):
                    d = 16 + (mat * 2 + ct) * 4
                    b = wf(mat, ct, ks)
                    cin = "0" if ks == 0 else f"v[{d}:{d+3}]"
                    a(f"v_mfma_f32_16x16x32_bf16 v[{d}:{d+3}], v[{b}:{b+3}], v[{XF[buf]+4*ks}:{XF[buf]+4*ks+3}], {cin}")
            if ks == 0 and mid:
                mid()
    xconst()
    a(f"s_lshl_b32 s{sSlot}, s{sQ}, 1")
    a(f"s_add_u32 s{sSlot}, s{sSlot}, 1")
    a(f"s_mul_i32 s{sOut}, s{sS}, {PS}")
    a(f"s_lshr_b32 s{sT0}, s{sX0}, 1")
    a(f"s_add_u32 s{sOut}, s{sOut}, s{sT0}")
    a(f"s_sub_u32 s{sT0}, s{sSlot}, s{sDl}")
    a(f"s_lshl_b32 s{sT0}, s{sT0}, 11")
    a(f"s_add_u32 s{sOut}, s{sOut}, s{sT0}")
    a.stamp(4)
    a("s_barrier")
    a.stamp(7)
    a.stampc(31)
    xread(0, sSlot)
    for i in range(4):
        buf = i & 1
        if i == 3:
            a.c("13th P tile (tile 24, slot 0): slice 2, set 0 only")
            a(f"s_cmp_lg_u32 s{sQ}, 0")
            a("s_cbranch_scc1 K1_PDONE")
            a(f"s_cmp_eq_u32 s{sDl}, 0")
            a("s_cbranch_scc1 K1_PDONE")
        if i < 2:
            a(f"s_add_u32 s{sSlot}, s{sSlot}, 8")
        elif i == 2:
            a(f"s_mov_b32 s{sSlot}, 0")
        a("s_waitcnt lgkmcnt(0)")
        mfmas(buf, (lambda: xread(buf ^ 1, sSlot)) if i < 3 else None)
        a("s_nop 7")
        for ct in range(2):
            for j in range(4):
                a(f"v_fma_mixlo_f16 v{24+4*ct+j}, v{16+4*ct+j}, s{sScale}, 0")
        a("ds_write_b128 v10, v[24:27]")
        a("ds_write_b128 v0, v[28:31]")
        a("ds_read_b128 v[12:15], v2")
        a("ds_read_b128 v[16:19], v2 offset:1024")
        a("s_waitcnt lgkmcnt(1)")
        a(f"buffer_store_dwordx4 v[12:15], v3, s[{SWS}:{SWS+3}], s{sOut} offen{K1_ST}")
        a("s_waitcnt lgkmcnt(0)")
        a(f"buffer_store_dwordx4 v[16:19], v3, s[{SWS}:{SWS+3}], s{sOut} offen offset:1024{K1_ST}")
        a.stamp(8 + i)
        if i < 3:
            a(f"s_add_u32 s{sOut}, s{sOut}, 16384")
            a("s_nop 1")
    a.lab("K1_PDONE")
    a("s_waitcnt vmcnt(6) lgkmcnt(0)")
    a.lab("K1_AU")
    xconst()
    a(f"v_lshrrev_b32 v2, 4, v{vLane}")
    a(f"v_and_b32 v3, 15, v{vLane}")
    a("v_lshrrev_b32 v48, 2, v3")
    a("v_lshl_add_u32 v48, v2, 3, v48")
    a("v_lshlrev_b32 v48, 6, v48")
    a(f"v_and_b32 v49, 3, v{vLane}")
    a("v_lshl_add_u32 v48, v49, 3, v48")
    a(f"v_add_u32 v48, {K1_WAU}, v48")
    a("v_and_b32 v10, 7, v3")
    a("v_xor_b32 v10, v10, v2")
    a("v_lshlrev_b32 v10, 4, v10")
    a("v_lshl_add_u32 v10, v3, 7, v10")
    a(f"v_add_u32 v10, {L_AUR}, v10")
    a(f"s_mov_b32 s{sSlot}, s{sW}")
    a.stamp(14)
    a("s_barrier")
    a.stamp(15)
    xread(0, sSlot)
    for ks in range(4):
        for mat in range(2):
            for ct in range(2):
                b = wf(mat, ct, ks)
                off = mat * 8192 + ks * 2048 + ct * 32
                a(f"ds_read_b64_tr_b16 v[{b}:{b+1}], v48 offset:{off}")
                a(f"ds_read_b64_tr_b16 v[{b+2}:{b+3}], v48 offset:{off+256}")
    a("s_waitcnt lgkmcnt(0)")
    a("s_barrier")
    a.stamp(16)
    for i in range(2):
        a(f"s_sub_u32 s{sT1}, s{sSlot}, s{sDl}")
        a(f"s_cselect_b32 s{sT1}, 24, s{sT1}")
        a(f"s_lshl_b32 s{sT1}, s{sT1}, 11")
        a(f"v_add_u32 v12, s{sT1}, v10")
        a("v_xor_b32 v13, 64, v12")
        if i == 0:
            a(f"s_add_u32 s{sSlot}, s{sSlot}, 16")
            a(f"s_min_u32 s{sJ}, s{sSlot}, 24")
        a("s_waitcnt lgkmcnt(0)")
        mfmas(i, (lambda: xread(1, sJ)) if i == 0 else None)
        a("s_nop 7")
        for ct in range(2):
            for j in range(4):
                a(f"v_fma_mixlo_f16 v{24+4*ct+j}, v{16+4*ct+j}, 1.0, 0")
        a("ds_write_b128 v12, v[24:27]")
        a("ds_write_b128 v13, v[28:31]")
        if i == 0:
            a(f"s_cmp_ge_u32 s{sSlot}, 25")
            a("s_cbranch_scc1 K1_END")
    a.lab("K1_END")
    a.stamp(12)
    a.stampc(32)
    a.stamp_flush(0, sW)
    a.c("wave 15 waits until every partition workgroup has counted into R")
    a(f"s_cmp_lg_u32 s{sW}, 15")
    a("s_cbranch_scc1 K1_RDONE")
    poll(a, "R", 22, 0, hex(NCH), 8)
    a.lab("K1_RDONE")
    a(f"s_lshl_b32 s{sT0}, s{sW}, 6")
    a(f"v_add_u32 v0, s{sT0}, v{vLane}")
    a("s_branch K2_ENTRY")
    a.lab("K1_END2")
    a("s_endpgm")


CAP = 8192
L_CNT = 0
L_ORD = 2048
L_DH = 4096
L_BST = 4352
L_SB = 4608
L_FLAG = 4864
L_GD = L_FLAG + 4
L_ELL = 5120
L_DUM = L_ELL + CAP * 4
L_EA = L_DUM + 512
NKW = 11
EA_TAIL = NKW * 12 * 64
EA_ZERO = EA_TAIL + NKW * 64
assert L_EA + EA_ZERO * 8 + 8 <= L_AUR
DUMMY = 0xFFFF0000 | EA_ZERO
DUMMY_NODE = 399 * 128
NBATCH = (BN + 15) // 16
NR = 13


def gen_k2(a):
    assert FUSED
    sW, sSl, sBk = 22, 23, 24
    sT0, sT1, sT2, sT3 = 25, 26, 27, 28
    sK = 29
    sSp, sOvf = 30, 31
    SWS, SP, SO, SG = 32, 36, 40, 44
    SDS = 48
    sSave = 54
    sM = 56
    sKK = 56
    sRet = 82
    SA = 84
    SF0, SF1, SF2 = 64, 44, 60
    sTM, sEarly, sOutOff, sK2, sK1 = 88, 90, 91, 92, 93
    sA, sCntS, sNxtA, sNxtCnt, sRem, sN2 = 48, 49, 50, 51, 52, 53
    vLane, vC8, vG8, vRec4, vCo, vS, vSrc, vEa, vT = 1, 2, 3, 4, 5, 6, 7, 8, 9
    NA, N2, EE = 10, 12, 14
    ACC, AC, D = 16, 24, 40
    PP = [56, 72, 88]
    R, WB, vStg = 104, 112, 122
    AD = R
    KEYR, RK, HA = 24, 37, 50
    ET, WR, AU2 = 70, 88, 96
    vDesc = 104
    vL4, vL16, vIdx, v64c = 65, 66, 67, 68
    T = 72
    a.vst = 120

    def auread(n):
        a(f"v_xor_b32 v{vT}, v{n}, v{vC8}")
        a(f"v_xor_b32 v{AD+2}, v{n+1}, v{vC8}")
        a(f"v_add_u32 v{vT}, {L_AUR}, v{vT}")
        a(f"v_add_u32 v{AD+2}, {L_AUR}, v{AD+2}")
        a(f"ds_read_b128 v[{ACC}:{ACC+3}], v{vT}")
        a(f"ds_read_b128 v[{ACC+4}:{ACC+7}], v{AD+2}")

    def sb_arrive(k):
        a("s_waitcnt lgkmcnt(0)")
        a("s_mov_b64 exec, 1")
        a(f"ds_add_u32 v{T+14}, v{T+15} offset:{L_SB+4*k}")
        a("s_mov_b64 exec, -1")

    def sb_wait(k, n, tag):
        a.lab(f"K2_SBW{tag}")
        a(f"ds_read_b32 v{T+13}, v{T+14} offset:{L_SB+4*k}")
        a("s_waitcnt lgkmcnt(0)")
        a(f"v_cmp_gt_u32 vcc, {n}, v{T+13}")
        a(f"s_cbranch_vccnz K2_SBW{tag}")

    def batchinfo():
        a(f"s_lshl_b32 s{sT0}, s{sK1}, 6")
        a(f"v_add_u32 v{T}, s{sT0}, v{vG8}")
        a(f"ds_read_b64 v[{NA}:{NA+1}], v{T} offset:{L_ORD}")
        a(f"s_min_u32 s{sT0}, s{sK2}, 25")
        a(f"s_lshl_b32 s{sT0}, s{sT0}, 6")
        a(f"v_add_u32 v{T}, s{sT0}, v{vG8}")
        a(f"ds_read_b64 v[{N2}:{N2+1}], v{T} offset:{L_ORD}")
        a(f"ds_read_b32 v{T+4}, v{vL4} offset:{L_BST}")
        a(f"ds_read_b64 v[{T+8}:{T+9}], v{T+14} offset:{L_FLAG}")
        a("s_waitcnt lgkmcnt(0)")
        a(f"v_min_u32 v{T+4}, 0x1ff, v{T+4}")
        a(f"v_lshlrev_b32 v{T+5}, 7, v{T+4}")
        a(f"v_mov_b32 v{T+6}, v{T+5}")
        scan64(a, T + 6)
        a(f"v_readfirstlane_b32 s{sOvf}, v{T+8}")
        a(f"v_readfirstlane_b32 s{sEarly}, v{T+9}")
        a(f"v_sub_u32 v{T+6}, v{T+6}, v{T+5}")
        a(f"v_add_u32 v{T+6}, {L_ELL}, v{T+6}")
        a("s_nop 0")
        a(f"v_readlane_b32 s{sA}, v{T+6}, s{sK1}")
        a(f"v_readlane_b32 s{sRem}, v{T+4}, s{sK1}")
        a(f"v_readlane_b32 s{sNxtA}, v{T+6}, s{sK2}")
        a(f"v_readlane_b32 s{sN2}, v{T+4}, s{sK2}")
        a("s_nop 3")
        a(f"s_sub_u32 s{sRem}, s{sRem}, 1")
        a(f"s_mov_b32 s{sCntS}, s{sRem}")
        a(f"s_sub_u32 s{sNxtCnt}, s{sN2}, 1")
        a(f"s_cmp_eq_u32 s{sN2}, 0")
        a(f"s_cselect_b32 s{sNxtA}, {L_DUM}, s{sNxtA}")
        a(f"s_cselect_b32 s{sNxtCnt}, 100, s{sNxtCnt}")

    def wperm():
        a(f"s_mov_b32 s{sT0}, 0x05040100")
        a(f"s_mov_b32 s{sT1}, 0x07060302")
        for m in range(4):
            sel = sT0 if m % 2 == 0 else sT1
            h = m >> 1
            a(f"v_perm_b32 v{WB+2*m}, v{WR+2+h}, v{WR+h}, s{sel}")
            a(f"v_perm_b32 v{WB+2*m+1}, v{WR+6+h}, v{WR+4+h}, s{sel}")

    a.lab("K2_ENTRY")
    a.stamp(0)
    a.stampc(29)
    srd(a, SG, 16, 260 * 256)
    a(f"v_and_b32 v{vCo}, 7, v{vLane}")
    a(f"v_lshlrev_b32 v{vCo}, 3, v{vCo}")
    a(f"s_lshl_b32 s{sT1}, s{sSl}, 6")
    a(f"s_add_u32 s{sT1}, s{sT1}, 65536")
    for k in range(4):
        a(f"buffer_load_dwordx2 v[{WR+2*k}:{WR+1+2*k}], v{vCo}, s[{SG}:{SG+3}], s{sT1} offen offset:{k*256}")
    a.c("first chunk of this wave: key waves 12w (12 chunks), loader waves 32(w-11) (32 chunks)")
    a(f"s_mul_i32 s{sT2}, s{sW}, 12")
    a(f"s_lshl_b32 s{sT3}, s{sW}, 5")
    a(f"s_sub_u32 s{sT3}, s{sT3}, {32*NKW}")
    a(f"s_cmp_lt_u32 s{sW}, {NKW}")
    a(f"s_cselect_b32 s{sT3}, s{sT2}, s{sT3}")
    a(f"s_cselect_b32 s{sT2}, 12, 32")
    a(f"s_bfm_b64 s[{sSave}:{sSave+1}], s{sT2}, 0")
    a(f"s_lshl_b32 s{sT0}, s{sT3}, 8")
    a(f"s_lshl_b32 s{sT1}, s{sBk}, 2")
    a(f"s_add_u32 s{sT0}, s{sT0}, s{sT1}")
    a(f"v_lshlrev_b32 v64, 8, v{vLane}")
    a(f"s_add_u32 s{SDS}, s20, {DESC_OFF}")
    a(f"s_addc_u32 s{SDS+1}, s21, 0")
    a(f"s_mov_b32 s{SDS+2}, {NCH*256}")
    a(f"s_mov_b32 s{SDS+3}, 0x20000")
    a("v_lshlrev_b32 v51, 4, v0")
    for i in range(4):
        a(f"v_mov_b32 v{52+i}, {hex(DUMMY)}")
        a(f"v_mov_b32 v{56+i}, 0")
        a(f"v_mov_b32 v{60+i}, {DUMMY_NODE}")
    a("s_waitcnt lgkmcnt(0)")
    a("s_barrier")
    a.stamp(1)
    a(f"s_mov_b64 exec, s[{sSave}:{sSave+1}]")
    a(f"buffer_load_dword v{vDesc}, v64, s[{SDS}:{SDS+3}], s{sT0} offen{LD}")
    a("s_mov_b64 exec, -1")
    a(f"ds_write_b128 v51, v[52:55] offset:{L_ELL}")
    a(f"ds_write_b128 v51, v[52:55] offset:{L_ELL+16384}")
    a(f"s_cmp_ge_u32 s{sW}, 6")
    a("s_cbranch_scc1 K2_INIT_DONE")
    a(f"s_cmp_eq_u32 s{sW}, 5")
    a("s_cbranch_scc1 K2_INIT_5")
    a(f"s_lshr_b32 s{sT0}, s{sW}, 1")
    a(f"s_cmp_eq_u32 s{sT0}, 1")
    a("s_cbranch_scc1 K2_INIT_ORD")
    a("ds_write_b128 v51, v[56:59]")
    a("s_branch K2_INIT_DONE")
    a.lab("K2_INIT_ORD")
    a("ds_write_b128 v51, v[60:63]")
    a("s_branch K2_INIT_DONE")
    a.lab("K2_INIT_5")
    a(f"v_mov_b32 v64, {L_EA + EA_ZERO*8}")
    a("ds_write_b64 v64, v[56:57]")
    a("s_bfm_b64 exec, 32, 0")
    a(f"ds_write_b128 v51, v[52:55] offset:{L_DUM - 5*1024}")
    a("s_mov_b64 exec, -1")
    a.lab("K2_INIT_DONE")
    srd(a, SWS, 20, WS_USED)
    a(f"s_mul_i32 s{sT0}, s{sSl}, {PS}")
    a(f"s_add_u32 s{SP}, s20, s{sT0}")
    a(f"s_addc_u32 s{SP+1}, s21, 0")
    a(f"s_mov_b32 s{SP+2}, {N*128}")
    a(f"s_mov_b32 s{SP+3}, 0x20000")
    srd(a, SO, 18, N * 256)
    a(f"s_mov_b32 s{sK}, {hex(NL2E)}")
    a(f"v_lshlrev_b32 v{vC8}, 1, v{vCo}")
    a(f"v_and_b32 v{vG8}, 56, v{vLane}")
    a(f"v_and_b32 v64, 2, v{vLane}")
    a(f"v_lshl_add_u32 v{vRec4}, v64, 1, v{vG8}")
    a(f"v_and_b32 v64, 1, v{vLane}")
    a(f"v_lshl_add_u32 v{vRec4}, v64, 6, v{vRec4}")
    a(f"v_lshlrev_b32 v{vL4}, 2, v{vLane}")
    a(f"v_lshlrev_b32 v{vL16}, 4, v{vLane}")
    a(f"v_mov_b32 v{T+14}, 0")
    a(f"v_mov_b32 v{T+15}, 1")
    a(f"s_and_b32 s{sT0}, s{sW}, 3")
    a(f"s_and_b32 s{sT1}, s{sW}, 12")
    a(f"s_add_u32 s{sT2}, s{sT1}, s{sT0}")
    a(f"s_add_u32 s{sT1}, s{sT1}, 3")
    a(f"s_sub_u32 s{sT1}, s{sT1}, s{sT0}")
    a(f"s_bitcmp1_b32 s{sW}, 2")
    a(f"s_cselect_b32 s{sK1}, s{sT1}, s{sT2}")
    a(f"s_add_u32 s{sK2}, s{sK1}, 16")
    a(f"s_add_u32 s{sT1}, s{sT1}, 16")
    a(f"s_cmp_ge_u32 s{sW}, 8")
    a(f"s_cselect_b32 s{sK2}, s{sT1}, s{sK2}")
    a(f"s_mul_i32 s{sOutOff}, s{sBk}, {BN*256}")
    a(f"s_lshl_b32 s{sT0}, s{sSl}, 6")
    a(f"s_add_u32 s{sOutOff}, s{sOutOff}, s{sT0}")
    a(f"s_cmp_ge_u32 s{sW}, {NKW}")
    a("s_cbranch_scc1 K2_LW")
    a(f"s_lshl_b32 s{sT0}, s{sT3}, 6")
    a(f"v_add_u32 v{vIdx}, s{sT0}, v{vL4}")
    a(f"v_mov_b32 v{v64c}, 64")
    a(f"v_lshrrev_b32 v{T}, 4, v{vLane}")
    a(f"v_lshlrev_b32 v{T+1}, 2, v{T}")
    a(f"s_mov_b32 s{sT0}, {CH*4}")
    a(f"v_and_b32 v{T+2}, 15, v{vLane}")
    a(f"v_lshlrev_b32 v{T+3}, 2, v{T+2}")
    a(f"v_lshlrev_b32 v{T+2}, 4, v{T+2}")
    a(f"v_mad_u32_u24 v{T+2}, v{T}, s{sT0}, v{T+2}")
    a(f"s_mov_b32 s{sSp}, 0")
    a(f"s_mov_b32 s{sOvf}, 0")
    a(f"s_mov_b64 s[{sM+24}:{sM+25}], 0")
    a(f"s_mul_i32 s{sT2}, s{sT3}, {CH*4}")
    a(f"s_add_u32 s{sT2}, s{sT2}, {KEY_OFF}")
    a(f"s_mov_b32 s{sT0}, 0x40ffff")
    a("s_waitcnt vmcnt(0)")
    a.stamp(2)
    for h in range(3):
        a(f"ds_bpermute_b32 v{T+4+h}, v{T+1}, v{vDesc} offset:{16*h}")
    a(f"v_cmp_lt_u32 vcc, s{sT0}, v{vDesc}")
    a(f"s_and_b64 s[{sTM}:{sTM+1}], vcc, s[{sSave}:{sSave+1}]")
    a("s_waitcnt lgkmcnt(0)")
    for h in range(3):
        a(f"v_lshrrev_b32 v{T+7+h}, 16, v{T+4+h}")
        a(f"v_lshlrev_b32_sdwa v{T+4+h}, 2, v{T+4+h} dst_sel:DWORD dst_unused:UNUSED_PAD src0_sel:DWORD src1_sel:WORD_0")
        a(f"v_cmp_gt_u32 s[{sM+8*h}:{sM+8*h+1}], v{T+7+h}, v{T+3}")
        a(f"v_add_u32 v{T+4+h}, v{T+4+h}, v{T+2}")
        a(f"s_or_b64 exec, s[{sM+8*h}:{sM+8*h+1}], 1")
        a(f"buffer_load_dwordx4 v[{KEYR+4*h}:{KEYR+4*h+3}], v{T+4+h}, s[{SWS}:{SWS+3}], s{sT2} offen{LD}")
        a("s_mov_b64 exec, -1")
        if h < 2:
            a(f"s_add_u32 s{sT2}, s{sT2}, {4*CH*4}")
    for c in range(1, 4):
        a(f"v_add_u32 v{T+3}, 1, v{T+3}")
        for h in range(3):
            a(f"v_cmp_gt_u32 s[{sM+8*h+2*c}:{sM+8*h+2*c+1}], v{T+7+h}, v{T+3}")
    a(f"s_cmp_lg_u64 s[{sTM}:{sTM+1}], 0")
    a("s_cbranch_scc1 K2_TAIL")
    a.lab("K2_TAILR")
    a.stamp(3)
    a("s_barrier")
    a.stamp(4)
    a(f"s_cmp_eq_u32 s{sOvf}, 0")
    a("s_cbranch_scc1 K2_NOOVF")
    a(f"ds_write_b32 v{T+14}, v{T+15} offset:{L_FLAG}")
    a.lab("K2_NOOVF")
    a("s_waitcnt vmcnt(0)")
    a.stamp(5)
    for i in range(NR):
        a(f"v_and_b32 v{HA+i}, 0xffff, v{KEYR+i}")
        a(f"s_mov_b64 exec, s[{sM+2*i}:{sM+2*i+1}]")
        a(f"ds_add_rtn_u32 v{RK+i}, v{HA+i}, v{v64c}")
        a("s_mov_b64 exec, -1")
    for i in range(NR):
        if i == NR - 1:
            a(f"s_lshl_b32 s{sT0}, s{sW}, 6")
            a(f"s_add_u32 s{sT0}, s{sT0}, {EA_TAIL}")
            a(f"v_add_u32 v{vIdx}, s{sT0}, v{vLane}")
        a(f"v_mov_b32_sdwa v{KEYR+i}, v{vIdx} dst_sel:WORD_0 dst_unused:UNUSED_PRESERVE src0_sel:DWORD")
        if i < NR - 2:
            a(f"v_add_u32 v{vIdx}, {253 if i % 4 == 3 else 1}, v{vIdx}")
    sb_arrive(0)
    a(f"s_cmp_ge_u32 s{sW}, 7")
    a("s_cbranch_scc1 K2_W5")
    a(f"v_cmp_gt_u32 vcc, {BN}, v0")
    a(f"v_lshlrev_b32 v{T}, 2, v0")
    a(f"v_and_b32 v{T+8}, 7, v0")
    a(f"v_lshlrev_b32 v{T+8}, 4, v{T+8}")
    a(f"v_lshl_add_u32 v{T+8}, v0, 7, v{T+8}")
    a(f"s_mov_b64 s[{sSave}:{sSave+1}], vcc")
    sb_wait(0, NKW, "2")
    a.stamp(6)
    a.c("node phase A")
    a(f"s_mov_b64 exec, s[{sSave}:{sSave+1}]")
    a(f"ds_read_b32 v{T+1}, v{T}")
    a("s_waitcnt lgkmcnt(0)")
    a(f"v_lshrrev_b32 v{T+1}, 6, v{T+1}")
    a(f"v_min_u32 v{T+2}, 63, v{T+1}")
    a(f"v_sub_u32 v{T+2}, 63, v{T+2}")
    a(f"v_lshlrev_b32 v{T+2}, 2, v{T+2}")
    a(f"ds_add_rtn_u32 v{T+3}, v{T+2}, v{T+15} offset:{L_DH}")
    a(f"v_add_u32 v{T+7}, 1, v{T+1}")
    a(f"v_lshrrev_b32 v{T+7}, 1, v{T+7}")
    a(f"v_max_u32 v{T+7}, 1, v{T+7}")
    sb_arrive(1)
    sb_wait(1, 7, "3")
    a.stamp(7)
    a.c("node phase B")
    a(f"ds_read_b32 v{T+5}, v{vL4} offset:{L_DH}")
    a("s_waitcnt lgkmcnt(0)")
    a(f"v_mov_b32 v{T+6}, v{T+5}")
    scan64(a, T + 6)
    a(f"v_sub_u32 v{T+6}, v{T+6}, v{T+5}")
    a("s_nop 0")
    a(f"ds_bpermute_b32 v{T+9}, v{T+2}, v{T+6}")
    a("s_waitcnt lgkmcnt(0)")
    a(f"s_mov_b64 exec, s[{sSave}:{sSave+1}]")
    a(f"v_add_u32 v{T+3}, v{T+3}, v{T+9}")
    a(f"v_lshlrev_b32 v{T+9}, 2, v{T+3}")
    a(f"ds_write_b32 v{T+9}, v{T+8} offset:{L_ORD}")
    a(f"v_lshrrev_b32 v{T+10}, 4, v{T+3}")
    a(f"v_lshlrev_b32 v{T+10}, 2, v{T+10}")
    a(f"ds_max_u32 v{T+10}, v{T+7} offset:{L_BST}")
    a(f"v_and_b32 v{T+9}, 60, v{T+9}")
    sb_arrive(2)
    sb_wait(2, 7, "4")
    a.stamp(8)
    a.c("node phase C")
    a(f"ds_read_b32 v{T+5}, v{vL4} offset:{L_BST}")
    a("s_waitcnt lgkmcnt(0)")
    a(f"v_min_u32 v{T+5}, 0x1ff, v{T+5}")
    a(f"v_lshlrev_b32 v{T+5}, 7, v{T+5}")
    a(f"v_mov_b32 v{T+6}, v{T+5}")
    scan64(a, T + 6)
    a("s_nop 0")
    a(f"v_readlane_b32 s{sT0}, v{T+6}, 63")
    a(f"v_sub_u32 v{T+6}, v{T+6}, v{T+5}")
    a(f"v_add_u32 v{T+6}, {L_ELL}, v{T+6}")
    a("s_nop 1")
    a(f"ds_bpermute_b32 v{T+10}, v{T+10}, v{T+6}")
    a(f"s_cmp_le_u32 s{sT0}, {CAP*4}")
    a("s_cbranch_scc1 K2_NC_OK")
    a(f"ds_write_b32 v{T+14}, v{T+15} offset:{L_FLAG}")
    a.lab("K2_NC_OK")
    a("s_waitcnt lgkmcnt(0)")
    a(f"s_mov_b64 exec, s[{sSave}:{sSave+1}]")
    a(f"v_add_u32 v{T+10}, v{T+10}, v{T+9}")
    a(f"ds_write_b32 v{T}, v{T+10}")
    sb_arrive(3)
    a.lab("K2_W5")
    sb_wait(3, 7, "5")
    a.stamp(9)
    for i in range(NR):
        a(f"s_mov_b64 exec, s[{sM+2*i}:{sM+2*i+1}]")
        a(f"ds_read_b32 v{HA+i}, v{HA+i}")
    a("s_mov_b64 exec, -1")
    batchinfo()
    a(f"s_cmp_lg_u32 s{sOvf}, 0")
    a("s_cbranch_scc1 K2_FINB")
    for i in range(NR):
        a(f"v_add_u32 v{HA+i}, v{HA+i}, v{RK+i}")
        a(f"s_mov_b64 exec, s[{sM+2*i}:{sM+2*i+1}]")
        a(f"ds_write_b32 v{HA+i}, v{KEYR+i}")
        a("s_mov_b64 exec, -1")
    a(f"s_lshl_b32 s{sT2}, s{sW}, 9")
    a(f"s_add_u32 s{sT2}, s{sT2}, {L_EA + EA_TAIL*8}")
    a(f"v_lshl_add_u32 v63, v{vLane}, 3, s{sT2}")
    a(f"ds_write_b64 v63, v[{ET}:{ET+1}]")
    a.stamp(10)
    a("s_branch K2_FINB")
    a.lab("K2_LW")
    a(f"v_lshrrev_b32 v{T+4}, 5, v{vLane}")
    a(f"v_lshlrev_b32 v{T+5}, 2, v{T+4}")
    a(f"v_and_b32 v{T+6}, 31, v{vLane}")
    a(f"v_lshlrev_b32 v{T+7}, 1, v{T+6}")
    a(f"v_lshlrev_b32 v{T+6}, 4, v{T+6}")
    a(f"s_mov_b32 s{sT0}, {CH*8}")
    a(f"v_mad_u32_u24 v{T+6}, v{T+4}, s{sT0}, v{T+6}")
    a(f"s_mul_i32 s{sT2}, s{sT3}, {CH*8}")
    a(f"s_add_u32 s{sT2}, s{sT2}, {EAT_OFF}")
    a(f"s_lshl_b32 s{sT0}, s{sT3}, 9")
    a(f"v_add_u32 v{T+8}, s{sT0}, v{vL16}")
    a(f"s_mov_b32 s{sEarly}, 0")
    a("s_waitcnt vmcnt(0)")
    a.stamp(2)
    a(f"s_cmp_eq_u32 s{sW}, 15")
    a("s_cbranch_scc1 K2_SW")
    BP = 105
    EAD = 6
    for q in range(8):
        a(f"ds_bpermute_b32 v{BP+q}, v{T+5}, v{vDesc} offset:{8*q}")
    a("s_waitcnt lgkmcnt(0)")
    a("s_barrier")
    a.stamp(4)
    for half in range(2):
        for q in range(8):
            r = 24 + (q % 8) * 4 if half == 0 else None
        pass
    LWD = [6, 10, 16, 20, 24, 28, 32, 36, 40, 44, 48, 52, 56, 60, 96, 100]
    LWD = [16, 20, 24, 28, 32, 36, 40, 44, 48, 52, 56, 60, 96, 100, 6, 10]
    for q in range(16):
        b = BP + (q % 8)
        a(f"v_lshrrev_b32 v{T+9}, 16, v{b}")
        a(f"v_lshlrev_b32_sdwa v{T+10}, 3, v{b} dst_sel:DWORD dst_unused:UNUSED_PAD src0_sel:DWORD src1_sel:WORD_0")
        a(f"v_cmp_gt_u32 vcc, v{T+9}, v{T+7}")
        a(f"v_add_u32 v{T+10}, v{T+10}, v{T+6}")
        if q < 8:
            a(f"ds_bpermute_b32 v{b}, v{T+5}, v{vDesc} offset:{8*(q+8)}")
        a("s_or_b64 exec, vcc, 1")
        a(f"buffer_load_dwordx4 v[{LWD[q]}:{LWD[q]+3}], v{T+10}, s[{SWS}:{SWS+3}], s{sT2} offen{LD}")
        a("s_mov_b64 exec, -1")
        if q < 15:
            a(f"s_add_u32 s{sT2}, s{sT2}, {2*CH*8}")
        if q == 7:
            a("s_waitcnt lgkmcnt(0)")
    a.stamp(5)
    for q in range(16):
        a(f"s_waitcnt vmcnt({15-q})")
        a(f"ds_write_b128 v{T+8}, v[{LWD[q]}:{LWD[q]+3}] offset:{L_EA + q*1024}")
    a.stamp(10)
    a("s_branch K2_FINB")
    a.lab("K2_SW")
    a("s_waitcnt lgkmcnt(0)")
    a("s_barrier")
    a.stamp(4)
    a.c("every wave has waited for its table stores: count this workgroup in; the last one raises flag G")
    a(f"s_cmp_lt_u32 s{sSl}, 2")
    a("s_cbranch_scc1 K2_NOGF")
    a("v_mov_b32 v123, 1")
    a(f"s_mov_b32 s{sT0}, {GCNT_OFF}")
    a("s_mov_b64 exec, 1")
    a(f"buffer_atomic_add v123, off, s[{SWS}:{SWS+3}], s{sT0} sc0 sc1")
    a("s_waitcnt vmcnt(0)")
    a("v_cmp_eq_u32 vcc, 0x7f, v123")
    a("s_cbranch_vccz K2_NOGF")
    a(f"buffer_store_dword v123, off, s[{SDB}:{SDB+3}], 0 offset:128 sc1")
    a.lab("K2_NOGF")
    a.stamp(5)
    poll(a, "G", 53, 128, None, 4)
    a.stamp(10)
    a.lab("K2_FINB")
    a("s_mov_b64 exec, -1")
    wperm()
    a("s_waitcnt lgkmcnt(0)")
    a.stamp(12)
    a("s_barrier")
    a(f"s_cmp_lt_u32 s{sW}, {NKW}")
    a("s_cbranch_scc1 K2_HAVEBI")
    batchinfo()
    a(f"s_mov_b32 s{sEarly}, 0")
    a.lab("K2_HAVEBI")
    a(f"s_cmp_lg_u32 s{sOvf}, 0")
    a("s_cbranch_scc1 K2_FALLBACK")
    a(f"s_mov_b32 s{sKK}, {hex(NL2E)}")
    a(f"s_mov_b32 s{sKK+1}, {hex(NL2E)}")
    auread(NA)
    a.stamp(13)
    a.stampc(30)

    sw_sites = []

    def advance(tag):
        a(f"s_add_u32 s{sA}, s{sA}, 128")
        a(f"s_sub_u32 s{sCntS}, s{sCntS}, 1")
        a(f"s_cbranch_scc1 K2_SW{tag}")
        a.lab(f"K2_SWR{tag}")
        sw_sites.append(tag)

    def gathers(P):
        for j in range(4):
            a(f"v_add_u32_dpp v{AD+j}, v{vSrc}, v{vC8} quad_perm:[{j},{j},{j},{j}] row_mask:0xf bank_mask:0xf")
        for j in range(4):
            a(f"buffer_load_dwordx4 v[{P+4*j}:{P+4*j+3}], v{AD+j}, s[{SP}:{SP+3}], 0 offen{LD}")

    def split(S):
        a(f"v_lshlrev_b32_sdwa v{vSrc}, 7, v{S} dst_sel:DWORD dst_unused:UNUSED_PAD src0_sel:DWORD src1_sel:WORD_1")
        a(f"v_lshlrev_b32_sdwa v{vEa}, 3, v{S} dst_sel:DWORD dst_unused:UNUSED_PAD src0_sel:DWORD src1_sel:WORD_0")

    def setup_ac():
        for m in range(4):
            a(f"v_cvt_f32_f16 v{AC+4*m}, v{ACC+m}")
            a(f"v_cvt_f32_f16 v{AC+4*m+2}, v{ACC+4+m}")
        for m in range(4):
            a(f"v_mov_b32 v{AC+4*m+1}, v{AC+4*m}")
            a(f"v_mov_b32 v{AC+4*m+3}, v{AC+4*m+2}")

    def compute(P):
        for m in range(4):
            for j in range(4):
                a(f"v_fma_mix_f32 v{D+4*m+j}, v{D+4*m+j}, s{sK}, v{P+4*j+m} op_sel_hi:[0,0,1]")
        for i in range(16):
            a(f"v_exp_f32 v{D+i}, v{D+i}")
        for i in range(8):
            a(f"v_pk_add_f32 v[{D+2*i}:{D+2*i+1}], v[{D+2*i}:{D+2*i+1}], 1.0 op_sel_hi:[1,0]")
        for j in range(4):
            r = R + 4 * (j & 1)
            for m in range(4):
                a(f"v_rcp_f32 v{r+m}, v{D+4*m+j}")
            acc = ACC + 4 * (j >> 1)
            a(f"v_pk_fma_f32 v[{acc}:{acc+1}], v[{P+4*j}:{P+4*j+1}], v[{r}:{r+1}], v[{acc}:{acc+1}]")
            a(f"v_pk_fma_f32 v[{acc+2}:{acc+3}], v[{P+4*j+2}:{P+4*j+3}], v[{r+2}:{r+3}], v[{acc+2}:{acc+3}]")

    a(f"v_add_u32 v{vT}, s{sA}, v{vRec4}")
    a(f"ds_read_b32 v{D}, v{vT}")
    advance("F0")
    a(f"v_add_u32 v{vT}, s{sA}, v{vRec4}")
    a(f"ds_read_b32 v{D+1}, v{vT}")
    advance("F1")
    a(f"v_add_u32 v{vT}, s{sA}, v{vRec4}")
    a(f"ds_read_b32 v{vS}, v{vT}")
    a("s_waitcnt lgkmcnt(2)")
    split(D)
    a("s_nop 0")
    a(f"ds_read_b64 v[{EE}:{EE+1}], v{vEa} offset:{L_EA}")
    gathers(PP[0])
    a("s_waitcnt lgkmcnt(2)")
    split(D + 1)
    a("s_nop 1")
    gathers(PP[1])
    setup_ac()
    a.lab("K2_LOOP")
    for ph in range(3):
        a("s_waitcnt lgkmcnt(0)")
        for m in range(4):
            a(f"v_mfma_f32_4x4x4_16b_bf16 v[{D+4*m}:{D+4*m+3}], v[{EE}:{EE+1}], v[{WB+2*m}:{WB+2*m+1}], v[{AC+4*m}:{AC+4*m+3}]")
        a(f"ds_read_b64 v[{EE}:{EE+1}], v{vEa} offset:{L_EA}")
        split(vS)
        advance(f"L{ph}")
        gathers(PP[(ph + 2) % 3])
        a(f"v_add_u32 v{vT}, s{sA}, v{vRec4}")
        a(f"ds_read_b32 v{vS}, v{vT}")
        a("s_waitcnt vmcnt(8)")
        compute(PP[ph])
        a(f"s_sub_u32 s{sRem}, s{sRem}, 1")
        if ph < 2:
            a(f"s_cbranch_scc0 K2_C{ph}")
            a(f"s_call_b64 s[{sRet}:{sRet+1}], K2_EPI")
            a.lab(f"K2_C{ph}")
        else:
            a("s_cbranch_scc0 K2_LOOP")
            a(f"s_call_b64 s[{sRet}:{sRet+1}], K2_EPI")
            a("s_branch K2_LOOP")

    def epilogue(acc, tmp, nregs):
        for i in range(0, nregs, 2):
            a(f"v_pk_mul_f32 v[{tmp+i}:{tmp+i+1}], v[{acc+i}:{acc+i+1}], s[{sKK}:{sKK+1}]")
        for i in range(nregs):
            a(f"v_exp_f32 v{tmp+i}, v{tmp+i}")
        a("s_nop 0")
        for i in range(0, nregs, 2):
            a(f"v_pk_add_f32 v[{tmp+i}:{tmp+i+1}], v[{tmp+i}:{tmp+i+1}], 1.0 op_sel_hi:[1,0]")
        for i in range(nregs):
            a(f"v_rcp_f32 v{tmp+i}, v{tmp+i}")
        a("s_nop 0")
        for i in range(0, nregs, 2):
            a(f"v_pk_mul_f32 v[{tmp+i}:{tmp+i+1}], v[{tmp+i}:{tmp+i+1}], v[{acc+i}:{acc+i+1}]")
        for i in range(0, nregs, 2):
            a(f"v_cvt_pk_bf16_f32 v{tmp+i//2}, v{tmp+i}, v{tmp+i+1}")

    a.lab("K2_EPI")
    epilogue(ACC, D, 8)
    auread(N2)
    a(f"v_lshrrev_b32 v{AD}, 7, v{NA}")
    a(f"v_lshrrev_b32 v{AD+1}, 7, v{NA+1}")
    a(f"v_lshl_add_u32 v{AD}, v{AD}, 8, v{vCo}")
    a(f"v_lshl_add_u32 v{AD+1}, v{AD+1}, 8, v{vCo}")
    a(f"v_cmp_gt_u32 vcc, {BN*128}, v{NA}")
    a("s_mov_b64 exec, vcc")
    a(f"buffer_store_dwordx2 v[{D}:{D+1}], v{AD}, s[{SO}:{SO+3}], s{sOutOff} offen{K2_ST}")
    a("s_mov_b64 exec, -1")
    a(f"v_cmp_gt_u32 vcc, {BN*128}, v{NA+1}")
    a("s_mov_b64 exec, vcc")
    a(f"buffer_store_dwordx2 v[{D+2}:{D+3}], v{AD+1}, s[{SO}:{SO+3}], s{sOutOff} offen{K2_ST}")
    a("s_mov_b64 exec, -1")
    a(f"s_cmp_eq_u32 s{sN2}, 0")
    a("s_cbranch_scc1 K2_FIN")
    a.stamp(14)
    a(f"s_sub_u32 s{sRem}, s{sN2}, 1")
    a(f"s_mov_b32 s{sN2}, 0")
    a(f"v_mov_b32 v{NA}, v{N2}")
    a(f"v_mov_b32 v{NA+1}, v{N2+1}")
    a("s_waitcnt lgkmcnt(0)")
    setup_ac()
    a(f"s_setpc_b64 s[{sRet}:{sRet+1}]")
    a.lab("K2_FIN")
    a.stamp(15)
    a.stampc(31)
    a.stamp_flush(1, sW)
    a("s_endpgm")

    for tag in sw_sites:
        a.lab(f"K2_SW{tag}")
        a(f"s_mov_b32 s{sA}, s{sNxtA}")
        a(f"s_mov_b32 s{sCntS}, s{sNxtCnt}")
        a(f"s_mov_b32 s{sNxtA}, {L_DUM}")
        a(f"s_mov_b32 s{sNxtCnt}, 100")
        a(f"s_branch K2_SWR{tag}")

    a.lab("K2_TAIL")
    a(f"v_lshlrev_b32 v64, 3, v{vLane}")
    a.lab("K2_TAIL_LOOP")
    a(f"s_ff1_i32_b64 s{sT0}, s[{sTM}:{sTM+1}]")
    a(f"s_bitset0_b64 s[{sTM}:{sTM+1}], s{sT0}")
    a(f"v_readlane_b32 s{sT1}, v{vDesc}, s{sT0}")
    a(f"s_add_u32 s{sT0}, s{sT0}, s{sT3}")
    a(f"s_mul_i32 s{sT0}, s{sT0}, {CH}")
    a(f"s_and_b32 s{sT2}, s{sT1}, 0xffff")
    a(f"s_add_u32 s{sT0}, s{sT0}, s{sT2}")
    a(f"s_add_u32 s{sT0}, s{sT0}, 64")
    a(f"s_sub_u32 s{sT0}, s{sT0}, s{sSp}")
    a(f"s_lshr_b32 s{sT1}, s{sT1}, 16")
    a(f"s_sub_u32 s{sT1}, s{sT1}, 64")
    a(f"s_add_u32 s{sT2}, s{sSp}, s{sT1}")
    a(f"s_cmp_gt_u32 s{sT2}, 63")
    a("s_cbranch_scc1 K2_TAILF")
    a(f"s_bfm_b64 s[{sSave}:{sSave+1}], s{sT1}, s{sSp}")
    a(f"s_or_b64 s[{sM+24}:{sM+25}], s[{sM+24}:{sM+25}], s[{sSave}:{sSave+1}]")
    a(f"s_mov_b32 s{sSp}, s{sT2}")
    a(f"s_lshl_b32 s{sT1}, s{sT0}, 2")
    a(f"s_add_u32 s{sT1}, s{sT1}, {KEY_OFF}")
    a(f"s_lshl_b32 s{sT2}, s{sT0}, 3")
    a(f"s_add_u32 s{sT2}, s{sT2}, {EAT_OFF}")
    a(f"s_mov_b64 exec, s[{sSave}:{sSave+1}]")
    a(f"buffer_load_dword v{KEYR+12}, v{vL4}, s[{SWS}:{SWS+3}], s{sT1} offen{LD}")
    a(f"buffer_load_dwordx2 v[{ET}:{ET+1}], v64, s[{SWS}:{SWS+3}], s{sT2} offen{LD}")
    a("s_mov_b64 exec, -1")
    a(f"s_cmp_lg_u64 s[{sTM}:{sTM+1}], 0")
    a("s_cbranch_scc1 K2_TAIL_LOOP")
    a("s_branch K2_TAILR")
    a.lab("K2_TAILF")
    a(f"s_mov_b32 s{sOvf}, 1")
    a("s_branch K2_TAILR")

    L_AGG = L_EA
    a.lab("K2_FALLBACK")
    a("s_waitcnt vmcnt(0) lgkmcnt(0)")
    a(f"s_mov_b32 s{sKK}, {hex(NL2E)}")
    a(f"s_mov_b32 s{sKK+1}, {hex(NL2E)}")
    a("s_barrier")
    a("v_lshlrev_b32 v51, 4, v0")
    a(f"v_add_u32 v51, {L_AGG}, v51")
    for i in range(4):
        a(f"v_mov_b32 v{56+i}, 0")
    for i in range(4):
        a(f"ds_write_b128 v51, v[56:59] offset:{i*16384}")
    a("s_waitcnt lgkmcnt(0)")
    a("s_barrier")
    srd(a, SF0, 10, E * 4)
    srd(a, SF1, 8, E * 4)
    srd(a, SF2, 6, E * 8)
    a(f"s_mul_i32 s{sT3}, s{sBk}, {BN}")
    a(f"s_mul_i32 s{sT2}, s{sBk}, {BN*128}")
    a(f"s_lshl_b32 s{sT0}, s{sW}, 5")
    a(f"v_lshrrev_b32 v51, 1, v{vG8}")
    a.lab("K2_FB_LOOP")
    a(f"s_lshl_b32 s{sT1}, s{sT0}, 1")
    a(f"buffer_load_dword v52, v51, s[{SF0}:{SF0+3}], s{sT0} offen")
    a(f"buffer_load_dword v53, v51, s[{SF1}:{SF1+3}], s{sT0} offen")
    a(f"buffer_load_dwordx2 v[54:55], v{vG8}, s[{SF2}:{SF2+3}], s{sT1} offen")
    a("s_waitcnt vmcnt(0)")
    a(f"v_subrev_u32 v52, s{sT3}, v52")
    a(f"v_cmp_gt_u32 vcc, {BN}, v52")
    a("s_mov_b64 exec, vcc")
    a("s_cbranch_execz K2_FB_NEXT")
    a(f"v_lshl_add_u32 v53, v53, 7, v{vC8}")
    a("v_and_b32 v56, 7, v52")
    a("v_lshlrev_b32 v56, 4, v56")
    a(f"v_lshl_add_u32 v52, v52, 7, v{vC8}")
    a("v_xor_b32 v56, v56, v52")
    a(f"v_add_u32 v56, {L_AUR}, v56")
    a(f"buffer_load_dwordx4 v[16:19], v53, s[{SP}:{SP+3}], 0 offen{LD}")
    a("ds_read_b128 v[20:23], v56")
    a(f"v_add_u32 v52, {L_AGG}, v52")
    a("s_waitcnt vmcnt(0) lgkmcnt(0)")
    for m in range(4):
        a(f"v_cvt_f32_f16 v{20+m}, v{20+m}")
    for m in range(4):
        a(f"v_dot2_f32_bf16 v{20+m}, v54, v{WB+2*m}, v{20+m}")
    for m in range(4):
        a(f"v_dot2_f32_bf16 v{20+m}, v55, v{WB+2*m+1}, v{20+m}")
    a("s_nop 3")
    for m in range(4):
        a(f"v_fma_mix_f32 v{20+m}, v{20+m}, s{sK}, v{16+m} op_sel_hi:[0,0,1]")
    for m in range(4):
        a(f"v_exp_f32 v{20+m}, v{20+m}")
    a("s_nop 0")
    for m in range(4):
        a(f"v_add_f32 v{20+m}, 1.0, v{20+m}")
    for m in range(4):
        a(f"v_rcp_f32 v{20+m}, v{20+m}")
    a("s_nop 0")
    for m in range(4):
        a(f"v_mul_f32 v{20+m}, v{20+m}, v{16+m}")
    for m in range(4):
        a(f"ds_add_f32 v52, v{20+m} offset:{4*m}")
    a.lab("K2_FB_NEXT")
    a("s_mov_b64 exec, -1")
    a(f"s_add_u32 s{sT0}, s{sT0}, 512")
    a(f"s_cmp_lt_u32 s{sT0}, {E*4}")
    a("s_cbranch_scc1 K2_FB_LOOP")
    a("s_waitcnt lgkmcnt(0)")
    a("s_barrier")
    a(f"s_lshl_b32 s{sT0}, s{sW}, 10")
    a(f"v_lshlrev_b32 v51, 4, v{vG8}")
    a.lab("K2_FB_OUT")
    a(f"v_add_u32 v52, s{sT0}, v51")
    a(f"v_add_u32 v53, v52, v{vC8}")
    a(f"v_lshlrev_b32 v56, 1, v{vG8}")
    a("v_xor_b32 v56, v56, v53")
    a(f"v_min_u32 v56, {399*128+112}, v56")
    a(f"v_add_u32 v56, {L_AUR}, v56")
    a("ds_read_b128 v[16:19], v56")
    a(f"v_add_u32 v53, {L_AGG}, v53")
    a("ds_read_b128 v[20:23], v53")
    a("s_waitcnt vmcnt(0) lgkmcnt(0)")
    for m in range(4):
        a(f"v_add_f32 v{16+m}, v{16+m}, v{20+m}")
    epilogue(16, 24, 4)
    a(f"v_lshl_add_u32 v53, v52, 1, v{vCo}")
    a(f"v_cmp_gt_u32 vcc, {BN*128}, v52")
    a("s_mov_b64 exec, vcc")
    a(f"buffer_store_dwordx2 v[24:25], v53, s[{SO}:{SO+3}], s{sOutOff} offen{K2_ST}")
    a("s_mov_b64 exec, -1")
    a(f"s_add_u32 s{sT0}, s{sT0}, 16384")
    a(f"s_cmp_lt_u32 s{sT0}, {BN*128}")
    a("s_cbranch_scc1 K2_FB_OUT")
    a.lab("K2_END")
    a("s_endpgm")


def kd(name, vgpr, sgpr, extra=""):
    acc = (vgpr + 3) // 4 * 4
    return f""".amdhsa_kernel {name}
  .amdhsa_next_free_vgpr {vgpr}
  .amdhsa_next_free_sgpr {sgpr}
  .amdhsa_accum_offset {acc}
  .amdhsa_group_segment_fixed_size 0
  .amdhsa_kernarg_size 80
  .amdhsa_user_sgpr_count 2
  .amdhsa_user_sgpr_kernarg_segment_ptr 1
  .amdhsa_system_sgpr_workgroup_id_x 1
{extra}.end_amdhsa_kernel
"""


def main():
    out = HEADER
    if FUSED:
        out += f"; @launch grid=(256,1,1) block=(1024,1,1) lds={K1_LDS}\n"
    else:
        out += f"; @launch kernel=k1_kernel grid=(256,1,1) block=(1024,1,1) lds={K1_LDS}\n"
        out += f"; @launch kernel=k2_kernel grid=(256,1,1) block=(1024,1,1) lds={K2_LDS}\n"
    out += '.amdgcn_target "amdgcn-amd-amdhsa--gfx950"\n.text\n'
    for name, g in ((KNAME if FUSED else "k1_kernel", gen_k1), ("k2_kernel", gen_k2)):
        a = A()
        g(a)
        if not (FUSED and g is gen_k2):
            out += f".globl {name}\n.p2align 8\n.type {name},@function\n"
        out += "\n".join(a.l) + "\n"
    out += '.section .rodata,"a"\n.p2align 6\n'
    out += kd(KNAME if FUSED else "k1_kernel", 128, 102, "  .amdhsa_fp16_overflow 1\n")
    if not FUSED:
        out += ".p2align 6\n"
        out += kd("k2_kernel", 128, 102)
    path = sys.argv[1] if len(sys.argv) > 1 else "gather_scatter__edge_featured_mpnn_egc__graph.s"
    open(path, "w").write(out)


if __name__ == "__main__":
    main()
```

```python
import sys

N = 25000
E = 400000
NB = 64
BN = 391
CH = 3200
NCH = 125
PS = 25040 * 128
P_OFF = 0
AU_OFF = 0x1000000
KEY_OFF = 0x2000000
EAT_OFF = 0x2200000
DESC_OFF = 0x2800000
GCNT_OFF = 0x2810000
WS_USED = 0x2900000
NL2E = 0xBFB8AA3B
MAGIC = 85817

OPTS = set(sys.argv[2:])
STAMPS = "stamps" in OPTS
STAMP_OFF = 0x3000000
K1_ST = ""
K2_ST = ""
NT_E = "" if "noent" in OPTS else " nt"
NT_X = " nt" if "xnt" in OPTS else ""
FUSED = "split" not in OPTS
K1_ST = " sc1"
LD = " sc1" if FUSED else ""
KNAME = "gather_scatter__edge_featured_mpnn_egc__graph_kernel"
SDB = 96
for o in OPTS:
    if o.startswith("k1st="):
        K1_ST = " " + o[5:].replace("+", " ")
    if o.startswith("k2st="):
        K2_ST = " " + o[5:].replace("+", " ")

HEADER = """; Kernarg layout for this problem (80 bytes, ptrs only, base s[0:1]):
"""


class A:
    def __init__(self):
        self.l = []
        self.vst = None

    def __call__(self, s):
        for x in s.strip().split("\n"):
            self.l.append("    " + x.strip())

    def lab(self, s):
        self.l.append(s + ":")

    def c(self, s):
        self.l.append("    ; " + s)

    def stamp(self, idx):
        if not STAMPS:
            return
        self("s_memrealtime s[100:101]")
        self("s_waitcnt lgkmcnt(0)")
        self(f"v_writelane_b32 v{self.vst}, s100, {idx}")

    def stampc(self, idx):
        if not STAMPS:
            return
        self("s_memtime s[100:101]")
        self("s_waitcnt lgkmcnt(0)")
        self(f"v_writelane_b32 v{self.vst}, s100, {idx}")

    def stamp_flush(self, kidx, sw):
        if not STAMPS:
            return
        self("s_mov_b64 exec, -1")
        self(f"s_add_u32 s12, s20, {STAMP_OFF + kidx*0x100000}")
        self("s_addc_u32 s13, s21, 0")
        self("s_mov_b32 s14, 0x100000")
        self("s_mov_b32 s15, 0x20000")
        self("s_lshl_b32 s100, s2, 12")
        self(f"v_mbcnt_lo_u32_b32 v{self.vst+1}, -1, 0")
        self(f"v_mbcnt_hi_u32_b32 v{self.vst+1}, -1, v{self.vst+1}")
        self(f"v_lshlrev_b32 v{self.vst+1}, 2, v{self.vst+1}")
        self(f"s_lshl_b32 s101, s{sw}, 8")
        self("s_add_u32 s100, s100, s101")
        self(f"buffer_store_dword v{self.vst}, v{self.vst+1}, s[12:15], s100 offen")


def srd(a, d, base, size, off=0):
    if off:
        a(f"s_add_u32 s{d}, s{base}, {off}")
        a(f"s_addc_u32 s{d+1}, s{base+1}, 0")
    else:
        a(f"s_mov_b32 s{d}, s{base}")
        a(f"s_mov_b32 s{d+1}, s{base+1}")
    a(f"s_mov_b32 s{d+2}, {size}")
    a(f"s_mov_b32 s{d+3}, 0x20000")


def scan64(a, v):
    for sh in (1, 2, 4, 8):
        a("s_nop 1")
        a(f"v_add_u32_dpp v{v}, v{v}, v{v} row_shr:{sh} row_mask:0xf bank_mask:0xf bound_ctrl:0")
    a("s_nop 1")
    a(f"v_add_u32_dpp v{v}, v{v}, v{v} row_bcast:15 row_mask:0xa bank_mask:0xf")
    a("s_nop 1")
    a(f"v_add_u32_dpp v{v}, v{v}, v{v} row_bcast:31 row_mask:0xc bank_mask:0xf")


K1_WP = 98304
K1_WAU = 102400
K1_CNT = 118784
K1_STK = K1_CNT + 2048
K1_STE = K1_STK + 12800
K1_SCR = 131072
L_AUR = 112640
L_GW = 103936
K1_LDS = 163840
assert K1_STE + 25600 <= K1_LDS


def poll(a, tag, vP, off, val=None, slp=2):
    a("s_mov_b32 s101, 0x40000")
    a("s_mov_b64 exec, 1")
    a.lab(f"POLL{tag}")
    a(f"buffer_load_dword v{vP}, off, s[{SDB}:{SDB+3}], 0 offset:{off} sc1")
    a("s_waitcnt vmcnt(0)")
    a(f"v_cmp_ne_u32 vcc, 0, v{vP}" if val is None else f"v_cmp_eq_u32 vcc, {val}, v{vP}")
    a("s_sub_u32 s101, s101, 1")
    a(f"s_cbranch_scc1 POLLD{tag}")
    a(f"s_cbranch_vccnz POLLD{tag}")
    a(f"s_sleep {slp}")
    a(f"s_branch POLL{tag}")
    a.lab(f"POLLD{tag}")
    a("s_mov_b64 exec, -1")


def gen_k1(a):
    sW, sSl, sBk, sT0, sT1, sT2, sT3 = 22, 23, 24, 25, 26, 27, 28
    sG = 29
    sEx = 30
    SD, SS, SE, SWS, SX, SWL, SWH = 32, 36, 40, 44, 48, 52, 56
    sScale, sOut, sS, sQ, sX0, sDl, sJ, sSlot = 60, 61, 62, 63, 64, 65, 66, 67
    sUns = 94
    vLane = 1
    VX = 40
    VW = 44
    a.lab(KNAME)
    a.vst = 11
    a("s_cmp_ge_u32 s2, 256")
    a("s_cbranch_scc1 K1_END2")
    a.stamp(0)
    a.stampc(30)
    a("s_load_dwordx16 s[4:19], s[0:1], 0")
    a("s_load_dwordx2 s[20:21], s[0:1], 72")
    a(f"s_load_dwordx2 s[{SDB}:{SDB+1}], s[0:1], 64")
    a("v_lshrrev_b32 v2, 6, v0")
    a(f"v_and_b32 v{vLane}, 63, v0")
    a(f"v_readfirstlane_b32 s{sW}, v2")
    a(f"s_mov_b32 s{SDB+2}, 256")
    a(f"s_mov_b32 s{SDB+3}, 0x20000")
    a(f"s_and_b32 s{sSl}, s2, 3")
    a(f"s_lshr_b32 s{sT0}, s2, 2")
    a(f"s_mov_b32 s{sBk}, s{sT0}")
    a(f"s_lshl_b32 s{sG}, s{sT0}, 1")
    a(f"s_add_u32 s{sG}, s{sG}, s{sSl}")
    a(f"s_mul_i32 s{sX0}, s{sBk}, {BN*256}")
    a(f"s_cmp_eq_u32 s{sSl}, 2")
    a(f"s_cselect_b32 s{sDl}, 1, 0")
    a("v_lshlrev_b32 v2, 4, v0")
    a("v_lshlrev_b32 v3, 5, v0")
    a(f"v_lshrrev_b32 v4, 4, v{vLane}")
    a(f"v_and_b32 v5, 15, v{vLane}")
    a("v_xor_b32 v6, v5, v4")
    a("v_lshlrev_b32 v6, 4, v6")
    a(f"v_lshl_add_u32 v{VX}, v4, 8, v6")
    a(f"v_xor_b32 v{VX+1}, 64, v{VX}")
    a(f"v_xor_b32 v{VX+2}, 0x80, v{VX}")
    a(f"v_xor_b32 v{VX+3}, 0xc0, v{VX}")
    a("v_lshrrev_b32 v6, 1, v5")
    a("v_xor_b32 v6, v6, v4")
    a("v_lshlrev_b32 v6, 5, v6")
    a("v_lshl_add_u32 v6, v4, 8, v6")
    a(f"v_and_b32 v7, 1, v{vLane}")
    a(f"v_lshl_add_u32 v{VW}, v7, 4, v6")
    a(f"v_xor_b32 v{VW+1}, 0x80, v{VW}")
    a(f"v_lshrrev_b32 v6, 2, v{vLane}")
    a("v_lshlrev_b32 v6, 8, v6")
    a(f"v_and_b32 v7, 3, v{vLane}")
    a(f"v_lshl_add_u32 v{VW+2}, v7, 4, v6")
    a("s_waitcnt lgkmcnt(0)")
    a.stamp(1)
    srd(a, SX, 4, N * 256)
    a(f"s_cmp_ge_u32 s{sSl}, 2")
    a("s_cbranch_scc1 K1_TB")

    def xdma(slot_sgpr, tag):
        a(f"s_lshl_b32 s{sT0}, s{slot_sgpr}, 12")
        a(f"s_mov_b32 m0, s{sT0}")
        a(f"s_sub_u32 s{sT1}, s{slot_sgpr}, s{sDl}")
        a(f"s_cselect_b32 s{sT1}, 24, s{sT1}")
        a(f"s_lshl_b32 s{sT1}, s{sT1}, 12")
        a(f"s_add_u32 s{sT1}, s{sT1}, s{sX0}")
        for pp in range(4):
            a(f"buffer_load_dwordx4 v{VX+pp}, s[{SX}:{SX+3}], s{sT1} offen offset:{pp*1024}{NT_X} lds")

    def waudma(piece_sgpr):
        a(f"s_lshl_b32 s{sT0}, s{piece_sgpr}, 10")
        a(f"s_add_u32 s{sT0}, s{sT0}, {K1_WAU}")
        a(f"s_mov_b32 m0, s{sT0}")
        a(f"s_and_b32 s{sT1}, s{piece_sgpr}, 7")
        a(f"s_lshl_b32 s{sT1}, s{sT1}, 12")
        a(f"s_lshl_b32 s{sT0}, s{sSl}, 6")
        a(f"s_add_u32 s{sT1}, s{sT1}, s{sT0}")
        a(f"s_cmp_lt_u32 s{piece_sgpr}, 8")
        a(f"s_cselect_b32 s{SWL}, s16, s12")
        a(f"s_cselect_b32 s{SWL+1}, s17, s13")
        a(f"s_mov_b32 s{SWL+2}, 32768")
        a(f"s_mov_b32 s{SWL+3}, 0x20000")
        a(f"buffer_load_dwordx4 v{VW+2}, s[{SWL}:{SWL+3}], s{sT1} offen lds")

    a(f"s_cmp_ge_u32 s{sG}, {NCH}")
    a("s_cbranch_scc1 K1_NOEDGE")
    a(f"s_cmp_ge_u32 s{sW}, 13")
    a("s_cbranch_scc1 K1_NOEDGE")
    srd(a, SD, 10, E * 4)
    srd(a, SS, 8, E * 4)
    srd(a, SE, 6, E * 8)
    a("v_cmp_gt_u32 vcc, 800, v0")
    a(f"s_mul_i32 s{sT0}, s{sG}, {CH*4}")
    a(f"s_mul_i32 s{sT1}, s{sG}, {CH*8}")
    a(f"s_mov_b64 s[{sEx}:{sEx+1}], vcc")
    a("s_mov_b64 exec, vcc")
    a(f"buffer_load_dwordx4 v[16:19], v2, s[{SD}:{SD+3}], s{sT0} offen{NT_E}")
    a(f"buffer_load_dwordx4 v[20:23], v2, s[{SS}:{SS+3}], s{sT0} offen{NT_E}")
    a(f"buffer_load_dwordx4 v[24:27], v3, s[{SE}:{SE+3}], s{sT1} offen{NT_E}")
    a(f"buffer_load_dwordx4 v[28:31], v3, s[{SE}:{SE+3}], s{sT1} offen offset:16{NT_E}")
    a("s_mov_b64 exec, -1")
    a.lab("K1_NOEDGE")
    srd(a, SWS, 20, WS_USED)
    a(f"v_lshlrev_b32 v6, 2, v{vLane}")
    a(f"v_add_u32 v6, {K1_CNT}, v6")
    a("v_mov_b32 v7, 0")
    a(f"v_mov_b32 v12, {K1_CNT+1024}")
    a(f"s_cmp_lg_u32 s{sW}, 0")
    a("s_cbranch_scc1 K1_P1")
    a("ds_write_b32 v6, v7")
    a("ds_write_b32 v6, v7 offset:256")
    a("ds_write_b32 v6, v7 offset:1024")
    a("s_waitcnt lgkmcnt(0)")
    a.lab("K1_P1")
    a("s_barrier")
    a(f"s_cmp_lt_u32 s{sW}, 13")
    a("s_cbranch_scc1 K1_PW")
    a.c("loader waves 13..15 : W_AU pieces and x tiles by LDS-DMA")
    a(f"s_sub_u32 s{sJ}, s{sW}, 13")
    a.lab("K1_LA1")
    waudma(sJ)
    a(f"s_add_u32 s{sJ}, s{sJ}, 3")
    a(f"s_cmp_lt_u32 s{sJ}, 16")
    a("s_cbranch_scc1 K1_LA1")
    a(f"s_sub_u32 s{sJ}, s{sW}, 13")
    a.lab("K1_LA2")
    xdma(sJ, "A")
    a(f"s_add_u32 s{sJ}, s{sJ}, 3")
    a(f"s_cmp_lt_u32 s{sJ}, 25")
    a("s_cbranch_scc1 K1_LA2")
    a.stamp(2)
    a("s_waitcnt vmcnt(0)")
    a.stamp(13)
    a("s_branch K1_AU")
    a.lab("K1_PW")
    a(f"s_cmp_ge_u32 s{sG}, {NCH}")
    a("s_cbranch_scc1 K1_AU")

    def sb(k, tag):
        a("s_waitcnt lgkmcnt(0)")
        a("s_mov_b64 exec, 1")
        a(f"ds_add_u32 v12, v7 offset:{4+4*k}")
        a("s_mov_b64 exec, -1")
        a.lab(f"K1_SB{tag}")
        a(f"ds_read_b32 v13, v12 offset:{4+4*k}")
        a("s_waitcnt lgkmcnt(0)")
        a("v_cmp_gt_u32 vcc, 13, v13")
        a(f"s_cbranch_vccnz K1_SB{tag}")
    a(f"s_mov_b32 s{sT0}, {MAGIC}")
    a(f"s_mov_b32 s{sT1}, {-BN & 0xffffffff}")
    a("v_mov_b32 v7, 1")
    a(f"s_mov_b64 exec, s[{sEx}:{sEx+1}]")
    a("s_waitcnt vmcnt(3)")
    a.stamp(3)
    for i in range(4):
        a(f"v_mul_u32_u24 v{32+i}, s{sT0}, v{16+i}")
    for i in range(4):
        a(f"v_lshrrev_b32 v{32+i}, 25, v{32+i}")
    for i in range(4):
        a(f"v_mad_i32_i24 v{16+i}, v{32+i}, s{sT1}, v{16+i}")
    for i in range(4):
        a(f"v_lshlrev_b32 v{32+i}, 2, v{32+i}")
    for i in range(4):
        a(f"v_add_u32 v{32+i}, {K1_CNT}, v{32+i}")
    for i in range(4):
        a(f"ds_add_rtn_u32 v{36+i}, v{32+i}, v7")
    for i in range(4):
        a(f"v_lshlrev_b32 v{16+i}, 2, v{16+i}")
    a("s_waitcnt vmcnt(2)")
    for i in range(4):
        a(f"v_lshl_or_b32 v{20+i}, v{20+i}, 16, v{16+i}")
    sb(0, "2")
    a.stamp(4)
    a("ds_read_b32 v8, v6")
    a("s_waitcnt lgkmcnt(0)")
    a("v_mov_b32 v9, v8")
    scan64(a, 9)
    a("v_sub_u32 v9, v9, v8")
    a("ds_write_b32 v6, v9 offset:512")
    a("v_lshl_or_b32 v8, v8, 16, v9")
    a(f"s_mov_b64 exec, s[{sEx}:{sEx+1}]")
    for i in range(4):
        a(f"ds_read_b32 v{32+i}, v{32+i} offset:512")
    a("s_waitcnt lgkmcnt(0)")
    for i in range(4):
        a(f"v_add_u32 v{32+i}, v{32+i}, v{36+i}")
    for i in range(4):
        a(f"v_lshlrev_b32 v{36+i}, 2, v{32+i}")
        a(f"v_lshlrev_b32 v{32+i}, 3, v{32+i}")
    for i in range(4):
        a(f"v_add_u32 v{36+i}, {K1_STK}, v{36+i}")
        a(f"v_add_u32 v{32+i}, {K1_STE}, v{32+i}")
    for i in range(4):
        a(f"ds_write_b32 v{36+i}, v{20+i}")
    a("s_waitcnt vmcnt(0)")
    for i in range(4):
        a(f"ds_write_b64 v{32+i}, v[{24+2*i}:{25+2*i}]")
    a("v_or3_b32 v16, v24, v25, v26")
    a("v_or3_b32 v17, v27, v28, v29")
    a("v_or3_b32 v16, v30, v31, v16")
    a("v_or_b32 v16, v16, v17")
    a("v_and_b32 v16, 0x40004000, v16")
    a("v_cmp_ne_u32 vcc, 0, v16")
    a(f"s_cmp_lg_u64 vcc, 0")
    a(f"s_cselect_b32 s{sUns}, 0x101, 1")
    sb(1, "3")
    a.stamp(5)
    a(f"s_mov_b64 exec, s[{sEx}:{sEx+1}]")
    a(f"v_add_u32 v6, {K1_STK}, v2")
    a("ds_read_b128 v[16:19], v6")
    a("ds_read_b128 v[20:23], v6 offset:12800")
    a("ds_read_b128 v[24:27], v6 offset:25600")
    a(f"s_mul_i32 s{sT0}, s{sG}, {CH*4}")
    a(f"s_add_u32 s{sT0}, s{sT0}, {KEY_OFF}")
    a(f"s_mul_i32 s{sT1}, s{sG}, {CH*8}")
    a(f"s_add_u32 s{sT1}, s{sT1}, {EAT_OFF}")
    a(f"s_add_u32 s{sT2}, s{sT1}, 12800")
    a("s_waitcnt lgkmcnt(2)")
    a(f"buffer_store_dwordx4 v[16:19], v2, s[{SWS}:{SWS+3}], s{sT0} offen{K1_ST}")
    a("s_waitcnt lgkmcnt(1)")
    a(f"buffer_store_dwordx4 v[20:23], v2, s[{SWS}:{SWS+3}], s{sT1} offen{K1_ST}")
    a("s_waitcnt lgkmcnt(0)")
    a(f"buffer_store_dwordx4 v[24:27], v2, s[{SWS}:{SWS+3}], s{sT2} offen{K1_ST}")
    a("s_mov_b64 exec, -1")
    a(f"s_cmp_lg_u32 s{sW}, 0")
    a("s_cbranch_scc1 K1_P2B")
    a(f"v_lshlrev_b32 v9, 2, v{vLane}")
    a(f"s_lshl_b32 s{sT0}, s{sG}, 8")
    a(f"s_add_u32 s{sT0}, s{sT0}, {DESC_OFF}")
    a(f"buffer_store_dword v8, v9, s[{SWS}:{SWS+3}], s{sT0} offen{K1_ST}")
    a.lab("K1_P2B")
    a.c("publish the partition: the last of the 13 storing waves counts this workgroup into R")
    a(f"v_mov_b32 v15, s{sUns}")
    a("s_waitcnt vmcnt(0)")
    a("s_mov_b64 exec, 1")
    a("ds_add_rtn_u32 v14, v12, v15")
    a("s_waitcnt lgkmcnt(0)")
    a("v_add_u32 v14, v14, v15")
    a("v_and_b32 v15, 0xff, v14")
    a("v_cmp_eq_u32 vcc, 13, v15")
    a("s_cbranch_vccz K1_NOR2")
    a("v_lshrrev_b32 v14, 8, v14")
    a("v_lshl_or_b32 v14, v14, 16, 1")
    a("v_mov_b32 v15, v14")
    a(f"buffer_atomic_add v15, off, s[{SDB}:{SDB+3}], 0 sc0 sc1")
    a("s_waitcnt vmcnt(0)")
    a("v_add_u32 v15, v15, v14")
    a("v_and_b32 v14, 0xffff, v15")
    a(f"v_cmp_eq_u32 vcc, {NCH}, v14")
    a("s_cbranch_vccz K1_NOR2")
    a(f"buffer_store_dword v15, off, s[{SDB}:{SDB+3}], 0 offset:192 sc1")
    a.lab("K1_NOR2")
    a("s_mov_b64 exec, -1")
    a.stamp(6)
    a("s_branch K1_AU")

    a.lab("K1_TB")
    a(f"s_add_u32 s{sT0}, s16, 32768")
    a(f"s_addc_u32 s{sT1}, s17, 0")
    a(f"s_cmp_lt_u32 s{sW}, 8")
    a(f"s_cselect_b32 s{SWH}, s{sT0}, s14")
    a(f"s_cselect_b32 s{SWH+1}, s{sT1}, s15")
    a(f"s_mov_b32 s{SWH+2}, 32768")
    a(f"s_mov_b32 s{SWH+3}, 0x20000")
    a(f"s_lshl_b32 s{sT0}, s{sW}, 12")
    a(f"s_add_u32 s{sT1}, s{sT0}, {K1_WP}")
    a(f"s_mov_b32 m0, s{sT1}")
    a(f"s_and_b32 s{sT0}, s{sT0}, 0x7fff")
    for pp in range(4):
        a(f"buffer_load_dwordx4 v{VW+(pp>>1)}, s[{SWH}:{SWH+3}], s{sT0} offen offset:{pp*1024} lds")
    srd(a, SWS, 20, WS_USED)
    a(f"s_cmp_ge_u32 s{sW}, 13")
    a("s_cbranch_scc1 K1_B0")
    a(f"s_lshl_b32 s{sJ}, s{sW}, 1")
    a(f"s_add_u32 s{sJ}, s{sJ}, 1")
    a(f"s_cmp_eq_u32 s{sW}, 12")
    a(f"s_cselect_b32 s{sJ}, 0, s{sJ}")
    xdma(sJ, "B")
    a.lab("K1_B0")
    a(f"s_and_b32 s{sS}, s{sW}, 3")
    a(f"s_lshr_b32 s{sQ}, s{sW}, 2")
    a(f"v_lshrrev_b32 v2, 4, v{vLane}")
    a(f"v_and_b32 v3, 15, v{vLane}")
    a("v_lshrrev_b32 v48, 2, v3")
    a("v_and_b32 v49, 1, v2")
    a("v_lshl_or_b32 v49, v49, 2, v48")
    a(f"s_lshl_b32 s{sT0}, s{sS}, 1")
    a(f"v_xor_b32 v49, s{sT0}, v49")
    a("v_lshlrev_b32 v49, 5, v49")
    a("v_lshl_add_u32 v48, v2, 3, v48")
    a("v_lshl_add_u32 v48, v48, 8, v49")
    a(f"v_and_b32 v49, 3, v{vLane}")
    a("v_lshl_add_u32 v48, v49, 3, v48")
    a(f"v_add_u32 v48, {K1_WP}, v48")
    a("v_xor_b32 v49, 32, v48")
    a("v_and_b32 v10, 7, v3")
    a("v_xor_b32 v10, v10, v2")
    a("v_lshlrev_b32 v10, 4, v10")
    a("v_lshl_add_u32 v10, v3, 7, v10")
    a(f"s_lshl_b32 s{sT0}, s{sW}, 11")
    a(f"s_add_u32 s{sT0}, s{sT0}, {K1_SCR}")
    a(f"v_add_u32 v10, s{sT0}, v10")
    a("v_xor_b32 v0, 64, v10")
    a(f"v_lshlrev_b32 v2, 4, v{vLane}")
    a(f"v_add_u32 v2, s{sT0}, v2")
    a(f"v_lshrrev_b32 v3, 3, v{vLane}")
    a(f"v_and_b32 v28, 7, v{vLane}")
    a("v_xor_b32 v28, v28, v3")
    a("v_lshlrev_b32 v28, 4, v28")
    a("v_lshl_add_u32 v3, v3, 7, v28")
    a(f"s_mov_b32 s{sScale}, {hex(NL2E)}")
    a(f"s_cmp_ge_u32 s{sW}, 13")
    a("s_cbranch_scc1 K1_B1")
    a("s_waitcnt vmcnt(4)")
    a("s_branch K1_B2")
    a.lab("K1_B1")
    a("s_waitcnt vmcnt(0)")
    a.lab("K1_B2")
    a.stamp(2)
    a("s_barrier")
    WF = 64

    def wf(mat, ct, ks):
        return WF + ((mat * 2 + ct) * 4 + ks) * 4
    for ks in range(4):
        for mat in range(2):
            for ct in range(2):
                b = wf(mat, ct, ks)
                off = mat * 32768 + ks * 8192
                a(f"ds_read_b64_tr_b16 v[{b}:{b+1}], v{48+ct} offset:{off}")
                a(f"ds_read_b64_tr_b16 v[{b+2}:{b+3}], v{48+ct} offset:{off+1024}")
    a("s_waitcnt lgkmcnt(0)")
    a.stamp(3)
    a("s_barrier")
    a(f"v_mov_b32 v50, {K1_CNT}")
    a("v_mov_b32 v51, 0")
    a("ds_write_b32 v50, v51")
    waudma(sW)
    a(f"s_cmp_ge_u32 s{sW}, 12")
    a("s_cbranch_scc1 K1_B3")
    a(f"s_lshl_b32 s{sJ}, s{sW}, 1")
    a(f"s_add_u32 s{sJ}, s{sJ}, 2")
    xdma(sJ, "C")
    a("s_waitcnt vmcnt(5)")
    a("s_branch K1_B4")
    a.lab("K1_B3")
    a("s_waitcnt vmcnt(1)")
    a.lab("K1_B4")
    XF = [32, 48]

    def xconst():
        a(f"v_lshrrev_b32 v4, 4, v{vLane}")
        a(f"v_and_b32 v5, 15, v{vLane}")
        a("v_xor_b32 v4, v4, v5")
        a("v_lshlrev_b32 v4, 4, v4")
        a("v_lshl_add_u32 v5, v5, 8, v4")

    def xread(buf, slot_sgpr):
        a(f"s_lshl_b32 s{sT0}, s{slot_sgpr}, 12")
        a(f"v_add_u32 v6, s{sT0}, v5")
        a("v_xor_b32 v7, 64, v6")
        a("v_xor_b32 v8, 0x80, v6")
        a("v_xor_b32 v9, 0xc0, v6")
        for ks in range(4):
            a(f"ds_read_b128 v[{XF[buf]+4*ks}:{XF[buf]+4*ks+3}], v{6+ks}")

    def mfmas(buf, mid=None):
        for ks in range(4):
            for mat in range(2):
                for ct in range(2):
                    d = 16 + (mat * 2 + ct) * 4
                    b = wf(mat, ct, ks)
                    cin = "0" if ks == 0 else f"v[{d}:{d+3}]"
                    a(f"v_mfma_f32_16x16x32_bf16 v[{d}:{d+3}], v[{b}:{b+3}], v[{XF[buf]+4*ks}:{XF[buf]+4*ks+3}], {cin}")
            if ks == 0 and mid:
                mid()
    xconst()
    a(f"s_lshl_b32 s{sSlot}, s{sQ}, 1")
    a(f"s_add_u32 s{sSlot}, s{sSlot}, 1")
    a(f"s_mul_i32 s{sOut}, s{sS}, {PS}")
    a(f"s_lshr_b32 s{sT0}, s{sX0}, 1")
    a(f"s_add_u32 s{sOut}, s{sOut}, s{sT0}")
    a(f"s_sub_u32 s{sT0}, s{sSlot}, s{sDl}")
    a(f"s_lshl_b32 s{sT0}, s{sT0}, 11")
    a(f"s_add_u32 s{sOut}, s{sOut}, s{sT0}")
    a.stamp(4)
    a("v_mov_b32 v4, 0")
    a("s_waitcnt lgkmcnt(0)")
    a("s_barrier")
    a.stamp(7)
    a.stampc(31)
    xread(0, sSlot)
    for i in range(4):
        buf = i & 1
        if i == 3:
            a.c("13th P tile (tile 24, slot 0): slice 2, set 0 only")
            a(f"s_cmp_lg_u32 s{sQ}, 0")
            a("s_cbranch_scc1 K1_PDONE")
            a(f"s_cmp_eq_u32 s{sDl}, 0")
            a("s_cbranch_scc1 K1_PDONE")
        if i < 2:
            a(f"s_add_u32 s{sSlot}, s{sSlot}, 8")
        elif i == 2:
            a(f"s_mov_b32 s{sSlot}, 0")
        a("s_waitcnt lgkmcnt(0)")
        mfmas(buf, (lambda: xread(buf ^ 1, sSlot)) if i < 3 else None)
        a("s_nop 7")
        for r in range(16, 32, 2):
            a(f"v_max3_f32 v4, abs(v{r}), abs(v{r+1}), v4")
        for ct in range(2):
            for j in range(4):
                a(f"v_fma_mixlo_f16 v{24+4*ct+j}, v{16+4*ct+j}, s{sScale}, 0")
        a("ds_write_b128 v10, v[24:27]")
        a("ds_write_b128 v0, v[28:31]")
        a("ds_read_b128 v[12:15], v2")
        a("ds_read_b128 v[16:19], v2 offset:1024")
        a("s_waitcnt lgkmcnt(1)")
        a(f"buffer_store_dwordx4 v[12:15], v3, s[{SWS}:{SWS+3}], s{sOut} offen{K1_ST}")
        a("s_waitcnt lgkmcnt(0)")
        a(f"buffer_store_dwordx4 v[16:19], v3, s[{SWS}:{SWS+3}], s{sOut} offen offset:1024{K1_ST}")
        a.stamp(8 + i)
        if i < 3:
            a(f"s_add_u32 s{sOut}, s{sOut}, 16384")
            a("s_nop 1")
    a.lab("K1_PDONE")
    a("v_cmp_le_f32 vcc, 4.0, v4")
    a("s_cbranch_vccz K1_PSAFE")
    a(f"v_mov_b32 v12, {K1_CNT}")
    a("v_mov_b32 v13, 0x10000")
    a("ds_write_b32 v12, v13")
    a.lab("K1_PSAFE")
    a("s_waitcnt vmcnt(6) lgkmcnt(0)")
    a.lab("K1_AU")
    xconst()
    a(f"v_lshrrev_b32 v2, 4, v{vLane}")
    a(f"v_and_b32 v3, 15, v{vLane}")
    a("v_lshrrev_b32 v48, 2, v3")
    a("v_lshl_add_u32 v48, v2, 3, v48")
    a("v_lshlrev_b32 v48, 6, v48")
    a(f"v_and_b32 v49, 3, v{vLane}")
    a("v_lshl_add_u32 v48, v49, 3, v48")
    a(f"v_add_u32 v48, {K1_WAU}, v48")
    a("v_and_b32 v10, 7, v3")
    a("v_xor_b32 v10, v10, v2")
    a("v_lshlrev_b32 v10, 4, v10")
    a("v_lshl_add_u32 v10, v3, 7, v10")
    a(f"v_add_u32 v10, {L_AUR}, v10")
    a(f"s_mov_b32 s{sSlot}, s{sW}")
    a(f"v_mov_b32 v14, {K1_CNT}")
    a.stamp(14)
    a("s_barrier")
    a.stamp(15)
    a("ds_read_b32 v15, v14")
    xread(0, sSlot)
    for ks in range(4):
        for mat in range(2):
            for ct in range(2):
                b = wf(mat, ct, ks)
                off = mat * 8192 + ks * 2048 + ct * 32
                a(f"ds_read_b64_tr_b16 v[{b}:{b+1}], v48 offset:{off}")
                a(f"ds_read_b64_tr_b16 v[{b+2}:{b+3}], v48 offset:{off+256}")
    a("s_waitcnt vmcnt(0) lgkmcnt(0)")
    a("s_barrier")
    a(f"s_cmp_lg_u32 s{sW}, 15")
    a("s_cbranch_scc1 K1_NZ")
    a(f"v_mov_b32 v14, {L_GW}")
    a("v_mov_b32 v3, 0")
    a("ds_write_b32 v14, v3")
    a(f"s_cmp_lt_u32 s{sSl}, 2")
    a("s_cbranch_scc1 K1_NZ")
    a.c("count this workgroup's P tiles in")
    a("v_or_b32 v15, 1, v15")
    a("v_mov_b32 v14, v15")
    a("s_mov_b64 exec, 1")
    a(f"buffer_atomic_add v14, off, s[{SDB}:{SDB+3}], 0 offset:64 sc0 sc1")
    a("s_mov_b64 exec, -1")
    a.lab("K1_NZ")
    a("v_mov_b32 v4, 0")
    a.stamp(16)
    for i in range(2):
        a(f"s_sub_u32 s{sT1}, s{sSlot}, s{sDl}")
        a(f"s_cselect_b32 s{sT1}, 24, s{sT1}")
        a(f"s_lshl_b32 s{sT1}, s{sT1}, 11")
        a(f"v_add_u32 v12, s{sT1}, v10")
        a("v_xor_b32 v13, 64, v12")
        if i == 0:
            a(f"s_add_u32 s{sSlot}, s{sSlot}, 16")
            a(f"s_min_u32 s{sJ}, s{sSlot}, 24")
        a("s_waitcnt lgkmcnt(0)")
        mfmas(i, (lambda: xread(1, sJ)) if i == 0 else None)
        a("s_nop 7")
        for r in range(16, 24, 2):
            a(f"v_max3_f32 v4, abs(v{r}), abs(v{r+1}), v4")
        for ct in range(2):
            for j in range(4):
                a(f"v_fma_mixlo_f16 v{24+4*ct+j}, v{16+4*ct+j}, 1.0, 0")
        a("ds_write_b128 v12, v[24:27]")
        a("ds_write_b128 v13, v[28:31]")
        if i == 0:
            a(f"s_cmp_ge_u32 s{sSlot}, 25")
            a("s_cbranch_scc1 K1_END")
    a.lab("K1_END")
    a("v_cmp_le_f32 vcc, 4.0, v4")
    a("s_cmp_lg_u64 vcc, 0")
    a(f"s_cselect_b32 s{sUns+1}, 1, 0")
    a.stamp(12)
    a.stampc(32)
    a.stamp_flush(0, sW)
    a.c("wave 15 waits until every partition workgroup has counted into R")
    a(f"s_cmp_lg_u32 s{sW}, 15")
    a("s_cbranch_scc1 K1_RDONE")
    a(f"s_cmp_lt_u32 s{sSl}, 2")
    a("s_cbranch_scc1 K1_NG")
    a("s_mov_b64 exec, 1")
    a("s_waitcnt vmcnt(0)")
    a("v_add_u32 v14, v14, v15")
    a("v_and_b32 v15, 0xffff, v14")
    a("v_cmp_eq_u32 vcc, 0x80, v15")
    a("s_cbranch_vccz K1_NG")
    a(f"buffer_store_dword v14, off, s[{SDB}:{SDB+3}], 0 offset:128 sc1")
    a.lab("K1_NG")
    poll(a, "R", 22, 192, None, 4)
    a("v_readfirstlane_b32 s100, v22")
    a("s_nop 3")
    a("s_lshr_b32 s100, s100, 16")
    a(f"s_or_b32 s{sUns+1}, s{sUns+1}, s100")
    a.lab("K1_RDONE")
    a(f"s_lshl_b32 s{sT0}, s{sW}, 6")
    a(f"v_add_u32 v0, s{sT0}, v{vLane}")
    a("s_branch K2_ENTRY")
    a.lab("K1_END2")
    a("s_endpgm")


CAP = 8192
L_CNT = 0
L_ORD = 2048
L_DH = 4096
L_BST = 4352
L_SB = 4608
L_FLAG = 4864
L_GD = L_FLAG + 4
L_ELL = 5120
L_DUM = L_ELL + CAP * 4
L_EA = L_DUM + 512
NKW = 11
EA_TAIL = NKW * 12 * 64
EA_ZERO = EA_TAIL + NKW * 64
assert L_EA + EA_ZERO * 8 + 8 <= L_AUR
DUMMY = 0xFFFF0000 | EA_ZERO
DUMMY_NODE = 399 * 128
NBATCH = (BN + 15) // 16
NR = 13


def gen_k2(a):
    assert FUSED
    sW, sSl, sBk = 22, 23, 24
    sT0, sT1, sT2, sT3 = 25, 26, 27, 28
    sK = 29
    sSp, sOvf = 30, 31
    SWS, SP, SO, SG = 32, 36, 40, 44
    SDS = 48
    sSave = 54
    sM = 56
    sKK = 56
    sRet = 82
    SA = 84
    SF0, SF1, SF2 = 64, 44, 60
    sTM, sEarly, sOutOff, sK2, sK1 = 88, 90, 91, 92, 93
    sA, sCntS, sNxtA, sNxtCnt, sRem, sN2 = 48, 49, 50, 51, 52, 53
    vLane, vC8, vG8, vRec4, vCo, vS, vSrc, vEa, vT = 1, 2, 3, 4, 5, 6, 7, 8, 9
    NA, N2, EE = 10, 12, 14
    ACC, AC, D = 16, 24, 40
    PP = [56, 72, 88]
    R, WB, vStg = 104, 112, 122
    AD = R
    KEYR, RK, HA = 24, 37, 50
    ET, WR, AU2 = 70, 88, 96
    vDesc = 104
    vL4, vL16, vIdx, v64c = 65, 66, 67, 68
    T = 72
    a.vst = 120

    def auread(n):
        a(f"v_xor_b32 v{vT}, v{n}, v{vC8}")
        a(f"v_xor_b32 v{AD+2}, v{n+1}, v{vC8}")
        a(f"v_add_u32 v{vT}, {L_AUR}, v{vT}")
        a(f"v_add_u32 v{AD+2}, {L_AUR}, v{AD+2}")
        a(f"ds_read_b128 v[{ACC}:{ACC+3}], v{vT}")
        a(f"ds_read_b128 v[{ACC+4}:{ACC+7}], v{AD+2}")

    def sb_arrive(k):
        a("s_waitcnt lgkmcnt(0)")
        a("s_mov_b64 exec, 1")
        a(f"ds_add_u32 v{T+14}, v{T+15} offset:{L_SB+4*k}")
        a("s_mov_b64 exec, -1")

    def sb_wait(k, n, tag):
        a.lab(f"K2_SBW{tag}")
        a(f"ds_read_b32 v{T+13}, v{T+14} offset:{L_SB+4*k}")
        a("s_waitcnt lgkmcnt(0)")
        a(f"v_cmp_gt_u32 vcc, {n}, v{T+13}")
        a(f"s_cbranch_vccnz K2_SBW{tag}")

    def batchinfo():
        a(f"s_lshl_b32 s{sT0}, s{sK1}, 6")
        a(f"v_add_u32 v{T}, s{sT0}, v{vG8}")
        a(f"ds_read_b64 v[{NA}:{NA+1}], v{T} offset:{L_ORD}")
        a(f"s_min_u32 s{sT0}, s{sK2}, 25")
        a(f"s_lshl_b32 s{sT0}, s{sT0}, 6")
        a(f"v_add_u32 v{T}, s{sT0}, v{vG8}")
        a(f"ds_read_b64 v[{N2}:{N2+1}], v{T} offset:{L_ORD}")
        a(f"ds_read_b32 v{T+4}, v{vL4} offset:{L_BST}")
        a(f"ds_read_b64 v[{T+8}:{T+9}], v{T+14} offset:{L_FLAG}")
        a("s_waitcnt lgkmcnt(0)")
        a(f"v_min_u32 v{T+4}, 0x1ff, v{T+4}")
        a(f"v_lshlrev_b32 v{T+5}, 7, v{T+4}")
        a(f"v_mov_b32 v{T+6}, v{T+5}")
        scan64(a, T + 6)
        a(f"v_readfirstlane_b32 s{sOvf}, v{T+8}")
        a(f"v_readfirstlane_b32 s{sEarly}, v{T+9}")
        a(f"v_sub_u32 v{T+6}, v{T+6}, v{T+5}")
        a(f"v_add_u32 v{T+6}, {L_ELL}, v{T+6}")
        a("s_nop 0")
        a(f"v_readlane_b32 s{sA}, v{T+6}, s{sK1}")
        a(f"v_readlane_b32 s{sRem}, v{T+4}, s{sK1}")
        a(f"v_readlane_b32 s{sNxtA}, v{T+6}, s{sK2}")
        a(f"v_readlane_b32 s{sN2}, v{T+4}, s{sK2}")
        a("s_nop 3")
        a(f"s_sub_u32 s{sRem}, s{sRem}, 1")
        a(f"s_mov_b32 s{sCntS}, s{sRem}")
        a(f"s_sub_u32 s{sNxtCnt}, s{sN2}, 1")
        a(f"s_cmp_eq_u32 s{sN2}, 0")
        a(f"s_cselect_b32 s{sNxtA}, {L_DUM}, s{sNxtA}")
        a(f"s_cselect_b32 s{sNxtCnt}, 100, s{sNxtCnt}")

    def wperm():
        a(f"s_mov_b32 s{sT0}, 0x05040100")
        a(f"s_mov_b32 s{sT1}, 0x07060302")
        for m in range(4):
            sel = sT0 if m % 2 == 0 else sT1
            h = m >> 1
            a(f"v_perm_b32 v{WB+2*m}, v{WR+2+h}, v{WR+h}, s{sel}")
            a(f"v_perm_b32 v{WB+2*m+1}, v{WR+6+h}, v{WR+4+h}, s{sel}")

    a.lab("K2_ENTRY")
    a.stamp(0)
    a.stampc(29)
    srd(a, SG, 16, 260 * 256)
    a(f"v_and_b32 v{vCo}, 7, v{vLane}")
    a(f"v_lshlrev_b32 v{vCo}, 3, v{vCo}")
    a(f"s_lshl_b32 s{sT1}, s{sSl}, 6")
    a(f"s_add_u32 s{sT1}, s{sT1}, 65536")
    for k in range(4):
        a(f"buffer_load_dwordx2 v[{WR+2*k}:{WR+1+2*k}], v{vCo}, s[{SG}:{SG+3}], s{sT1} offen offset:{k*256}")
    a.c("first chunk of this wave: key waves 12w (12 chunks), loader waves 32(w-11) (32 chunks)")
    a(f"s_mul_i32 s{sT2}, s{sW}, 12")
    a(f"s_lshl_b32 s{sT3}, s{sW}, 5")
    a(f"s_sub_u32 s{sT3}, s{sT3}, {32*NKW}")
    a(f"s_cmp_lt_u32 s{sW}, {NKW}")
    a(f"s_cselect_b32 s{sT3}, s{sT2}, s{sT3}")
    a(f"s_cselect_b32 s{sT2}, 12, 32")
    a(f"s_bfm_b64 s[{sSave}:{sSave+1}], s{sT2}, 0")
    a(f"s_lshl_b32 s{sT0}, s{sT3}, 8")
    a(f"s_lshl_b32 s{sT1}, s{sBk}, 2")
    a(f"s_add_u32 s{sT0}, s{sT0}, s{sT1}")
    a(f"v_lshlrev_b32 v64, 8, v{vLane}")
    a(f"s_add_u32 s{SDS}, s20, {DESC_OFF}")
    a(f"s_addc_u32 s{SDS+1}, s21, 0")
    a(f"s_mov_b32 s{SDS+2}, {NCH*256}")
    a(f"s_mov_b32 s{SDS+3}, 0x20000")
    a("v_lshlrev_b32 v51, 4, v0")
    for i in range(4):
        a(f"v_mov_b32 v{52+i}, {hex(DUMMY)}")
        a(f"v_mov_b32 v{56+i}, 0")
        a(f"v_mov_b32 v{60+i}, {DUMMY_NODE}")
    a("s_waitcnt lgkmcnt(0)")
    a(f"v_mov_b32 v{T+10}, {L_GW}")
    a(f"v_mov_b32 v{T+12}, s95")
    a("s_barrier")
    a.stamp(1)
    a("s_mov_b64 exec, 1")
    a(f"ds_or_b32 v{T+10}, v{T+12}")
    a("s_mov_b64 exec, -1")
    a(f"s_mov_b64 exec, s[{sSave}:{sSave+1}]")
    a(f"buffer_load_dword v{vDesc}, v64, s[{SDS}:{SDS+3}], s{sT0} offen{LD}")
    a("s_mov_b64 exec, -1")
    a(f"ds_write_b128 v51, v[52:55] offset:{L_ELL}")
    a(f"ds_write_b128 v51, v[52:55] offset:{L_ELL+16384}")
    a(f"s_cmp_ge_u32 s{sW}, 6")
    a("s_cbranch_scc1 K2_INIT_DONE")
    a(f"s_cmp_eq_u32 s{sW}, 5")
    a("s_cbranch_scc1 K2_INIT_5")
    a(f"s_lshr_b32 s{sT0}, s{sW}, 1")
    a(f"s_cmp_eq_u32 s{sT0}, 1")
    a("s_cbranch_scc1 K2_INIT_ORD")
    a("ds_write_b128 v51, v[56:59]")
    a("s_branch K2_INIT_DONE")
    a.lab("K2_INIT_ORD")
    a("ds_write_b128 v51, v[60:63]")
    a("s_branch K2_INIT_DONE")
    a.lab("K2_INIT_5")
    a(f"v_mov_b32 v64, {L_EA + EA_ZERO*8}")
    a("ds_write_b64 v64, v[56:57]")
    a("s_bfm_b64 exec, 32, 0")
    a(f"ds_write_b128 v51, v[52:55] offset:{L_DUM - 5*1024}")
    a("s_mov_b64 exec, -1")
    a.lab("K2_INIT_DONE")
    srd(a, SWS, 20, WS_USED)
    a(f"s_mul_i32 s{sT0}, s{sSl}, {PS}")
    a(f"s_add_u32 s{SP}, s20, s{sT0}")
    a(f"s_addc_u32 s{SP+1}, s21, 0")
    a(f"s_mov_b32 s{SP+2}, {N*128}")
    a(f"s_mov_b32 s{SP+3}, 0x20000")
    srd(a, SO, 18, N * 256)
    a(f"s_mov_b32 s{sK}, {hex(NL2E)}")
    a(f"v_lshlrev_b32 v{vC8}, 1, v{vCo}")
    a(f"v_and_b32 v{vG8}, 56, v{vLane}")
    a(f"v_and_b32 v64, 2, v{vLane}")
    a(f"v_lshl_add_u32 v{vRec4}, v64, 1, v{vG8}")
    a(f"v_and_b32 v64, 1, v{vLane}")
    a(f"v_lshl_add_u32 v{vRec4}, v64, 6, v{vRec4}")
    a(f"v_lshlrev_b32 v{vL4}, 2, v{vLane}")
    a(f"v_lshlrev_b32 v{vL16}, 4, v{vLane}")
    a(f"v_mov_b32 v{T+14}, 0")
    a(f"v_mov_b32 v{T+15}, 1")
    a(f"s_and_b32 s{sT0}, s{sW}, 3")
    a(f"s_and_b32 s{sT1}, s{sW}, 12")
    a(f"s_add_u32 s{sT2}, s{sT1}, s{sT0}")
    a(f"s_add_u32 s{sT1}, s{sT1}, 3")
    a(f"s_sub_u32 s{sT1}, s{sT1}, s{sT0}")
    a(f"s_bitcmp1_b32 s{sW}, 2")
    a(f"s_cselect_b32 s{sK1}, s{sT1}, s{sT2}")
    a(f"s_add_u32 s{sK2}, s{sK1}, 16")
    a(f"s_add_u32 s{sT1}, s{sT1}, 16")
    a(f"s_cmp_ge_u32 s{sW}, 8")
    a(f"s_cselect_b32 s{sK2}, s{sT1}, s{sK2}")
    a(f"s_mul_i32 s{sOutOff}, s{sBk}, {BN*256}")
    a(f"s_lshl_b32 s{sT0}, s{sSl}, 6")
    a(f"s_add_u32 s{sOutOff}, s{sOutOff}, s{sT0}")
    a(f"s_cmp_ge_u32 s{sW}, {NKW}")
    a("s_cbranch_scc1 K2_LW")
    a(f"s_lshl_b32 s{sT0}, s{sT3}, 6")
    a(f"v_add_u32 v{vIdx}, s{sT0}, v{vL4}")
    a(f"v_mov_b32 v{v64c}, 64")
    a(f"v_lshrrev_b32 v{T}, 4, v{vLane}")
    a(f"v_lshlrev_b32 v{T+1}, 2, v{T}")
    a(f"s_mov_b32 s{sT0}, {CH*4}")
    a(f"v_and_b32 v{T+2}, 15, v{vLane}")
    a(f"v_lshlrev_b32 v{T+3}, 2, v{T+2}")
    a(f"v_lshlrev_b32 v{T+2}, 4, v{T+2}")
    a(f"v_mad_u32_u24 v{T+2}, v{T}, s{sT0}, v{T+2}")
    a(f"s_mov_b32 s{sSp}, 0")
    a(f"s_mov_b32 s{sOvf}, 0")
    a(f"s_mov_b64 s[{sM+24}:{sM+25}], 0")
    a(f"s_mul_i32 s{sT2}, s{sT3}, {CH*4}")
    a(f"s_add_u32 s{sT2}, s{sT2}, {KEY_OFF}")
    a(f"s_mov_b32 s{sT0}, 0x40ffff")
    a("s_waitcnt vmcnt(0)")
    a.stamp(2)
    for h in range(3):
        a(f"ds_bpermute_b32 v{T+4+h}, v{T+1}, v{vDesc} offset:{16*h}")
    a(f"v_cmp_lt_u32 vcc, s{sT0}, v{vDesc}")
    a(f"s_and_b64 s[{sTM}:{sTM+1}], vcc, s[{sSave}:{sSave+1}]")
    a("s_waitcnt lgkmcnt(0)")
    for h in range(3):
        a(f"v_lshrrev_b32 v{T+7+h}, 16, v{T+4+h}")
        a(f"v_lshlrev_b32_sdwa v{T+4+h}, 2, v{T+4+h} dst_sel:DWORD dst_unused:UNUSED_PAD src0_sel:DWORD src1_sel:WORD_0")
        a(f"v_cmp_gt_u32 s[{sM+8*h}:{sM+8*h+1}], v{T+7+h}, v{T+3}")
        a(f"v_add_u32 v{T+4+h}, v{T+4+h}, v{T+2}")
        a(f"s_or_b64 exec, s[{sM+8*h}:{sM+8*h+1}], 1")
        a(f"buffer_load_dwordx4 v[{KEYR+4*h}:{KEYR+4*h+3}], v{T+4+h}, s[{SWS}:{SWS+3}], s{sT2} offen{LD}")
        a("s_mov_b64 exec, -1")
        if h < 2:
            a(f"s_add_u32 s{sT2}, s{sT2}, {4*CH*4}")
    for c in range(1, 4):
        a(f"v_add_u32 v{T+3}, 1, v{T+3}")
        for h in range(3):
            a(f"v_cmp_gt_u32 s[{sM+8*h+2*c}:{sM+8*h+2*c+1}], v{T+7+h}, v{T+3}")
    a(f"s_cmp_lg_u64 s[{sTM}:{sTM+1}], 0")
    a("s_cbranch_scc1 K2_TAIL")
    a.lab("K2_TAILR")
    a.stamp(3)
    a("s_barrier")
    a.stamp(4)
    a(f"s_cmp_eq_u32 s{sOvf}, 0")
    a("s_cbranch_scc1 K2_NOOVF")
    a(f"ds_write_b32 v{T+14}, v{T+15} offset:{L_FLAG}")
    a.lab("K2_NOOVF")
    a("s_waitcnt vmcnt(0)")
    a.stamp(5)
    for i in range(NR):
        a(f"v_and_b32 v{HA+i}, 0xffff, v{KEYR+i}")
        a(f"s_mov_b64 exec, s[{sM+2*i}:{sM+2*i+1}]")
        a(f"ds_add_rtn_u32 v{RK+i}, v{HA+i}, v{v64c}")
        a("s_mov_b64 exec, -1")
    for i in range(NR):
        if i == NR - 1:
            a(f"s_lshl_b32 s{sT0}, s{sW}, 6")
            a(f"s_add_u32 s{sT0}, s{sT0}, {EA_TAIL}")
            a(f"v_add_u32 v{vIdx}, s{sT0}, v{vLane}")
        a(f"v_mov_b32_sdwa v{KEYR+i}, v{vIdx} dst_sel:WORD_0 dst_unused:UNUSED_PRESERVE src0_sel:DWORD")
        if i < NR - 2:
            a(f"v_add_u32 v{vIdx}, {253 if i % 4 == 3 else 1}, v{vIdx}")
    sb_arrive(0)
    a(f"s_cmp_ge_u32 s{sW}, 7")
    a("s_cbranch_scc1 K2_W5")
    a(f"v_cmp_gt_u32 vcc, {BN}, v0")
    a(f"v_lshlrev_b32 v{T}, 2, v0")
    a(f"v_and_b32 v{T+8}, 7, v0")
    a(f"v_lshlrev_b32 v{T+8}, 4, v{T+8}")
    a(f"v_lshl_add_u32 v{T+8}, v0, 7, v{T+8}")
    a(f"s_mov_b64 s[{sSave}:{sSave+1}], vcc")
    sb_wait(0, NKW, "2")
    a.stamp(6)
    a.c("node phase A")
    a(f"s_mov_b64 exec, s[{sSave}:{sSave+1}]")
    a(f"ds_read_b32 v{T+1}, v{T}")
    a("s_waitcnt lgkmcnt(0)")
    a(f"v_lshrrev_b32 v{T+1}, 6, v{T+1}")
    a(f"v_min_u32 v{T+2}, 63, v{T+1}")
    a(f"v_sub_u32 v{T+2}, 63, v{T+2}")
    a(f"v_lshlrev_b32 v{T+2}, 2, v{T+2}")
    a(f"ds_add_rtn_u32 v{T+3}, v{T+2}, v{T+15} offset:{L_DH}")
    a(f"v_add_u32 v{T+7}, 1, v{T+1}")
    a(f"v_lshrrev_b32 v{T+7}, 1, v{T+7}")
    a(f"v_max_u32 v{T+7}, 1, v{T+7}")
    sb_arrive(1)
    sb_wait(1, 7, "3")
    a.stamp(7)
    a.c("node phase B")
    a(f"ds_read_b32 v{T+5}, v{vL4} offset:{L_DH}")
    a("s_waitcnt lgkmcnt(0)")
    a(f"v_mov_b32 v{T+6}, v{T+5}")
    scan64(a, T + 6)
    a(f"v_sub_u32 v{T+6}, v{T+6}, v{T+5}")
    a("s_nop 0")
    a(f"ds_bpermute_b32 v{T+9}, v{T+2}, v{T+6}")
    a("s_waitcnt lgkmcnt(0)")
    a(f"s_mov_b64 exec, s[{sSave}:{sSave+1}]")
    a(f"v_add_u32 v{T+3}, v{T+3}, v{T+9}")
    a(f"v_lshlrev_b32 v{T+9}, 2, v{T+3}")
    a(f"ds_write_b32 v{T+9}, v{T+8} offset:{L_ORD}")
    a(f"v_lshrrev_b32 v{T+10}, 4, v{T+3}")
    a(f"v_lshlrev_b32 v{T+10}, 2, v{T+10}")
    a(f"ds_max_u32 v{T+10}, v{T+7} offset:{L_BST}")
    a(f"v_and_b32 v{T+9}, 60, v{T+9}")
    sb_arrive(2)
    sb_wait(2, 7, "4")
    a.stamp(8)
    a.c("node phase C")
    a(f"ds_read_b32 v{T+5}, v{vL4} offset:{L_BST}")
    a("s_waitcnt lgkmcnt(0)")
    a(f"v_min_u32 v{T+5}, 0x1ff, v{T+5}")
    a(f"v_lshlrev_b32 v{T+5}, 7, v{T+5}")
    a(f"v_mov_b32 v{T+6}, v{T+5}")
    scan64(a, T + 6)
    a("s_nop 0")
    a(f"v_readlane_b32 s{sT0}, v{T+6}, 63")
    a(f"v_sub_u32 v{T+6}, v{T+6}, v{T+5}")
    a(f"v_add_u32 v{T+6}, {L_ELL}, v{T+6}")
    a("s_nop 1")
    a(f"ds_bpermute_b32 v{T+10}, v{T+10}, v{T+6}")
    a(f"s_cmp_le_u32 s{sT0}, {CAP*4}")
    a("s_cbranch_scc1 K2_NC_OK")
    a(f"ds_write_b32 v{T+14}, v{T+15} offset:{L_FLAG}")
    a.lab("K2_NC_OK")
    a("s_waitcnt lgkmcnt(0)")
    a(f"s_mov_b64 exec, s[{sSave}:{sSave+1}]")
    a(f"v_add_u32 v{T+10}, v{T+10}, v{T+9}")
    a(f"ds_write_b32 v{T}, v{T+10}")
    sb_arrive(3)
    a.lab("K2_W5")
    sb_wait(3, 7, "5")
    a.stamp(9)
    for i in range(NR):
        a(f"s_mov_b64 exec, s[{sM+2*i}:{sM+2*i+1}]")
        a(f"ds_read_b32 v{HA+i}, v{HA+i}")
    a("s_mov_b64 exec, -1")
    batchinfo()
    a(f"s_cmp_lg_u32 s{sOvf}, 0")
    a("s_cbranch_scc1 K2_FINB")
    for i in range(NR):
        a(f"v_add_u32 v{HA+i}, v{HA+i}, v{RK+i}")
        a(f"s_mov_b64 exec, s[{sM+2*i}:{sM+2*i+1}]")
        a(f"ds_write_b32 v{HA+i}, v{KEYR+i}")
        a("s_mov_b64 exec, -1")
    a(f"s_lshl_b32 s{sT2}, s{sW}, 9")
    a(f"s_add_u32 s{sT2}, s{sT2}, {L_EA + EA_TAIL*8}")
    a(f"v_lshl_add_u32 v63, v{vLane}, 3, s{sT2}")
    a(f"ds_write_b64 v63, v[{ET}:{ET+1}]")
    a.stamp(10)
    a("s_branch K2_FINB")
    a.lab("K2_LW")
    a(f"v_lshrrev_b32 v{T+4}, 5, v{vLane}")
    a(f"v_lshlrev_b32 v{T+5}, 2, v{T+4}")
    a(f"v_and_b32 v{T+6}, 31, v{vLane}")
    a(f"v_lshlrev_b32 v{T+7}, 1, v{T+6}")
    a(f"v_lshlrev_b32 v{T+6}, 4, v{T+6}")
    a(f"s_mov_b32 s{sT0}, {CH*8}")
    a(f"v_mad_u32_u24 v{T+6}, v{T+4}, s{sT0}, v{T+6}")
    a(f"s_mul_i32 s{sT2}, s{sT3}, {CH*8}")
    a(f"s_add_u32 s{sT2}, s{sT2}, {EAT_OFF}")
    a(f"s_lshl_b32 s{sT0}, s{sT3}, 9")
    a(f"v_add_u32 v{T+8}, s{sT0}, v{vL16}")
    a(f"s_mov_b32 s{sEarly}, 0")
    a("s_waitcnt vmcnt(0)")
    a.stamp(2)
    a(f"s_cmp_eq_u32 s{sW}, 15")
    a("s_cbranch_scc1 K2_SW")
    BP = 105
    EAD = 6
    for q in range(8):
        a(f"ds_bpermute_b32 v{BP+q}, v{T+5}, v{vDesc} offset:{8*q}")
    a("s_waitcnt lgkmcnt(0)")
    a("s_barrier")
    a.stamp(4)
    for half in range(2):
        for q in range(8):
            r = 24 + (q % 8) * 4 if half == 0 else None
        pass
    LWD = [6, 10, 16, 20, 24, 28, 32, 36, 40, 44, 48, 52, 56, 60, 96, 100]
    LWD = [16, 20, 24, 28, 32, 36, 40, 44, 48, 52, 56, 60, 96, 100, 6, 10]
    for q in range(16):
        b = BP + (q % 8)
        a(f"v_lshrrev_b32 v{T+9}, 16, v{b}")
        a(f"v_lshlrev_b32_sdwa v{T+10}, 3, v{b} dst_sel:DWORD dst_unused:UNUSED_PAD src0_sel:DWORD src1_sel:WORD_0")
        a(f"v_cmp_gt_u32 vcc, v{T+9}, v{T+7}")
        a(f"v_add_u32 v{T+10}, v{T+10}, v{T+6}")
        if q < 8:
            a(f"ds_bpermute_b32 v{b}, v{T+5}, v{vDesc} offset:{8*(q+8)}")
        a("s_or_b64 exec, vcc, 1")
        a(f"buffer_load_dwordx4 v[{LWD[q]}:{LWD[q]+3}], v{T+10}, s[{SWS}:{SWS+3}], s{sT2} offen{LD}")
        a("s_mov_b64 exec, -1")
        if q < 15:
            a(f"s_add_u32 s{sT2}, s{sT2}, {2*CH*8}")
        if q == 7:
            a("s_waitcnt lgkmcnt(0)")
    a.stamp(5)
    sb_arrive(6)
    for q in range(16):
        a(f"s_waitcnt vmcnt({15-q})")
        a(f"ds_write_b128 v{T+8}, v[{LWD[q]}:{LWD[q]+3}] offset:{L_EA + q*1024}")
    a.stamp(10)
    a("s_branch K2_FINB")
    a.lab("K2_SW")
    a("s_waitcnt lgkmcnt(0)")
    a("s_barrier")
    a.stamp(4)
    poll(a, "G", 53, 128, None, 4)
    a("v_lshrrev_b32 v53, 16, v53")
    a(f"v_mov_b32 v52, {L_GW}")
    a("s_mov_b64 exec, 1")
    a("ds_or_b32 v52, v53")
    a("s_mov_b64 exec, -1")
    a.stamp(5)
    if "touch" in OPTS:
        a.c("warm this XCD's L2 with 1/32 of the P slice once the e_attr loads are queued")
        sb_wait(6, 4, "LI")
        a(f"s_lshr_b32 s{sT0}, s2, 3")
        a(f"s_mul_i32 s{sT0}, s{sT0}, {782*128}")
        a(f"v_lshlrev_b32 v52, 7, v{vLane}")
        for i in range(13):
            a(f"buffer_load_dword v{24+i}, v52, s[{SP}:{SP+3}], s{sT0} offen{LD}")
            if i < 12:
                a(f"s_add_u32 s{sT0}, s{sT0}, 8192")
    a.stamp(10)
    a.lab("K2_FINB")
    a("s_mov_b64 exec, -1")
    a.c("Wc magnitude check (|w| < 2)")
    a(f"v_or3_b32 v{T}, v{WR}, v{WR+1}, v{WR+2}")
    a(f"v_or3_b32 v{T+1}, v{WR+3}, v{WR+4}, v{WR+5}")
    a(f"v_or3_b32 v{T}, v{WR+6}, v{WR+7}, v{T}")
    a(f"v_or_b32 v{T}, v{T}, v{T+1}")
    a(f"v_and_b32 v{T}, 0x40004000, v{T}")
    a(f"v_cmp_ne_u32 vcc, 0, v{T}")
    a("s_cbranch_vccz K2_WOK")
    a(f"v_mov_b32 v{T+1}, {L_GW}")
    a(f"ds_or_b32 v{T+1}, v{T+15}")
    a.lab("K2_WOK")
    wperm()
    a("s_waitcnt lgkmcnt(0)")
    a.stamp(12)
    a("s_barrier")
    a(f"s_cmp_lt_u32 s{sW}, {NKW}")
    a("s_cbranch_scc1 K2_HAVEBI")
    batchinfo()
    a(f"s_mov_b32 s{sEarly}, 0")
    a.lab("K2_HAVEBI")
    a(f"s_cmp_lg_u32 s{sOvf}, 0")
    a("s_cbranch_scc1 K2_FALLBACK")
    a(f"s_mov_b32 s{sKK}, {hex(NL2E)}")
    a(f"s_mov_b32 s{sKK+1}, {hex(NL2E)}")
    a(f"v_mov_b32 v{D+2}, {L_GW}")
    a(f"ds_read_b32 v{D+2}, v{D+2}")
    auread(NA)
    a.stamp(13)
    a.stampc(30)

    sw_sites = []

    def advance(tag):
        a(f"s_add_u32 s{sA}, s{sA}, 128")
        a(f"s_sub_u32 s{sCntS}, s{sCntS}, 1")
        a(f"s_cbranch_scc1 K2_SW{tag}")
        a.lab(f"K2_SWR{tag}")
        sw_sites.append(tag)

    def gathers(P):
        for j in range(4):
            a(f"v_add_u32_dpp v{AD+j}, v{vSrc}, v{vC8} quad_perm:[{j},{j},{j},{j}] row_mask:0xf bank_mask:0xf")
        for j in range(4):
            a(f"buffer_load_dwordx4 v[{P+4*j}:{P+4*j+3}], v{AD+j}, s[{SP}:{SP+3}], 0 offen{LD}")

    def split(S):
        a(f"v_lshlrev_b32_sdwa v{vSrc}, 7, v{S} dst_sel:DWORD dst_unused:UNUSED_PAD src0_sel:DWORD src1_sel:WORD_1")
        a(f"v_lshlrev_b32_sdwa v{vEa}, 3, v{S} dst_sel:DWORD dst_unused:UNUSED_PAD src0_sel:DWORD src1_sel:WORD_0")

    def setup_ac():
        for m in range(4):
            a(f"v_cvt_f32_f16 v{AC+4*m}, v{ACC+m}")
            a(f"v_cvt_f32_f16 v{AC+4*m+2}, v{ACC+4+m}")
        for m in range(4):
            a(f"v_mov_b32 v{AC+4*m+1}, v{AC+4*m}")
            a(f"v_mov_b32 v{AC+4*m+3}, v{AC+4*m+2}")

    def compute(P):
        for m in range(4):
            for j in range(4):
                a(f"v_fma_mix_f32 v{D+4*m+j}, v{D+4*m+j}, s{sK}, v{P+4*j+m} op_sel_hi:[0,0,1]")
        for i in range(16):
            a(f"v_exp_f32 v{D+i}, v{D+i}")
        for i in range(8):
            a(f"v_pk_add_f32 v[{D+2*i}:{D+2*i+1}], v[{D+2*i}:{D+2*i+1}], 1.0 op_sel_hi:[1,0]")
        for j in range(4):
            r = R + 4 * (j & 1)
            for m in range(4):
                a(f"v_rcp_f32 v{r+m}, v{D+4*m+j}")
            acc = ACC + 4 * (j >> 1)
            a(f"v_pk_fma_f32 v[{acc}:{acc+1}], v[{P+4*j}:{P+4*j+1}], v[{r}:{r+1}], v[{acc}:{acc+1}]")
            a(f"v_pk_fma_f32 v[{acc+2}:{acc+3}], v[{P+4*j+2}:{P+4*j+3}], v[{r+2}:{r+3}], v[{acc+2}:{acc+3}]")

    def pk(op, d, *src, mod=""):
        a(f"v_pk_{op}_f32 v[{d}:{d+1}], " + ", ".join(x if isinstance(x, str) else f"v[{x}:{x+1}]" for x in src) + mod)

    def compute_fast(P):
        for j in range(4):
            for m in range(4):
                a(f"v_fma_mix_f32 v{D+4*m+j}, v{D+4*m+j}, s{sK}, v{P+4*j+m} op_sel_hi:[0,0,1]")

        def exps(j0):
            for m in range(4):
                a(f"v_exp_f32 v{R+m}, v{D+4*m+j0}")
            for m in range(4):
                a(f"v_exp_f32 v{R+4+m}, v{D+4*m+j0+1}")

        def mid(j0):
            H1, H2 = P + 4 * j0, P + 4 * j0 + 4
            N, Q = (D + j0, D + 4 + j0), (D + 8 + j0, D + 12 + j0)
            for h in range(2):
                pk("add", R + 2 * h, R + 2 * h, "1.0", mod=" op_sel_hi:[1,0]")
            for h in range(2):
                pk("fma", N[h], H2 + 2 * h, R + 2 * h, H1 + 2 * h)
            for h in range(2):
                pk("fma", Q[h], R + 2 * h, R + 4 + 2 * h, R + 2 * h)
            for h in range(2):
                pk("fma", N[h], H1 + 2 * h, R + 4 + 2 * h, N[h])

        def rcps(j0):
            for q in (D + 8 + j0, D + 9 + j0, D + 12 + j0, D + 13 + j0):
                a(f"v_rcp_f32 v{q}, v{q}")

        def fin(j0):
            acc = ACC + 2 * j0
            pk("fma", acc, D + j0, D + 8 + j0, acc)
            pk("fma", acc + 2, D + 4 + j0, D + 12 + j0, acc + 2)
        exps(0)
        mid(0)
        exps(2)
        rcps(0)
        mid(2)
        fin(0)
        rcps(2)
        a("s_nop 0")
        fin(2)

    a(f"v_add_u32 v{vT}, s{sA}, v{vRec4}")
    a(f"ds_read_b32 v{D}, v{vT}")
    advance("F0")
    a(f"v_add_u32 v{vT}, s{sA}, v{vRec4}")
    a(f"ds_read_b32 v{D+1}, v{vT}")
    advance("F1")
    a(f"v_add_u32 v{vT}, s{sA}, v{vRec4}")
    a(f"ds_read_b32 v{vS}, v{vT}")
    a("s_waitcnt lgkmcnt(2)")
    split(D)
    a("s_nop 0")
    a(f"ds_read_b64 v[{EE}:{EE+1}], v{vEa} offset:{L_EA}")
    gathers(PP[0])
    a("s_waitcnt lgkmcnt(2)")
    split(D + 1)
    a("s_nop 1")
    gathers(PP[1])
    setup_ac()
    def loop(sfx, comp):
        a.lab(f"K2_LOOP{sfx}")
        for ph in range(3):
            a("s_waitcnt lgkmcnt(0)")
            for m in range(4):
                a(f"v_mfma_f32_4x4x4_16b_bf16 v[{D+4*m}:{D+4*m+3}], v[{EE}:{EE+1}], v[{WB+2*m}:{WB+2*m+1}], v[{AC+4*m}:{AC+4*m+3}]")
            a(f"ds_read_b64 v[{EE}:{EE+1}], v{vEa} offset:{L_EA}")
            split(vS)
            advance(f"L{sfx}{ph}")
            gathers(PP[(ph + 2) % 3])
            a(f"v_add_u32 v{vT}, s{sA}, v{vRec4}")
            a(f"ds_read_b32 v{vS}, v{vT}")
            a("s_waitcnt vmcnt(8)")
            comp(PP[ph])
            a(f"s_sub_u32 s{sRem}, s{sRem}, 1")
            if ph < 2:
                a(f"s_cbranch_scc0 K2_C{sfx}{ph}")
                a(f"s_call_b64 s[{sRet}:{sRet+1}], K2_EPI")
                a.lab(f"K2_C{sfx}{ph}")
            else:
                a(f"s_cbranch_scc0 K2_LOOP{sfx}")
                a(f"s_call_b64 s[{sRet}:{sRet+1}], K2_EPI")
                a(f"s_branch K2_LOOP{sfx}")
    a(f"v_cmp_ne_u32 vcc, 0, v{D+2}")
    if "safeonly" in OPTS:
        a("s_branch K2_LOOPS")
    a("s_cbranch_vccnz K2_LOOPS")
    loop("F", compute_fast)
    loop("S", compute)

    def epilogue(acc, tmp, nregs):
        for i in range(0, nregs, 2):
            a(f"v_pk_mul_f32 v[{tmp+i}:{tmp+i+1}], v[{acc+i}:{acc+i+1}], s[{sKK}:{sKK+1}]")
        for i in range(nregs):
            a(f"v_exp_f32 v{tmp+i}, v{tmp+i}")
        a("s_nop 0")
        for i in range(0, nregs, 2):
            a(f"v_pk_add_f32 v[{tmp+i}:{tmp+i+1}], v[{tmp+i}:{tmp+i+1}], 1.0 op_sel_hi:[1,0]")
        for i in range(nregs):
            a(f"v_rcp_f32 v{tmp+i}, v{tmp+i}")
        a("s_nop 0")
        for i in range(0, nregs, 2):
            a(f"v_pk_mul_f32 v[{tmp+i}:{tmp+i+1}], v[{tmp+i}:{tmp+i+1}], v[{acc+i}:{acc+i+1}]")
        for i in range(0, nregs, 2):
            a(f"v_cvt_pk_bf16_f32 v{tmp+i//2}, v{tmp+i}, v{tmp+i+1}")

    a.lab("K2_EPI")
    epilogue(ACC, D, 8)
    auread(N2)
    a(f"v_lshrrev_b32 v{AD}, 7, v{NA}")
    a(f"v_lshrrev_b32 v{AD+1}, 7, v{NA+1}")
    a(f"v_lshl_add_u32 v{AD}, v{AD}, 8, v{vCo}")
    a(f"v_lshl_add_u32 v{AD+1}, v{AD+1}, 8, v{vCo}")
    a(f"v_cmp_gt_u32 vcc, {BN*128}, v{NA}")
    a("s_mov_b64 exec, vcc")
    a(f"buffer_store_dwordx2 v[{D}:{D+1}], v{AD}, s[{SO}:{SO+3}], s{sOutOff} offen{K2_ST}")
    a("s_mov_b64 exec, -1")
    a(f"v_cmp_gt_u32 vcc, {BN*128}, v{NA+1}")
    a("s_mov_b64 exec, vcc")
    a(f"buffer_store_dwordx2 v[{D+2}:{D+3}], v{AD+1}, s[{SO}:{SO+3}], s{sOutOff} offen{K2_ST}")
    a("s_mov_b64 exec, -1")
    a(f"s_cmp_eq_u32 s{sN2}, 0")
    a("s_cbranch_scc1 K2_FIN")
    a.stamp(14)
    a(f"s_sub_u32 s{sRem}, s{sN2}, 1")
    a(f"s_mov_b32 s{sN2}, 0")
    a(f"v_mov_b32 v{NA}, v{N2}")
    a(f"v_mov_b32 v{NA+1}, v{N2+1}")
    a("s_waitcnt lgkmcnt(0)")
    setup_ac()
    a(f"s_setpc_b64 s[{sRet}:{sRet+1}]")
    a.lab("K2_FIN")
    a.stamp(15)
    a.stampc(31)
    a.stamp_flush(1, sW)
    a("s_endpgm")

    for tag in sw_sites:
        a.lab(f"K2_SW{tag}")
        a(f"s_mov_b32 s{sA}, s{sNxtA}")
        a(f"s_mov_b32 s{sCntS}, s{sNxtCnt}")
        a(f"s_mov_b32 s{sNxtA}, {L_DUM}")
        a(f"s_mov_b32 s{sNxtCnt}, 100")
        a(f"s_branch K2_SWR{tag}")

    a.lab("K2_TAIL")
    a(f"v_lshlrev_b32 v64, 3, v{vLane}")
    a.lab("K2_TAIL_LOOP")
    a(f"s_ff1_i32_b64 s{sT0}, s[{sTM}:{sTM+1}]")
    a(f"s_bitset0_b64 s[{sTM}:{sTM+1}], s{sT0}")
    a(f"v_readlane_b32 s{sT1}, v{vDesc}, s{sT0}")
    a(f"s_add_u32 s{sT0}, s{sT0}, s{sT3}")
    a(f"s_mul_i32 s{sT0}, s{sT0}, {CH}")
    a(f"s_and_b32 s{sT2}, s{sT1}, 0xffff")
    a(f"s_add_u32 s{sT0}, s{sT0}, s{sT2}")
    a(f"s_add_u32 s{sT0}, s{sT0}, 64")
    a(f"s_sub_u32 s{sT0}, s{sT0}, s{sSp}")
    a(f"s_lshr_b32 s{sT1}, s{sT1}, 16")
    a(f"s_sub_u32 s{sT1}, s{sT1}, 64")
    a(f"s_add_u32 s{sT2}, s{sSp}, s{sT1}")
    a(f"s_cmp_gt_u32 s{sT2}, 63")
    a("s_cbranch_scc1 K2_TAILF")
    a(f"s_bfm_b64 s[{sSave}:{sSave+1}], s{sT1}, s{sSp}")
    a(f"s_or_b64 s[{sM+24}:{sM+25}], s[{sM+24}:{sM+25}], s[{sSave}:{sSave+1}]")
    a(f"s_mov_b32 s{sSp}, s{sT2}")
    a(f"s_lshl_b32 s{sT1}, s{sT0}, 2")
    a(f"s_add_u32 s{sT1}, s{sT1}, {KEY_OFF}")
    a(f"s_lshl_b32 s{sT2}, s{sT0}, 3")
    a(f"s_add_u32 s{sT2}, s{sT2}, {EAT_OFF}")
    a(f"s_mov_b64 exec, s[{sSave}:{sSave+1}]")
    a(f"buffer_load_dword v{KEYR+12}, v{vL4}, s[{SWS}:{SWS+3}], s{sT1} offen{LD}")
    a(f"buffer_load_dwordx2 v[{ET}:{ET+1}], v64, s[{SWS}:{SWS+3}], s{sT2} offen{LD}")
    a("s_mov_b64 exec, -1")
    a(f"s_cmp_lg_u64 s[{sTM}:{sTM+1}], 0")
    a("s_cbranch_scc1 K2_TAIL_LOOP")
    a("s_branch K2_TAILR")
    a.lab("K2_TAILF")
    a(f"s_mov_b32 s{sOvf}, 1")
    a("s_branch K2_TAILR")

    L_AGG = L_EA
    a.lab("K2_FALLBACK")
    a("s_waitcnt vmcnt(0) lgkmcnt(0)")
    a(f"s_mov_b32 s{sKK}, {hex(NL2E)}")
    a(f"s_mov_b32 s{sKK+1}, {hex(NL2E)}")
    a("s_barrier")
    a("v_lshlrev_b32 v51, 4, v0")
    a(f"v_add_u32 v51, {L_AGG}, v51")
    for i in range(4):
        a(f"v_mov_b32 v{56+i}, 0")
    for i in range(4):
        a(f"ds_write_b128 v51, v[56:59] offset:{i*16384}")
    a("s_waitcnt lgkmcnt(0)")
    a("s_barrier")
    srd(a, SF0, 10, E * 4)
    srd(a, SF1, 8, E * 4)
    srd(a, SF2, 6, E * 8)
    a(f"s_mul_i32 s{sT3}, s{sBk}, {BN}")
    a(f"s_mul_i32 s{sT2}, s{sBk}, {BN*128}")
    a(f"s_lshl_b32 s{sT0}, s{sW}, 5")
    a(f"v_lshrrev_b32 v51, 1, v{vG8}")
    a.lab("K2_FB_LOOP")
    a(f"s_lshl_b32 s{sT1}, s{sT0}, 1")
    a(f"buffer_load_dword v52, v51, s[{SF0}:{SF0+3}], s{sT0} offen")
    a(f"buffer_load_dword v53, v51, s[{SF1}:{SF1+3}], s{sT0} offen")
    a(f"buffer_load_dwordx2 v[54:55], v{vG8}, s[{SF2}:{SF2+3}], s{sT1} offen")
    a("s_waitcnt vmcnt(0)")
    a(f"v_subrev_u32 v52, s{sT3}, v52")
    a(f"v_cmp_gt_u32 vcc, {BN}, v52")
    a("s_mov_b64 exec, vcc")
    a("s_cbranch_execz K2_FB_NEXT")
    a(f"v_lshl_add_u32 v53, v53, 7, v{vC8}")
    a("v_and_b32 v56, 7, v52")
    a("v_lshlrev_b32 v56, 4, v56")
    a(f"v_lshl_add_u32 v52, v52, 7, v{vC8}")
    a("v_xor_b32 v56, v56, v52")
    a(f"v_add_u32 v56, {L_AUR}, v56")
    a(f"buffer_load_dwordx4 v[16:19], v53, s[{SP}:{SP+3}], 0 offen{LD}")
    a("ds_read_b128 v[20:23], v56")
    a(f"v_add_u32 v52, {L_AGG}, v52")
    a("s_waitcnt vmcnt(0) lgkmcnt(0)")
    for m in range(4):
        a(f"v_cvt_f32_f16 v{20+m}, v{20+m}")
    for m in range(4):
        a(f"v_dot2_f32_bf16 v{20+m}, v54, v{WB+2*m}, v{20+m}")
    for m in range(4):
        a(f"v_dot2_f32_bf16 v{20+m}, v55, v{WB+2*m+1}, v{20+m}")
    a("s_nop 3")
    for m in range(4):
        a(f"v_fma_mix_f32 v{20+m}, v{20+m}, s{sK}, v{16+m} op_sel_hi:[0,0,1]")
    for m in range(4):
        a(f"v_exp_f32 v{20+m}, v{20+m}")
    a("s_nop 0")
    for m in range(4):
        a(f"v_add_f32 v{20+m}, 1.0, v{20+m}")
    for m in range(4):
        a(f"v_rcp_f32 v{20+m}, v{20+m}")
    a("s_nop 0")
    for m in range(4):
        a(f"v_mul_f32 v{20+m}, v{20+m}, v{16+m}")
    for m in range(4):
        a(f"ds_add_f32 v52, v{20+m} offset:{4*m}")
    a.lab("K2_FB_NEXT")
    a("s_mov_b64 exec, -1")
    a(f"s_add_u32 s{sT0}, s{sT0}, 512")
    a(f"s_cmp_lt_u32 s{sT0}, {E*4}")
    a("s_cbranch_scc1 K2_FB_LOOP")
    a("s_waitcnt lgkmcnt(0)")
    a("s_barrier")
    a(f"s_lshl_b32 s{sT0}, s{sW}, 10")
    a(f"v_lshlrev_b32 v51, 4, v{vG8}")
    a.lab("K2_FB_OUT")
    a(f"v_add_u32 v52, s{sT0}, v51")
    a(f"v_add_u32 v53, v52, v{vC8}")
    a(f"v_lshlrev_b32 v56, 1, v{vG8}")
    a("v_xor_b32 v56, v56, v53")
    a(f"v_min_u32 v56, {399*128+112}, v56")
    a(f"v_add_u32 v56, {L_AUR}, v56")
    a("ds_read_b128 v[16:19], v56")
    a(f"v_add_u32 v53, {L_AGG}, v53")
    a("ds_read_b128 v[20:23], v53")
    a("s_waitcnt vmcnt(0) lgkmcnt(0)")
    for m in range(4):
        a(f"v_add_f32 v{16+m}, v{16+m}, v{20+m}")
    epilogue(16, 24, 4)
    a(f"v_lshl_add_u32 v53, v52, 1, v{vCo}")
    a(f"v_cmp_gt_u32 vcc, {BN*128}, v52")
    a("s_mov_b64 exec, vcc")
    a(f"buffer_store_dwordx2 v[24:25], v53, s[{SO}:{SO+3}], s{sOutOff} offen{K2_ST}")
    a("s_mov_b64 exec, -1")
    a(f"s_add_u32 s{sT0}, s{sT0}, 16384")
    a(f"s_cmp_lt_u32 s{sT0}, {BN*128}")
    a("s_cbranch_scc1 K2_FB_OUT")
    a.lab("K2_END")
    a("s_endpgm")


def kd(name, vgpr, sgpr, extra=""):
    acc = (vgpr + 3) // 4 * 4
    return f""".amdhsa_kernel {name}
  .amdhsa_next_free_vgpr {vgpr}
  .amdhsa_next_free_sgpr {sgpr}
  .amdhsa_accum_offset {acc}
  .amdhsa_group_segment_fixed_size 0
  .amdhsa_kernarg_size 80
  .amdhsa_user_sgpr_count 2
  .amdhsa_user_sgpr_kernarg_segment_ptr 1
  .amdhsa_system_sgpr_workgroup_id_x 1
{extra}.end_amdhsa_kernel
"""


def main():
    out = HEADER
    if FUSED:
        out += f"; @launch grid=(256,1,1) block=(1024,1,1) lds={K1_LDS}\n"
    else:
        out += f"; @launch kernel=k1_kernel grid=(256,1,1) block=(1024,1,1) lds={K1_LDS}\n"
        out += f"; @launch kernel=k2_kernel grid=(256,1,1) block=(1024,1,1) lds={K2_LDS}\n"
    out += '.amdgcn_target "amdgcn-amd-amdhsa--gfx950"\n.text\n'
    for name, g in ((KNAME if FUSED else "k1_kernel", gen_k1), ("k2_kernel", gen_k2)):
        a = A()
        g(a)
        if not (FUSED and g is gen_k2):
            out += f".globl {name}\n.p2align 8\n.type {name},@function\n"
        out += "\n".join(a.l) + "\n"
    out += '.section .rodata,"a"\n.p2align 6\n'
    out += kd(KNAME if FUSED else "k1_kernel", 128, 102, "  .amdhsa_fp16_overflow 1\n")
    if not FUSED:
        out += ".p2align 6\n"
        out += kd("k2_kernel", 128, 102)
    path = sys.argv[1] if len(sys.argv) > 1 else "gather_scatter__edge_featured_mpnn_egc__graph.s"
    open(path, "w").write(out)


if __name__ == "__main__":
    main()
```

```python
import sys

N = 25000
E = 400000
NB = 64
BN = 391
CH = 3200
NCH = 125
PS = 25040 * 128
P_OFF = 0
AU_OFF = 0x1000000
KEY_OFF = 0x2000000
EAT_OFF = 0x2200000
DESC_OFF = 0x2800000
GCNT_OFF = 0x2810000
WS_USED = 0x2900000
NL2E = 0xBFB8AA3B
MAGIC = 85817

OPTS = set(sys.argv[2:])
STAMPS = "stamps" in OPTS
STAMP_OFF = 0x3000000
K1_ST = ""
K2_ST = ""
NT_E = "" if "noent" in OPTS else " nt"
NT_X = " nt" if "xnt" in OPTS else ""
FUSED = "split" not in OPTS
K1_ST = " sc1"
LD = " sc1" if FUSED else ""
KNAME = "gather_scatter__edge_featured_mpnn_egc__graph_kernel"
SDB = 96
for o in OPTS:
    if o.startswith("k1st="):
        K1_ST = " " + o[5:].replace("+", " ")
    if o.startswith("k2st="):
        K2_ST = " " + o[5:].replace("+", " ")

HEADER = """; Kernarg layout for this problem (80 bytes, ptrs only, base s[0:1]):
"""


class A:
    def __init__(self):
        self.l = []
        self.vst = None

    def __call__(self, s):
        for x in s.strip().split("\n"):
            self.l.append("    " + x.strip())

    def lab(self, s):
        self.l.append(s + ":")

    def c(self, s):
        self.l.append("    ; " + s)

    def stamp(self, idx):
        if not STAMPS:
            return
        self("s_memrealtime s[100:101]")
        self("s_waitcnt lgkmcnt(0)")
        self(f"v_writelane_b32 v{self.vst}, s100, {idx}")

    def stampc(self, idx):
        if not STAMPS:
            return
        self("s_memtime s[100:101]")
        self("s_waitcnt lgkmcnt(0)")
        self(f"v_writelane_b32 v{self.vst}, s100, {idx}")

    def stamp_flush(self, kidx, sw):
        if not STAMPS:
            return
        self("s_mov_b64 exec, -1")
        self(f"s_add_u32 s12, s20, {STAMP_OFF + kidx*0x100000}")
        self("s_addc_u32 s13, s21, 0")
        self("s_mov_b32 s14, 0x100000")
        self("s_mov_b32 s15, 0x20000")
        self("s_lshl_b32 s100, s2, 12")
        self(f"v_mbcnt_lo_u32_b32 v{self.vst+1}, -1, 0")
        self(f"v_mbcnt_hi_u32_b32 v{self.vst+1}, -1, v{self.vst+1}")
        self(f"v_lshlrev_b32 v{self.vst+1}, 2, v{self.vst+1}")
        self(f"s_lshl_b32 s101, s{sw}, 8")
        self("s_add_u32 s100, s100, s101")
        self(f"buffer_store_dword v{self.vst}, v{self.vst+1}, s[12:15], s100 offen")


def srd(a, d, base, size, off=0):
    if off:
        a(f"s_add_u32 s{d}, s{base}, {off}")
        a(f"s_addc_u32 s{d+1}, s{base+1}, 0")
    else:
        a(f"s_mov_b32 s{d}, s{base}")
        a(f"s_mov_b32 s{d+1}, s{base+1}")
    a(f"s_mov_b32 s{d+2}, {size}")
    a(f"s_mov_b32 s{d+3}, 0x20000")


def scan64(a, v):
    for sh in (1, 2, 4, 8):
        a("s_nop 1")
        a(f"v_add_u32_dpp v{v}, v{v}, v{v} row_shr:{sh} row_mask:0xf bank_mask:0xf bound_ctrl:0")
    a("s_nop 1")
    a(f"v_add_u32_dpp v{v}, v{v}, v{v} row_bcast:15 row_mask:0xa bank_mask:0xf")
    a("s_nop 1")
    a(f"v_add_u32_dpp v{v}, v{v}, v{v} row_bcast:31 row_mask:0xc bank_mask:0xf")


K1_WP = 98304
K1_WAU = 102400
K1_CNT = 118784
K1_STK = K1_CNT + 2048
K1_STE = K1_STK + 12800
K1_SCR = 131072
L_AUR = 112640
L_GW = 103936
K1_LDS = 163840
assert K1_STE + 25600 <= K1_LDS


def poll(a, tag, vP, off, val=None, slp=2):
    a("s_mov_b32 s101, 0x40000")
    a("s_mov_b64 exec, 1")
    a.lab(f"POLL{tag}")
    a(f"buffer_load_dword v{vP}, off, s[{SDB}:{SDB+3}], 0 offset:{off} sc1")
    a("s_waitcnt vmcnt(0)")
    a(f"v_cmp_ne_u32 vcc, 0, v{vP}" if val is None else f"v_cmp_eq_u32 vcc, {val}, v{vP}")
    a("s_sub_u32 s101, s101, 1")
    a(f"s_cbranch_scc1 POLLD{tag}")
    a(f"s_cbranch_vccnz POLLD{tag}")
    a(f"s_sleep {slp}")
    a(f"s_branch POLL{tag}")
    a.lab(f"POLLD{tag}")
    a("s_mov_b64 exec, -1")


def gen_k1(a):
    sW, sSl, sBk, sT0, sT1, sT2, sT3 = 22, 23, 24, 25, 26, 27, 28
    sG = 29
    sEx = 30
    SD, SS, SE, SWS, SX, SWL, SWH = 32, 36, 40, 44, 48, 52, 56
    sScale, sOut, sS, sQ, sX0, sDl, sJ, sSlot = 60, 61, 62, 63, 64, 65, 66, 67
    sUns = 94
    vLane = 1
    VX = 40
    VW = 44
    a.lab(KNAME)
    a.vst = 11
    a("s_cmp_ge_u32 s2, 256")
    a("s_cbranch_scc1 K1_END2")
    a.stamp(0)
    a.stampc(30)
    a("s_load_dwordx16 s[4:19], s[0:1], 0")
    a("s_load_dwordx2 s[20:21], s[0:1], 72")
    a(f"s_load_dwordx2 s[{SDB}:{SDB+1}], s[0:1], 64")
    a("v_lshrrev_b32 v2, 6, v0")
    a(f"v_and_b32 v{vLane}, 63, v0")
    a(f"v_readfirstlane_b32 s{sW}, v2")
    a(f"s_mov_b32 s{SDB+2}, 256")
    a(f"s_mov_b32 s{SDB+3}, 0x20000")
    a(f"s_and_b32 s{sSl}, s2, 3")
    a(f"s_lshr_b32 s{sT0}, s2, 2")
    a(f"s_mov_b32 s{sBk}, s{sT0}")
    a(f"s_lshl_b32 s{sG}, s{sT0}, 1")
    a(f"s_add_u32 s{sG}, s{sG}, s{sSl}")
    a(f"s_mul_i32 s{sX0}, s{sBk}, {BN*256}")
    a(f"s_cmp_eq_u32 s{sSl}, 2")
    a(f"s_cselect_b32 s{sDl}, 1, 0")
    a("v_lshlrev_b32 v2, 4, v0")
    a("v_lshlrev_b32 v3, 5, v0")
    a(f"v_lshrrev_b32 v4, 4, v{vLane}")
    a(f"v_and_b32 v5, 15, v{vLane}")
    a("v_xor_b32 v6, v5, v4")
    a("v_lshlrev_b32 v6, 4, v6")
    a(f"v_lshl_add_u32 v{VX}, v4, 8, v6")
    a(f"v_xor_b32 v{VX+1}, 64, v{VX}")
    a(f"v_xor_b32 v{VX+2}, 0x80, v{VX}")
    a(f"v_xor_b32 v{VX+3}, 0xc0, v{VX}")
    a("v_lshrrev_b32 v6, 1, v5")
    a("v_xor_b32 v6, v6, v4")
    a("v_lshlrev_b32 v6, 5, v6")
    a("v_lshl_add_u32 v6, v4, 8, v6")
    a(f"v_and_b32 v7, 1, v{vLane}")
    a(f"v_lshl_add_u32 v{VW}, v7, 4, v6")
    a(f"v_xor_b32 v{VW+1}, 0x80, v{VW}")
    a(f"v_lshrrev_b32 v6, 2, v{vLane}")
    a("v_lshlrev_b32 v6, 8, v6")
    a(f"v_and_b32 v7, 3, v{vLane}")
    a(f"v_lshl_add_u32 v{VW+2}, v7, 4, v6")
    if "icode" in OPTS:
        a.c("pull this kernel's code into the XCD's L2 (wave 15 of the first workgroups)")
        a(f"s_cmp_lg_u32 s{sW}, 15")
        a("s_cbranch_scc1 K1_NOIC")
        a("s_cmp_ge_u32 s2, 16")
        a("s_cbranch_scc1 K1_NOIC")
        a("s_getpc_b64 s[68:69]")
        a(f"v_lshlrev_b32 v60, 7, v{vLane}")
        a.lab("K1_ICB")
        a("global_load_dword v61, v60, s[68:69]")
        a("s_add_u32 s68, s68, 8192")
        a("s_addc_u32 s69, s69, 0")
        a("s_bfm_b64 exec, (K2_END-K1_ICB-8192)/128, 0")
        a("global_load_dword v62, v60, s[68:69]")
        a("s_mov_b64 exec, -1")
        a.lab("K1_NOIC")
    a("s_waitcnt lgkmcnt(0)")
    a.stamp(1)
    srd(a, SX, 4, N * 256)
    a(f"s_cmp_ge_u32 s{sSl}, 2")
    a("s_cbranch_scc1 K1_TB")

    def xdma(slot_sgpr, tag):
        a(f"s_lshl_b32 s{sT0}, s{slot_sgpr}, 12")
        a(f"s_mov_b32 m0, s{sT0}")
        a(f"s_sub_u32 s{sT1}, s{slot_sgpr}, s{sDl}")
        a(f"s_cselect_b32 s{sT1}, 24, s{sT1}")
        a(f"s_lshl_b32 s{sT1}, s{sT1}, 12")
        a(f"s_add_u32 s{sT1}, s{sT1}, s{sX0}")
        for pp in range(4):
            a(f"buffer_load_dwordx4 v{VX+pp}, s[{SX}:{SX+3}], s{sT1} offen offset:{pp*1024}{NT_X} lds")

    def waudma(piece_sgpr):
        a(f"s_lshl_b32 s{sT0}, s{piece_sgpr}, 10")
        a(f"s_add_u32 s{sT0}, s{sT0}, {K1_WAU}")
        a(f"s_mov_b32 m0, s{sT0}")
        a(f"s_and_b32 s{sT1}, s{piece_sgpr}, 7")
        a(f"s_lshl_b32 s{sT1}, s{sT1}, 12")
        a(f"s_lshl_b32 s{sT0}, s{sSl}, 6")
        a(f"s_add_u32 s{sT1}, s{sT1}, s{sT0}")
        a(f"s_cmp_lt_u32 s{piece_sgpr}, 8")
        a(f"s_cselect_b32 s{SWL}, s16, s12")
        a(f"s_cselect_b32 s{SWL+1}, s17, s13")
        a(f"s_mov_b32 s{SWL+2}, 32768")
        a(f"s_mov_b32 s{SWL+3}, 0x20000")
        a(f"buffer_load_dwordx4 v{VW+2}, s[{SWL}:{SWL+3}], s{sT1} offen lds")

    a(f"s_cmp_ge_u32 s{sG}, {NCH}")
    a("s_cbranch_scc1 K1_NOEDGE")
    a(f"s_cmp_ge_u32 s{sW}, 13")
    a("s_cbranch_scc1 K1_NOEDGE")
    srd(a, SD, 10, E * 4)
    srd(a, SS, 8, E * 4)
    srd(a, SE, 6, E * 8)
    a("v_cmp_gt_u32 vcc, 800, v0")
    a(f"s_mul_i32 s{sT0}, s{sG}, {CH*4}")
    a(f"s_mul_i32 s{sT1}, s{sG}, {CH*8}")
    a(f"s_mov_b64 s[{sEx}:{sEx+1}], vcc")
    a("s_mov_b64 exec, vcc")
    a(f"buffer_load_dwordx4 v[16:19], v2, s[{SD}:{SD+3}], s{sT0} offen{NT_E}")
    a(f"buffer_load_dwordx4 v[20:23], v2, s[{SS}:{SS+3}], s{sT0} offen{NT_E}")
    a(f"buffer_load_dwordx4 v[24:27], v3, s[{SE}:{SE+3}], s{sT1} offen{NT_E}")
    a(f"buffer_load_dwordx4 v[28:31], v3, s[{SE}:{SE+3}], s{sT1} offen offset:16{NT_E}")
    a("s_mov_b64 exec, -1")
    a.lab("K1_NOEDGE")
    srd(a, SWS, 20, WS_USED)
    a(f"v_lshlrev_b32 v6, 2, v{vLane}")
    a(f"v_add_u32 v6, {K1_CNT}, v6")
    a("v_mov_b32 v7, 0")
    a(f"v_mov_b32 v12, {K1_CNT+1024}")
    a(f"s_cmp_lg_u32 s{sW}, 0")
    a("s_cbranch_scc1 K1_P1")
    a("ds_write_b32 v6, v7")
    a("ds_write_b32 v6, v7 offset:256")
    a("ds_write_b32 v6, v7 offset:1024")
    a("s_waitcnt lgkmcnt(0)")
    a.lab("K1_P1")
    a("s_barrier")
    a(f"s_cmp_lt_u32 s{sW}, 13")
    a("s_cbranch_scc1 K1_PW")
    a.c("loader waves 13..15 : W_AU pieces and x tiles by LDS-DMA")
    a(f"s_sub_u32 s{sJ}, s{sW}, 13")
    a.lab("K1_LA1")
    waudma(sJ)
    a(f"s_add_u32 s{sJ}, s{sJ}, 3")
    a(f"s_cmp_lt_u32 s{sJ}, 16")
    a("s_cbranch_scc1 K1_LA1")
    a(f"s_sub_u32 s{sJ}, s{sW}, 13")
    a.lab("K1_LA2")
    xdma(sJ, "A")
    a(f"s_add_u32 s{sJ}, s{sJ}, 3")
    a(f"s_cmp_lt_u32 s{sJ}, 25")
    a("s_cbranch_scc1 K1_LA2")
    a.stamp(2)
    a("s_waitcnt vmcnt(0)")
    a.stamp(13)
    a("s_branch K1_AU")
    a.lab("K1_PW")
    a(f"s_cmp_ge_u32 s{sG}, {NCH}")
    a("s_cbranch_scc1 K1_AU")

    def sb(k, tag):
        a("s_waitcnt lgkmcnt(0)")
        a("s_mov_b64 exec, 1")
        a(f"ds_add_u32 v12, v7 offset:{4+4*k}")
        a("s_mov_b64 exec, -1")
        a.lab(f"K1_SB{tag}")
        a(f"ds_read_b32 v13, v12 offset:{4+4*k}")
        a("s_waitcnt lgkmcnt(0)")
        a("v_cmp_gt_u32 vcc, 13, v13")
        a(f"s_cbranch_vccnz K1_SB{tag}")
    a(f"s_mov_b32 s{sT0}, {MAGIC}")
    a(f"s_mov_b32 s{sT1}, {-BN & 0xffffffff}")
    a("v_mov_b32 v7, 1")
    a(f"s_mov_b64 exec, s[{sEx}:{sEx+1}]")
    a("s_waitcnt vmcnt(3)")
    a.stamp(3)
    for i in range(4):
        a(f"v_mul_u32_u24 v{32+i}, s{sT0}, v{16+i}")
    for i in range(4):
        a(f"v_lshrrev_b32 v{32+i}, 25, v{32+i}")
    for i in range(4):
        a(f"v_mad_i32_i24 v{16+i}, v{32+i}, s{sT1}, v{16+i}")
    for i in range(4):
        a(f"v_lshlrev_b32 v{32+i}, 2, v{32+i}")
    for i in range(4):
        a(f"v_add_u32 v{32+i}, {K1_CNT}, v{32+i}")
    for i in range(4):
        a(f"ds_add_rtn_u32 v{36+i}, v{32+i}, v7")
    for i in range(4):
        a(f"v_lshlrev_b32 v{16+i}, 2, v{16+i}")
    a("s_waitcnt vmcnt(2)")
    for i in range(4):
        a(f"v_lshl_or_b32 v{20+i}, v{20+i}, 16, v{16+i}")
    sb(0, "2")
    a.stamp(4)
    a("ds_read_b32 v8, v6")
    a("s_waitcnt lgkmcnt(0)")
    a("v_mov_b32 v9, v8")
    scan64(a, 9)
    a("v_sub_u32 v9, v9, v8")
    a("ds_write_b32 v6, v9 offset:512")
    a("v_lshl_or_b32 v8, v8, 16, v9")
    a(f"s_mov_b64 exec, s[{sEx}:{sEx+1}]")
    for i in range(4):
        a(f"ds_read_b32 v{32+i}, v{32+i} offset:512")
    a("s_waitcnt lgkmcnt(0)")
    for i in range(4):
        a(f"v_add_u32 v{32+i}, v{32+i}, v{36+i}")
    for i in range(4):
        a(f"v_lshlrev_b32 v{36+i}, 2, v{32+i}")
        a(f"v_lshlrev_b32 v{32+i}, 3, v{32+i}")
    for i in range(4):
        a(f"v_add_u32 v{36+i}, {K1_STK}, v{36+i}")
        a(f"v_add_u32 v{32+i}, {K1_STE}, v{32+i}")
    for i in range(4):
        a(f"ds_write_b32 v{36+i}, v{20+i}")
    a("s_waitcnt vmcnt(0)")
    for i in range(4):
        a(f"ds_write_b64 v{32+i}, v[{24+2*i}:{25+2*i}]")
    a("v_or3_b32 v16, v24, v25, v26")
    a("v_or3_b32 v17, v27, v28, v29")
    a("v_or3_b32 v16, v30, v31, v16")
    a("v_or_b32 v16, v16, v17")
    a("v_and_b32 v16, 0x40004000, v16")
    a("v_cmp_ne_u32 vcc, 0, v16")
    a(f"s_cmp_lg_u64 vcc, 0")
    a(f"s_cselect_b32 s{sUns}, 0x101, 1")
    sb(1, "3")
    a.stamp(5)
    a(f"s_mov_b64 exec, s[{sEx}:{sEx+1}]")
    a(f"v_add_u32 v6, {K1_STK}, v2")
    a("ds_read_b128 v[16:19], v6")
    a("ds_read_b128 v[20:23], v6 offset:12800")
    a("ds_read_b128 v[24:27], v6 offset:25600")
    a(f"s_mul_i32 s{sT0}, s{sG}, {CH*4}")
    a(f"s_add_u32 s{sT0}, s{sT0}, {KEY_OFF}")
    a(f"s_mul_i32 s{sT1}, s{sG}, {CH*8}")
    a(f"s_add_u32 s{sT1}, s{sT1}, {EAT_OFF}")
    a(f"s_add_u32 s{sT2}, s{sT1}, 12800")
    a("s_waitcnt lgkmcnt(2)")
    a(f"buffer_store_dwordx4 v[16:19], v2, s[{SWS}:{SWS+3}], s{sT0} offen{K1_ST}")
    a("s_waitcnt lgkmcnt(1)")
    a(f"buffer_store_dwordx4 v[20:23], v2, s[{SWS}:{SWS+3}], s{sT1} offen{K1_ST}")
    a("s_waitcnt lgkmcnt(0)")
    a(f"buffer_store_dwordx4 v[24:27], v2, s[{SWS}:{SWS+3}], s{sT2} offen{K1_ST}")
    a("s_mov_b64 exec, -1")
    a(f"s_cmp_lg_u32 s{sW}, 0")
    a("s_cbranch_scc1 K1_P2B")
    a(f"v_lshlrev_b32 v9, 2, v{vLane}")
    a(f"s_lshl_b32 s{sT0}, s{sG}, 8")
    a(f"s_add_u32 s{sT0}, s{sT0}, {DESC_OFF}")
    a(f"buffer_store_dword v8, v9, s[{SWS}:{SWS+3}], s{sT0} offen{K1_ST}")
    a.lab("K1_P2B")
    a.c("publish the partition: the last of the 13 storing waves counts this workgroup into R")
    a(f"v_mov_b32 v15, s{sUns}")
    a("s_waitcnt vmcnt(0)")
    a("s_mov_b64 exec, 1")
    a("ds_add_rtn_u32 v14, v12, v15")
    a("s_waitcnt lgkmcnt(0)")
    a("v_add_u32 v14, v14, v15")
    a("v_and_b32 v15, 0xff, v14")
    a("v_cmp_eq_u32 vcc, 13, v15")
    a("s_cbranch_vccz K1_NOR2")
    a("v_lshrrev_b32 v14, 8, v14")
    a("v_lshl_or_b32 v14, v14, 16, 1")
    a("v_mov_b32 v15, v14")
    a(f"buffer_atomic_add v15, off, s[{SDB}:{SDB+3}], 0 sc0 sc1")
    a("s_waitcnt vmcnt(0)")
    a("v_add_u32 v15, v15, v14")
    a("v_and_b32 v14, 0xffff, v15")
    a(f"v_cmp_eq_u32 vcc, {NCH}, v14")
    a("s_cbranch_vccz K1_NOR2")
    a(f"buffer_store_dword v15, off, s[{SDB}:{SDB+3}], 0 offset:192 sc1")
    a.lab("K1_NOR2")
    a("s_mov_b64 exec, -1")
    a.stamp(6)
    a("s_branch K1_AU")

    a.lab("K1_TB")
    a(f"s_add_u32 s{sT0}, s16, 32768")
    a(f"s_addc_u32 s{sT1}, s17, 0")
    a(f"s_cmp_lt_u32 s{sW}, 8")
    a(f"s_cselect_b32 s{SWH}, s{sT0}, s14")
    a(f"s_cselect_b32 s{SWH+1}, s{sT1}, s15")
    a(f"s_mov_b32 s{SWH+2}, 32768")
    a(f"s_mov_b32 s{SWH+3}, 0x20000")
    a(f"s_lshl_b32 s{sT0}, s{sW}, 12")
    a(f"s_add_u32 s{sT1}, s{sT0}, {K1_WP}")
    a(f"s_mov_b32 m0, s{sT1}")
    a(f"s_and_b32 s{sT0}, s{sT0}, 0x7fff")
    for pp in range(4):
        a(f"buffer_load_dwordx4 v{VW+(pp>>1)}, s[{SWH}:{SWH+3}], s{sT0} offen offset:{pp*1024} lds")
    srd(a, SWS, 20, WS_USED)
    a(f"s_cmp_ge_u32 s{sW}, 13")
    a("s_cbranch_scc1 K1_B0")
    a(f"s_lshl_b32 s{sJ}, s{sW}, 1")
    a(f"s_add_u32 s{sJ}, s{sJ}, 1")
    a(f"s_cmp_eq_u32 s{sW}, 12")
    a(f"s_cselect_b32 s{sJ}, 0, s{sJ}")
    xdma(sJ, "B")
    a.lab("K1_B0")
    a(f"s_and_b32 s{sS}, s{sW}, 3")
    a(f"s_lshr_b32 s{sQ}, s{sW}, 2")
    a(f"v_lshrrev_b32 v2, 4, v{vLane}")
    a(f"v_and_b32 v3, 15, v{vLane}")
    a("v_lshrrev_b32 v48, 2, v3")
    a("v_and_b32 v49, 1, v2")
    a("v_lshl_or_b32 v49, v49, 2, v48")
    a(f"s_lshl_b32 s{sT0}, s{sS}, 1")
    a(f"v_xor_b32 v49, s{sT0}, v49")
    a("v_lshlrev_b32 v49, 5, v49")
    a("v_lshl_add_u32 v48, v2, 3, v48")
    a("v_lshl_add_u32 v48, v48, 8, v49")
    a(f"v_and_b32 v49, 3, v{vLane}")
    a("v_lshl_add_u32 v48, v49, 3, v48")
    a(f"v_add_u32 v48, {K1_WP}, v48")
    a("v_xor_b32 v49, 32, v48")
    a("v_and_b32 v10, 7, v3")
    a("v_xor_b32 v10, v10, v2")
    a("v_lshlrev_b32 v10, 4, v10")
    a("v_lshl_add_u32 v10, v3, 7, v10")
    a(f"s_lshl_b32 s{sT0}, s{sW}, 11")
    a(f"s_add_u32 s{sT0}, s{sT0}, {K1_SCR}")
    a(f"v_add_u32 v10, s{sT0}, v10")
    a("v_xor_b32 v0, 64, v10")
    a(f"v_lshlrev_b32 v2, 4, v{vLane}")
    a(f"v_add_u32 v2, s{sT0}, v2")
    a(f"v_lshrrev_b32 v3, 3, v{vLane}")
    a(f"v_and_b32 v28, 7, v{vLane}")
    a("v_xor_b32 v28, v28, v3")
    a("v_lshlrev_b32 v28, 4, v28")
    a("v_lshl_add_u32 v3, v3, 7, v28")
    a(f"s_mov_b32 s{sScale}, {hex(NL2E)}")
    a(f"s_cmp_ge_u32 s{sW}, 13")
    a("s_cbranch_scc1 K1_B1")
    a("s_waitcnt vmcnt(4)")
    a("s_branch K1_B2")
    a.lab("K1_B1")
    a("s_waitcnt vmcnt(0)")
    a.lab("K1_B2")
    a.stamp(2)
    a("s_barrier")
    WF = 64

    def wf(mat, ct, ks):
        return WF + ((mat * 2 + ct) * 4 + ks) * 4
    for ks in range(4):
        for mat in range(2):
            for ct in range(2):
                b = wf(mat, ct, ks)
                off = mat * 32768 + ks * 8192
                a(f"ds_read_b64_tr_b16 v[{b}:{b+1}], v{48+ct} offset:{off}")
                a(f"ds_read_b64_tr_b16 v[{b+2}:{b+3}], v{48+ct} offset:{off+1024}")
    a("s_waitcnt lgkmcnt(0)")
    a.stamp(3)
    a("s_barrier")
    a(f"v_mov_b32 v50, {K1_CNT}")
    a("v_mov_b32 v51, 0")
    a("ds_write_b32 v50, v51")
    waudma(sW)
    a(f"s_cmp_ge_u32 s{sW}, 12")
    a("s_cbranch_scc1 K1_B3")
    a(f"s_lshl_b32 s{sJ}, s{sW}, 1")
    a(f"s_add_u32 s{sJ}, s{sJ}, 2")
    xdma(sJ, "C")
    a("s_waitcnt vmcnt(5)")
    a("s_branch K1_B4")
    a.lab("K1_B3")
    a("s_waitcnt vmcnt(1)")
    a.lab("K1_B4")
    XF = [32, 48]

    def xconst():
        a(f"v_lshrrev_b32 v4, 4, v{vLane}")
        a(f"v_and_b32 v5, 15, v{vLane}")
        a("v_xor_b32 v4, v4, v5")
        a("v_lshlrev_b32 v4, 4, v4")
        a("v_lshl_add_u32 v5, v5, 8, v4")

    def xread(buf, slot_sgpr):
        a(f"s_lshl_b32 s{sT0}, s{slot_sgpr}, 12")
        a(f"v_add_u32 v6, s{sT0}, v5")
        a("v_xor_b32 v7, 64, v6")
        a("v_xor_b32 v8, 0x80, v6")
        a("v_xor_b32 v9, 0xc0, v6")
        for ks in range(4):
            a(f"ds_read_b128 v[{XF[buf]+4*ks}:{XF[buf]+4*ks+3}], v{6+ks}")

    def mfmas(buf, mid=None):
        for ks in range(4):
            for mat in range(2):
                for ct in range(2):
                    d = 16 + (mat * 2 + ct) * 4
                    b = wf(mat, ct, ks)
                    cin = "0" if ks == 0 else f"v[{d}:{d+3}]"
                    a(f"v_mfma_f32_16x16x32_bf16 v[{d}:{d+3}], v[{b}:{b+3}], v[{XF[buf]+4*ks}:{XF[buf]+4*ks+3}], {cin}")
            if ks == 0 and mid:
                mid()
    xconst()
    a(f"s_lshl_b32 s{sSlot}, s{sQ}, 1")
    a(f"s_add_u32 s{sSlot}, s{sSlot}, 1")
    a(f"s_mul_i32 s{sOut}, s{sS}, {PS}")
    a(f"s_lshr_b32 s{sT0}, s{sX0}, 1")
    a(f"s_add_u32 s{sOut}, s{sOut}, s{sT0}")
    a(f"s_sub_u32 s{sT0}, s{sSlot}, s{sDl}")
    a(f"s_lshl_b32 s{sT0}, s{sT0}, 11")
    a(f"s_add_u32 s{sOut}, s{sOut}, s{sT0}")
    a.stamp(4)
    a("v_mov_b32 v4, 0")
    a("s_waitcnt lgkmcnt(0)")
    a("s_barrier")
    a.stamp(7)
    a.stampc(31)
    xread(0, sSlot)
    for i in range(4):
        buf = i & 1
        if i == 3:
            a.c("13th P tile (tile 24, slot 0): slice 2, set 0 only")
            a(f"s_cmp_lg_u32 s{sQ}, 0")
            a("s_cbranch_scc1 K1_PDONE")
            a(f"s_cmp_eq_u32 s{sDl}, 0")
            a("s_cbranch_scc1 K1_PDONE")
        if i < 2:
            a(f"s_add_u32 s{sSlot}, s{sSlot}, 8")
        elif i == 2:
            a(f"s_mov_b32 s{sSlot}, 0")
        a("s_waitcnt lgkmcnt(0)")
        mfmas(buf, (lambda: xread(buf ^ 1, sSlot)) if i < 3 else None)
        a("s_nop 7")
        for r in range(16, 32, 2):
            a(f"v_max3_f32 v4, abs(v{r}), abs(v{r+1}), v4")
        for ct in range(2):
            for j in range(4):
                a(f"v_fma_mixlo_f16 v{24+4*ct+j}, v{16+4*ct+j}, s{sScale}, 0")
        a("ds_write_b128 v10, v[24:27]")
        a("ds_write_b128 v0, v[28:31]")
        a("ds_read_b128 v[12:15], v2")
        a("ds_read_b128 v[16:19], v2 offset:1024")
        a("s_waitcnt lgkmcnt(1)")
        a(f"buffer_store_dwordx4 v[12:15], v3, s[{SWS}:{SWS+3}], s{sOut} offen{K1_ST}")
        a("s_waitcnt lgkmcnt(0)")
        a(f"buffer_store_dwordx4 v[16:19], v3, s[{SWS}:{SWS+3}], s{sOut} offen offset:1024{K1_ST}")
        a.stamp(8 + i)
        if i < 3:
            a(f"s_add_u32 s{sOut}, s{sOut}, 16384")
            a("s_nop 1")
    a.lab("K1_PDONE")
    a("v_cmp_le_f32 vcc, 4.0, v4")
    a("s_cbranch_vccz K1_PSAFE")
    a(f"v_mov_b32 v12, {K1_CNT}")
    a("v_mov_b32 v13, 0x10000")
    a("ds_write_b32 v12, v13")
    a.lab("K1_PSAFE")
    a("s_waitcnt vmcnt(6) lgkmcnt(0)")
    a.lab("K1_AU")
    xconst()
    a(f"v_lshrrev_b32 v2, 4, v{vLane}")
    a(f"v_and_b32 v3, 15, v{vLane}")
    a("v_lshrrev_b32 v48, 2, v3")
    a("v_lshl_add_u32 v48, v2, 3, v48")
    a("v_lshlrev_b32 v48, 6, v48")
    a(f"v_and_b32 v49, 3, v{vLane}")
    a("v_lshl_add_u32 v48, v49, 3, v48")
    a(f"v_add_u32 v48, {K1_WAU}, v48")
    a("v_and_b32 v10, 7, v3")
    a("v_xor_b32 v10, v10, v2")
    a("v_lshlrev_b32 v10, 4, v10")
    a("v_lshl_add_u32 v10, v3, 7, v10")
    a(f"v_add_u32 v10, {L_AUR}, v10")
    a(f"s_mov_b32 s{sSlot}, s{sW}")
    a(f"v_mov_b32 v14, {K1_CNT}")
    a.c("first chunk of this wave: key waves 12w (12 chunks), loader waves 32(w-11) (32 chunks)")
    a(f"s_mul_i32 s{sT2}, s{sW}, 12")
    a(f"s_lshl_b32 s{sT3}, s{sW}, 5")
    a(f"s_sub_u32 s{sT3}, s{sT3}, {32*11}")
    a(f"s_cmp_lt_u32 s{sW}, 11")
    a(f"s_cselect_b32 s{sT3}, s{sT2}, s{sT3}")
    a(f"s_cselect_b32 s{sT2}, 12, 32")
    a(f"s_bfm_b64 s[54:55], s{sT2}, 0")
    a(f"s_lshl_b32 s90, s{sT3}, 8")
    a(f"s_lshl_b32 s{sT1}, s{sBk}, 2")
    a(f"s_add_u32 s90, s90, s{sT1}")
    a(f"s_add_u32 s48, s20, {DESC_OFF}")
    a("s_addc_u32 s49, s21, 0")
    a(f"s_mov_b32 s50, {NCH*256}")
    a("s_mov_b32 s51, 0x20000")
    a.stamp(14)
    a("s_barrier")
    a.stamp(15)
    a("ds_read_b32 v15, v14")
    xread(0, sSlot)
    for ks in range(4):
        for mat in range(2):
            for ct in range(2):
                b = wf(mat, ct, ks)
                off = mat * 8192 + ks * 2048 + ct * 32
                a(f"ds_read_b64_tr_b16 v[{b}:{b+1}], v48 offset:{off}")
                a(f"ds_read_b64_tr_b16 v[{b+2}:{b+3}], v48 offset:{off+256}")
    a("s_waitcnt vmcnt(0) lgkmcnt(0)")
    a("s_barrier")
    a(f"s_cmp_lg_u32 s{sW}, 15")
    a("s_cbranch_scc1 K1_NZ")
    a(f"v_lshlrev_b32 v14, 2, v{vLane}")
    a(f"v_add_u32 v14, {L_GW}, v14")
    a("v_mov_b32 v3, 0")
    a("ds_write_b32 v14, v3")
    a(f"s_cmp_lt_u32 s{sSl}, 2")
    a("s_cbranch_scc1 K1_NZ2")
    a.c("count this workgroup's P tiles in")
    a("v_or_b32 v15, 1, v15")
    a("v_mov_b32 v14, v15")
    a("s_mov_b64 exec, 1")
    a(f"buffer_atomic_add v14, off, s[{SDB}:{SDB+3}], 0 offset:64 sc0 sc1")
    a("s_mov_b64 exec, -1")
    a("s_branch K1_NZ2")
    a.lab("K1_NZ")
    a("s_mov_b64 exec, 1")
    a(f"buffer_load_dword v2, off, s[{SDB}:{SDB+3}], 0 offset:192 sc1")
    a("s_mov_b64 exec, -1")
    a(f"v_lshlrev_b32 v14, 8, v{vLane}")
    a.lab("K1_NZ2")
    a("v_mov_b32 v4, 0")
    a(f"s_mov_b32 s{sUns+1}, 0")
    a.stamp(16)
    for i in range(2):
        a(f"s_sub_u32 s{sT1}, s{sSlot}, s{sDl}")
        a(f"s_cselect_b32 s{sT1}, 24, s{sT1}")
        a(f"s_lshl_b32 s{sT1}, s{sT1}, 11")
        a(f"v_add_u32 v12, s{sT1}, v10")
        a("v_xor_b32 v13, 64, v12")
        if i == 0:
            a(f"s_add_u32 s{sSlot}, s{sSlot}, 16")
            a(f"s_min_u32 s{sJ}, s{sSlot}, 24")
        a("s_waitcnt lgkmcnt(0)")
        mfmas(i, (lambda: xread(1, sJ)) if i == 0 else None)
        a("s_nop 7")
        for r in range(16, 24, 2):
            a(f"v_max3_f32 v4, abs(v{r}), abs(v{r+1}), v4")
        for ct in range(2):
            for j in range(4):
                a(f"v_fma_mixlo_f16 v{24+4*ct+j}, v{16+4*ct+j}, 1.0, 0")
        a("ds_write_b128 v12, v[24:27]")
        a("ds_write_b128 v13, v[28:31]")
        if i == 0:
            a(f"s_cmp_eq_u32 s{sW}, 15")
            a("s_cbranch_scc1 K1_END")
            a.c("partition published? then fetch this wave's segment descriptors")
            a("s_mov_b64 exec, 1")
            a("s_waitcnt vmcnt(0)")
            a("v_cmp_ne_u32 vcc, 0, v2")
            a("s_cbranch_vccnz K1_ROK")
            poll(a, "R", 2, 192, None, 4)
            a.lab("K1_ROK")
            a("s_mov_b64 exec, s[54:55]")
            a(f"buffer_load_dword v3, v14, s[48:51], s90 offen{LD}")
            a("s_mov_b64 exec, -1")
            a(f"v_readfirstlane_b32 s{sUns+1}, v2")
            a.stamp(17)
            a(f"s_cmp_ge_u32 s{sSlot}, 25")
            a(f"s_lshr_b32 s{sUns+1}, s{sUns+1}, 16")
            a(f"s_cmp_ge_u32 s{sSlot}, 25")
            a("s_cbranch_scc1 K1_END")
    a.lab("K1_END")
    a("v_cmp_le_f32 vcc, 4.0, v4")
    a("s_cmp_lg_u64 vcc, 0")
    a(f"s_cselect_b32 s{sUns+1}, 1, s{sUns+1}")
    a.stamp(12)
    a.stampc(32)
    a.stamp_flush(0, sW)
    a.c("wave 15 waits until every partition workgroup has counted into R")
    a(f"s_cmp_lg_u32 s{sW}, 15")
    a("s_cbranch_scc1 K1_RDONE")
    a(f"s_cmp_lt_u32 s{sSl}, 2")
    a("s_cbranch_scc1 K1_NG")
    a("s_mov_b64 exec, 1")
    a("s_waitcnt vmcnt(0)")
    a("v_add_u32 v14, v14, v15")
    a("v_and_b32 v15, 0xffff, v14")
    a("v_cmp_eq_u32 vcc, 0x80, v15")
    a("s_cbranch_vccz K1_NG")
    a(f"buffer_store_dword v14, off, s[{SDB}:{SDB+3}], 0 offset:128 sc1")
    a.lab("K1_NG")
    a("s_mov_b64 exec, -1")
    a.lab("K1_RDONE")
    a(f"s_lshl_b32 s{sT0}, s{sW}, 6")
    a(f"v_add_u32 v0, s{sT0}, v{vLane}")
    a("s_branch K2_ENTRY")
    a.lab("K1_END2")
    a("s_endpgm")


CAP = 8192
L_CNT = 0
L_ORD = 2048
L_DH = 4096
L_BST = 4352
L_SB = 4608
L_FLAG = 4864
L_GD = L_FLAG + 4
L_ELL = 5120
L_DUM = L_ELL + CAP * 4
L_EA = L_DUM + 512
NKW = 11
EA_TAIL = NKW * 12 * 64
EA_ZERO = EA_TAIL + NKW * 64
assert L_EA + EA_ZERO * 8 + 8 <= L_AUR
DUMMY = 0xFFFF0000 | EA_ZERO
DUMMY_NODE = 399 * 128
NBATCH = (BN + 15) // 16
NR = 13


def gen_k2(a):
    assert FUSED
    sW, sSl, sBk = 22, 23, 24
    sT0, sT1, sT2, sT3 = 25, 26, 27, 28
    sK = 29
    sSp, sOvf = 30, 31
    SWS, SP, SO, SG = 32, 36, 40, 44
    SDS = 48
    sSave = 54
    sM = 56
    sKK = 56
    sRet = 82
    SA = 84
    SF0, SF1, SF2 = 64, 44, 60
    sTM, sEarly, sOutOff, sK2, sK1 = 88, 90, 91, 92, 93
    sA, sCntS, sNxtA, sNxtCnt, sRem, sN2 = 48, 49, 50, 51, 52, 53
    vLane, vC8, vG8, vRec4, vCo, vS, vSrc, vEa, vT = 1, 2, 3, 4, 5, 6, 7, 8, 9
    NA, N2, EE = 10, 12, 14
    ACC, AC, D = 16, 24, 40
    PP = [56, 72, 88]
    R, WB, vStg = 104, 112, 122
    AD = R
    KEYR, RK, HA = 24, 37, 50
    ET, WR, AU2 = 70, 88, 96
    vDesc = 104
    vL4, vL16, vIdx, v64c = 65, 66, 67, 68
    T = 72
    a.vst = 120

    def auread(n):
        a(f"v_xor_b32 v{vT}, v{n}, v{vC8}")
        a(f"v_xor_b32 v{AD+2}, v{n+1}, v{vC8}")
        a(f"v_add_u32 v{vT}, {L_AUR}, v{vT}")
        a(f"v_add_u32 v{AD+2}, {L_AUR}, v{AD+2}")
        a(f"ds_read_b128 v[{ACC}:{ACC+3}], v{vT}")
        a(f"ds_read_b128 v[{ACC+4}:{ACC+7}], v{AD+2}")

    def sb_arrive(k):
        a("s_waitcnt lgkmcnt(0)")
        a("s_mov_b64 exec, 1")
        a(f"ds_add_u32 v{T+14}, v{T+15} offset:{4*k}")
        a("s_mov_b64 exec, -1")

    def sb_wait(k, n, tag):
        a.lab(f"K2_SBW{tag}")
        a(f"ds_read_b32 v{T+13}, v{T+14} offset:{4*k}")
        a("s_waitcnt lgkmcnt(0)")
        a(f"v_cmp_gt_u32 vcc, {n}, v{T+13}")
        a(f"s_cbranch_vccnz K2_SBW{tag}")

    def batchinfo():
        a(f"s_lshl_b32 s{sT0}, s{sK1}, 6")
        a(f"v_add_u32 v{T}, s{sT0}, v{vG8}")
        a(f"ds_read_b64 v[{NA}:{NA+1}], v{T} offset:{L_ORD}")
        a(f"s_min_u32 s{sT0}, s{sK2}, 25")
        a(f"s_lshl_b32 s{sT0}, s{sT0}, 6")
        a(f"v_add_u32 v{T}, s{sT0}, v{vG8}")
        a(f"ds_read_b64 v[{N2}:{N2+1}], v{T} offset:{L_ORD}")
        a(f"ds_read_b32 v{T+4}, v{vL4} offset:{L_BST}")
        a(f"ds_read_b32 v{T+8}, v123 offset:{L_FLAG}")
        a("s_waitcnt lgkmcnt(0)")
        a(f"v_min_u32 v{T+4}, 0x1ff, v{T+4}")
        a(f"v_lshlrev_b32 v{T+5}, 7, v{T+4}")
        a(f"v_mov_b32 v{T+6}, v{T+5}")
        scan64(a, T + 6)
        a(f"v_readfirstlane_b32 s{sOvf}, v{T+8}")
        a(f"v_sub_u32 v{T+6}, v{T+6}, v{T+5}")
        a(f"v_add_u32 v{T+6}, {L_ELL}, v{T+6}")
        a("s_nop 0")
        a(f"v_readlane_b32 s{sA}, v{T+6}, s{sK1}")
        a(f"v_readlane_b32 s{sRem}, v{T+4}, s{sK1}")
        a(f"v_readlane_b32 s{sNxtA}, v{T+6}, s{sK2}")
        a(f"v_readlane_b32 s{sN2}, v{T+4}, s{sK2}")
        a("s_nop 3")
        a(f"s_sub_u32 s{sRem}, s{sRem}, 1")
        a(f"s_mov_b32 s{sCntS}, s{sRem}")
        a(f"s_sub_u32 s{sNxtCnt}, s{sN2}, 1")
        a(f"s_cmp_eq_u32 s{sN2}, 0")
        a(f"s_cselect_b32 s{sNxtA}, {L_DUM}, s{sNxtA}")
        a(f"s_cselect_b32 s{sNxtCnt}, 100, s{sNxtCnt}")

    def wperm():
        a(f"s_mov_b32 s{sT0}, 0x05040100")
        a(f"s_mov_b32 s{sT1}, 0x07060302")
        for m in range(4):
            sel = sT0 if m % 2 == 0 else sT1
            h = m >> 1
            a(f"v_perm_b32 v{WB+2*m}, v{WR+2+h}, v{WR+h}, s{sel}")
            a(f"v_perm_b32 v{WB+2*m+1}, v{WR+6+h}, v{WR+4+h}, s{sel}")

    def wcloads():
        a(f"s_lshl_b32 s{sT1}, s{sSl}, 6")
        a(f"s_add_u32 s{sT1}, s{sT1}, 65536")
        for k in range(4):
            a(f"buffer_load_dwordx2 v[{WR+2*k}:{WR+1+2*k}], v{vCo}, s[{SG}:{SG+3}], s{sT1} offen offset:{k*256}")

    def unsafe_or():
        a(f"v_mov_b32 v{T+12}, s95")
        a("s_mov_b64 exec, 1")
        a(f"ds_or_b32 v{T+14}, v{T+12} offset:32")
        a("s_mov_b64 exec, -1")

    a.lab("K2_ENTRY")
    a.stamp(0)
    a.stampc(29)
    a(f"v_mov_b32 v{vDesc}, v3") if False else None
    srd(a, SWS, 20, WS_USED)
    a(f"v_lshlrev_b32 v{vL4}, 2, v{vLane}")
    a(f"v_lshlrev_b32 v{vL16}, 4, v{vLane}")
    a(f"v_mov_b32 v{T+14}, {L_GW}")
    a(f"v_mov_b32 v{T+15}, 1")
    a("v_mov_b32 v123, 0")

    def consts():
        srd(a, SG, 16, 260 * 256)
        a(f"s_mul_i32 s{sT0}, s{sSl}, {PS}")
        a(f"s_add_u32 s{SP}, s20, s{sT0}")
        a(f"s_addc_u32 s{SP+1}, s21, 0")
        a(f"s_mov_b32 s{SP+2}, {N*128}")
        a(f"s_mov_b32 s{SP+3}, 0x20000")
        srd(a, SO, 18, N * 256)
        a(f"s_mov_b32 s{sK}, {hex(NL2E)}")
        a(f"v_and_b32 v{vCo}, 7, v{vLane}")
        a(f"v_lshlrev_b32 v{vCo}, 3, v{vCo}")
        a(f"v_lshlrev_b32 v{vC8}, 1, v{vCo}")
        a(f"v_and_b32 v{vG8}, 56, v{vLane}")
        a(f"v_and_b32 v64, 2, v{vLane}")
        a(f"v_lshl_add_u32 v{vRec4}, v64, 1, v{vG8}")
        a(f"v_and_b32 v64, 1, v{vLane}")
        a(f"v_lshl_add_u32 v{vRec4}, v64, 6, v{vRec4}")
        a(f"s_and_b32 s{sT0}, s{sW}, 3")
        a(f"s_and_b32 s{sT1}, s{sW}, 12")
        a(f"s_add_u32 s{sT2}, s{sT1}, s{sT0}")
        a(f"s_add_u32 s{sT1}, s{sT1}, 3")
        a(f"s_sub_u32 s{sT1}, s{sT1}, s{sT0}")
        a(f"s_bitcmp1_b32 s{sW}, 2")
        a(f"s_cselect_b32 s{sK1}, s{sT1}, s{sT2}")
        a(f"s_add_u32 s{sK2}, s{sK1}, 16")
        a(f"s_add_u32 s{sT1}, s{sT1}, 16")
        a(f"s_cmp_ge_u32 s{sW}, 8")
        a(f"s_cselect_b32 s{sK2}, s{sT1}, s{sK2}")
        a(f"s_mul_i32 s{sOutOff}, s{sBk}, {BN*256}")
        a(f"s_lshl_b32 s{sT0}, s{sSl}, 6")
        a(f"s_add_u32 s{sOutOff}, s{sOutOff}, s{sT0}")
    a(f"s_cmp_ge_u32 s{sW}, {NKW}")
    a("s_cbranch_scc1 K2_LW")
    a(f"v_lshrrev_b32 v{T}, 4, v{vLane}")
    a(f"v_lshlrev_b32 v{T+1}, 2, v{T}")
    a(f"s_mov_b32 s{sT0}, {CH*4}")
    a(f"v_and_b32 v{T+2}, 15, v{vLane}")
    a(f"v_lshlrev_b32 v{T+3}, 2, v{T+2}")
    a(f"v_lshlrev_b32 v{T+2}, 4, v{T+2}")
    a(f"v_mad_u32_u24 v{T+2}, v{T}, s{sT0}, v{T+2}")
    a(f"s_mov_b32 s{sSp}, 0")
    a(f"s_mov_b32 s{sOvf}, 0")
    a(f"s_mov_b64 s[{sM+24}:{sM+25}], 0")
    a(f"s_mul_i32 s{sT2}, s{sT3}, {CH*4}")
    a(f"s_add_u32 s{sT2}, s{sT2}, {KEY_OFF}")
    a(f"s_mov_b32 s{sT0}, 0x40ffff")
    a("s_waitcnt vmcnt(0)")
    a.stamp(2)
    a(f"v_mov_b32 v{vDesc}, v3")
    for h in range(3):
        a(f"ds_bpermute_b32 v{T+4+h}, v{T+1}, v3 offset:{16*h}")
    a(f"v_cmp_lt_u32 vcc, s{sT0}, v3")
    a(f"s_and_b64 s[{sTM}:{sTM+1}], vcc, s[{sSave}:{sSave+1}]")
    a("s_waitcnt lgkmcnt(0)")
    for h in range(3):
        a(f"v_lshrrev_b32 v{T+7+h}, 16, v{T+4+h}")
        a(f"v_lshlrev_b32_sdwa v{T+4+h}, 2, v{T+4+h} dst_sel:DWORD dst_unused:UNUSED_PAD src0_sel:DWORD src1_sel:WORD_0")
        a(f"v_cmp_gt_u32 s[{sM+8*h}:{sM+8*h+1}], v{T+7+h}, v{T+3}")
        a(f"v_add_u32 v{T+4+h}, v{T+4+h}, v{T+2}")
        a(f"s_or_b64 exec, s[{sM+8*h}:{sM+8*h+1}], 1")
        a(f"buffer_load_dwordx4 v[{KEYR+4*h}:{KEYR+4*h+3}], v{T+4+h}, s[{SWS}:{SWS+3}], s{sT2} offen{LD}")
        a("s_mov_b64 exec, -1")
        if h < 2:
            a(f"s_add_u32 s{sT2}, s{sT2}, {4*CH*4}")
    a(f"s_cmp_lg_u64 s[{sTM}:{sTM+1}], 0")
    a("s_cbranch_scc1 K2_TAIL")
    a.lab("K2_TAILR")
    a.stamp(3)
    a("s_barrier")
    a.stamp(1)
    a(f"v_lshlrev_b32 v{T}, 4, v0")
    for i in range(4):
        a(f"v_mov_b32 v{16+i}, {hex(DUMMY)}")
        a(f"v_mov_b32 v{20+i}, 0")
    a.c("LDS init by the 11 key waves: ELL + dummy blocks (33280 B), small arrays")
    for i in range(3):
        if i == 2:
            a(f"v_cmp_gt_u32 vcc, {(33280 - 2*11264)//16}, v0")
            a("s_mov_b64 exec, vcc")
        a(f"ds_write_b128 v{T}, v[16:19] offset:{L_ELL + i*11264}")
    a("s_mov_b64 exec, -1")
    a(f"s_cmp_ge_u32 s{sW}, 6")
    a("s_cbranch_scc1 K2_INIT_DONE")
    a(f"s_cmp_eq_u32 s{sW}, 5")
    a("s_cbranch_scc1 K2_INIT_5")
    a(f"s_lshr_b32 s{sT0}, s{sW}, 1")
    a(f"s_cmp_eq_u32 s{sT0}, 1")
    a("s_cbranch_scc0 K2_INIT_Z")
    for i in range(4):
        a(f"v_mov_b32 v{20+i}, {DUMMY_NODE}")
    a.lab("K2_INIT_Z")
    a(f"ds_write_b128 v{T}, v[20:23]")
    a("s_branch K2_INIT_DONE")
    a.lab("K2_INIT_5")
    a(f"v_mov_b32 v64, {L_EA + EA_ZERO*8}")
    a("ds_write_b64 v64, v[20:21]")
    a.lab("K2_INIT_DONE")
    sb_arrive(5)
    unsafe_or()
    for c in range(1, 4):
        a(f"v_add_u32 v{T+3}, 1, v{T+3}")
        for h in range(3):
            a(f"v_cmp_gt_u32 s[{sM+8*h+2*c}:{sM+8*h+2*c+1}], v{T+7+h}, v{T+3}")
    a(f"s_lshl_b32 s{sT0}, s{sT3}, 6")
    a(f"v_add_u32 v{vIdx}, s{sT0}, v{vL4}")
    a(f"v_mov_b32 v{v64c}, 64")
    consts()
    wcloads()
    sb_wait(5, NKW, "B1")
    a.stamp(4)
    a(f"s_cmp_eq_u32 s{sOvf}, 0")
    a("s_cbranch_scc1 K2_NOOVF")
    a(f"ds_write_b32 v123, v{T+15} offset:{L_FLAG}")
    a.lab("K2_NOOVF")
    a("s_waitcnt vmcnt(4)")
    a.stamp(5)
    for i in range(NR):
        a(f"v_and_b32 v{HA+i}, 0xffff, v{KEYR+i}")
        a(f"s_mov_b64 exec, s[{sM+2*i}:{sM+2*i+1}]")
        a(f"ds_add_rtn_u32 v{RK+i}, v{HA+i}, v{v64c}")
        a("s_mov_b64 exec, -1")
    for i in range(NR):
        if i == NR - 1:
            a(f"s_lshl_b32 s{sT0}, s{sW}, 6")
            a(f"s_add_u32 s{sT0}, s{sT0}, {EA_TAIL}")
            a(f"v_add_u32 v{vIdx}, s{sT0}, v{vLane}")
        a(f"v_mov_b32_sdwa v{KEYR+i}, v{vIdx} dst_sel:WORD_0 dst_unused:UNUSED_PRESERVE src0_sel:DWORD")
        if i < NR - 2:
            a(f"v_add_u32 v{vIdx}, {253 if i % 4 == 3 else 1}, v{vIdx}")
    sb_arrive(0)
    a(f"s_cmp_ge_u32 s{sW}, 7")
    a("s_cbranch_scc1 K2_W5")
    a(f"v_cmp_gt_u32 vcc, {BN}, v0")
    a(f"v_lshlrev_b32 v{T}, 2, v0")
    a(f"v_and_b32 v{T+8}, 7, v0")
    a(f"v_lshlrev_b32 v{T+8}, 4, v{T+8}")
    a(f"v_lshl_add_u32 v{T+8}, v0, 7, v{T+8}")
    a(f"s_mov_b64 s[{sSave}:{sSave+1}], vcc")
    sb_wait(0, NKW, "2")
    a.stamp(6)
    a.c("node phase A")
    a(f"s_mov_b64 exec, s[{sSave}:{sSave+1}]")
    a(f"ds_read_b32 v{T+1}, v{T}")
    a("s_waitcnt lgkmcnt(0)")
    a(f"v_lshrrev_b32 v{T+1}, 6, v{T+1}")
    a(f"v_min_u32 v{T+2}, 63, v{T+1}")
    a(f"v_sub_u32 v{T+2}, 63, v{T+2}")
    a(f"v_lshlrev_b32 v{T+2}, 2, v{T+2}")
    a(f"ds_add_rtn_u32 v{T+3}, v{T+2}, v{T+15} offset:{L_DH}")
    a(f"v_add_u32 v{T+7}, 1, v{T+1}")
    a(f"v_lshrrev_b32 v{T+7}, 1, v{T+7}")
    a(f"v_max_u32 v{T+7}, 1, v{T+7}")
    sb_arrive(1)
    sb_wait(1, 7, "3")
    a.stamp(7)
    a.c("node phase B")
    a(f"ds_read_b32 v{T+5}, v{vL4} offset:{L_DH}")
    a("s_waitcnt lgkmcnt(0)")
    a(f"v_mov_b32 v{T+6}, v{T+5}")
    scan64(a, T + 6)
    a(f"v_sub_u32 v{T+6}, v{T+6}, v{T+5}")
    a("s_nop 0")
    a(f"ds_bpermute_b32 v{T+9}, v{T+2}, v{T+6}")
    a("s_waitcnt lgkmcnt(0)")
    a(f"s_mov_b64 exec, s[{sSave}:{sSave+1}]")
    a(f"v_add_u32 v{T+3}, v{T+3}, v{T+9}")
    a(f"v_lshlrev_b32 v{T+9}, 2, v{T+3}")
    a(f"ds_write_b32 v{T+9}, v{T+8} offset:{L_ORD}")
    a(f"v_lshrrev_b32 v{T+10}, 4, v{T+3}")
    a(f"v_lshlrev_b32 v{T+10}, 2, v{T+10}")
    a(f"ds_max_u32 v{T+10}, v{T+7} offset:{L_BST}")
    a(f"v_and_b32 v{T+9}, 60, v{T+9}")
    sb_arrive(2)
    sb_wait(2, 7, "4")
    a.stamp(8)
    a.c("node phase C")
    a(f"ds_read_b32 v{T+5}, v{vL4} offset:{L_BST}")
    a("s_waitcnt lgkmcnt(0)")
    a(f"v_min_u32 v{T+5}, 0x1ff, v{T+5}")
    a(f"v_lshlrev_b32 v{T+5}, 7, v{T+5}")
    a(f"v_mov_b32 v{T+6}, v{T+5}")
    scan64(a, T + 6)
    a("s_nop 0")
    a(f"v_readlane_b32 s{sT0}, v{T+6}, 63")
    a(f"v_sub_u32 v{T+6}, v{T+6}, v{T+5}")
    a(f"v_add_u32 v{T+6}, {L_ELL}, v{T+6}")
    a("s_nop 1")
    a(f"ds_bpermute_b32 v{T+10}, v{T+10}, v{T+6}")
    a(f"s_cmp_le_u32 s{sT0}, {CAP*4}")
    a("s_cbranch_scc1 K2_NC_OK")
    a(f"ds_write_b32 v123, v{T+15} offset:{L_FLAG}")
    a.lab("K2_NC_OK")
    a("s_waitcnt lgkmcnt(0)")
    a(f"s_mov_b64 exec, s[{sSave}:{sSave+1}]")
    a(f"v_add_u32 v{T+10}, v{T+10}, v{T+9}")
    a(f"ds_write_b32 v{T}, v{T+10}")
    sb_arrive(3)
    a.lab("K2_W5")
    sb_wait(3, 7, "5")
    a.stamp(9)
    for i in range(NR):
        a(f"s_mov_b64 exec, s[{sM+2*i}:{sM+2*i+1}]")
        a(f"ds_read_b32 v{HA+i}, v{HA+i}")
    a("s_mov_b64 exec, -1")
    batchinfo()
    a(f"s_cmp_lg_u32 s{sOvf}, 0")
    a("s_cbranch_scc1 K2_FINB")
    for i in range(NR):
        a(f"v_add_u32 v{HA+i}, v{HA+i}, v{RK+i}")
        a(f"s_mov_b64 exec, s[{sM+2*i}:{sM+2*i+1}]")
        a(f"ds_write_b32 v{HA+i}, v{KEYR+i}")
        a("s_mov_b64 exec, -1")
    a(f"s_lshl_b32 s{sT2}, s{sW}, 9")
    a(f"s_add_u32 s{sT2}, s{sT2}, {L_EA + EA_TAIL*8}")
    a(f"v_lshl_add_u32 v63, v{vLane}, 3, s{sT2}")
    a(f"ds_write_b64 v63, v[{ET}:{ET+1}]")
    a.stamp(10)
    a("s_branch K2_FINB")
    a.lab("K2_LW")
    a(f"v_lshrrev_b32 v{T+4}, 5, v{vLane}")
    a(f"v_lshlrev_b32 v{T+5}, 2, v{T+4}")
    a(f"v_and_b32 v{T+6}, 31, v{vLane}")
    a(f"v_lshlrev_b32 v{T+7}, 1, v{T+6}")
    a(f"v_lshlrev_b32 v{T+6}, 4, v{T+6}")
    a(f"s_mov_b32 s{sT0}, {CH*8}")
    a(f"v_mad_u32_u24 v{T+6}, v{T+4}, s{sT0}, v{T+6}")
    a(f"s_lshl_b32 s{sT0}, s{sT3}, 9")
    a(f"v_add_u32 v{T+8}, s{sT0}, v{vL16}")
    a("s_waitcnt vmcnt(0)")
    a(f"v_mov_b32 v{vDesc}, v3")
    consts()
    wcloads()
    a(f"s_mul_i32 s{sT2}, s{sT3}, {CH*8}")
    a(f"s_add_u32 s{sT2}, s{sT2}, {EAT_OFF}")
    a.stamp(2)
    a(f"s_cmp_eq_u32 s{sW}, 15")
    a("s_cbranch_scc1 K2_SW")
    BP = 105
    for q in range(8):
        a(f"ds_bpermute_b32 v{BP+q}, v{T+5}, v{vDesc} offset:{8*q}")
    a("s_waitcnt lgkmcnt(0)")
    a("s_barrier")
    a.stamp(1)
    LWD = [16, 20, 24, 28, 32, 36, 40, 44, 48, 52, 56, 60, 96, 100, 6, 10]
    for q in range(16):
        b = BP + (q % 8)
        a(f"v_lshrrev_b32 v{T+9}, 16, v{b}")
        a(f"v_lshlrev_b32_sdwa v{T+10}, 3, v{b} dst_sel:DWORD dst_unused:UNUSED_PAD src0_sel:DWORD src1_sel:WORD_0")
        a(f"v_cmp_gt_u32 vcc, v{T+9}, v{T+7}")
        a(f"v_add_u32 v{T+10}, v{T+10}, v{T+6}")
        if q < 8:
            a(f"ds_bpermute_b32 v{b}, v{T+5}, v{vDesc} offset:{8*(q+8)}")
        a("s_or_b64 exec, vcc, 1")
        a(f"buffer_load_dwordx4 v[{LWD[q]}:{LWD[q]+3}], v{T+10}, s[{SWS}:{SWS+3}], s{sT2} offen{LD}")
        a("s_mov_b64 exec, -1")
        if q < 15:
            a(f"s_add_u32 s{sT2}, s{sT2}, {2*CH*8}")
        if q == 7:
            a("s_waitcnt lgkmcnt(0)")
    a.stamp(5)
    unsafe_or()
    for q in range(16):
        a(f"s_waitcnt vmcnt({15-q})")
        a(f"ds_write_b128 v{T+8}, v[{LWD[q]}:{LWD[q]+3}] offset:{L_EA + q*1024}")
    a.stamp(10)
    a("s_branch K2_FINB")
    a.lab("K2_SW")
    a("s_waitcnt lgkmcnt(0)")
    a("s_barrier")
    a.stamp(1)
    poll(a, "G", 53, 128, None, 4)
    a(f"v_readfirstlane_b32 s{sT0}, v53")
    a("s_nop 3")
    a(f"s_lshr_b32 s{sT0}, s{sT0}, 16")
    a(f"s_or_b32 s95, s95, s{sT0}")
    unsafe_or()
    a.stamp(10)
    a.lab("K2_FINB")
    a("s_mov_b64 exec, -1")
    a.c("Wc magnitude check (|w| < 2)")
    a("s_waitcnt vmcnt(0)")
    a(f"v_or3_b32 v{T}, v{WR}, v{WR+1}, v{WR+2}")
    a(f"v_or3_b32 v{T+1}, v{WR+3}, v{WR+4}, v{WR+5}")
    a(f"v_or3_b32 v{T}, v{WR+6}, v{WR+7}, v{T}")
    a(f"v_or_b32 v{T}, v{T}, v{T+1}")
    a(f"v_and_b32 v{T}, 0x40004000, v{T}")
    a(f"v_cmp_ne_u32 vcc, 0, v{T}")
    a("s_cbranch_vccz K2_WOK")
    a(f"ds_or_b32 v{T+14}, v{T+15} offset:32")
    a.lab("K2_WOK")
    wperm()
    a("s_waitcnt lgkmcnt(0)")
    a.stamp(12)
    a("s_barrier")
    a(f"s_cmp_lt_u32 s{sW}, {NKW}")
    a("s_cbranch_scc1 K2_HAVEBI")
    batchinfo()
    a.lab("K2_HAVEBI")
    a(f"s_cmp_lg_u32 s{sOvf}, 0")
    a("s_cbranch_scc1 K2_FALLBACK")
    a(f"s_mov_b32 s{sKK}, {hex(NL2E)}")
    a(f"s_mov_b32 s{sKK+1}, {hex(NL2E)}")
    a(f"ds_read_b32 v{D+2}, v{T+14} offset:32")
    auread(NA)
    a.stamp(13)
    a.stampc(30)

    sw_sites = []

    def advance(tag):
        a(f"s_add_u32 s{sA}, s{sA}, 128")
        a(f"s_sub_u32 s{sCntS}, s{sCntS}, 1")
        a(f"s_cbranch_scc1 K2_SW{tag}")
        a.lab(f"K2_SWR{tag}")
        sw_sites.append(tag)

    def gathers(P):
        for j in range(4):
            a(f"v_add_u32_dpp v{AD+j}, v{vSrc}, v{vC8} quad_perm:[{j},{j},{j},{j}] row_mask:0xf bank_mask:0xf")
        for j in range(4):
            a(f"buffer_load_dwordx4 v[{P+4*j}:{P+4*j+3}], v{AD+j}, s[{SP}:{SP+3}], 0 offen{LD}")

    def split(S):
        a(f"v_lshlrev_b32_sdwa v{vSrc}, 7, v{S} dst_sel:DWORD dst_unused:UNUSED_PAD src0_sel:DWORD src1_sel:WORD_1")
        a(f"v_lshlrev_b32_sdwa v{vEa}, 3, v{S} dst_sel:DWORD dst_unused:UNUSED_PAD src0_sel:DWORD src1_sel:WORD_0")

    def setup_ac():
        for m in range(4):
            a(f"v_cvt_f32_f16 v{AC+4*m}, v{ACC+m}")
            a(f"v_cvt_f32_f16 v{AC+4*m+2}, v{ACC+4+m}")
        for m in range(4):
            a(f"v_mov_b32 v{AC+4*m+1}, v{AC+4*m}")
            a(f"v_mov_b32 v{AC+4*m+3}, v{AC+4*m+2}")

    def compute(P):
        for m in range(4):
            for j in range(4):
                a(f"v_fma_mix_f32 v{D+4*m+j}, v{D+4*m+j}, s{sK}, v{P+4*j+m} op_sel_hi:[0,0,1]")
        for i in range(16):
            a(f"v_exp_f32 v{D+i}, v{D+i}")
        for i in range(8):
            a(f"v_pk_add_f32 v[{D+2*i}:{D+2*i+1}], v[{D+2*i}:{D+2*i+1}], 1.0 op_sel_hi:[1,0]")
        for j in range(4):
            r = R + 4 * (j & 1)
            for m in range(4):
                a(f"v_rcp_f32 v{r+m}, v{D+4*m+j}")
            acc = ACC + 4 * (j >> 1)
            a(f"v_pk_fma_f32 v[{acc}:{acc+1}], v[{P+4*j}:{P+4*j+1}], v[{r}:{r+1}], v[{acc}:{acc+1}]")
            a(f"v_pk_fma_f32 v[{acc+2}:{acc+3}], v[{P+4*j+2}:{P+4*j+3}], v[{r+2}:{r+3}], v[{acc+2}:{acc+3}]")

    def pk(op, d, *src, mod=""):
        a(f"v_pk_{op}_f32 v[{d}:{d+1}], " + ", ".join(x if isinstance(x, str) else f"v[{x}:{x+1}]" for x in src) + mod)

    def compute_fast(P):
        for j in range(4):
            for m in range(4):
                a(f"v_fma_mix_f32 v{D+4*m+j}, v{D+4*m+j}, s{sK}, v{P+4*j+m} op_sel_hi:[0,0,1]")

        def exps(j0):
            for m in range(4):
                a(f"v_exp_f32 v{R+m}, v{D+4*m+j0}")
            for m in range(4):
                a(f"v_exp_f32 v{R+4+m}, v{D+4*m+j0+1}")

        def mid(j0):
            H1, H2 = P + 4 * j0, P + 4 * j0 + 4
            N, Q = (D + j0, D + 4 + j0), (D + 8 + j0, D + 12 + j0)
            for h in range(2):
                pk("add", R + 2 * h, R + 2 * h, "1.0", mod=" op_sel_hi:[1,0]")
            for h in range(2):
                pk("fma", N[h], H2 + 2 * h, R + 2 * h, H1 + 2 * h)
            for h in range(2):
                pk("fma", Q[h], R + 2 * h, R + 4 + 2 * h, R + 2 * h)
            for h in range(2):
                pk("fma", N[h], H1 + 2 * h, R + 4 + 2 * h, N[h])

        def rcps(j0):
            for q in (D + 8 + j0, D + 9 + j0, D + 12 + j0, D + 13 + j0):
                a(f"v_rcp_f32 v{q}, v{q}")

        def fin(j0):
            acc = ACC + 2 * j0
            pk("fma", acc, D + j0, D + 8 + j0, acc)
            pk("fma", acc + 2, D + 4 + j0, D + 12 + j0, acc + 2)
        exps(0)
        mid(0)
        exps(2)
        rcps(0)
        mid(2)
        fin(0)
        rcps(2)
        a("s_nop 0")
        fin(2)

    a(f"v_add_u32 v{vT}, s{sA}, v{vRec4}")
    a(f"ds_read_b32 v{D}, v{vT}")
    advance("F0")
    a(f"v_add_u32 v{vT}, s{sA}, v{vRec4}")
    a(f"ds_read_b32 v{D+1}, v{vT}")
    advance("F1")
    a(f"v_add_u32 v{vT}, s{sA}, v{vRec4}")
    a(f"ds_read_b32 v{vS}, v{vT}")
    a("s_waitcnt lgkmcnt(2)")
    split(D)
    a("s_nop 0")
    a(f"ds_read_b64 v[{EE}:{EE+1}], v{vEa} offset:{L_EA}")
    gathers(PP[0])
    a("s_waitcnt lgkmcnt(2)")
    split(D + 1)
    a("s_nop 1")
    gathers(PP[1])
    setup_ac()
    def loop(sfx, comp):
        a.lab(f"K2_LOOP{sfx}")
        for ph in range(3):
            a("s_waitcnt lgkmcnt(0)")
            for m in range(4):
                a(f"v_mfma_f32_4x4x4_16b_bf16 v[{D+4*m}:{D+4*m+3}], v[{EE}:{EE+1}], v[{WB+2*m}:{WB+2*m+1}], v[{AC+4*m}:{AC+4*m+3}]")
            a(f"ds_read_b64 v[{EE}:{EE+1}], v{vEa} offset:{L_EA}")
            split(vS)
            advance(f"L{sfx}{ph}")
            gathers(PP[(ph + 2) % 3])
            a(f"v_add_u32 v{vT}, s{sA}, v{vRec4}")
            a(f"ds_read_b32 v{vS}, v{vT}")
            a("s_waitcnt vmcnt(8)")
            comp(PP[ph])
            a(f"s_sub_u32 s{sRem}, s{sRem}, 1")
            if ph < 2:
                a(f"s_cbranch_scc0 K2_C{sfx}{ph}")
                a(f"s_call_b64 s[{sRet}:{sRet+1}], K2_EPI")
                a.lab(f"K2_C{sfx}{ph}")
            else:
                a(f"s_cbranch_scc0 K2_LOOP{sfx}")
                a(f"s_call_b64 s[{sRet}:{sRet+1}], K2_EPI")
                a(f"s_branch K2_LOOP{sfx}")
    a(f"v_cmp_ne_u32 vcc, 0, v{D+2}")
    if "safeonly" in OPTS:
        a("s_branch K2_LOOPS")
    a("s_cbranch_vccnz K2_LOOPS")
    loop("F", compute_fast)
    loop("S", compute)

    def epilogue(acc, tmp, nregs):
        for i in range(0, nregs, 2):
            a(f"v_pk_mul_f32 v[{tmp+i}:{tmp+i+1}], v[{acc+i}:{acc+i+1}], s[{sKK}:{sKK+1}]")
        for i in range(nregs):
            a(f"v_exp_f32 v{tmp+i}, v{tmp+i}")
        a("s_nop 0")
        for i in range(0, nregs, 2):
            a(f"v_pk_add_f32 v[{tmp+i}:{tmp+i+1}], v[{tmp+i}:{tmp+i+1}], 1.0 op_sel_hi:[1,0]")
        for i in range(nregs):
            a(f"v_rcp_f32 v{tmp+i}, v{tmp+i}")
        a("s_nop 0")
        for i in range(0, nregs, 2):
            a(f"v_pk_mul_f32 v[{tmp+i}:{tmp+i+1}], v[{tmp+i}:{tmp+i+1}], v[{acc+i}:{acc+i+1}]")
        for i in range(0, nregs, 2):
            a(f"v_cvt_pk_bf16_f32 v{tmp+i//2}, v{tmp+i}, v{tmp+i+1}")

    a.lab("K2_EPI")
    epilogue(ACC, D, 8)
    auread(N2)
    a(f"v_lshrrev_b32 v{AD}, 7, v{NA}")
    a(f"v_lshrrev_b32 v{AD+1}, 7, v{NA+1}")
    a(f"v_lshl_add_u32 v{AD}, v{AD}, 8, v{vCo}")
    a(f"v_lshl_add_u32 v{AD+1}, v{AD+1}, 8, v{vCo}")
    a(f"v_cmp_gt_u32 vcc, {BN*128}, v{NA}")
    a("s_mov_b64 exec, vcc")
    a(f"buffer_store_dwordx2 v[{D}:{D+1}], v{AD}, s[{SO}:{SO+3}], s{sOutOff} offen{K2_ST}")
    a("s_mov_b64 exec, -1")
    a(f"v_cmp_gt_u32 vcc, {BN*128}, v{NA+1}")
    a("s_mov_b64 exec, vcc")
    a(f"buffer_store_dwordx2 v[{D+2}:{D+3}], v{AD+1}, s[{SO}:{SO+3}], s{sOutOff} offen{K2_ST}")
    a("s_mov_b64 exec, -1")
    a(f"s_cmp_eq_u32 s{sN2}, 0")
    a("s_cbranch_scc1 K2_FIN")
    a.stamp(14)
    a(f"s_sub_u32 s{sRem}, s{sN2}, 1")
    a(f"s_mov_b32 s{sN2}, 0")
    a(f"v_mov_b32 v{NA}, v{N2}")
    a(f"v_mov_b32 v{NA+1}, v{N2+1}")
    a("s_waitcnt lgkmcnt(0)")
    setup_ac()
    a(f"s_setpc_b64 s[{sRet}:{sRet+1}]")
    a.lab("K2_FIN")
    a.stamp(15)
    a.stampc(31)
    a.stamp_flush(1, sW)
    a("s_endpgm")

    for tag in sw_sites:
        a.lab(f"K2_SW{tag}")
        a(f"s_mov_b32 s{sA}, s{sNxtA}")
        a(f"s_mov_b32 s{sCntS}, s{sNxtCnt}")
        a(f"s_mov_b32 s{sNxtA}, {L_DUM}")
        a(f"s_mov_b32 s{sNxtCnt}, 100")
        a(f"s_branch K2_SWR{tag}")

    a.lab("K2_TAIL")
    a(f"v_lshlrev_b32 v64, 3, v{vLane}")
    a.lab("K2_TAIL_LOOP")
    a(f"s_ff1_i32_b64 s{sT0}, s[{sTM}:{sTM+1}]")
    a(f"s_bitset0_b64 s[{sTM}:{sTM+1}], s{sT0}")
    a(f"v_readlane_b32 s{sT1}, v{vDesc}, s{sT0}")
    a(f"s_add_u32 s{sT0}, s{sT0}, s{sT3}")
    a(f"s_mul_i32 s{sT0}, s{sT0}, {CH}")
    a(f"s_and_b32 s{sT2}, s{sT1}, 0xffff")
    a(f"s_add_u32 s{sT0}, s{sT0}, s{sT2}")
    a(f"s_add_u32 s{sT0}, s{sT0}, 64")
    a(f"s_sub_u32 s{sT0}, s{sT0}, s{sSp}")
    a(f"s_lshr_b32 s{sT1}, s{sT1}, 16")
    a(f"s_sub_u32 s{sT1}, s{sT1}, 64")
    a(f"s_add_u32 s{sT2}, s{sSp}, s{sT1}")
    a(f"s_cmp_gt_u32 s{sT2}, 63")
    a("s_cbranch_scc1 K2_TAILF")
    a(f"s_bfm_b64 s[{sSave}:{sSave+1}], s{sT1}, s{sSp}")
    a(f"s_or_b64 s[{sM+24}:{sM+25}], s[{sM+24}:{sM+25}], s[{sSave}:{sSave+1}]")
    a(f"s_mov_b32 s{sSp}, s{sT2}")
    a(f"s_lshl_b32 s{sT1}, s{sT0}, 2")
    a(f"s_add_u32 s{sT1}, s{sT1}, {KEY_OFF}")
    a(f"s_lshl_b32 s{sT2}, s{sT0}, 3")
    a(f"s_add_u32 s{sT2}, s{sT2}, {EAT_OFF}")
    a(f"s_mov_b64 exec, s[{sSave}:{sSave+1}]")
    a(f"buffer_load_dword v{KEYR+12}, v{vL4}, s[{SWS}:{SWS+3}], s{sT1} offen{LD}")
    a(f"buffer_load_dwordx2 v[{ET}:{ET+1}], v64, s[{SWS}:{SWS+3}], s{sT2} offen{LD}")
    a("s_mov_b64 exec, -1")
    a(f"s_cmp_lg_u64 s[{sTM}:{sTM+1}], 0")
    a("s_cbranch_scc1 K2_TAIL_LOOP")
    a("s_branch K2_TAILR")
    a.lab("K2_TAILF")
    a(f"s_mov_b32 s{sOvf}, 1")
    a("s_branch K2_TAILR")

    L_AGG = L_EA
    a.lab("K2_FALLBACK")
    a("s_waitcnt vmcnt(0) lgkmcnt(0)")
    a(f"s_mov_b32 s{sKK}, {hex(NL2E)}")
    a(f"s_mov_b32 s{sKK+1}, {hex(NL2E)}")
    a("s_barrier")
    a("v_lshlrev_b32 v51, 4, v0")
    a(f"v_add_u32 v51, {L_AGG}, v51")
    for i in range(4):
        a(f"v_mov_b32 v{56+i}, 0")
    for i in range(4):
        a(f"ds_write_b128 v51, v[56:59] offset:{i*16384}")
    a("s_waitcnt lgkmcnt(0)")
    a("s_barrier")
    srd(a, SF0, 10, E * 4)
    srd(a, SF1, 8, E * 4)
    srd(a, SF2, 6, E * 8)
    a(f"s_mul_i32 s{sT3}, s{sBk}, {BN}")
    a(f"s_mul_i32 s{sT2}, s{sBk}, {BN*128}")
    a(f"s_lshl_b32 s{sT0}, s{sW}, 5")
    a(f"v_lshrrev_b32 v51, 1, v{vG8}")
    a.lab("K2_FB_LOOP")
    a(f"s_lshl_b32 s{sT1}, s{sT0}, 1")
    a(f"buffer_load_dword v52, v51, s[{SF0}:{SF0+3}], s{sT0} offen")
    a(f"buffer_load_dword v53, v51, s[{SF1}:{SF1+3}], s{sT0} offen")
    a(f"buffer_load_dwordx2 v[54:55], v{vG8}, s[{SF2}:{SF2+3}], s{sT1} offen")
    a("s_waitcnt vmcnt(0)")
    a(f"v_subrev_u32 v52, s{sT3}, v52")
    a(f"v_cmp_gt_u32 vcc, {BN}, v52")
    a("s_mov_b64 exec, vcc")
    a("s_cbranch_execz K2_FB_NEXT")
    a(f"v_lshl_add_u32 v53, v53, 7, v{vC8}")
    a("v_and_b32 v56, 7, v52")
    a("v_lshlrev_b32 v56, 4, v56")
    a(f"v_lshl_add_u32 v52, v52, 7, v{vC8}")
    a("v_xor_b32 v56, v56, v52")
    a(f"v_add_u32 v56, {L_AUR}, v56")
    a(f"buffer_load_dwordx4 v[16:19], v53, s[{SP}:{SP+3}], 0 offen{LD}")
    a("ds_read_b128 v[20:23], v56")
    a(f"v_add_u32 v52, {L_AGG}, v52")
    a("s_waitcnt vmcnt(0) lgkmcnt(0)")
    for m in range(4):
        a(f"v_cvt_f32_f16 v{20+m}, v{20+m}")
    for m in range(4):
        a(f"v_dot2_f32_bf16 v{20+m}, v54, v{WB+2*m}, v{20+m}")
    for m in range(4):
        a(f"v_dot2_f32_bf16 v{20+m}, v55, v{WB+2*m+1}, v{20+m}")
    a("s_nop 3")
    for m in range(4):
        a(f"v_fma_mix_f32 v{20+m}, v{20+m}, s{sK}, v{16+m} op_sel_hi:[0,0,1]")
    for m in range(4):
        a(f"v_exp_f32 v{20+m}, v{20+m}")
    a("s_nop 0")
    for m in range(4):
        a(f"v_add_f32 v{20+m}, 1.0, v{20+m}")
    for m in range(4):
        a(f"v_rcp_f32 v{20+m}, v{20+m}")
    a("s_nop 0")
    for m in range(4):
        a(f"v_mul_f32 v{20+m}, v{20+m}, v{16+m}")
    for m in range(4):
        a(f"ds_add_f32 v52, v{20+m} offset:{4*m}")
    a.lab("K2_FB_NEXT")
    a("s_mov_b64 exec, -1")
    a(f"s_add_u32 s{sT0}, s{sT0}, 512")
    a(f"s_cmp_lt_u32 s{sT0}, {E*4}")
    a("s_cbranch_scc1 K2_FB_LOOP")
    a("s_waitcnt lgkmcnt(0)")
    a("s_barrier")
    a(f"s_lshl_b32 s{sT0}, s{sW}, 10")
    a(f"v_lshlrev_b32 v51, 4, v{vG8}")
    a.lab("K2_FB_OUT")
    a(f"v_add_u32 v52, s{sT0}, v51")
    a(f"v_add_u32 v53, v52, v{vC8}")
    a(f"v_lshlrev_b32 v56, 1, v{vG8}")
    a("v_xor_b32 v56, v56, v53")
    a(f"v_min_u32 v56, {399*128+112}, v56")
    a(f"v_add_u32 v56, {L_AUR}, v56")
    a("ds_read_b128 v[16:19], v56")
    a(f"v_add_u32 v53, {L_AGG}, v53")
    a("ds_read_b128 v[20:23], v53")
    a("s_waitcnt vmcnt(0) lgkmcnt(0)")
    for m in range(4):
        a(f"v_add_f32 v{16+m}, v{16+m}, v{20+m}")
    epilogue(16, 24, 4)
    a(f"v_lshl_add_u32 v53, v52, 1, v{vCo}")
    a(f"v_cmp_gt_u32 vcc, {BN*128}, v52")
    a("s_mov_b64 exec, vcc")
    a(f"buffer_store_dwordx2 v[24:25], v53, s[{SO}:{SO+3}], s{sOutOff} offen{K2_ST}")
    a("s_mov_b64 exec, -1")
    a(f"s_add_u32 s{sT0}, s{sT0}, 16384")
    a(f"s_cmp_lt_u32 s{sT0}, {BN*128}")
    a("s_cbranch_scc1 K2_FB_OUT")
    a.lab("K2_END")
    a("s_endpgm")


def kd(name, vgpr, sgpr, extra=""):
    acc = (vgpr + 3) // 4 * 4
    return f""".amdhsa_kernel {name}
  .amdhsa_next_free_vgpr {vgpr}
  .amdhsa_next_free_sgpr {sgpr}
  .amdhsa_accum_offset {acc}
  .amdhsa_group_segment_fixed_size 0
  .amdhsa_kernarg_size 80
  .amdhsa_user_sgpr_count 2
  .amdhsa_user_sgpr_kernarg_segment_ptr 1
  .amdhsa_system_sgpr_workgroup_id_x 1
{extra}.end_amdhsa_kernel
"""


def main():
    out = HEADER
    if FUSED:
        out += f"; @launch grid=(256,1,1) block=(1024,1,1) lds={K1_LDS}\n"
    else:
        out += f"; @launch kernel=k1_kernel grid=(256,1,1) block=(1024,1,1) lds={K1_LDS}\n"
        out += f"; @launch kernel=k2_kernel grid=(256,1,1) block=(1024,1,1) lds={K2_LDS}\n"
    out += '.amdgcn_target "amdgcn-amd-amdhsa--gfx950"\n.text\n'
    for name, g in ((KNAME if FUSED else "k1_kernel", gen_k1), ("k2_kernel", gen_k2)):
        a = A()
        g(a)
        if not (FUSED and g is gen_k2):
            out += f".globl {name}\n.p2align 8\n.type {name},@function\n"
        out += "\n".join(a.l) + "\n"
    out += '.section .rodata,"a"\n.p2align 6\n'
    out += kd(KNAME if FUSED else "k1_kernel", 128, 102, "  .amdhsa_fp16_overflow 1\n")
    if not FUSED:
        out += ".p2align 6\n"
        out += kd("k2_kernel", 128, 102)
    path = sys.argv[1] if len(sys.argv) > 1 else "gather_scatter__edge_featured_mpnn_egc__graph.s"
    open(path, "w").write(out)


if __name__ == "__main__":
    main()
```

```python
import sys

N = 25000
E = 400000
NB = 64
BN = 391
CH = 3200
NCH = 125
PS = 25040 * 128
P_OFF = 0
AU_OFF = 0x1000000
KEY_OFF = 0x2000000
EAT_OFF = 0x2200000
DESC_OFF = 0x2800000
GCNT_OFF = 0x2810000
WS_USED = 0x2900000
NL2E = 0xBFB8AA3B
MAGIC = 85817

OPTS = set(sys.argv[2:])
STAMPS = "stamps" in OPTS
STAMP_OFF = 0x3000000
K1_ST = ""
K2_ST = ""
NT_E = "" if "noent" in OPTS else " nt"
NT_X = " nt" if "xnt" in OPTS else ""
FUSED = "split" not in OPTS
K1_ST = " sc1"
LD = " sc1" if FUSED else ""
KNAME = "gather_scatter__edge_featured_mpnn_egc__graph_kernel"
SDB = 96
for o in OPTS:
    if o.startswith("k1st="):
        K1_ST = " " + o[5:].replace("+", " ")
    if o.startswith("k2st="):
        K2_ST = " " + o[5:].replace("+", " ")

HEADER = """; Kernarg layout for this problem (80 bytes, ptrs only, base s[0:1]):
"""


class A:
    def __init__(self):
        self.l = []
        self.vst = None

    def __call__(self, s):
        for x in s.strip().split("\n"):
            self.l.append("    " + x.strip())

    def lab(self, s):
        self.l.append(s + ":")

    def c(self, s):
        self.l.append("    ; " + s)

    def stamp(self, idx):
        if not STAMPS:
            return
        self("s_memrealtime s[100:101]")
        self("s_waitcnt lgkmcnt(0)")
        self(f"v_writelane_b32 v{self.vst}, s100, {idx}")

    def stampc(self, idx):
        if not STAMPS:
            return
        self("s_memtime s[100:101]")
        self("s_waitcnt lgkmcnt(0)")
        self(f"v_writelane_b32 v{self.vst}, s100, {idx}")

    def stamp_flush(self, kidx, sw):
        if not STAMPS:
            return
        self("s_mov_b64 exec, -1")
        self(f"s_add_u32 s12, s20, {STAMP_OFF + kidx*0x100000}")
        self("s_addc_u32 s13, s21, 0")
        self("s_mov_b32 s14, 0x100000")
        self("s_mov_b32 s15, 0x20000")
        self("s_lshl_b32 s100, s2, 12")
        self(f"v_mbcnt_lo_u32_b32 v{self.vst+1}, -1, 0")
        self(f"v_mbcnt_hi_u32_b32 v{self.vst+1}, -1, v{self.vst+1}")
        self(f"v_lshlrev_b32 v{self.vst+1}, 2, v{self.vst+1}")
        self(f"s_lshl_b32 s101, s{sw}, 8")
        self("s_add_u32 s100, s100, s101")
        self(f"buffer_store_dword v{self.vst}, v{self.vst+1}, s[12:15], s100 offen")


def srd(a, d, base, size, off=0):
    if off:
        a(f"s_add_u32 s{d}, s{base}, {off}")
        a(f"s_addc_u32 s{d+1}, s{base+1}, 0")
    else:
        a(f"s_mov_b32 s{d}, s{base}")
        a(f"s_mov_b32 s{d+1}, s{base+1}")
    a(f"s_mov_b32 s{d+2}, {size}")
    a(f"s_mov_b32 s{d+3}, 0x20000")


def scan64(a, v):
    for sh in (1, 2, 4, 8):
        a("s_nop 1")
        a(f"v_add_u32_dpp v{v}, v{v}, v{v} row_shr:{sh} row_mask:0xf bank_mask:0xf bound_ctrl:0")
    a("s_nop 1")
    a(f"v_add_u32_dpp v{v}, v{v}, v{v} row_bcast:15 row_mask:0xa bank_mask:0xf")
    a("s_nop 1")
    a(f"v_add_u32_dpp v{v}, v{v}, v{v} row_bcast:31 row_mask:0xc bank_mask:0xf")


K1_WP = 98304
K1_WAU = 102400
K1_CNT = 118784
K1_STK = K1_CNT + 2048
K1_STE = K1_STK + 12800
K1_SCR = 131072
L_AUR = 112640
L_GW = 103936
K1_LDS = 163840
assert K1_STE + 25600 <= K1_LDS


def poll(a, tag, vP, off, val=None, slp=2):
    a("s_mov_b32 s101, 0x40000")
    a("s_mov_b64 exec, 1")
    a.lab(f"POLL{tag}")
    a(f"buffer_load_dword v{vP}, off, s[{SDB}:{SDB+3}], 0 offset:{off} sc1")
    a("s_waitcnt vmcnt(0)")
    a(f"v_cmp_ne_u32 vcc, 0, v{vP}" if val is None else f"v_cmp_eq_u32 vcc, {val}, v{vP}")
    a("s_sub_u32 s101, s101, 1")
    a(f"s_cbranch_scc1 POLLD{tag}")
    a(f"s_cbranch_vccnz POLLD{tag}")
    a(f"s_sleep {slp}")
    a(f"s_branch POLL{tag}")
    a.lab(f"POLLD{tag}")
    a("s_mov_b64 exec, -1")


def gen_k1(a):
    sW, sSl, sBk, sT0, sT1, sT2, sT3 = 22, 23, 24, 25, 26, 27, 28
    sG = 29
    sEx = 30
    SD, SS, SE, SWS, SX, SWL, SWH = 32, 36, 40, 44, 48, 52, 56
    sScale, sOut, sS, sQ, sX0, sDl, sJ, sSlot = 60, 61, 62, 63, 64, 65, 66, 67
    sUns = 94
    vLane = 1
    VX = 40
    VW = 44
    a.lab(KNAME)
    a.vst = 11
    a("s_cmp_ge_u32 s2, 256")
    a("s_cbranch_scc1 K1_END2")
    a.stamp(0)
    a.stampc(30)
    a("s_load_dwordx16 s[4:19], s[0:1], 0")
    a("s_load_dwordx2 s[20:21], s[0:1], 72")
    a(f"s_load_dwordx2 s[{SDB}:{SDB+1}], s[0:1], 64")
    a("v_lshrrev_b32 v2, 6, v0")
    a(f"v_and_b32 v{vLane}, 63, v0")
    a(f"v_readfirstlane_b32 s{sW}, v2")
    a(f"s_mov_b32 s{SDB+2}, 256")
    a(f"s_mov_b32 s{SDB+3}, 0x20000")
    a(f"s_and_b32 s{sSl}, s2, 3")
    a(f"s_lshr_b32 s{sT0}, s2, 2")
    a(f"s_mov_b32 s{sBk}, s{sT0}")
    a(f"s_lshl_b32 s{sG}, s{sT0}, 1")
    a(f"s_add_u32 s{sG}, s{sG}, s{sSl}")
    a(f"s_mul_i32 s{sX0}, s{sBk}, {BN*256}")
    a(f"s_cmp_eq_u32 s{sSl}, 2")
    a(f"s_cselect_b32 s{sDl}, 1, 0")
    a("v_lshlrev_b32 v2, 4, v0")
    a("v_lshlrev_b32 v3, 5, v0")
    a(f"v_lshrrev_b32 v4, 4, v{vLane}")
    a(f"v_and_b32 v5, 15, v{vLane}")
    a("v_xor_b32 v6, v5, v4")
    a("v_lshlrev_b32 v6, 4, v6")
    a(f"v_lshl_add_u32 v{VX}, v4, 8, v6")
    a(f"v_xor_b32 v{VX+1}, 64, v{VX}")
    a(f"v_xor_b32 v{VX+2}, 0x80, v{VX}")
    a(f"v_xor_b32 v{VX+3}, 0xc0, v{VX}")
    a("v_lshrrev_b32 v6, 1, v5")
    a("v_xor_b32 v6, v6, v4")
    a("v_lshlrev_b32 v6, 5, v6")
    a("v_lshl_add_u32 v6, v4, 8, v6")
    a(f"v_and_b32 v7, 1, v{vLane}")
    a(f"v_lshl_add_u32 v{VW}, v7, 4, v6")
    a(f"v_xor_b32 v{VW+1}, 0x80, v{VW}")
    a(f"v_lshrrev_b32 v6, 2, v{vLane}")
    a("v_lshlrev_b32 v6, 8, v6")
    a(f"v_and_b32 v7, 3, v{vLane}")
    a(f"v_lshrrev_b32 v8, 4, v{vLane}")
    a("v_and_b32 v8, 2, v8")
    a("v_xor_b32 v7, v7, v8")
    a(f"v_lshl_add_u32 v{VW+2}, v7, 4, v6")
    if "icode" in OPTS:
        a.c("pull this kernel's code into the XCD's L2 (wave 15 of the first workgroups)")
        a(f"s_cmp_lg_u32 s{sW}, 15")
        a("s_cbranch_scc1 K1_NOIC")
        a("s_cmp_ge_u32 s2, 16")
        a("s_cbranch_scc1 K1_NOIC")
        a("s_getpc_b64 s[68:69]")
        a(f"v_lshlrev_b32 v60, 7, v{vLane}")
        a.lab("K1_ICB")
        a("global_load_dword v61, v60, s[68:69]")
        a("s_add_u32 s68, s68, 8192")
        a("s_addc_u32 s69, s69, 0")
        a("s_bfm_b64 exec, (K2_END-K1_ICB-8192)/128, 0")
        a("global_load_dword v62, v60, s[68:69]")
        a("s_mov_b64 exec, -1")
        a.lab("K1_NOIC")
    a("s_waitcnt lgkmcnt(0)")
    a.stamp(1)
    srd(a, SX, 4, N * 256)
    a(f"s_cmp_ge_u32 s{sSl}, 2")
    a("s_cbranch_scc1 K1_TB")

    def xdma(slot_sgpr, tag):
        a(f"s_lshl_b32 s{sT0}, s{slot_sgpr}, 12")
        a(f"s_mov_b32 m0, s{sT0}")
        a(f"s_sub_u32 s{sT1}, s{slot_sgpr}, s{sDl}")
        a(f"s_cselect_b32 s{sT1}, 24, s{sT1}")
        a(f"s_lshl_b32 s{sT1}, s{sT1}, 12")
        a(f"s_add_u32 s{sT1}, s{sT1}, s{sX0}")
        for pp in range(4):
            a(f"buffer_load_dwordx4 v{VX+pp}, s[{SX}:{SX+3}], s{sT1} offen offset:{pp*1024}{NT_X} lds")

    def waudma(piece_sgpr):
        a(f"s_lshl_b32 s{sT0}, s{piece_sgpr}, 10")
        a(f"s_add_u32 s{sT0}, s{sT0}, {K1_WAU}")
        a(f"s_mov_b32 m0, s{sT0}")
        a(f"s_and_b32 s{sT1}, s{piece_sgpr}, 7")
        a(f"s_lshl_b32 s{sT1}, s{sT1}, 12")
        a(f"s_lshl_b32 s{sT0}, s{sSl}, 6")
        a(f"s_add_u32 s{sT1}, s{sT1}, s{sT0}")
        a(f"s_cmp_lt_u32 s{piece_sgpr}, 8")
        a(f"s_cselect_b32 s{SWL}, s16, s12")
        a(f"s_cselect_b32 s{SWL+1}, s17, s13")
        a(f"s_mov_b32 s{SWL+2}, 32768")
        a(f"s_mov_b32 s{SWL+3}, 0x20000")
        a(f"buffer_load_dwordx4 v{VW+2}, s[{SWL}:{SWL+3}], s{sT1} offen lds")

    a(f"s_cmp_ge_u32 s{sG}, {NCH}")
    a("s_cbranch_scc1 K1_NOEDGE")
    a(f"s_cmp_ge_u32 s{sW}, 13")
    a("s_cbranch_scc1 K1_NOEDGE")
    srd(a, SD, 10, E * 4)
    srd(a, SS, 8, E * 4)
    srd(a, SE, 6, E * 8)
    a("v_cmp_gt_u32 vcc, 800, v0")
    a(f"s_mul_i32 s{sT0}, s{sG}, {CH*4}")
    a(f"s_mul_i32 s{sT1}, s{sG}, {CH*8}")
    a(f"s_mov_b64 s[{sEx}:{sEx+1}], vcc")
    a("s_mov_b64 exec, vcc")
    a(f"buffer_load_dwordx4 v[16:19], v2, s[{SD}:{SD+3}], s{sT0} offen{NT_E}")
    a(f"buffer_load_dwordx4 v[20:23], v2, s[{SS}:{SS+3}], s{sT0} offen{NT_E}")
    a(f"buffer_load_dwordx4 v[24:27], v3, s[{SE}:{SE+3}], s{sT1} offen{NT_E}")
    a(f"buffer_load_dwordx4 v[28:31], v3, s[{SE}:{SE+3}], s{sT1} offen offset:16{NT_E}")
    a("s_mov_b64 exec, -1")
    a.lab("K1_NOEDGE")
    srd(a, SWS, 20, WS_USED)
    a(f"v_lshlrev_b32 v6, 2, v{vLane}")
    a(f"v_add_u32 v6, {K1_CNT}, v6")
    a("v_mov_b32 v7, 0")
    a(f"v_mov_b32 v12, {K1_CNT+1024}")
    a(f"s_cmp_lg_u32 s{sW}, 0")
    a("s_cbranch_scc1 K1_P1")
    a("ds_write_b32 v6, v7")
    a("ds_write_b32 v6, v7 offset:256")
    a("ds_write_b32 v6, v7 offset:1024")
    a("s_waitcnt lgkmcnt(0)")
    a.lab("K1_P1")
    a("s_barrier")
    a(f"s_cmp_lt_u32 s{sW}, 13")
    a("s_cbranch_scc1 K1_PW")
    a.c("loader waves 13..15 : W_AU pieces and x tiles by LDS-DMA")
    a(f"s_sub_u32 s{sJ}, s{sW}, 13")
    a.lab("K1_LA1")
    waudma(sJ)
    a(f"s_add_u32 s{sJ}, s{sJ}, 3")
    a(f"s_cmp_lt_u32 s{sJ}, 16")
    a("s_cbranch_scc1 K1_LA1")
    a(f"s_sub_u32 s{sJ}, s{sW}, 13")
    xdma(sJ, "A0")
    a(f"s_add_u32 s{sJ}, s{sJ}, 3")
    xdma(sJ, "A1")
    a(f"s_add_u32 s{sJ}, s{sJ}, 3")
    a("v_mov_b32 v7, 1")
    a("s_waitcnt vmcnt(8)")
    a("s_mov_b64 exec, 1")
    a("ds_add_u32 v12, v7 offset:12")
    a("s_mov_b64 exec, -1")
    a.lab("K1_LA2")
    xdma(sJ, "A")
    a(f"s_add_u32 s{sJ}, s{sJ}, 3")
    a(f"s_cmp_lt_u32 s{sJ}, 25")
    a("s_cbranch_scc1 K1_LA2")
    a.stamp(2)
    a("s_branch K1_AUA")
    a.lab("K1_PW")
    a(f"s_cmp_ge_u32 s{sG}, {NCH}")
    a("s_cbranch_scc1 K1_AUA")

    def sb(k, tag):
        a("s_waitcnt lgkmcnt(0)")
        a("s_mov_b64 exec, 1")
        a(f"ds_add_u32 v12, v7 offset:{4+4*k}")
        a("s_mov_b64 exec, -1")
        a.lab(f"K1_SB{tag}")
        a(f"ds_read_b32 v13, v12 offset:{4+4*k}")
        a("s_waitcnt lgkmcnt(0)")
        a("v_cmp_gt_u32 vcc, 13, v13")
        a(f"s_cbranch_vccnz K1_SB{tag}")
    a(f"s_mov_b32 s{sT0}, {MAGIC}")
    a(f"s_mov_b32 s{sT1}, {-BN & 0xffffffff}")
    a("v_mov_b32 v7, 1")
    a(f"s_mov_b64 exec, s[{sEx}:{sEx+1}]")
    a("s_waitcnt vmcnt(3)")
    a.stamp(3)
    for i in range(4):
        a(f"v_mul_u32_u24 v{32+i}, s{sT0}, v{16+i}")
    for i in range(4):
        a(f"v_lshrrev_b32 v{32+i}, 25, v{32+i}")
    for i in range(4):
        a(f"v_mad_i32_i24 v{16+i}, v{32+i}, s{sT1}, v{16+i}")
    for i in range(4):
        a(f"v_lshlrev_b32 v{32+i}, 2, v{32+i}")
    for i in range(4):
        a(f"v_add_u32 v{32+i}, {K1_CNT}, v{32+i}")
    for i in range(4):
        a(f"ds_add_rtn_u32 v{36+i}, v{32+i}, v7")
    for i in range(4):
        a(f"v_lshlrev_b32 v{16+i}, 2, v{16+i}")
    a("s_waitcnt vmcnt(2)")
    for i in range(4):
        a(f"v_lshl_or_b32 v{20+i}, v{20+i}, 16, v{16+i}")
    sb(0, "2")
    a.stamp(4)
    a("ds_read_b32 v8, v6")
    a("s_waitcnt lgkmcnt(0)")
    a("v_mov_b32 v9, v8")
    scan64(a, 9)
    a("v_sub_u32 v9, v9, v8")
    a("ds_write_b32 v6, v9 offset:512")
    a("v_lshl_or_b32 v8, v8, 16, v9")
    a(f"s_mov_b64 exec, s[{sEx}:{sEx+1}]")
    for i in range(4):
        a(f"ds_read_b32 v{32+i}, v{32+i} offset:512")
    a("s_waitcnt lgkmcnt(0)")
    for i in range(4):
        a(f"v_add_u32 v{32+i}, v{32+i}, v{36+i}")
    for i in range(4):
        a(f"v_lshlrev_b32 v{36+i}, 2, v{32+i}")
        a(f"v_lshlrev_b32 v{32+i}, 3, v{32+i}")
    for i in range(4):
        a(f"v_add_u32 v{36+i}, {K1_STK}, v{36+i}")
        a(f"v_add_u32 v{32+i}, {K1_STE}, v{32+i}")
    for i in range(4):
        a(f"ds_write_b32 v{36+i}, v{20+i}")
    a("s_waitcnt vmcnt(0)")
    for i in range(4):
        a(f"ds_write_b64 v{32+i}, v[{24+2*i}:{25+2*i}]")
    a("v_or3_b32 v16, v24, v25, v26")
    a("v_or3_b32 v17, v27, v28, v29")
    a("v_or3_b32 v16, v30, v31, v16")
    a("v_or_b32 v16, v16, v17")
    a("v_and_b32 v16, 0x40004000, v16")
    a("v_cmp_ne_u32 vcc, 0, v16")
    a(f"s_cmp_lg_u64 vcc, 0")
    a(f"s_cselect_b32 s{sUns}, 0x101, 1")
    sb(1, "3")
    a.stamp(5)
    a(f"s_mov_b64 exec, s[{sEx}:{sEx+1}]")
    a(f"v_add_u32 v6, {K1_STK}, v2")
    a("ds_read_b128 v[16:19], v6")
    a("ds_read_b128 v[20:23], v6 offset:12800")
    a("ds_read_b128 v[24:27], v6 offset:25600")
    a(f"s_mul_i32 s{sT0}, s{sG}, {CH*4}")
    a(f"s_add_u32 s{sT0}, s{sT0}, {KEY_OFF}")
    a(f"s_mul_i32 s{sT1}, s{sG}, {CH*8}")
    a(f"s_add_u32 s{sT1}, s{sT1}, {EAT_OFF}")
    a(f"s_add_u32 s{sT2}, s{sT1}, 12800")
    a("s_waitcnt lgkmcnt(2)")
    a(f"buffer_store_dwordx4 v[16:19], v2, s[{SWS}:{SWS+3}], s{sT0} offen{K1_ST}")
    a("s_waitcnt lgkmcnt(1)")
    a(f"buffer_store_dwordx4 v[20:23], v2, s[{SWS}:{SWS+3}], s{sT1} offen{K1_ST}")
    a("s_waitcnt lgkmcnt(0)")
    a(f"buffer_store_dwordx4 v[24:27], v2, s[{SWS}:{SWS+3}], s{sT2} offen{K1_ST}")
    a("s_mov_b64 exec, -1")
    a(f"s_cmp_lg_u32 s{sW}, 0")
    a("s_cbranch_scc1 K1_P2B")
    a(f"v_lshlrev_b32 v9, 2, v{vLane}")
    a(f"s_lshl_b32 s{sT0}, s{sG}, 8")
    a(f"s_add_u32 s{sT0}, s{sT0}, {DESC_OFF}")
    a(f"buffer_store_dword v8, v9, s[{SWS}:{SWS+3}], s{sT0} offen{K1_ST}")
    a.lab("K1_P2B")
    a.c("publish the partition: the last of the 13 storing waves counts this workgroup into R")
    a(f"v_mov_b32 v15, s{sUns}")
    a("s_waitcnt vmcnt(0)")
    a("s_mov_b64 exec, 1")
    a("ds_add_rtn_u32 v14, v12, v15")
    a("s_waitcnt lgkmcnt(0)")
    a("v_add_u32 v14, v14, v15")
    a("v_and_b32 v15, 0xff, v14")
    a("v_cmp_eq_u32 vcc, 13, v15")
    a("s_cbranch_vccz K1_NOR2")
    a("v_lshrrev_b32 v14, 8, v14")
    a("v_lshl_or_b32 v14, v14, 16, 1")
    a("v_mov_b32 v15, v14")
    a(f"buffer_atomic_add v15, off, s[{SDB}:{SDB+3}], 0 sc0 sc1")
    a("s_waitcnt vmcnt(0)")
    a("v_add_u32 v15, v15, v14")
    a("v_and_b32 v14, 0xffff, v15")
    a(f"v_cmp_eq_u32 vcc, {NCH}, v14")
    a("s_cbranch_vccz K1_NOR2")
    a(f"buffer_store_dword v15, off, s[{SDB}:{SDB+3}], 0 offset:192 sc1")
    a.lab("K1_NOR2")
    a("s_mov_b64 exec, -1")
    a.stamp(6)
    a.lab("K1_AUA")
    a("ds_read_b32 v13, v12 offset:12")
    a("s_waitcnt lgkmcnt(0)")
    a("v_cmp_gt_u32 vcc, 3, v13")
    a("s_cbranch_vccnz K1_AUA")
    a("s_branch K1_AU")

    a.lab("K1_TB")
    a(f"s_add_u32 s{sT0}, s16, 32768")
    a(f"s_addc_u32 s{sT1}, s17, 0")
    a(f"s_cmp_lt_u32 s{sW}, 8")
    a(f"s_cselect_b32 s{SWH}, s{sT0}, s14")
    a(f"s_cselect_b32 s{SWH+1}, s{sT1}, s15")
    a(f"s_mov_b32 s{SWH+2}, 32768")
    a(f"s_mov_b32 s{SWH+3}, 0x20000")
    a(f"s_lshl_b32 s{sT0}, s{sW}, 12")
    a(f"s_add_u32 s{sT1}, s{sT0}, {K1_WP}")
    a(f"s_mov_b32 m0, s{sT1}")
    a(f"s_and_b32 s{sT0}, s{sT0}, 0x7fff")
    for pp in range(4):
        a(f"buffer_load_dwordx4 v{VW+(pp>>1)}, s[{SWH}:{SWH+3}], s{sT0} offen offset:{pp*1024} lds")
    srd(a, SWS, 20, WS_USED)

    def xup():
        a(f"s_cmp_ge_u32 s{sW}, 13")
        a("s_cbranch_scc1 K1_B0")
        a(f"s_lshl_b32 s{sJ}, s{sW}, 1")
        a(f"s_add_u32 s{sJ}, s{sJ}, 1")
        a(f"s_cmp_eq_u32 s{sW}, 12")
        a(f"s_cselect_b32 s{sJ}, 0, s{sJ}")
        xdma(sJ, "B")
        a.lab("K1_B0")
    if "wfirst" not in OPTS:
        xup()
    a(f"s_and_b32 s{sS}, s{sW}, 3")
    a(f"s_lshr_b32 s{sQ}, s{sW}, 2")
    a(f"v_lshrrev_b32 v2, 4, v{vLane}")
    a(f"v_and_b32 v3, 15, v{vLane}")
    a("v_lshrrev_b32 v48, 2, v3")
    a("v_and_b32 v49, 1, v2")
    a("v_lshl_or_b32 v49, v49, 2, v48")
    a(f"s_lshl_b32 s{sT0}, s{sS}, 1")
    a(f"v_xor_b32 v49, s{sT0}, v49")
    a("v_lshlrev_b32 v49, 5, v49")
    a("v_lshl_add_u32 v48, v2, 3, v48")
    a("v_lshl_add_u32 v48, v48, 8, v49")
    a(f"v_and_b32 v49, 3, v{vLane}")
    a("v_lshl_add_u32 v48, v49, 3, v48")
    a(f"v_add_u32 v48, {K1_WP}, v48")
    a("v_xor_b32 v49, 32, v48")
    a("v_and_b32 v10, 7, v3")
    a("v_xor_b32 v10, v10, v2")
    a("v_lshlrev_b32 v10, 4, v10")
    a("v_lshl_add_u32 v10, v3, 7, v10")
    a(f"s_lshl_b32 s{sT0}, s{sW}, 11")
    a(f"s_add_u32 s{sT0}, s{sT0}, {K1_SCR}")
    a(f"v_add_u32 v10, s{sT0}, v10")
    a("v_xor_b32 v0, 64, v10")
    a(f"v_lshlrev_b32 v2, 4, v{vLane}")
    a(f"v_add_u32 v2, s{sT0}, v2")
    a(f"v_lshrrev_b32 v3, 3, v{vLane}")
    a(f"v_and_b32 v28, 7, v{vLane}")
    a("v_xor_b32 v28, v28, v3")
    a("v_lshlrev_b32 v28, 4, v28")
    a("v_lshl_add_u32 v3, v3, 7, v28")
    a(f"s_mov_b32 s{sScale}, {hex(NL2E)}")
    if "wfirst" in OPTS:
        a("s_waitcnt vmcnt(0)")
        xup()
    else:
        a(f"s_cmp_ge_u32 s{sW}, 13")
        a("s_cbranch_scc1 K1_B1")
        a("s_waitcnt vmcnt(4)")
        a("s_branch K1_B2")
        a.lab("K1_B1")
        a("s_waitcnt vmcnt(0)")
        a.lab("K1_B2")
    a.stamp(2)
    a("s_barrier")
    WF = 64

    def wf(mat, ct, ks):
        return WF + ((mat * 2 + ct) * 4 + ks) * 4
    for ks in range(4):
        for mat in range(2):
            for ct in range(2):
                b = wf(mat, ct, ks)
                off = mat * 32768 + ks * 8192
                a(f"ds_read_b64_tr_b16 v[{b}:{b+1}], v{48+ct} offset:{off}")
                a(f"ds_read_b64_tr_b16 v[{b+2}:{b+3}], v{48+ct} offset:{off+1024}")
    a("s_waitcnt lgkmcnt(0)")
    a.stamp(3)
    a("s_barrier")
    waudma(sW)
    XF = [32, 48]

    def xconst():
        a(f"v_lshrrev_b32 v4, 4, v{vLane}")
        a(f"v_and_b32 v5, 15, v{vLane}")
        a("v_xor_b32 v4, v4, v5")
        a("v_lshlrev_b32 v4, 4, v4")
        a("v_lshl_add_u32 v5, v5, 8, v4")

    def xread(buf, slot_sgpr):
        a(f"s_lshl_b32 s{sT0}, s{slot_sgpr}, 12")
        a(f"v_add_u32 v6, s{sT0}, v5")
        a("v_xor_b32 v7, 64, v6")
        a("v_xor_b32 v8, 0x80, v6")
        a("v_xor_b32 v9, 0xc0, v6")
        for ks in range(4):
            a(f"ds_read_b128 v[{XF[buf]+4*ks}:{XF[buf]+4*ks+3}], v{6+ks}")

    def mfmas(buf, mid=None):
        for ks in range(4):
            for mat in range(2):
                for ct in range(2):
                    d = 16 + (mat * 2 + ct) * 4
                    b = wf(mat, ct, ks)
                    cin = "0" if ks == 0 else f"v[{d}:{d+3}]"
                    a(f"v_mfma_f32_16x16x32_bf16 v[{d}:{d+3}], v[{b}:{b+3}], v[{XF[buf]+4*ks}:{XF[buf]+4*ks+3}], {cin}")
            if ks == 0 and mid:
                mid()
    xconst()
    a(f"s_lshl_b32 s{sSlot}, s{sQ}, 1")
    a(f"s_add_u32 s{sSlot}, s{sSlot}, 1")
    a(f"s_mul_i32 s{sOut}, s{sS}, {PS}")
    a(f"s_lshr_b32 s{sT0}, s{sX0}, 1")
    a(f"s_add_u32 s{sOut}, s{sOut}, s{sT0}")
    a(f"s_sub_u32 s{sT0}, s{sSlot}, s{sDl}")
    a(f"s_lshl_b32 s{sT0}, s{sT0}, 11")
    a(f"s_add_u32 s{sOut}, s{sOut}, s{sT0}")
    a.stamp(4)
    a("v_mov_b32 v4, 0")
    a("s_waitcnt vmcnt(0)")
    a.stamp(5)
    a("s_barrier")
    a.stamp(7)
    a.stampc(31)
    a(f"s_cmp_ge_u32 s{sW}, 12")
    a("s_cbranch_scc1 K1_B3")
    a(f"s_lshl_b32 s{sJ}, s{sW}, 1")
    a(f"s_add_u32 s{sJ}, s{sJ}, 2")
    xdma(sJ, "C")
    a.lab("K1_B3")
    xread(0, sSlot)
    for i in range(4):
        buf = i & 1
        if i == 3:
            a.c("13th P tile (tile 24, slot 0): slice 2, set 0 only")
            a(f"s_cmp_lg_u32 s{sQ}, 0")
            a("s_cbranch_scc1 K1_PDONE")
            a(f"s_cmp_eq_u32 s{sDl}, 0")
            a("s_cbranch_scc1 K1_PDONE")
        if i < 2:
            a(f"s_add_u32 s{sSlot}, s{sSlot}, 8")
        elif i == 2:
            a(f"s_mov_b32 s{sSlot}, 0")
        a("s_waitcnt lgkmcnt(0)")
        mfmas(buf, (lambda: xread(buf ^ 1, sSlot)) if i < 3 else None)
        a("s_nop 7")
        for r in range(16, 32, 2):
            a(f"v_max3_f32 v4, abs(v{r}), abs(v{r+1}), v4")
        for ct in range(2):
            for j in range(4):
                a(f"v_fma_mixlo_f16 v{24+4*ct+j}, v{16+4*ct+j}, s{sScale}, 0")
        a("ds_write_b128 v10, v[24:27]")
        a("ds_write_b128 v0, v[28:31]")
        a("ds_read_b128 v[12:15], v2")
        a("ds_read_b128 v[16:19], v2 offset:1024")
        a("s_waitcnt lgkmcnt(1)")
        a(f"buffer_store_dwordx4 v[12:15], v3, s[{SWS}:{SWS+3}], s{sOut} offen{K1_ST}")
        a("s_waitcnt lgkmcnt(0)")
        a(f"buffer_store_dwordx4 v[16:19], v3, s[{SWS}:{SWS+3}], s{sOut} offen offset:1024{K1_ST}")
        a.stamp(8 + i)
        if i < 3:
            a(f"s_add_u32 s{sOut}, s{sOut}, 16384")
            a("s_nop 1")
    a.lab("K1_PDONE")
    a("v_cmp_le_f32 vcc, 4.0, v4")
    a("s_cbranch_vccz K1_PSAFE")
    a("v_mov_b32 v13, 0x10000")
    a("s_mov_b64 exec, 1")
    a(f"buffer_atomic_add v13, off, s[{SDB}:{SDB+3}], 0 offset:64 sc1")
    a("s_mov_b64 exec, -1")
    a.lab("K1_PSAFE")
    a.lab("K1_AU")
    xconst()
    a(f"v_lshrrev_b32 v2, 4, v{vLane}")
    a(f"v_and_b32 v3, 15, v{vLane}")
    a("v_lshrrev_b32 v48, 2, v3")
    a("v_lshl_add_u32 v48, v2, 3, v48")
    a("v_lshlrev_b32 v48, 6, v48")
    a(f"v_and_b32 v49, 3, v{vLane}")
    a("v_lshl_add_u32 v48, v49, 3, v48")
    a("v_and_b32 v49, 1, v2")
    a("v_lshl_add_u32 v48, v49, 5, v48")
    a(f"v_add_u32 v48, {K1_WAU}, v48")
    a("v_xor_b32 v49, 32, v48")
    a("s_waitcnt lgkmcnt(0)")
    for ks in range(4):
        for mat in range(2):
            for ct in range(2):
                b = wf(mat, ct, ks)
                off = mat * 8192 + ks * 2048
                a(f"ds_read_b64_tr_b16 v[{b}:{b+1}], v{48+ct} offset:{off}")
                a(f"ds_read_b64_tr_b16 v[{b+2}:{b+3}], v{48+ct} offset:{off+256}")
    a("v_and_b32 v10, 7, v3")
    a("v_xor_b32 v10, v10, v2")
    a("v_lshlrev_b32 v10, 4, v10")
    a("v_lshl_add_u32 v10, v3, 7, v10")
    a(f"v_add_u32 v10, {L_AUR}, v10")
    a(f"s_mov_b32 s{sSlot}, s{sW}")
    a.c("first chunk of this wave: key waves 12w (12 chunks), loader waves 32(w-11) (32 chunks)")
    a(f"s_mul_i32 s{sT2}, s{sW}, 12")
    a(f"s_lshl_b32 s{sT3}, s{sW}, 5")
    a(f"s_sub_u32 s{sT3}, s{sT3}, {32*11}")
    a(f"s_cmp_lt_u32 s{sW}, 11")
    a(f"s_cselect_b32 s{sT3}, s{sT2}, s{sT3}")
    a(f"s_cselect_b32 s{sT2}, 12, 32")
    a(f"s_bfm_b64 s[54:55], s{sT2}, 0")
    a(f"s_lshl_b32 s90, s{sT3}, 8")
    a(f"s_lshl_b32 s{sT1}, s{sBk}, 2")
    a(f"s_add_u32 s90, s90, s{sT1}")
    a(f"s_add_u32 s48, s20, {DESC_OFF}")
    a("s_addc_u32 s49, s21, 0")
    a(f"s_mov_b32 s50, {NCH*256}")
    a("s_mov_b32 s51, 0x20000")
    a.stamp(14)
    a("s_waitcnt vmcnt(0) lgkmcnt(0)")
    a.stamp(13)
    a("s_barrier")
    a.stamp(15)
    xread(0, sSlot)
    a(f"s_cmp_lg_u32 s{sW}, 15")
    a("s_cbranch_scc1 K1_NZ")
    a(f"v_lshlrev_b32 v14, 2, v{vLane}")
    a(f"v_add_u32 v14, {L_GW}, v14")
    a("v_mov_b32 v3, 0")
    a("ds_write_b32 v14, v3")
    a(f"s_cmp_lt_u32 s{sSl}, 2")
    a("s_cbranch_scc1 K1_NZ2")
    a.c("count this workgroup's P tiles in")
    a("v_mov_b32 v15, 1")
    a("v_mov_b32 v14, 1")
    a("s_mov_b64 exec, 1")
    a(f"buffer_atomic_add v14, off, s[{SDB}:{SDB+3}], 0 offset:64 sc0 sc1")
    a("s_mov_b64 exec, -1")
    a("s_branch K1_NZ2")
    a.lab("K1_NZ")
    a("s_mov_b64 exec, 1")
    a(f"buffer_load_dword v2, off, s[{SDB}:{SDB+3}], 0 offset:192 sc1")
    a("s_mov_b64 exec, -1")
    a(f"v_lshlrev_b32 v14, 8, v{vLane}")
    a.lab("K1_NZ2")
    a("v_mov_b32 v4, 0")
    a(f"s_mov_b32 s{sUns+1}, 0")
    a.stamp(16)
    for i in range(2):
        a(f"s_sub_u32 s{sT1}, s{sSlot}, s{sDl}")
        a(f"s_cselect_b32 s{sT1}, 24, s{sT1}")
        a(f"s_lshl_b32 s{sT1}, s{sT1}, 11")
        a(f"v_add_u32 v12, s{sT1}, v10")
        a("v_xor_b32 v13, 64, v12")
        if i == 0:
            a(f"s_add_u32 s{sSlot}, s{sSlot}, 16")
            a(f"s_min_u32 s{sJ}, s{sSlot}, 24")
        a("s_waitcnt lgkmcnt(0)")
        mfmas(i, (lambda: xread(1, sJ)) if i == 0 else None)
        a("s_nop 7")
        for r in range(16, 24, 2):
            a(f"v_max3_f32 v4, abs(v{r}), abs(v{r+1}), v4")
        for ct in range(2):
            for j in range(4):
                a(f"v_fma_mixlo_f16 v{24+4*ct+j}, v{16+4*ct+j}, 1.0, 0")
        a("ds_write_b128 v12, v[24:27]")
        a("ds_write_b128 v13, v[28:31]")
        if i == 0:
            a(f"s_cmp_eq_u32 s{sW}, 15")
            a("s_cbranch_scc1 K1_END")
            a.c("partition published? then fetch this wave's segment descriptors")
            a("s_mov_b64 exec, 1")
            a("s_waitcnt vmcnt(0)")
            a("v_cmp_ne_u32 vcc, 0, v2")
            a("s_cbranch_vccnz K1_ROK")
            poll(a, "R", 2, 192, None, 4)
            a.lab("K1_ROK")
            a("s_mov_b64 exec, s[54:55]")
            a(f"buffer_load_dword v3, v14, s[48:51], s90 offen{LD}")
            a("s_mov_b64 exec, -1")
            a(f"v_readfirstlane_b32 s{sUns+1}, v2")
            a.stamp(17)
            a(f"s_cmp_ge_u32 s{sSlot}, 25")
            a(f"s_lshr_b32 s{sUns+1}, s{sUns+1}, 16")
            a(f"s_cmp_ge_u32 s{sSlot}, 25")
            a("s_cbranch_scc1 K1_END")
    a.lab("K1_END")
    a("v_cmp_le_f32 vcc, 4.0, v4")
    a("s_cmp_lg_u64 vcc, 0")
    a(f"s_cselect_b32 s{sUns+1}, 1, s{sUns+1}")
    a.stamp(12)
    a.stampc(32)
    a.stamp_flush(0, sW)
    a.c("wave 15 waits until every partition workgroup has counted into R")
    a(f"s_cmp_lg_u32 s{sW}, 15")
    a("s_cbranch_scc1 K1_RDONE")
    a(f"s_cmp_lt_u32 s{sSl}, 2")
    a("s_cbranch_scc1 K1_NG")
    a("s_mov_b64 exec, 1")
    a("s_waitcnt vmcnt(0)")
    a("v_add_u32 v14, v14, v15")
    a("v_and_b32 v15, 0xffff, v14")
    a("v_cmp_eq_u32 vcc, 0x80, v15")
    a("s_cbranch_vccz K1_NG")
    a(f"buffer_store_dword v14, off, s[{SDB}:{SDB+3}], 0 offset:128 sc1")
    a.lab("K1_NG")
    a("s_mov_b64 exec, -1")
    a.lab("K1_RDONE")
    a(f"s_lshl_b32 s{sT0}, s{sW}, 6")
    a(f"v_add_u32 v0, s{sT0}, v{vLane}")
    a("s_branch K2_ENTRY")
    a.lab("K1_END2")
    a("s_endpgm")


CAP = 8192
L_CNT = 0
L_ORD = 2048
L_DH = 4096
L_BST = 4352
L_SB = 4608
L_FLAG = 4864
L_GD = L_FLAG + 4
L_ELL = 5120
L_DUM = L_ELL + CAP * 4
L_EA = L_DUM + 512
NKW = 11
EA_TAIL = NKW * 12 * 64
EA_ZERO = EA_TAIL + NKW * 64
assert L_EA + EA_ZERO * 8 + 8 <= L_AUR
DUMMY = 0xFFFF0000 | EA_ZERO
DUMMY_NODE = 399 * 128
NBATCH = (BN + 15) // 16
NR = 13


def gen_k2(a):
    assert FUSED
    sW, sSl, sBk = 22, 23, 24
    sT0, sT1, sT2, sT3 = 25, 26, 27, 28
    sK = 29
    sSp, sOvf = 30, 31
    SWS, SP, SO, SG = 32, 36, 40, 44
    SDS = 48
    sSave = 54
    sM = 56
    sKK = 56
    sRet = 82
    SA = 84
    SF0, SF1, SF2 = 64, 44, 60
    sTM, sEarly, sOutOff, sK2, sK1 = 88, 90, 91, 92, 93
    sA, sCntS, sNxtA, sNxtCnt, sRem, sN2 = 48, 49, 50, 51, 52, 53
    vLane, vC8, vG8, vRec4, vCo, vS, vSrc, vEa, vT = 1, 2, 3, 4, 5, 6, 7, 8, 9
    NA, N2, EE = 10, 12, 14
    ACC, AC, D = 16, 24, 40
    PP = [56, 72, 88]
    R, WB, vStg = 104, 112, 122
    AD = R
    KEYR, RK, HA = 24, 37, 50
    ET, WR, AU2 = 70, 88, 96
    vDesc = 104
    vL4, vL16, vIdx, v64c = 65, 66, 67, 68
    T = 72
    a.vst = 120

    def auread(n):
        a(f"v_xor_b32 v{vT}, v{n}, v{vC8}")
        a(f"v_xor_b32 v{AD+2}, v{n+1}, v{vC8}")
        a(f"v_add_u32 v{vT}, {L_AUR}, v{vT}")
        a(f"v_add_u32 v{AD+2}, {L_AUR}, v{AD+2}")
        a(f"ds_read_b128 v[{ACC}:{ACC+3}], v{vT}")
        a(f"ds_read_b128 v[{ACC+4}:{ACC+7}], v{AD+2}")

    def sb_arrive(k):
        a("s_waitcnt lgkmcnt(0)")
        a("s_mov_b64 exec, 1")
        a(f"ds_add_u32 v{T+14}, v{T+15} offset:{4*k}")
        a("s_mov_b64 exec, -1")

    def sb_wait(k, n, tag):
        a.lab(f"K2_SBW{tag}")
        a(f"ds_read_b32 v{T+13}, v{T+14} offset:{4*k}")
        a("s_waitcnt lgkmcnt(0)")
        a(f"v_cmp_gt_u32 vcc, {n}, v{T+13}")
        a(f"s_cbranch_vccnz K2_SBW{tag}")

    def batchinfo():
        a(f"s_lshl_b32 s{sT0}, s{sK1}, 6")
        a(f"v_add_u32 v{T}, s{sT0}, v{vG8}")
        a(f"ds_read_b64 v[{NA}:{NA+1}], v{T} offset:{L_ORD}")
        a(f"s_min_u32 s{sT0}, s{sK2}, 25")
        a(f"s_lshl_b32 s{sT0}, s{sT0}, 6")
        a(f"v_add_u32 v{T}, s{sT0}, v{vG8}")
        a(f"ds_read_b64 v[{N2}:{N2+1}], v{T} offset:{L_ORD}")
        a(f"ds_read_b32 v{T+4}, v{vL4} offset:{L_BST}")
        a(f"ds_read_b32 v{T+8}, v123 offset:{L_FLAG}")
        a("s_waitcnt lgkmcnt(0)")
        a(f"v_min_u32 v{T+4}, 0x1ff, v{T+4}")
        a(f"v_lshlrev_b32 v{T+5}, 7, v{T+4}")
        a(f"v_mov_b32 v{T+6}, v{T+5}")
        scan64(a, T + 6)
        a(f"v_readfirstlane_b32 s{sOvf}, v{T+8}")
        a(f"v_sub_u32 v{T+6}, v{T+6}, v{T+5}")
        a(f"v_add_u32 v{T+6}, {L_ELL}, v{T+6}")
        a("s_nop 0")
        a(f"v_readlane_b32 s{sA}, v{T+6}, s{sK1}")
        a(f"v_readlane_b32 s{sRem}, v{T+4}, s{sK1}")
        a(f"v_readlane_b32 s{sNxtA}, v{T+6}, s{sK2}")
        a(f"v_readlane_b32 s{sN2}, v{T+4}, s{sK2}")
        a("s_nop 3")
        a(f"s_sub_u32 s{sRem}, s{sRem}, 1")
        a(f"s_mov_b32 s{sCntS}, s{sRem}")
        a(f"s_sub_u32 s{sNxtCnt}, s{sN2}, 1")
        a(f"s_cmp_eq_u32 s{sN2}, 0")
        a(f"s_cselect_b32 s{sNxtA}, {L_DUM}, s{sNxtA}")
        a(f"s_cselect_b32 s{sNxtCnt}, 100, s{sNxtCnt}")

    def wperm():
        a(f"s_mov_b32 s{sT0}, 0x05040100")
        a(f"s_mov_b32 s{sT1}, 0x07060302")
        for m in range(4):
            sel = sT0 if m % 2 == 0 else sT1
            h = m >> 1
            a(f"v_perm_b32 v{WB+2*m}, v{WR+2+h}, v{WR+h}, s{sel}")
            a(f"v_perm_b32 v{WB+2*m+1}, v{WR+6+h}, v{WR+4+h}, s{sel}")

    def wcloads():
        a(f"s_lshl_b32 s{sT1}, s{sSl}, 6")
        a(f"s_add_u32 s{sT1}, s{sT1}, 65536")
        for k in range(4):
            a(f"buffer_load_dwordx2 v[{WR+2*k}:{WR+1+2*k}], v{vCo}, s[{SG}:{SG+3}], s{sT1} offen offset:{k*256}")

    def unsafe_or():
        a(f"v_mov_b32 v{T+12}, s95")
        a("s_mov_b64 exec, 1")
        a(f"ds_or_b32 v{T+14}, v{T+12} offset:32")
        a("s_mov_b64 exec, -1")

    a.lab("K2_ENTRY")
    a.stamp(0)
    a.stampc(29)
    a(f"v_mov_b32 v{vDesc}, v3") if False else None
    srd(a, SWS, 20, WS_USED)
    a(f"v_lshlrev_b32 v{vL4}, 2, v{vLane}")
    a(f"v_lshlrev_b32 v{vL16}, 4, v{vLane}")
    a(f"v_mov_b32 v{T+14}, {L_GW}")
    a(f"v_mov_b32 v{T+15}, 1")
    a("v_mov_b32 v123, 0")

    def consts():
        srd(a, SG, 16, 260 * 256)
        a(f"s_mul_i32 s{sT0}, s{sSl}, {PS}")
        a(f"s_add_u32 s{SP}, s20, s{sT0}")
        a(f"s_addc_u32 s{SP+1}, s21, 0")
        a(f"s_mov_b32 s{SP+2}, {N*128}")
        a(f"s_mov_b32 s{SP+3}, 0x20000")
        srd(a, SO, 18, N * 256)
        a(f"s_mov_b32 s{sK}, {hex(NL2E)}")
        a(f"v_and_b32 v{vCo}, 7, v{vLane}")
        a(f"v_lshlrev_b32 v{vCo}, 3, v{vCo}")
        a(f"v_lshlrev_b32 v{vC8}, 1, v{vCo}")
        a(f"v_and_b32 v{vG8}, 56, v{vLane}")
        a(f"v_and_b32 v64, 2, v{vLane}")
        a(f"v_lshl_add_u32 v{vRec4}, v64, 1, v{vG8}")
        a(f"v_and_b32 v64, 1, v{vLane}")
        a(f"v_lshl_add_u32 v{vRec4}, v64, 6, v{vRec4}")
        a(f"s_and_b32 s{sT0}, s{sW}, 3")
        a(f"s_and_b32 s{sT1}, s{sW}, 12")
        a(f"s_add_u32 s{sT2}, s{sT1}, s{sT0}")
        a(f"s_add_u32 s{sT1}, s{sT1}, 3")
        a(f"s_sub_u32 s{sT1}, s{sT1}, s{sT0}")
        a(f"s_bitcmp1_b32 s{sW}, 2")
        a(f"s_cselect_b32 s{sK1}, s{sT1}, s{sT2}")
        a(f"s_add_u32 s{sK2}, s{sK1}, 16")
        a(f"s_add_u32 s{sT1}, s{sT1}, 16")
        a(f"s_cmp_ge_u32 s{sW}, 8")
        a(f"s_cselect_b32 s{sK2}, s{sT1}, s{sK2}")
        a(f"s_mul_i32 s{sOutOff}, s{sBk}, {BN*256}")
        a(f"s_lshl_b32 s{sT0}, s{sSl}, 6")
        a(f"s_add_u32 s{sOutOff}, s{sOutOff}, s{sT0}")
    a(f"s_cmp_ge_u32 s{sW}, {NKW}")
    a("s_cbranch_scc1 K2_LW")
    a(f"v_lshrrev_b32 v{T}, 4, v{vLane}")
    a(f"v_lshlrev_b32 v{T+1}, 2, v{T}")
    a(f"s_mov_b32 s{sT0}, {CH*4}")
    a(f"v_and_b32 v{T+2}, 15, v{vLane}")
    a(f"v_lshlrev_b32 v{T+3}, 2, v{T+2}")
    a(f"v_lshlrev_b32 v{T+2}, 4, v{T+2}")
    a(f"v_mad_u32_u24 v{T+2}, v{T}, s{sT0}, v{T+2}")
    a(f"s_mov_b32 s{sSp}, 0")
    a(f"s_mov_b32 s{sOvf}, 0")
    a(f"s_mov_b64 s[{sM+24}:{sM+25}], 0")
    a(f"s_mul_i32 s{sT2}, s{sT3}, {CH*4}")
    a(f"s_add_u32 s{sT2}, s{sT2}, {KEY_OFF}")
    a(f"s_mov_b32 s{sT0}, 0x40ffff")
    a("s_waitcnt vmcnt(0)")
    a.stamp(2)
    a(f"v_mov_b32 v{vDesc}, v3")
    for h in range(3):
        a(f"ds_bpermute_b32 v{T+4+h}, v{T+1}, v3 offset:{16*h}")
    a(f"v_cmp_lt_u32 vcc, s{sT0}, v3")
    a(f"s_and_b64 s[{sTM}:{sTM+1}], vcc, s[{sSave}:{sSave+1}]")
    a("s_waitcnt lgkmcnt(0)")
    for h in range(3):
        a(f"v_lshrrev_b32 v{T+7+h}, 16, v{T+4+h}")
        a(f"v_lshlrev_b32_sdwa v{T+4+h}, 2, v{T+4+h} dst_sel:DWORD dst_unused:UNUSED_PAD src0_sel:DWORD src1_sel:WORD_0")
        a(f"v_cmp_gt_u32 s[{sM+8*h}:{sM+8*h+1}], v{T+7+h}, v{T+3}")
        a(f"v_add_u32 v{T+4+h}, v{T+4+h}, v{T+2}")
        a(f"s_or_b64 exec, s[{sM+8*h}:{sM+8*h+1}], 1")
        a(f"buffer_load_dwordx4 v[{KEYR+4*h}:{KEYR+4*h+3}], v{T+4+h}, s[{SWS}:{SWS+3}], s{sT2} offen{LD}")
        a("s_mov_b64 exec, -1")
        if h < 2:
            a(f"s_add_u32 s{sT2}, s{sT2}, {4*CH*4}")
    a(f"s_cmp_lg_u64 s[{sTM}:{sTM+1}], 0")
    a("s_cbranch_scc1 K2_TAIL")
    a.lab("K2_TAILR")
    a(f"v_lshlrev_b32 v{T}, 4, v0")
    for i in range(4):
        a(f"v_mov_b32 v{20+i}, 0")
    a.stamp(3)
    a("s_barrier")
    a.stamp(1)
    a(f"s_cmp_ge_u32 s{sW}, 6")
    a("s_cbranch_scc1 K2_INIT_DONE")
    a(f"s_cmp_eq_u32 s{sW}, 5")
    a("s_cbranch_scc1 K2_INIT_5")
    a(f"s_lshr_b32 s{sT0}, s{sW}, 1")
    a(f"s_cmp_eq_u32 s{sT0}, 1")
    a("s_cbranch_scc0 K2_INIT_Z")
    for i in range(4):
        a(f"v_mov_b32 v{20+i}, {DUMMY_NODE}")
    a.lab("K2_INIT_Z")
    a(f"ds_write_b128 v{T}, v[20:23]")
    a("s_branch K2_INIT_A")
    a.lab("K2_INIT_5")
    a(f"v_mov_b32 v64, {L_EA + EA_ZERO*8}")
    a("ds_write_b64 v64, v[20:21]")
    a.lab("K2_INIT_A")
    sb_arrive(5)
    a.lab("K2_INIT_DONE")
    unsafe_or()
    for c in range(1, 4):
        a(f"v_add_u32 v{T+3}, 1, v{T+3}")
        for h in range(3):
            a(f"v_cmp_gt_u32 s[{sM+8*h+2*c}:{sM+8*h+2*c+1}], v{T+7+h}, v{T+3}")
    a(f"s_lshl_b32 s{sT0}, s{sT3}, 6")
    a(f"v_add_u32 v{vIdx}, s{sT0}, v{vL4}")
    a(f"v_mov_b32 v{v64c}, 64")
    consts()
    wcloads()
    sb_wait(5, 6, "B1")
    a.stamp(4)
    a(f"s_cmp_eq_u32 s{sOvf}, 0")
    a("s_cbranch_scc1 K2_NOOVF")
    a(f"ds_write_b32 v123, v{T+15} offset:{L_FLAG}")
    a.lab("K2_NOOVF")
    a("s_waitcnt vmcnt(4)")
    a.stamp(5)
    for i in range(NR):
        a(f"v_and_b32 v{HA+i}, 0xffff, v{KEYR+i}")
        a(f"s_mov_b64 exec, s[{sM+2*i}:{sM+2*i+1}]")
        a(f"ds_add_rtn_u32 v{RK+i}, v{HA+i}, v{v64c}")
        a("s_mov_b64 exec, -1")
    for i in range(NR):
        if i == NR - 1:
            a(f"s_lshl_b32 s{sT0}, s{sW}, 6")
            a(f"s_add_u32 s{sT0}, s{sT0}, {EA_TAIL}")
            a(f"v_add_u32 v{vIdx}, s{sT0}, v{vLane}")
        a(f"v_mov_b32_sdwa v{KEYR+i}, v{vIdx} dst_sel:WORD_0 dst_unused:UNUSED_PRESERVE src0_sel:DWORD")
        if i < NR - 2:
            a(f"v_add_u32 v{vIdx}, {253 if i % 4 == 3 else 1}, v{vIdx}")
    sb_arrive(0)
    a(f"s_cmp_ge_u32 s{sW}, 7")
    a("s_cbranch_scc1 K2_W5")
    a(f"v_cmp_gt_u32 vcc, {BN}, v0")
    a(f"v_lshlrev_b32 v{T}, 2, v0")
    a(f"v_and_b32 v{T+8}, 7, v0")
    a(f"v_lshlrev_b32 v{T+8}, 4, v{T+8}")
    a(f"v_lshl_add_u32 v{T+8}, v0, 7, v{T+8}")
    a(f"s_mov_b64 s[{sSave}:{sSave+1}], vcc")
    sb_wait(0, NKW, "2")
    a.stamp(6)
    a.c("node phase A")
    a(f"s_mov_b64 exec, s[{sSave}:{sSave+1}]")
    a(f"ds_read_b32 v{T+1}, v{T}")
    a("s_waitcnt lgkmcnt(0)")
    a(f"v_lshrrev_b32 v{T+1}, 6, v{T+1}")
    a(f"v_min_u32 v{T+2}, 63, v{T+1}")
    a(f"v_sub_u32 v{T+2}, 63, v{T+2}")
    a(f"v_lshlrev_b32 v{T+2}, 2, v{T+2}")
    a(f"ds_add_rtn_u32 v{T+3}, v{T+2}, v{T+15} offset:{L_DH}")
    a(f"v_add_u32 v{T+7}, 1, v{T+1}")
    a(f"v_lshrrev_b32 v{T+7}, 1, v{T+7}")
    a(f"v_max_u32 v{T+7}, 1, v{T+7}")
    sb_arrive(1)
    sb_wait(1, 7, "3")
    a.stamp(7)
    a.c("node phase B")
    a(f"ds_read_b32 v{T+5}, v{vL4} offset:{L_DH}")
    a("s_waitcnt lgkmcnt(0)")
    a(f"v_mov_b32 v{T+6}, v{T+5}")
    scan64(a, T + 6)
    a(f"v_sub_u32 v{T+6}, v{T+6}, v{T+5}")
    a("s_nop 0")
    a(f"ds_bpermute_b32 v{T+9}, v{T+2}, v{T+6}")
    a("s_waitcnt lgkmcnt(0)")
    a(f"s_mov_b64 exec, s[{sSave}:{sSave+1}]")
    a(f"v_add_u32 v{T+3}, v{T+3}, v{T+9}")
    a(f"v_lshlrev_b32 v{T+9}, 2, v{T+3}")
    a(f"ds_write_b32 v{T+9}, v{T+8} offset:{L_ORD}")
    a(f"v_lshrrev_b32 v{T+10}, 4, v{T+3}")
    a(f"v_lshlrev_b32 v{T+10}, 2, v{T+10}")
    a(f"ds_max_u32 v{T+10}, v{T+7} offset:{L_BST}")
    a(f"v_and_b32 v{T+9}, 60, v{T+9}")
    sb_arrive(2)
    sb_wait(2, 7, "4")
    a.stamp(8)
    a.c("node phase C")
    a(f"ds_read_b32 v{T+5}, v{vL4} offset:{L_BST}")
    a("s_waitcnt lgkmcnt(0)")
    a(f"v_min_u32 v{T+5}, 0x1ff, v{T+5}")
    a(f"v_lshlrev_b32 v{T+5}, 7, v{T+5}")
    a(f"v_mov_b32 v{T+6}, v{T+5}")
    scan64(a, T + 6)
    a("s_nop 0")
    a(f"v_readlane_b32 s{sT0}, v{T+6}, 63")
    a(f"v_sub_u32 v{T+6}, v{T+6}, v{T+5}")
    a(f"v_add_u32 v{T+6}, {L_ELL}, v{T+6}")
    a("s_nop 1")
    a(f"ds_bpermute_b32 v{T+10}, v{T+10}, v{T+6}")
    a(f"s_cmp_le_u32 s{sT0}, {CAP*4}")
    a("s_cbranch_scc1 K2_NC_OK")
    a(f"ds_write_b32 v123, v{T+15} offset:{L_FLAG}")
    a.lab("K2_NC_OK")
    a("s_waitcnt lgkmcnt(0)")
    a(f"s_mov_b64 exec, s[{sSave}:{sSave+1}]")
    a(f"v_add_u32 v{T+10}, v{T+10}, v{T+9}")
    a(f"ds_write_b32 v{T}, v{T+10}")
    sb_arrive(3)
    a.lab("K2_W5")
    sb_wait(3, 8, "5")
    a.stamp(9)
    a(f"ds_read_b32 v{T+8}, v123 offset:{L_FLAG}")
    for i in range(NR):
        a(f"s_mov_b64 exec, s[{sM+2*i}:{sM+2*i+1}]")
        a(f"ds_read_b32 v{HA+i}, v{HA+i}")
    a("s_mov_b64 exec, -1")
    a("s_waitcnt lgkmcnt(0)")
    a(f"v_cmp_ne_u32 vcc, 0, v{T+8}")
    a("s_cbranch_vccnz K2_NOSC")
    for i in range(NR):
        a(f"v_add_u32 v{HA+i}, v{HA+i}, v{RK+i}")
        a(f"s_mov_b64 exec, s[{sM+2*i}:{sM+2*i+1}]")
        a(f"ds_write_b32 v{HA+i}, v{KEYR+i}")
        a("s_mov_b64 exec, -1")
    a.lab("K2_NOSC")
    batchinfo()
    a(f"s_lshl_b32 s{sT2}, s{sW}, 9")
    a(f"s_add_u32 s{sT2}, s{sT2}, {L_EA + EA_TAIL*8}")
    a(f"v_lshl_add_u32 v63, v{vLane}, 3, s{sT2}")
    a(f"ds_write_b64 v63, v[{ET}:{ET+1}]")
    a.stamp(10)
    a("s_branch K2_FINB")
    a.lab("K2_LW")
    a(f"v_lshrrev_b32 v{T+4}, 5, v{vLane}")
    a(f"v_lshlrev_b32 v{T+5}, 2, v{T+4}")
    a(f"v_and_b32 v{T+6}, 31, v{vLane}")
    a(f"v_lshlrev_b32 v{T+7}, 1, v{T+6}")
    a(f"v_lshlrev_b32 v{T+6}, 4, v{T+6}")
    a(f"s_mov_b32 s{sT0}, {CH*8}")
    a(f"v_mad_u32_u24 v{T+6}, v{T+4}, s{sT0}, v{T+6}")
    a(f"s_lshl_b32 s{sT0}, s{sT3}, 9")
    a(f"v_add_u32 v{T+8}, s{sT0}, v{vL16}")
    a("s_waitcnt vmcnt(0)")
    a(f"v_mov_b32 v{vDesc}, v3")
    consts()
    wcloads()
    a(f"s_mul_i32 s{sT2}, s{sT3}, {CH*8}")
    a(f"s_add_u32 s{sT2}, s{sT2}, {EAT_OFF}")
    a.stamp(2)
    a(f"s_cmp_eq_u32 s{sW}, 15")
    a("s_cbranch_scc1 K2_SW")
    BP = 105
    for q in range(8):
        a(f"ds_bpermute_b32 v{BP+q}, v{T+5}, v{vDesc} offset:{8*q}")
    a("s_waitcnt lgkmcnt(0)")
    a("s_barrier")
    a.stamp(1)
    LWD = [16, 20, 24, 28, 32, 36, 40, 44, 48, 52, 56, 60, 96, 100, 6, 10]
    for q in range(16):
        b = BP + (q % 8)
        a(f"v_lshrrev_b32 v{T+9}, 16, v{b}")
        a(f"v_lshlrev_b32_sdwa v{T+10}, 3, v{b} dst_sel:DWORD dst_unused:UNUSED_PAD src0_sel:DWORD src1_sel:WORD_0")
        a(f"v_cmp_gt_u32 vcc, v{T+9}, v{T+7}")
        a(f"v_add_u32 v{T+10}, v{T+10}, v{T+6}")
        if q < 8:
            a(f"ds_bpermute_b32 v{b}, v{T+5}, v{vDesc} offset:{8*(q+8)}")
        a("s_or_b64 exec, vcc, 1")
        a(f"buffer_load_dwordx4 v[{LWD[q]}:{LWD[q]+3}], v{T+10}, s[{SWS}:{SWS+3}], s{sT2} offen{LD}")
        a("s_mov_b64 exec, -1")
        if q < 15:
            a(f"s_add_u32 s{sT2}, s{sT2}, {2*CH*8}")
        if q == 7:
            a("s_waitcnt lgkmcnt(0)")
    a.stamp(5)
    unsafe_or()
    for q in range(16):
        a(f"s_waitcnt vmcnt({15-q})")
        a(f"ds_write_b128 v{T+8}, v[{LWD[q]}:{LWD[q]+3}] offset:{L_EA + q*1024}")
    a.stamp(10)
    a("s_branch K2_FINB")
    a.lab("K2_SW")
    a("s_waitcnt lgkmcnt(0)")
    for i in range(4):
        a(f"v_mov_b32 v{16+i}, {hex(DUMMY)}")
    a("s_barrier")
    a.stamp(1)
    for i in range(33):
        if i == 32:
            a("s_bfm_b64 exec, 32, 0")
        a(f"ds_write_b128 v{vL16}, v[16:19] offset:{L_ELL + i*1024}")
    sb_arrive(3)
    poll(a, "G", 53, 128, None, 4)
    a(f"v_readfirstlane_b32 s{sT0}, v53")
    a("s_nop 3")
    a(f"s_lshr_b32 s{sT0}, s{sT0}, 16")
    a(f"s_or_b32 s95, s95, s{sT0}")
    unsafe_or()
    a.stamp(10)
    a.lab("K2_FINB")
    a("s_mov_b64 exec, -1")
    a.c("Wc magnitude check (|w| < 2)")
    a("s_waitcnt vmcnt(0)")
    a(f"v_or3_b32 v{T}, v{WR}, v{WR+1}, v{WR+2}")
    a(f"v_or3_b32 v{T+1}, v{WR+3}, v{WR+4}, v{WR+5}")
    a(f"v_or3_b32 v{T}, v{WR+6}, v{WR+7}, v{T}")
    a(f"v_or_b32 v{T}, v{T}, v{T+1}")
    a(f"v_and_b32 v{T}, 0x40004000, v{T}")
    a(f"v_cmp_ne_u32 vcc, 0, v{T}")
    a("s_cbranch_vccz K2_WOK")
    a(f"ds_or_b32 v{T+14}, v{T+15} offset:32")
    a.lab("K2_WOK")
    wperm()
    a("s_waitcnt lgkmcnt(0)")
    a.stamp(12)
    a("s_barrier")
    a(f"s_cmp_lt_u32 s{sW}, {NKW}")
    a("s_cbranch_scc1 K2_HAVEBI")
    batchinfo()
    a.lab("K2_HAVEBI")
    a(f"s_cmp_lg_u32 s{sOvf}, 0")
    a("s_cbranch_scc1 K2_FALLBACK")
    a(f"s_mov_b32 s{sKK}, {hex(NL2E)}")
    a(f"s_mov_b32 s{sKK+1}, {hex(NL2E)}")
    a(f"ds_read_b32 v{D+2}, v{T+14} offset:32")
    auread(NA)
    a.stamp(13)
    a.stampc(30)

    sw_sites = []

    def advance(tag):
        a(f"s_add_u32 s{sA}, s{sA}, 128")
        a(f"s_sub_u32 s{sCntS}, s{sCntS}, 1")
        a(f"s_cbranch_scc1 K2_SW{tag}")
        a.lab(f"K2_SWR{tag}")
        sw_sites.append(tag)

    def gathers(P):
        for j in range(4):
            a(f"v_add_u32_dpp v{AD+j}, v{vSrc}, v{vC8} quad_perm:[{j},{j},{j},{j}] row_mask:0xf bank_mask:0xf")
        for j in range(4):
            a(f"buffer_load_dwordx4 v[{P+4*j}:{P+4*j+3}], v{AD+j}, s[{SP}:{SP+3}], 0 offen{LD}")

    def split(S):
        a(f"v_lshlrev_b32_sdwa v{vSrc}, 7, v{S} dst_sel:DWORD dst_unused:UNUSED_PAD src0_sel:DWORD src1_sel:WORD_1")
        a(f"v_lshlrev_b32_sdwa v{vEa}, 3, v{S} dst_sel:DWORD dst_unused:UNUSED_PAD src0_sel:DWORD src1_sel:WORD_0")

    def setup_ac():
        for m in range(4):
            a(f"v_cvt_f32_f16 v{AC+4*m}, v{ACC+m}")
            a(f"v_cvt_f32_f16 v{AC+4*m+2}, v{ACC+4+m}")
        for m in range(4):
            a(f"v_mov_b32 v{AC+4*m+1}, v{AC+4*m}")
            a(f"v_mov_b32 v{AC+4*m+3}, v{AC+4*m+2}")

    def compute(P):
        for m in range(4):
            for j in range(4):
                a(f"v_fma_mix_f32 v{D+4*m+j}, v{D+4*m+j}, s{sK}, v{P+4*j+m} op_sel_hi:[0,0,1]")
        for i in range(16):
            a(f"v_exp_f32 v{D+i}, v{D+i}")
        for i in range(8):
            a(f"v_pk_add_f32 v[{D+2*i}:{D+2*i+1}], v[{D+2*i}:{D+2*i+1}], 1.0 op_sel_hi:[1,0]")
        for j in range(4):
            r = R + 4 * (j & 1)
            for m in range(4):
                a(f"v_rcp_f32 v{r+m}, v{D+4*m+j}")
            acc = ACC + 4 * (j >> 1)
            a(f"v_pk_fma_f32 v[{acc}:{acc+1}], v[{P+4*j}:{P+4*j+1}], v[{r}:{r+1}], v[{acc}:{acc+1}]")
            a(f"v_pk_fma_f32 v[{acc+2}:{acc+3}], v[{P+4*j+2}:{P+4*j+3}], v[{r+2}:{r+3}], v[{acc+2}:{acc+3}]")

    def pk(op, d, *src, mod=""):
        a(f"v_pk_{op}_f32 v[{d}:{d+1}], " + ", ".join(x if isinstance(x, str) else f"v[{x}:{x+1}]" for x in src) + mod)

    def compute_fast(P):
        for j in range(4):
            for m in range(4):
                a(f"v_fma_mix_f32 v{D+4*m+j}, v{D+4*m+j}, s{sK}, v{P+4*j+m} op_sel_hi:[0,0,1]")

        def exps(j0):
            for m in range(4):
                a(f"v_exp_f32 v{R+m}, v{D+4*m+j0}")
            for m in range(4):
                a(f"v_exp_f32 v{R+4+m}, v{D+4*m+j0+1}")

        def mid(j0):
            H1, H2 = P + 4 * j0, P + 4 * j0 + 4
            N, Q = (D + j0, D + 4 + j0), (D + 8 + j0, D + 12 + j0)
            for h in range(2):
                pk("add", R + 2 * h, R + 2 * h, "1.0", mod=" op_sel_hi:[1,0]")
            for h in range(2):
                pk("fma", N[h], H2 + 2 * h, R + 2 * h, H1 + 2 * h)
            for h in range(2):
                pk("fma", Q[h], R + 2 * h, R + 4 + 2 * h, R + 2 * h)
            for h in range(2):
                pk("fma", N[h], H1 + 2 * h, R + 4 + 2 * h, N[h])

        def rcps(j0):
            for q in (D + 8 + j0, D + 9 + j0, D + 12 + j0, D + 13 + j0):
                a(f"v_rcp_f32 v{q}, v{q}")

        def fin(j0):
            acc = ACC + 2 * j0
            pk("fma", acc, D + j0, D + 8 + j0, acc)
            pk("fma", acc + 2, D + 4 + j0, D + 12 + j0, acc + 2)
        exps(0)
        mid(0)
        exps(2)
        rcps(0)
        mid(2)
        fin(0)
        rcps(2)
        a("s_nop 0")
        fin(2)

    a(f"v_add_u32 v{vT}, s{sA}, v{vRec4}")
    a(f"ds_read_b32 v{D}, v{vT}")
    advance("F0")
    a(f"v_add_u32 v{vT}, s{sA}, v{vRec4}")
    a(f"ds_read_b32 v{D+1}, v{vT}")
    advance("F1")
    a(f"v_add_u32 v{vT}, s{sA}, v{vRec4}")
    a(f"ds_read_b32 v{vS}, v{vT}")
    a("s_waitcnt lgkmcnt(2)")
    split(D)
    a("s_nop 0")
    a(f"ds_read_b64 v[{EE}:{EE+1}], v{vEa} offset:{L_EA}")
    gathers(PP[0])
    a("s_waitcnt lgkmcnt(2)")
    split(D + 1)
    a("s_nop 1")
    gathers(PP[1])
    setup_ac()
    def loop(sfx, comp):
        a.lab(f"K2_LOOP{sfx}")
        for ph in range(3):
            a("s_waitcnt lgkmcnt(0)")
            for m in range(4):
                a(f"v_mfma_f32_4x4x4_16b_bf16 v[{D+4*m}:{D+4*m+3}], v[{EE}:{EE+1}], v[{WB+2*m}:{WB+2*m+1}], v[{AC+4*m}:{AC+4*m+3}]")
            a(f"ds_read_b64 v[{EE}:{EE+1}], v{vEa} offset:{L_EA}")
            split(vS)
            advance(f"L{sfx}{ph}")
            gathers(PP[(ph + 2) % 3])
            a(f"v_add_u32 v{vT}, s{sA}, v{vRec4}")
            a(f"ds_read_b32 v{vS}, v{vT}")
            a("s_waitcnt vmcnt(8)")
            comp(PP[ph])
            a(f"s_sub_u32 s{sRem}, s{sRem}, 1")
            if ph < 2:
                a(f"s_cbranch_scc0 K2_C{sfx}{ph}")
                a(f"s_call_b64 s[{sRet}:{sRet+1}], K2_EPI")
                a.lab(f"K2_C{sfx}{ph}")
            else:
                a(f"s_cbranch_scc0 K2_LOOP{sfx}")
                a(f"s_call_b64 s[{sRet}:{sRet+1}], K2_EPI")
                a(f"s_branch K2_LOOP{sfx}")
    a(f"v_cmp_ne_u32 vcc, 0, v{D+2}")
    if "safeonly" in OPTS:
        a("s_branch K2_LOOPS")
    a("s_cbranch_vccnz K2_LOOPS")
    loop("F", compute_fast)
    loop("S", compute)

    def epilogue(acc, tmp, nregs):
        for i in range(0, nregs, 2):
            a(f"v_pk_mul_f32 v[{tmp+i}:{tmp+i+1}], v[{acc+i}:{acc+i+1}], s[{sKK}:{sKK+1}]")
        for i in range(nregs):
            a(f"v_exp_f32 v{tmp+i}, v{tmp+i}")
        a("s_nop 0")
        for i in range(0, nregs, 2):
            a(f"v_pk_add_f32 v[{tmp+i}:{tmp+i+1}], v[{tmp+i}:{tmp+i+1}], 1.0 op_sel_hi:[1,0]")
        for i in range(nregs):
            a(f"v_rcp_f32 v{tmp+i}, v{tmp+i}")
        a("s_nop 0")
        for i in range(0, nregs, 2):
            a(f"v_pk_mul_f32 v[{tmp+i}:{tmp+i+1}], v[{tmp+i}:{tmp+i+1}], v[{acc+i}:{acc+i+1}]")
        for i in range(0, nregs, 2):
            a(f"v_cvt_pk_bf16_f32 v{tmp+i//2}, v{tmp+i}, v{tmp+i+1}")

    a.lab("K2_EPI")
    epilogue(ACC, D, 8)
    auread(N2)
    a(f"v_lshrrev_b32 v{AD}, 7, v{NA}")
    a(f"v_lshrrev_b32 v{AD+1}, 7, v{NA+1}")
    a(f"v_lshl_add_u32 v{AD}, v{AD}, 8, v{vCo}")
    a(f"v_lshl_add_u32 v{AD+1}, v{AD+1}, 8, v{vCo}")
    a(f"v_cmp_gt_u32 vcc, {BN*128}, v{NA}")
    a("s_mov_b64 exec, vcc")
    a(f"buffer_store_dwordx2 v[{D}:{D+1}], v{AD}, s[{SO}:{SO+3}], s{sOutOff} offen{K2_ST}")
    a("s_mov_b64 exec, -1")
    a(f"v_cmp_gt_u32 vcc, {BN*128}, v{NA+1}")
    a("s_mov_b64 exec, vcc")
    a(f"buffer_store_dwordx2 v[{D+2}:{D+3}], v{AD+1}, s[{SO}:{SO+3}], s{sOutOff} offen{K2_ST}")
    a("s_mov_b64 exec, -1")
    a(f"s_cmp_eq_u32 s{sN2}, 0")
    a("s_cbranch_scc1 K2_FIN")
    a.stamp(14)
    a(f"s_sub_u32 s{sRem}, s{sN2}, 1")
    a(f"s_mov_b32 s{sN2}, 0")
    a(f"v_mov_b32 v{NA}, v{N2}")
    a(f"v_mov_b32 v{NA+1}, v{N2+1}")
    a("s_waitcnt lgkmcnt(0)")
    setup_ac()
    a(f"s_setpc_b64 s[{sRet}:{sRet+1}]")
    a.lab("K2_FIN")
    a.stamp(15)
    a.stampc(31)
    a.stamp_flush(1, sW)
    a("s_endpgm")

    for tag in sw_sites:
        a.lab(f"K2_SW{tag}")
        a(f"s_mov_b32 s{sA}, s{sNxtA}")
        a(f"s_mov_b32 s{sCntS}, s{sNxtCnt}")
        a(f"s_mov_b32 s{sNxtA}, {L_DUM}")
        a(f"s_mov_b32 s{sNxtCnt}, 100")
        a(f"s_branch K2_SWR{tag}")

    a.lab("K2_TAIL")
    a(f"v_lshlrev_b32 v64, 3, v{vLane}")
    a.lab("K2_TAIL_LOOP")
    a(f"s_ff1_i32_b64 s{sT0}, s[{sTM}:{sTM+1}]")
    a(f"s_bitset0_b64 s[{sTM}:{sTM+1}], s{sT0}")
    a(f"v_readlane_b32 s{sT1}, v{vDesc}, s{sT0}")
    a(f"s_add_u32 s{sT0}, s{sT0}, s{sT3}")
    a(f"s_mul_i32 s{sT0}, s{sT0}, {CH}")
    a(f"s_and_b32 s{sT2}, s{sT1}, 0xffff")
    a(f"s_add_u32 s{sT0}, s{sT0}, s{sT2}")
    a(f"s_add_u32 s{sT0}, s{sT0}, 64")
    a(f"s_sub_u32 s{sT0}, s{sT0}, s{sSp}")
    a(f"s_lshr_b32 s{sT1}, s{sT1}, 16")
    a(f"s_sub_u32 s{sT1}, s{sT1}, 64")
    a(f"s_add_u32 s{sT2}, s{sSp}, s{sT1}")
    a(f"s_cmp_gt_u32 s{sT2}, 63")
    a("s_cbranch_scc1 K2_TAILF")
    a(f"s_bfm_b64 s[{sSave}:{sSave+1}], s{sT1}, s{sSp}")
    a(f"s_or_b64 s[{sM+24}:{sM+25}], s[{sM+24}:{sM+25}], s[{sSave}:{sSave+1}]")
    a(f"s_mov_b32 s{sSp}, s{sT2}")
    a(f"s_lshl_b32 s{sT1}, s{sT0}, 2")
    a(f"s_add_u32 s{sT1}, s{sT1}, {KEY_OFF}")
    a(f"s_lshl_b32 s{sT2}, s{sT0}, 3")
    a(f"s_add_u32 s{sT2}, s{sT2}, {EAT_OFF}")
    a(f"s_mov_b64 exec, s[{sSave}:{sSave+1}]")
    a(f"buffer_load_dword v{KEYR+12}, v{vL4}, s[{SWS}:{SWS+3}], s{sT1} offen{LD}")
    a(f"buffer_load_dwordx2 v[{ET}:{ET+1}], v64, s[{SWS}:{SWS+3}], s{sT2} offen{LD}")
    a("s_mov_b64 exec, -1")
    a(f"s_cmp_lg_u64 s[{sTM}:{sTM+1}], 0")
    a("s_cbranch_scc1 K2_TAIL_LOOP")
    a("s_branch K2_TAILR")
    a.lab("K2_TAILF")
    a(f"s_mov_b32 s{sOvf}, 1")
    a("s_branch K2_TAILR")

    L_AGG = L_EA
    a.lab("K2_FALLBACK")
    a("s_waitcnt vmcnt(0) lgkmcnt(0)")
    a(f"s_mov_b32 s{sKK}, {hex(NL2E)}")
    a(f"s_mov_b32 s{sKK+1}, {hex(NL2E)}")
    a("s_barrier")
    a("v_lshlrev_b32 v51, 4, v0")
    a(f"v_add_u32 v51, {L_AGG}, v51")
    for i in range(4):
        a(f"v_mov_b32 v{56+i}, 0")
    for i in range(4):
        a(f"ds_write_b128 v51, v[56:59] offset:{i*16384}")
    a("s_waitcnt lgkmcnt(0)")
    a("s_barrier")
    srd(a, SF0, 10, E * 4)
    srd(a, SF1, 8, E * 4)
    srd(a, SF2, 6, E * 8)
    a(f"s_mul_i32 s{sT3}, s{sBk}, {BN}")
    a(f"s_mul_i32 s{sT2}, s{sBk}, {BN*128}")
    a(f"s_lshl_b32 s{sT0}, s{sW}, 5")
    a(f"v_lshrrev_b32 v51, 1, v{vG8}")
    a.lab("K2_FB_LOOP")
    a(f"s_lshl_b32 s{sT1}, s{sT0}, 1")
    a(f"buffer_load_dword v52, v51, s[{SF0}:{SF0+3}], s{sT0} offen")
    a(f"buffer_load_dword v53, v51, s[{SF1}:{SF1+3}], s{sT0} offen")
    a(f"buffer_load_dwordx2 v[54:55], v{vG8}, s[{SF2}:{SF2+3}], s{sT1} offen")
    a("s_waitcnt vmcnt(0)")
    a(f"v_subrev_u32 v52, s{sT3}, v52")
    a(f"v_cmp_gt_u32 vcc, {BN}, v52")
    a("s_mov_b64 exec, vcc")
    a("s_cbranch_execz K2_FB_NEXT")
    a(f"v_lshl_add_u32 v53, v53, 7, v{vC8}")
    a("v_and_b32 v56, 7, v52")
    a("v_lshlrev_b32 v56, 4, v56")
    a(f"v_lshl_add_u32 v52, v52, 7, v{vC8}")
    a("v_xor_b32 v56, v56, v52")
    a(f"v_add_u32 v56, {L_AUR}, v56")
    a(f"buffer_load_dwordx4 v[16:19], v53, s[{SP}:{SP+3}], 0 offen{LD}")
    a("ds_read_b128 v[20:23], v56")
    a(f"v_add_u32 v52, {L_AGG}, v52")
    a("s_waitcnt vmcnt(0) lgkmcnt(0)")
    for m in range(4):
        a(f"v_cvt_f32_f16 v{20+m}, v{20+m}")
    for m in range(4):
        a(f"v_dot2_f32_bf16 v{20+m}, v54, v{WB+2*m}, v{20+m}")
    for m in range(4):
        a(f"v_dot2_f32_bf16 v{20+m}, v55, v{WB+2*m+1}, v{20+m}")
    a("s_nop 3")
    for m in range(4):
        a(f"v_fma_mix_f32 v{20+m}, v{20+m}, s{sK}, v{16+m} op_sel_hi:[0,0,1]")
    for m in range(4):
        a(f"v_exp_f32 v{20+m}, v{20+m}")
    a("s_nop 0")
    for m in range(4):
        a(f"v_add_f32 v{20+m}, 1.0, v{20+m}")
    for m in range(4):
        a(f"v_rcp_f32 v{20+m}, v{20+m}")
    a("s_nop 0")
    for m in range(4):
        a(f"v_mul_f32 v{20+m}, v{20+m}, v{16+m}")
    for m in range(4):
        a(f"ds_add_f32 v52, v{20+m} offset:{4*m}")
    a.lab("K2_FB_NEXT")
    a("s_mov_b64 exec, -1")
    a(f"s_add_u32 s{sT0}, s{sT0}, 512")
    a(f"s_cmp_lt_u32 s{sT0}, {E*4}")
    a("s_cbranch_scc1 K2_FB_LOOP")
    a("s_waitcnt lgkmcnt(0)")
    a("s_barrier")
    a(f"s_lshl_b32 s{sT0}, s{sW}, 10")
    a(f"v_lshlrev_b32 v51, 4, v{vG8}")
    a.lab("K2_FB_OUT")
    a(f"v_add_u32 v52, s{sT0}, v51")
    a(f"v_add_u32 v53, v52, v{vC8}")
    a(f"v_lshlrev_b32 v56, 1, v{vG8}")
    a("v_xor_b32 v56, v56, v53")
    a(f"v_min_u32 v56, {399*128+112}, v56")
    a(f"v_add_u32 v56, {L_AUR}, v56")
    a("ds_read_b128 v[16:19], v56")
    a(f"v_add_u32 v53, {L_AGG}, v53")
    a("ds_read_b128 v[20:23], v53")
    a("s_waitcnt vmcnt(0) lgkmcnt(0)")
    for m in range(4):
        a(f"v_add_f32 v{16+m}, v{16+m}, v{20+m}")
    epilogue(16, 24, 4)
    a(f"v_lshl_add_u32 v53, v52, 1, v{vCo}")
    a(f"v_cmp_gt_u32 vcc, {BN*128}, v52")
    a("s_mov_b64 exec, vcc")
    a(f"buffer_store_dwordx2 v[24:25], v53, s[{SO}:{SO+3}], s{sOutOff} offen{K2_ST}")
    a("s_mov_b64 exec, -1")
    a(f"s_add_u32 s{sT0}, s{sT0}, 16384")
    a(f"s_cmp_lt_u32 s{sT0}, {BN*128}")
    a("s_cbranch_scc1 K2_FB_OUT")
    a.lab("K2_END")
    a("s_endpgm")


def kd(name, vgpr, sgpr, extra=""):
    acc = (vgpr + 3) // 4 * 4
    return f""".amdhsa_kernel {name}
  .amdhsa_next_free_vgpr {vgpr}
  .amdhsa_next_free_sgpr {sgpr}
  .amdhsa_accum_offset {acc}
  .amdhsa_group_segment_fixed_size 0
  .amdhsa_kernarg_size 80
  .amdhsa_user_sgpr_count 2
  .amdhsa_user_sgpr_kernarg_segment_ptr 1
  .amdhsa_system_sgpr_workgroup_id_x 1
{extra}.end_amdhsa_kernel
"""


def main():
    out = HEADER
    if FUSED:
        out += f"; @launch grid=(256,1,1) block=(1024,1,1) lds={K1_LDS}\n"
    else:
        out += f"; @launch kernel=k1_kernel grid=(256,1,1) block=(1024,1,1) lds={K1_LDS}\n"
        out += f"; @launch kernel=k2_kernel grid=(256,1,1) block=(1024,1,1) lds={K2_LDS}\n"
    out += '.amdgcn_target "amdgcn-amd-amdhsa--gfx950"\n.text\n'
    for name, g in ((KNAME if FUSED else "k1_kernel", gen_k1), ("k2_kernel", gen_k2)):
        a = A()
        g(a)
        if not (FUSED and g is gen_k2):
            out += f".globl {name}\n.p2align 8\n.type {name},@function\n"
        out += "\n".join(a.l) + "\n"
    out += '.section .rodata,"a"\n.p2align 6\n'
    out += kd(KNAME if FUSED else "k1_kernel", 128, 102, "  .amdhsa_fp16_overflow 1\n")
    if not FUSED:
        out += ".p2align 6\n"
        out += kd("k2_kernel", 128, 102)
    path = sys.argv[1] if len(sys.argv) > 1 else "gather_scatter__edge_featured_mpnn_egc__graph.s"
    open(path, "w").write(out)


if __name__ == "__main__":
    main()
```

```python
import sys

N = 25000
E = 400000
NB = 64
BN = 391
CH = 3200
NCH = 125
PS = 25040 * 128
P_OFF = 0
AU_OFF = 0x1000000
KEY_OFF = 0x2000000
EAT_OFF = 0x2200000
DESC_OFF = 0x2800000
GCNT_OFF = 0x2810000
WS_USED = 0x2900000
NL2E = 0xBFB8AA3B
MAGIC = 85817

OPTS = set(sys.argv[2:])
STAMPS = "stamps" in OPTS
STAMP_OFF = 0x3000000
K1_ST = ""
K2_ST = " nt"
NT_E = "" if "noent" in OPTS else " nt"
NT_X = " nt" if "xnt" in OPTS else ""
FUSED = "split" not in OPTS
K1_ST = " sc1"
LD = " sc1" if FUSED else ""
KNAME = "gather_scatter__edge_featured_mpnn_egc__graph_kernel"
SDB = 96
SLP = 1 if "slp1" in OPTS else 4
for o in OPTS:
    if o.startswith("k1st="):
        K1_ST = " " + o[5:].replace("+", " ")
    if o.startswith("k2st="):
        K2_ST = " " + o[5:].replace("+", " ")

HEADER = """; Kernarg layout for this problem (80 bytes, ptrs only, base s[0:1]):
"""


class A:
    def __init__(self):
        self.l = []
        self.vst = None

    def __call__(self, s):
        for x in s.strip().split("\n"):
            self.l.append("    " + x.strip())

    def lab(self, s):
        self.l.append(s + ":")

    def c(self, s):
        self.l.append("    ; " + s)

    def stamp(self, idx):
        if not STAMPS:
            return
        self("s_memrealtime s[100:101]")
        self("s_waitcnt lgkmcnt(0)")
        self(f"v_writelane_b32 v{self.vst}, s100, {idx}")

    def stampc(self, idx):
        if not STAMPS:
            return
        self("s_memtime s[100:101]")
        self("s_waitcnt lgkmcnt(0)")
        self(f"v_writelane_b32 v{self.vst}, s100, {idx}")

    def stamp_flush(self, kidx, sw):
        if not STAMPS:
            return
        self("s_mov_b64 exec, -1")
        self(f"s_add_u32 s12, s20, {STAMP_OFF + kidx*0x100000}")
        self("s_addc_u32 s13, s21, 0")
        self("s_mov_b32 s14, 0x100000")
        self("s_mov_b32 s15, 0x20000")
        self("s_lshl_b32 s100, s2, 12")
        self(f"v_mbcnt_lo_u32_b32 v{self.vst+1}, -1, 0")
        self(f"v_mbcnt_hi_u32_b32 v{self.vst+1}, -1, v{self.vst+1}")
        self(f"v_lshlrev_b32 v{self.vst+1}, 2, v{self.vst+1}")
        self(f"s_lshl_b32 s101, s{sw}, 8")
        self("s_add_u32 s100, s100, s101")
        self(f"buffer_store_dword v{self.vst}, v{self.vst+1}, s[12:15], s100 offen")


def srd(a, d, base, size, off=0):
    if off:
        a(f"s_add_u32 s{d}, s{base}, {off}")
        a(f"s_addc_u32 s{d+1}, s{base+1}, 0")
    else:
        a(f"s_mov_b32 s{d}, s{base}")
        a(f"s_mov_b32 s{d+1}, s{base+1}")
    a(f"s_mov_b32 s{d+2}, {size}")
    a(f"s_mov_b32 s{d+3}, 0x20000")


def scan64(a, v):
    for sh in (1, 2, 4, 8):
        a("s_nop 1")
        a(f"v_add_u32_dpp v{v}, v{v}, v{v} row_shr:{sh} row_mask:0xf bank_mask:0xf bound_ctrl:0")
    a("s_nop 1")
    a(f"v_add_u32_dpp v{v}, v{v}, v{v} row_bcast:15 row_mask:0xa bank_mask:0xf")
    a("s_nop 1")
    a(f"v_add_u32_dpp v{v}, v{v}, v{v} row_bcast:31 row_mask:0xc bank_mask:0xf")


K1_WP = 98304
K1_WAU = 102400
K1_CNT = 118784
K1_STK = K1_CNT + 2048
K1_STE = K1_STK + 12800
K1_SCR = 131072
L_AUR = 112640
L_GW = 103936
K1_LDS = 163840
assert K1_STE + 25600 <= K1_LDS


def poll(a, tag, vP, off, val=None, slp=2):
    a("s_mov_b32 s101, 0x40000")
    a("s_mov_b64 exec, 1")
    a.lab(f"POLL{tag}")
    a(f"buffer_load_dword v{vP}, off, s[{SDB}:{SDB+3}], 0 offset:{off} sc1")
    a("s_waitcnt vmcnt(0)")
    a(f"v_cmp_ne_u32 vcc, 0, v{vP}" if val is None else f"v_cmp_eq_u32 vcc, {val}, v{vP}")
    a("s_sub_u32 s101, s101, 1")
    a(f"s_cbranch_scc1 POLLD{tag}")
    a(f"s_cbranch_vccnz POLLD{tag}")
    a(f"s_sleep {slp}")
    a(f"s_branch POLL{tag}")
    a.lab(f"POLLD{tag}")
    a("s_mov_b64 exec, -1")


def gen_k1(a):
    sW, sSl, sBk, sT0, sT1, sT2, sT3 = 22, 23, 24, 25, 26, 27, 28
    sG = 29
    sEx = 30
    SD, SS, SE, SWS, SX, SWL, SWH = 32, 36, 40, 44, 48, 52, 56
    sScale, sOut, sS, sQ, sX0, sDl, sJ, sSlot = 60, 61, 62, 63, 64, 65, 66, 67
    sUns = 94
    vLane = 1
    VX = 40
    VW = 44
    a.lab(KNAME)
    a.vst = 11
    a("s_cmp_ge_u32 s2, 256")
    a("s_cbranch_scc1 K1_END2")
    a.stamp(0)
    a.stampc(30)
    a("s_load_dwordx16 s[4:19], s[0:1], 0")
    a("s_load_dwordx2 s[20:21], s[0:1], 72")
    a(f"s_load_dwordx2 s[{SDB}:{SDB+1}], s[0:1], 64")
    a("v_lshrrev_b32 v2, 6, v0")
    a(f"v_and_b32 v{vLane}, 63, v0")
    a(f"v_readfirstlane_b32 s{sW}, v2")
    a(f"s_mov_b32 s{SDB+2}, 256")
    a(f"s_mov_b32 s{SDB+3}, 0x20000")
    a(f"s_and_b32 s{sSl}, s2, 3")
    a(f"s_lshr_b32 s{sT0}, s2, 2")
    if "oldmap" in OPTS:
        a(f"s_mov_b32 s{sBk}, s{sT0}")
    else:
        a.c("bucket = 32*((wg>>2)&1) + (wg>>3): workgroups that share an L2 take neighbouring buckets")
        a(f"s_and_b32 s{sBk}, s{sT0}, 1")
        a(f"s_lshl_b32 s{sBk}, s{sBk}, 5")
        a(f"s_lshr_b32 s{sT1}, s2, 3")
        a(f"s_or_b32 s{sBk}, s{sBk}, s{sT1}")
    a(f"s_lshl_b32 s{sG}, s{sT0}, 1")
    a(f"s_add_u32 s{sG}, s{sG}, s{sSl}")
    a(f"s_mul_i32 s{sX0}, s{sBk}, {BN*256}")
    a(f"s_cmp_eq_u32 s{sSl}, 2")
    a(f"s_cselect_b32 s{sDl}, 1, 0")
    a("v_lshlrev_b32 v2, 4, v0")
    a("v_lshlrev_b32 v3, 5, v0")
    a(f"v_lshrrev_b32 v4, 4, v{vLane}")
    a(f"v_and_b32 v5, 15, v{vLane}")
    a("v_xor_b32 v6, v5, v4")
    a("v_lshlrev_b32 v6, 4, v6")
    a(f"v_lshl_add_u32 v{VX}, v4, 8, v6")
    a(f"v_xor_b32 v{VX+1}, 64, v{VX}")
    a(f"v_xor_b32 v{VX+2}, 0x80, v{VX}")
    a(f"v_xor_b32 v{VX+3}, 0xc0, v{VX}")
    a("v_lshrrev_b32 v6, 1, v5")
    a("v_xor_b32 v6, v6, v4")
    a("v_lshlrev_b32 v6, 5, v6")
    a("v_lshl_add_u32 v6, v4, 8, v6")
    a(f"v_and_b32 v7, 1, v{vLane}")
    a(f"v_lshl_add_u32 v{VW}, v7, 4, v6")
    a(f"v_xor_b32 v{VW+1}, 0x80, v{VW}")
    a(f"v_lshrrev_b32 v6, 2, v{vLane}")
    a("v_lshlrev_b32 v6, 8, v6")
    a(f"v_and_b32 v7, 3, v{vLane}")
    a(f"v_lshrrev_b32 v8, 4, v{vLane}")
    a("v_and_b32 v8, 2, v8")
    a("v_xor_b32 v7, v7, v8")
    a(f"v_lshl_add_u32 v{VW+2}, v7, 4, v6")
    if "icode" in OPTS:
        a.c("pull this kernel's code into the XCD's L2 (wave 15 of the first workgroups)")
        a(f"s_cmp_lg_u32 s{sW}, 15")
        a("s_cbranch_scc1 K1_NOIC")
        a("s_cmp_ge_u32 s2, 16")
        a("s_cbranch_scc1 K1_NOIC")
        a("s_getpc_b64 s[68:69]")
        a(f"v_lshlrev_b32 v60, 7, v{vLane}")
        a.lab("K1_ICB")
        a("global_load_dword v61, v60, s[68:69]")
        a("s_add_u32 s68, s68, 8192")
        a("s_addc_u32 s69, s69, 0")
        a("s_bfm_b64 exec, (K2_END-K1_ICB-8192)/128, 0")
        a("global_load_dword v62, v60, s[68:69]")
        a("s_mov_b64 exec, -1")
        a.lab("K1_NOIC")
    a("s_waitcnt lgkmcnt(0)")
    a.stamp(1)
    srd(a, SX, 4, N * 256)
    a(f"s_cmp_ge_u32 s{sSl}, 2")
    a("s_cbranch_scc1 K1_TB")

    def xdma(slot_sgpr, tag):
        a(f"s_lshl_b32 s{sT0}, s{slot_sgpr}, 12")
        a(f"s_mov_b32 m0, s{sT0}")
        a(f"s_sub_u32 s{sT1}, s{slot_sgpr}, s{sDl}")
        a(f"s_cselect_b32 s{sT1}, 24, s{sT1}")
        a(f"s_lshl_b32 s{sT1}, s{sT1}, 12")
        a(f"s_add_u32 s{sT1}, s{sT1}, s{sX0}")
        for pp in range(4):
            a(f"buffer_load_dwordx4 v{VX+pp}, s[{SX}:{SX+3}], s{sT1} offen offset:{pp*1024}{NT_X} lds")

    def waudma(piece_sgpr):
        a(f"s_lshl_b32 s{sT0}, s{piece_sgpr}, 10")
        a(f"s_add_u32 s{sT0}, s{sT0}, {K1_WAU}")
        a(f"s_mov_b32 m0, s{sT0}")
        a(f"s_and_b32 s{sT1}, s{piece_sgpr}, 7")
        a(f"s_lshl_b32 s{sT1}, s{sT1}, 12")
        a(f"s_lshl_b32 s{sT0}, s{sSl}, 6")
        a(f"s_add_u32 s{sT1}, s{sT1}, s{sT0}")
        a(f"s_cmp_lt_u32 s{piece_sgpr}, 8")
        a(f"s_cselect_b32 s{SWL}, s16, s12")
        a(f"s_cselect_b32 s{SWL+1}, s17, s13")
        a(f"s_mov_b32 s{SWL+2}, 32768")
        a(f"s_mov_b32 s{SWL+3}, 0x20000")
        a(f"buffer_load_dwordx4 v{VW+2}, s[{SWL}:{SWL+3}], s{sT1} offen lds")

    a(f"s_cmp_ge_u32 s{sG}, {NCH}")
    a("s_cbranch_scc1 K1_NOEDGE")
    a(f"s_cmp_ge_u32 s{sW}, 13")
    a("s_cbranch_scc1 K1_NOEDGE")
    srd(a, SD, 10, E * 4)
    srd(a, SS, 8, E * 4)
    srd(a, SE, 6, E * 8)
    a("v_cmp_gt_u32 vcc, 800, v0")
    a(f"s_mul_i32 s{sT0}, s{sG}, {CH*4}")
    a(f"s_mul_i32 s{sT1}, s{sG}, {CH*8}")
    a(f"s_mov_b64 s[{sEx}:{sEx+1}], vcc")
    a("s_mov_b64 exec, vcc")
    a(f"buffer_load_dwordx4 v[16:19], v2, s[{SD}:{SD+3}], s{sT0} offen{NT_E}")
    a(f"buffer_load_dwordx4 v[20:23], v2, s[{SS}:{SS+3}], s{sT0} offen{NT_E}")
    a(f"buffer_load_dwordx4 v[24:27], v3, s[{SE}:{SE+3}], s{sT1} offen{NT_E}")
    a(f"buffer_load_dwordx4 v[28:31], v3, s[{SE}:{SE+3}], s{sT1} offen offset:16{NT_E}")
    a("s_mov_b64 exec, -1")
    a.lab("K1_NOEDGE")
    srd(a, SWS, 20, WS_USED)
    a(f"v_lshlrev_b32 v6, 2, v{vLane}")
    a(f"v_add_u32 v6, {K1_CNT}, v6")
    a("v_mov_b32 v7, 0")
    a(f"v_mov_b32 v12, {K1_CNT+1024}")
    a(f"s_cmp_lg_u32 s{sW}, 0")
    a("s_cbranch_scc1 K1_P1")
    a("ds_write_b32 v6, v7")
    a("ds_write_b32 v6, v7 offset:256")
    a("ds_write_b32 v6, v7 offset:1024")
    a("s_waitcnt lgkmcnt(0)")
    a.lab("K1_P1")
    a("s_barrier")
    a(f"s_cmp_lt_u32 s{sW}, 13")
    a("s_cbranch_scc1 K1_PW")
    a.c("loader waves 13..15 : W_AU pieces and x tiles by LDS-DMA")
    a(f"s_sub_u32 s{sJ}, s{sW}, 13")
    a.lab("K1_LA1")
    waudma(sJ)
    a(f"s_add_u32 s{sJ}, s{sJ}, 3")
    a(f"s_cmp_lt_u32 s{sJ}, 16")
    a("s_cbranch_scc1 K1_LA1")
    a(f"s_sub_u32 s{sJ}, s{sW}, 13")
    xdma(sJ, "A0")
    a(f"s_add_u32 s{sJ}, s{sJ}, 3")
    xdma(sJ, "A1")
    a(f"s_add_u32 s{sJ}, s{sJ}, 3")
    a("v_mov_b32 v7, 1")
    a("s_waitcnt vmcnt(8)")
    a("s_mov_b64 exec, 1")
    a("ds_add_u32 v12, v7 offset:12")
    a("s_mov_b64 exec, -1")
    HOLD = [int(o[5:]) for o in OPTS if o.startswith("hold=")]
    if HOLD:
        for h in range(HOLD[0] - 2):
            xdma(sJ, f"AH{h}")
            a(f"s_add_u32 s{sJ}, s{sJ}, 3")
        a.c("let the partition's record stores go out first")
        a(f"s_cmp_ge_u32 s{sG}, {NCH}")
        a("s_cbranch_scc1 K1_LA2")
        a.lab("K1_HOLD")
        a("ds_read_b32 v13, v12 offset:16")
        a("s_waitcnt lgkmcnt(0)")
        a("v_cmp_gt_u32 vcc, 13, v13")
        a("s_cbranch_vccnz K1_HOLD")
    a.lab("K1_LA2")
    xdma(sJ, "A")
    a(f"s_add_u32 s{sJ}, s{sJ}, 3")
    a(f"s_cmp_lt_u32 s{sJ}, 25")
    a("s_cbranch_scc1 K1_LA2")
    a.stamp(2)
    a("s_branch K1_AUA")
    a.lab("K1_PW")
    a(f"s_cmp_ge_u32 s{sG}, {NCH}")
    a("s_cbranch_scc1 K1_AUA")

    def sb(k, tag):
        a("s_waitcnt lgkmcnt(0)")
        a("s_mov_b64 exec, 1")
        a(f"ds_add_u32 v12, v7 offset:{4+4*k}")
        a("s_mov_b64 exec, -1")
        a.lab(f"K1_SB{tag}")
        a(f"ds_read_b32 v13, v12 offset:{4+4*k}")
        a("s_waitcnt lgkmcnt(0)")
        a("v_cmp_gt_u32 vcc, 13, v13")
        a(f"s_cbranch_vccnz K1_SB{tag}")
    a(f"s_mov_b32 s{sT0}, {MAGIC}")
    a(f"s_mov_b32 s{sT1}, {-BN & 0xffffffff}")
    a("v_mov_b32 v7, 1")
    a(f"s_mov_b64 exec, s[{sEx}:{sEx+1}]")
    a("s_waitcnt vmcnt(3)")
    a.stamp(3)
    for i in range(4):
        a(f"v_mul_u32_u24 v{32+i}, s{sT0}, v{16+i}")
    for i in range(4):
        a(f"v_lshrrev_b32 v{32+i}, 25, v{32+i}")
    for i in range(4):
        a(f"v_mad_i32_i24 v{16+i}, v{32+i}, s{sT1}, v{16+i}")
    for i in range(4):
        a(f"v_lshlrev_b32 v{32+i}, 2, v{32+i}")
    for i in range(4):
        a(f"v_add_u32 v{32+i}, {K1_CNT}, v{32+i}")
    for i in range(4):
        a(f"ds_add_rtn_u32 v{36+i}, v{32+i}, v7")
    for i in range(4):
        a(f"v_lshlrev_b32 v{16+i}, 2, v{16+i}")
    a("s_waitcnt vmcnt(2)")
    for i in range(4):
        a(f"v_lshl_or_b32 v{20+i}, v{20+i}, 16, v{16+i}")
    sb(0, "2")
    a.stamp(4)
    a("ds_read_b32 v8, v6")
    a("s_waitcnt lgkmcnt(0)")
    a("v_mov_b32 v9, v8")
    scan64(a, 9)
    a("v_sub_u32 v9, v9, v8")
    a("ds_write_b32 v6, v9 offset:512")
    a("v_lshl_or_b32 v8, v8, 16, v9")
    a(f"s_mov_b64 exec, s[{sEx}:{sEx+1}]")
    for i in range(4):
        a(f"ds_read_b32 v{32+i}, v{32+i} offset:512")
    a("s_waitcnt lgkmcnt(0)")
    for i in range(4):
        a(f"v_add_u32 v{32+i}, v{32+i}, v{36+i}")
    for i in range(4):
        a(f"v_lshlrev_b32 v{36+i}, 2, v{32+i}")
        a(f"v_lshlrev_b32 v{32+i}, 3, v{32+i}")
    for i in range(4):
        a(f"v_add_u32 v{36+i}, {K1_STK}, v{36+i}")
        a(f"v_add_u32 v{32+i}, {K1_STE}, v{32+i}")
    for i in range(4):
        a(f"ds_write_b32 v{36+i}, v{20+i}")
    a("s_waitcnt vmcnt(0)")
    for i in range(4):
        a(f"ds_write_b64 v{32+i}, v[{24+2*i}:{25+2*i}]")
    a("v_or3_b32 v16, v24, v25, v26")
    a("v_or3_b32 v17, v27, v28, v29")
    a("v_or3_b32 v16, v30, v31, v16")
    a("v_or_b32 v16, v16, v17")
    a("v_and_b32 v16, 0x40004000, v16")
    a("v_cmp_ne_u32 vcc, 0, v16")
    a(f"s_cmp_lg_u64 vcc, 0")
    a(f"s_cselect_b32 s{sUns}, 0x101, 1")
    sb(1, "3")
    a.stamp(5)
    a(f"s_mov_b64 exec, s[{sEx}:{sEx+1}]")
    a(f"v_add_u32 v6, {K1_STK}, v2")
    a("ds_read_b128 v[16:19], v6")
    a("ds_read_b128 v[20:23], v6 offset:12800")
    a("ds_read_b128 v[24:27], v6 offset:25600")
    a(f"s_mul_i32 s{sT0}, s{sG}, {CH*4}")
    a(f"s_add_u32 s{sT0}, s{sT0}, {KEY_OFF}")
    a(f"s_mul_i32 s{sT1}, s{sG}, {CH*8}")
    a(f"s_add_u32 s{sT1}, s{sT1}, {EAT_OFF}")
    a(f"s_add_u32 s{sT2}, s{sT1}, 12800")
    a("s_waitcnt lgkmcnt(2)")
    a(f"buffer_store_dwordx4 v[16:19], v2, s[{SWS}:{SWS+3}], s{sT0} offen{K1_ST}")
    a("s_waitcnt lgkmcnt(1)")
    a(f"buffer_store_dwordx4 v[20:23], v2, s[{SWS}:{SWS+3}], s{sT1} offen{K1_ST}")
    a("s_waitcnt lgkmcnt(0)")
    a(f"buffer_store_dwordx4 v[24:27], v2, s[{SWS}:{SWS+3}], s{sT2} offen{K1_ST}")
    a("s_mov_b64 exec, -1")
    a(f"s_cmp_lg_u32 s{sW}, 0")
    a("s_cbranch_scc1 K1_P2B")
    a(f"v_lshlrev_b32 v9, 2, v{vLane}")
    a(f"s_lshl_b32 s{sT0}, s{sG}, 8")
    a(f"s_add_u32 s{sT0}, s{sT0}, {DESC_OFF}")
    a(f"buffer_store_dword v8, v9, s[{SWS}:{SWS+3}], s{sT0} offen{K1_ST}")
    a.lab("K1_P2B")
    if HOLD:
        a("s_mov_b64 exec, 1")
        a("ds_add_u32 v12, v7 offset:16")
        a("s_mov_b64 exec, -1")
    a.c("publish the partition: the last of the 13 storing waves counts this workgroup into R")
    a(f"v_mov_b32 v15, s{sUns}")
    a("s_waitcnt vmcnt(0)")
    a("s_mov_b64 exec, 1")
    a("ds_add_rtn_u32 v14, v12, v15")
    a("s_waitcnt lgkmcnt(0)")
    a("v_add_u32 v14, v14, v15")
    a("v_and_b32 v15, 0xff, v14")
    a("v_cmp_eq_u32 vcc, 13, v15")
    a("s_cbranch_vccz K1_NOR2")
    a("v_lshrrev_b32 v14, 8, v14")
    a("v_lshl_or_b32 v14, v14, 16, 1")
    a("v_mov_b32 v15, v14")
    a(f"buffer_atomic_add v15, off, s[{SDB}:{SDB+3}], 0 sc0 sc1")
    a("s_waitcnt vmcnt(0)")
    a("v_add_u32 v15, v15, v14")
    a("v_and_b32 v14, 0xffff, v15")
    a(f"v_cmp_eq_u32 vcc, {NCH}, v14")
    a("s_cbranch_vccz K1_NOR2")
    a(f"buffer_store_dword v15, off, s[{SDB}:{SDB+3}], 0 offset:192 sc1")
    a.lab("K1_NOR2")
    a("s_mov_b64 exec, -1")
    a.stamp(6)
    a.lab("K1_AUA")
    a("ds_read_b32 v13, v12 offset:12")
    a("s_waitcnt lgkmcnt(0)")
    a("v_cmp_gt_u32 vcc, 3, v13")
    a("s_cbranch_vccnz K1_AUA")
    a("s_branch K1_AU")

    a.lab("K1_TB")
    a(f"s_add_u32 s{sT0}, s16, 32768")
    a(f"s_addc_u32 s{sT1}, s17, 0")
    a(f"s_cmp_lt_u32 s{sW}, 8")
    a(f"s_cselect_b32 s{SWH}, s{sT0}, s14")
    a(f"s_cselect_b32 s{SWH+1}, s{sT1}, s15")
    a(f"s_mov_b32 s{SWH+2}, 32768")
    a(f"s_mov_b32 s{SWH+3}, 0x20000")
    a(f"s_lshl_b32 s{sT0}, s{sW}, 12")
    a(f"s_add_u32 s{sT1}, s{sT0}, {K1_WP}")
    a(f"s_mov_b32 m0, s{sT1}")
    a(f"s_and_b32 s{sT0}, s{sT0}, 0x7fff")
    for pp in range(4):
        a(f"buffer_load_dwordx4 v{VW+(pp>>1)}, s[{SWH}:{SWH+3}], s{sT0} offen offset:{pp*1024} lds")
    srd(a, SWS, 20, WS_USED)

    def xup():
        a(f"s_cmp_ge_u32 s{sW}, 13")
        a("s_cbranch_scc1 K1_B0")
        a(f"s_lshl_b32 s{sJ}, s{sW}, 1")
        a(f"s_add_u32 s{sJ}, s{sJ}, 1")
        a(f"s_cmp_eq_u32 s{sW}, 12")
        a(f"s_cselect_b32 s{sJ}, 0, s{sJ}")
        xdma(sJ, "B")
        a.lab("K1_B0")
    if "wfirst" not in OPTS:
        xup()
    a(f"s_and_b32 s{sS}, s{sW}, 3")
    a(f"s_lshr_b32 s{sQ}, s{sW}, 2")
    a(f"v_lshrrev_b32 v2, 4, v{vLane}")
    a(f"v_and_b32 v3, 15, v{vLane}")
    a("v_lshrrev_b32 v48, 2, v3")
    a("v_and_b32 v49, 1, v2")
    a("v_lshl_or_b32 v49, v49, 2, v48")
    a(f"s_lshl_b32 s{sT0}, s{sS}, 1")
    a(f"v_xor_b32 v49, s{sT0}, v49")
    a("v_lshlrev_b32 v49, 5, v49")
    a("v_lshl_add_u32 v48, v2, 3, v48")
    a("v_lshl_add_u32 v48, v48, 8, v49")
    a(f"v_and_b32 v49, 3, v{vLane}")
    a("v_lshl_add_u32 v48, v49, 3, v48")
    a(f"v_add_u32 v48, {K1_WP}, v48")
    a("v_xor_b32 v49, 32, v48")
    a("v_and_b32 v10, 7, v3")
    a("v_xor_b32 v10, v10, v2")
    a("v_lshlrev_b32 v10, 4, v10")
    a("v_lshl_add_u32 v10, v3, 7, v10")
    a(f"s_lshl_b32 s{sT0}, s{sW}, 11")
    a(f"s_add_u32 s{sT0}, s{sT0}, {K1_SCR}")
    a(f"v_add_u32 v10, s{sT0}, v10")
    a("v_xor_b32 v0, 64, v10")
    a(f"v_lshlrev_b32 v2, 4, v{vLane}")
    a(f"v_add_u32 v2, s{sT0}, v2")
    a(f"v_lshrrev_b32 v3, 3, v{vLane}")
    a(f"v_and_b32 v28, 7, v{vLane}")
    a("v_xor_b32 v28, v28, v3")
    a("v_lshlrev_b32 v28, 4, v28")
    a("v_lshl_add_u32 v3, v3, 7, v28")
    a(f"s_mov_b32 s{sScale}, {hex(NL2E)}")
    if "wfirst" in OPTS:
        a("s_waitcnt vmcnt(0)")
        xup()
    else:
        a(f"s_cmp_ge_u32 s{sW}, 13")
        a("s_cbranch_scc1 K1_B1")
        a("s_waitcnt vmcnt(4)")
        a("s_branch K1_B2")
        a.lab("K1_B1")
        a("s_waitcnt vmcnt(0)")
        a.lab("K1_B2")
    a.stamp(2)
    a("s_barrier")
    WF = 64

    def wf(mat, ct, ks):
        return WF + ((mat * 2 + ct) * 4 + ks) * 4
    for ks in range(4):
        for mat in range(2):
            for ct in range(2):
                b = wf(mat, ct, ks)
                off = mat * 32768 + ks * 8192
                a(f"ds_read_b64_tr_b16 v[{b}:{b+1}], v{48+ct} offset:{off}")
                a(f"ds_read_b64_tr_b16 v[{b+2}:{b+3}], v{48+ct} offset:{off+1024}")
    a("s_waitcnt lgkmcnt(0)")
    a.stamp(3)
    a("s_barrier")
    waudma(sW)

    def xlate(tag):
        a(f"s_cmp_ge_u32 s{sW}, 12")
        a(f"s_cbranch_scc1 K1_B3{tag}")
        a(f"s_lshl_b32 s{sJ}, s{sW}, 1")
        a(f"s_add_u32 s{sJ}, s{sJ}, 2")
        xdma(sJ, "C")
        if tag:
            a("s_waitcnt vmcnt(4)")
            a("s_branch K1_B4")
        a.lab(f"K1_B3{tag}")
        if tag:
            a("s_waitcnt vmcnt(0)")
            a.lab("K1_B4")
    if "early" in OPTS:
        a("s_barrier")
        xlate("E")
    XF = [32, 48]

    def xconst():
        a(f"v_lshrrev_b32 v4, 4, v{vLane}")
        a(f"v_and_b32 v5, 15, v{vLane}")
        a("v_xor_b32 v4, v4, v5")
        a("v_lshlrev_b32 v4, 4, v4")
        a("v_lshl_add_u32 v5, v5, 8, v4")

    def xread(buf, slot_sgpr):
        a(f"s_lshl_b32 s{sT0}, s{slot_sgpr}, 12")
        a(f"v_add_u32 v6, s{sT0}, v5")
        a("v_xor_b32 v7, 64, v6")
        a("v_xor_b32 v8, 0x80, v6")
        a("v_xor_b32 v9, 0xc0, v6")
        for ks in range(4):
            a(f"ds_read_b128 v[{XF[buf]+4*ks}:{XF[buf]+4*ks+3}], v{6+ks}")

    def mfmas(buf, mid=None):
        for ks in range(4):
            for mat in range(2):
                for ct in range(2):
                    d = 16 + (mat * 2 + ct) * 4
                    b = wf(mat, ct, ks)
                    cin = "0" if ks == 0 else f"v[{d}:{d+3}]"
                    a(f"v_mfma_f32_16x16x32_bf16 v[{d}:{d+3}], v[{b}:{b+3}], v[{XF[buf]+4*ks}:{XF[buf]+4*ks+3}], {cin}")
            if ks == 0 and mid:
                mid()
    xconst()
    a(f"s_lshl_b32 s{sSlot}, s{sQ}, 1")
    a(f"s_add_u32 s{sSlot}, s{sSlot}, 1")
    a(f"s_mul_i32 s{sOut}, s{sS}, {PS}")
    a(f"s_lshr_b32 s{sT0}, s{sX0}, 1")
    a(f"s_add_u32 s{sOut}, s{sOut}, s{sT0}")
    a(f"s_sub_u32 s{sT0}, s{sSlot}, s{sDl}")
    a(f"s_lshl_b32 s{sT0}, s{sT0}, 11")
    a(f"s_add_u32 s{sOut}, s{sOut}, s{sT0}")
    a.stamp(4)
    a("v_mov_b32 v4, 0")
    if "early" not in OPTS:
        a("s_waitcnt vmcnt(0)")
    a.stamp(5)
    a("s_barrier")
    a.stamp(7)
    a.stampc(31)
    if "early" not in OPTS:
        xlate("")
    xread(0, sSlot)
    for i in range(4):
        buf = i & 1
        if i == 3:
            a.c("13th P tile (tile 24, slot 0): slice 2, set 0 only")
            a(f"s_cmp_lg_u32 s{sQ}, 0")
            a("s_cbranch_scc1 K1_PDONE")
            a(f"s_cmp_eq_u32 s{sDl}, 0")
            a("s_cbranch_scc1 K1_PDONE")
        if i < 2:
            a(f"s_add_u32 s{sSlot}, s{sSlot}, 8")
        elif i == 2:
            a(f"s_mov_b32 s{sSlot}, 0")
        a("s_waitcnt lgkmcnt(0)")
        mfmas(buf, (lambda: xread(buf ^ 1, sSlot)) if i < 3 else None)
        a("s_nop 7")
        for r in range(16, 32, 2):
            a(f"v_max3_f32 v4, abs(v{r}), abs(v{r+1}), v4")
        for ct in range(2):
            for j in range(4):
                a(f"v_fma_mixlo_f16 v{24+4*ct+j}, v{16+4*ct+j}, s{sScale}, 0")
        a("ds_write_b128 v10, v[24:27]")
        a("ds_write_b128 v0, v[28:31]")
        a("ds_read_b128 v[12:15], v2")
        a("ds_read_b128 v[16:19], v2 offset:1024")
        a("s_waitcnt lgkmcnt(1)")
        a(f"buffer_store_dwordx4 v[12:15], v3, s[{SWS}:{SWS+3}], s{sOut} offen{K1_ST}")
        a("s_waitcnt lgkmcnt(0)")
        a(f"buffer_store_dwordx4 v[16:19], v3, s[{SWS}:{SWS+3}], s{sOut} offen offset:1024{K1_ST}")
        a.stamp(8 + i)
        if i < 3:
            a(f"s_add_u32 s{sOut}, s{sOut}, 16384")
            a("s_nop 1")
    a.lab("K1_PDONE")
    a("v_cmp_le_f32 vcc, 4.0, v4")
    a("s_cbranch_vccz K1_PSAFE")
    a("v_mov_b32 v13, 0x10000")
    a("s_mov_b64 exec, 1")
    a(f"buffer_atomic_add v13, off, s[{SDB}:{SDB+3}], 0 offset:64 sc1")
    a("s_mov_b64 exec, -1")
    a.lab("K1_PSAFE")
    a.lab("K1_AU")
    xconst()
    a(f"v_lshrrev_b32 v2, 4, v{vLane}")
    a(f"v_and_b32 v3, 15, v{vLane}")
    a("v_lshrrev_b32 v48, 2, v3")
    a("v_lshl_add_u32 v48, v2, 3, v48")
    a("v_lshlrev_b32 v48, 6, v48")
    a(f"v_and_b32 v49, 3, v{vLane}")
    a("v_lshl_add_u32 v48, v49, 3, v48")
    a("v_and_b32 v49, 1, v2")
    a("v_lshl_add_u32 v48, v49, 5, v48")
    a(f"v_add_u32 v48, {K1_WAU}, v48")
    a("v_xor_b32 v49, 32, v48")
    a("s_waitcnt lgkmcnt(0)")
    for ks in range(4):
        for mat in range(2):
            for ct in range(2):
                b = wf(mat, ct, ks)
                off = mat * 8192 + ks * 2048
                a(f"ds_read_b64_tr_b16 v[{b}:{b+1}], v{48+ct} offset:{off}")
                a(f"ds_read_b64_tr_b16 v[{b+2}:{b+3}], v{48+ct} offset:{off+256}")
    a("v_and_b32 v10, 7, v3")
    a("v_xor_b32 v10, v10, v2")
    a("v_lshlrev_b32 v10, 4, v10")
    a("v_lshl_add_u32 v10, v3, 7, v10")
    a(f"v_add_u32 v10, {L_AUR}, v10")
    a(f"s_mov_b32 s{sSlot}, s{sW}")
    a.c("first chunk of this wave: key waves 12w (12 chunks), loader waves 32(w-11) (32 chunks)")
    a(f"s_mul_i32 s{sT2}, s{sW}, 12")
    a(f"s_lshl_b32 s{sT3}, s{sW}, 5")
    a(f"s_sub_u32 s{sT3}, s{sT3}, {32*11}")
    a(f"s_cmp_lt_u32 s{sW}, 11")
    a(f"s_cselect_b32 s{sT3}, s{sT2}, s{sT3}")
    a(f"s_cselect_b32 s{sT2}, 12, 32")
    a(f"s_bfm_b64 s[54:55], s{sT2}, 0")
    a(f"s_lshl_b32 s90, s{sT3}, 8")
    a(f"s_lshl_b32 s{sT1}, s{sBk}, 2")
    a(f"s_add_u32 s90, s90, s{sT1}")
    a(f"s_add_u32 s48, s20, {DESC_OFF}")
    a("s_addc_u32 s49, s21, 0")
    a(f"s_mov_b32 s50, {NCH*256}")
    a("s_mov_b32 s51, 0x20000")
    a.stamp(14)
    a("s_waitcnt vmcnt(0) lgkmcnt(0)")
    a.stamp(13)
    a("s_barrier")
    a.stamp(15)
    xread(0, sSlot)
    a(f"s_cmp_lg_u32 s{sW}, 15")
    a("s_cbranch_scc1 K1_NZ")
    a(f"v_lshlrev_b32 v14, 2, v{vLane}")
    a(f"v_add_u32 v14, {L_GW}, v14")
    a("v_mov_b32 v3, 0")
    a("ds_write_b32 v14, v3")
    a(f"s_cmp_lt_u32 s{sSl}, 2")
    a("s_cbranch_scc1 K1_NZ2")
    a.c("count this workgroup's P tiles in")
    a("v_mov_b32 v15, 1")
    a("v_mov_b32 v14, 1")
    a("s_mov_b64 exec, 1")
    a(f"buffer_atomic_add v14, off, s[{SDB}:{SDB+3}], 0 offset:64 sc0 sc1")
    a("s_mov_b64 exec, -1")
    a("s_branch K1_NZ2")
    a.lab("K1_NZ")
    a("s_mov_b64 exec, 1")
    a(f"buffer_load_dword v2, off, s[{SDB}:{SDB+3}], 0 offset:192 sc1")
    a("s_mov_b64 exec, -1")
    a(f"v_lshlrev_b32 v14, 8, v{vLane}")
    a.lab("K1_NZ2")
    a("v_mov_b32 v4, 0")
    a(f"s_mov_b32 s{sUns+1}, 0")
    a.stamp(16)
    for i in range(2):
        a(f"s_sub_u32 s{sT1}, s{sSlot}, s{sDl}")
        a(f"s_cselect_b32 s{sT1}, 24, s{sT1}")
        a(f"s_lshl_b32 s{sT1}, s{sT1}, 11")
        a(f"v_add_u32 v12, s{sT1}, v10")
        a("v_xor_b32 v13, 64, v12")
        if i == 0:
            a(f"s_add_u32 s{sSlot}, s{sSlot}, 16")
            a(f"s_min_u32 s{sJ}, s{sSlot}, 24")
        a("s_waitcnt lgkmcnt(0)")
        mfmas(i, (lambda: xread(1, sJ)) if i == 0 else None)
        a("s_nop 7")
        for r in range(16, 24, 2):
            a(f"v_max3_f32 v4, abs(v{r}), abs(v{r+1}), v4")
        for ct in range(2):
            for j in range(4):
                a(f"v_fma_mixlo_f16 v{24+4*ct+j}, v{16+4*ct+j}, 1.0, 0")
        a("ds_write_b128 v12, v[24:27]")
        a("ds_write_b128 v13, v[28:31]")
        if i == 0:
            a(f"s_cmp_eq_u32 s{sW}, 15")
            a("s_cbranch_scc1 K1_END")
            a.c("partition published? then fetch this wave's segment descriptors")
            a("s_mov_b64 exec, 1")
            a("s_waitcnt vmcnt(0)")
            a("v_cmp_ne_u32 vcc, 0, v2")
            a("s_cbranch_vccnz K1_ROK")
            poll(a, "R", 2, 192, None, SLP)
            a.lab("K1_ROK")
            a("s_mov_b64 exec, s[54:55]")
            a(f"buffer_load_dword v3, v14, s[48:51], s90 offen{LD}")
            a("s_mov_b64 exec, -1")
            a(f"v_readfirstlane_b32 s{sUns+1}, v2")
            a.stamp(17)
            a(f"s_cmp_ge_u32 s{sSlot}, 25")
            a(f"s_lshr_b32 s{sUns+1}, s{sUns+1}, 16")
            a(f"s_cmp_ge_u32 s{sSlot}, 25")
            a("s_cbranch_scc1 K1_END")
    a.lab("K1_END")
    a("v_cmp_le_f32 vcc, 4.0, v4")
    a("s_cmp_lg_u64 vcc, 0")
    a(f"s_cselect_b32 s{sUns+1}, 1, s{sUns+1}")
    a.stamp(12)
    a.stampc(32)
    a.stamp_flush(0, sW)
    a.c("wave 15 waits until every partition workgroup has counted into R")
    a(f"s_cmp_lg_u32 s{sW}, 15")
    a("s_cbranch_scc1 K1_RDONE")
    a(f"s_cmp_lt_u32 s{sSl}, 2")
    a("s_cbranch_scc1 K1_NG")
    a("s_mov_b64 exec, 1")
    a("s_waitcnt vmcnt(0)")
    a("v_add_u32 v14, v14, v15")
    a("v_and_b32 v15, 0xffff, v14")
    a("v_cmp_eq_u32 vcc, 0x80, v15")
    a("s_cbranch_vccz K1_NG")
    a(f"buffer_store_dword v14, off, s[{SDB}:{SDB+3}], 0 offset:128 sc1")
    a.lab("K1_NG")
    a("s_mov_b64 exec, -1")
    a.lab("K1_RDONE")
    a(f"s_lshl_b32 s{sT0}, s{sW}, 6")
    a(f"v_add_u32 v0, s{sT0}, v{vLane}")
    a("s_branch K2_ENTRY")
    a.lab("K1_END2")
    a("s_endpgm")


CAP = 8192
L_CNT = 0
L_ORD = 2048
L_DH = 4096
L_BST = 4352
L_SB = 4608
L_FLAG = 4864
L_GD = L_FLAG + 4
L_ELL = 5120
L_DUM = L_ELL + CAP * 4
L_EA = L_DUM + 512
NKW = 11
EA_TAIL = NKW * 12 * 64
EA_ZERO = EA_TAIL + NKW * 64
assert L_EA + EA_ZERO * 8 + 8 <= L_AUR
DUMMY = 0xFFFF0000 | EA_ZERO
DUMMY_NODE = 399 * 128
NBATCH = (BN + 15) // 16
NR = 13


def gen_k2(a):
    assert FUSED
    sW, sSl, sBk = 22, 23, 24
    sT0, sT1, sT2, sT3 = 25, 26, 27, 28
    sK = 29
    sSp, sOvf = 30, 31
    SWS, SP, SO, SG = 32, 36, 40, 44
    SDS = 48
    sSave = 54
    sM = 56
    sKK = 56
    sRet = 82
    SA = 84
    SF0, SF1, SF2 = 64, 44, 60
    sTM, sEarly, sOutOff, sK2, sK1 = 88, 90, 91, 92, 93
    sA, sCntS, sNxtA, sNxtCnt, sRem, sN2 = 48, 49, 50, 51, 52, 53
    vLane, vC8, vG8, vRec4, vCo, vS, vSrc, vEa, vT = 1, 2, 3, 4, 5, 6, 7, 8, 9
    NA, N2, EE = 10, 12, 14
    ACC, AC, D = 16, 24, 40
    PP = [56, 72, 88]
    R, WB, vStg = 104, 112, 122
    AD = R
    KEYR, RK, HA = 24, 37, 50
    ET, WR, AU2 = 70, 88, 96
    vDesc = 104
    vL4, vL16, vIdx, v64c = 65, 66, 67, 68
    T = 72
    a.vst = 120

    def auread(n):
        a(f"v_xor_b32 v{vT}, v{n}, v{vC8}")
        a(f"v_xor_b32 v{AD+2}, v{n+1}, v{vC8}")
        a(f"v_add_u32 v{vT}, {L_AUR}, v{vT}")
        a(f"v_add_u32 v{AD+2}, {L_AUR}, v{AD+2}")
        a(f"ds_read_b128 v[{ACC}:{ACC+3}], v{vT}")
        a(f"ds_read_b128 v[{ACC+4}:{ACC+7}], v{AD+2}")

    def sb_arrive(k):
        a("s_waitcnt lgkmcnt(0)")
        a("s_mov_b64 exec, 1")
        a(f"ds_add_u32 v{T+14}, v{T+15} offset:{4*k}")
        a("s_mov_b64 exec, -1")

    def sb_wait(k, n, tag):
        a.lab(f"K2_SBW{tag}")
        a(f"ds_read_b32 v{T+13}, v{T+14} offset:{4*k}")
        a("s_waitcnt lgkmcnt(0)")
        a(f"v_cmp_gt_u32 vcc, {n}, v{T+13}")
        a(f"s_cbranch_vccnz K2_SBW{tag}")

    def batchinfo():
        a(f"s_lshl_b32 s{sT0}, s{sK1}, 6")
        a(f"v_add_u32 v{T}, s{sT0}, v{vG8}")
        a(f"ds_read_b64 v[{NA}:{NA+1}], v{T} offset:{L_ORD}")
        a(f"s_min_u32 s{sT0}, s{sK2}, 25")
        a(f"s_lshl_b32 s{sT0}, s{sT0}, 6")
        a(f"v_add_u32 v{T}, s{sT0}, v{vG8}")
        a(f"ds_read_b64 v[{N2}:{N2+1}], v{T} offset:{L_ORD}")
        a(f"ds_read_b32 v{T+4}, v{vL4} offset:{L_BST}")
        a(f"ds_read_b32 v{T+8}, v123 offset:{L_FLAG}")
        a("s_waitcnt lgkmcnt(0)")
        a(f"v_min_u32 v{T+4}, 0x1ff, v{T+4}")
        a(f"v_lshlrev_b32 v{T+5}, 7, v{T+4}")
        a(f"v_mov_b32 v{T+6}, v{T+5}")
        scan64(a, T + 6)
        a(f"v_readfirstlane_b32 s{sOvf}, v{T+8}")
        a(f"v_sub_u32 v{T+6}, v{T+6}, v{T+5}")
        a(f"v_add_u32 v{T+6}, {L_ELL}, v{T+6}")
        a("s_nop 0")
        a(f"v_readlane_b32 s{sA}, v{T+6}, s{sK1}")
        a(f"v_readlane_b32 s{sRem}, v{T+4}, s{sK1}")
        a(f"v_readlane_b32 s{sNxtA}, v{T+6}, s{sK2}")
        a(f"v_readlane_b32 s{sN2}, v{T+4}, s{sK2}")
        a("s_nop 3")
        a(f"s_sub_u32 s{sRem}, s{sRem}, 1")
        a(f"s_mov_b32 s{sCntS}, s{sRem}")
        a(f"s_sub_u32 s{sNxtCnt}, s{sN2}, 1")
        a(f"s_cmp_eq_u32 s{sN2}, 0")
        a(f"s_cselect_b32 s{sNxtA}, {L_DUM}, s{sNxtA}")
        a(f"s_cselect_b32 s{sNxtCnt}, 100, s{sNxtCnt}")

    def wperm():
        a(f"s_mov_b32 s{sT0}, 0x05040100")
        a(f"s_mov_b32 s{sT1}, 0x07060302")
        for m in range(4):
            sel = sT0 if m % 2 == 0 else sT1
            h = m >> 1
            a(f"v_perm_b32 v{WB+2*m}, v{WR+2+h}, v{WR+h}, s{sel}")
            a(f"v_perm_b32 v{WB+2*m+1}, v{WR+6+h}, v{WR+4+h}, s{sel}")

    def wcloads():
        a(f"s_lshl_b32 s{sT1}, s{sSl}, 6")
        a(f"s_add_u32 s{sT1}, s{sT1}, 65536")
        for k in range(4):
            a(f"buffer_load_dwordx2 v[{WR+2*k}:{WR+1+2*k}], v{vCo}, s[{SG}:{SG+3}], s{sT1} offen offset:{k*256}")

    def unsafe_or():
        a(f"v_mov_b32 v{T+12}, s95")
        a("s_mov_b64 exec, 1")
        a(f"ds_or_b32 v{T+14}, v{T+12} offset:32")
        a("s_mov_b64 exec, -1")

    a.lab("K2_ENTRY")
    a.stamp(0)
    a.stampc(29)
    a(f"v_mov_b32 v{vDesc}, v3") if False else None
    srd(a, SWS, 20, WS_USED)
    a(f"v_lshlrev_b32 v{vL4}, 2, v{vLane}")
    a(f"v_lshlrev_b32 v{vL16}, 4, v{vLane}")
    a(f"v_mov_b32 v{T+14}, {L_GW}")
    a(f"v_mov_b32 v{T+15}, 1")
    a("v_mov_b32 v123, 0")

    def consts():
        srd(a, SG, 16, 260 * 256)
        a(f"s_mul_i32 s{sT0}, s{sSl}, {PS}")
        a(f"s_add_u32 s{SP}, s20, s{sT0}")
        a(f"s_addc_u32 s{SP+1}, s21, 0")
        a(f"s_mov_b32 s{SP+2}, {N*128}")
        a(f"s_mov_b32 s{SP+3}, 0x20000")
        srd(a, SO, 18, N * 256)
        a(f"s_mov_b32 s{sK}, {hex(NL2E)}")
        a(f"v_and_b32 v{vCo}, 7, v{vLane}")
        a(f"v_lshlrev_b32 v{vCo}, 3, v{vCo}")
        a(f"v_lshlrev_b32 v{vC8}, 1, v{vCo}")
        a(f"v_and_b32 v{vG8}, 56, v{vLane}")
        a(f"v_and_b32 v64, 2, v{vLane}")
        a(f"v_lshl_add_u32 v{vRec4}, v64, 1, v{vG8}")
        a(f"v_and_b32 v64, 1, v{vLane}")
        a(f"v_lshl_add_u32 v{vRec4}, v64, 6, v{vRec4}")
        LISTS = [[0, 10, 11, 12, 20, 23], [1, 2, 7, 16, 17, 21], [6, 8, 9, 15, 18, 22, 24], [3, 4, 5, 13, 14, 19]]
        if "oldasg" in OPTS:
            LISTS = [[q, 7-q, 8+q, 15-q, 16+q, 23-q] + ([24] if q == 3 else []) for q in range(4)]
        assert sorted(sum(LISTS, [])) == list(range(NBATCH))
        a(f"s_and_b32 s{sT0}, s{sW}, 3")
        for q in range(4):
            L = LISTS[q] + [31] * (8 - len(LISTS[q]))
            if "ord2" in OPTS:
                X = LISTS[q]
                L = [X[0], X[1], X[2], X[-1], X[3], X[4], X[5] if len(X) > 6 else 31, 31]
            if "ord1" not in OPTS and "ord2" not in OPTS:
                X = LISTS[q]
                L = [X[0], X[2], X[4], X[-1], X[1], X[3], X[5] if len(X) > 6 else 31, 31]
            c1 = sum(L[r] << (8 * r) for r in range(4))
            c2 = sum(L[4 + r] << (8 * r) for r in range(4))
            if q == 0:
                a(f"s_mov_b32 s{sK1}, {hex(c1)}")
                a(f"s_mov_b32 s{sK2}, {hex(c2)}")
            else:
                a(f"s_cmp_eq_u32 s{sT0}, {q}")
                a(f"s_cselect_b32 s{sK1}, {hex(c1)}, s{sK1}")
                a(f"s_cselect_b32 s{sK2}, {hex(c2)}, s{sK2}")
        a(f"s_and_b32 s{sT1}, s{sW}, 12")
        a(f"s_lshl_b32 s{sT1}, s{sT1}, 1")
        a(f"s_lshr_b32 s{sK1}, s{sK1}, s{sT1}")
        a(f"s_lshr_b32 s{sK2}, s{sK2}, s{sT1}")
        a(f"s_and_b32 s{sK1}, s{sK1}, 0xff")
        a(f"s_and_b32 s{sK2}, s{sK2}, 0xff")
        a(f"s_mul_i32 s{sOutOff}, s{sBk}, {BN*256}")
        a(f"s_lshl_b32 s{sT0}, s{sSl}, 6")
        a(f"s_add_u32 s{sOutOff}, s{sOutOff}, s{sT0}")
    a(f"s_cmp_ge_u32 s{sW}, {NKW}")
    a("s_cbranch_scc1 K2_LW")
    a(f"v_lshrrev_b32 v{T}, 4, v{vLane}")
    a(f"v_lshlrev_b32 v{T+1}, 2, v{T}")
    a(f"s_mov_b32 s{sT0}, {CH*4}")
    a(f"v_and_b32 v{T+2}, 15, v{vLane}")
    a(f"v_lshlrev_b32 v{T+3}, 2, v{T+2}")
    a(f"v_lshlrev_b32 v{T+2}, 4, v{T+2}")
    a(f"v_mad_u32_u24 v{T+2}, v{T}, s{sT0}, v{T+2}")
    a(f"s_mov_b32 s{sSp}, 0")
    a(f"s_mov_b32 s{sOvf}, 0")
    a(f"s_mov_b64 s[{sM+24}:{sM+25}], 0")
    a(f"s_mul_i32 s{sT2}, s{sT3}, {CH*4}")
    a(f"s_add_u32 s{sT2}, s{sT2}, {KEY_OFF}")
    a(f"s_mov_b32 s{sT0}, 0x40ffff")
    a("s_waitcnt vmcnt(0)")
    a.stamp(2)
    a(f"v_mov_b32 v{vDesc}, v3")
    for h in range(3):
        a(f"ds_bpermute_b32 v{T+4+h}, v{T+1}, v3 offset:{16*h}")
    a(f"v_cmp_lt_u32 vcc, s{sT0}, v3")
    a(f"s_and_b64 s[{sTM}:{sTM+1}], vcc, s[{sSave}:{sSave+1}]")
    a("s_waitcnt lgkmcnt(0)")
    for h in range(3):
        a(f"v_lshrrev_b32 v{T+7+h}, 16, v{T+4+h}")
        a(f"v_lshlrev_b32_sdwa v{T+4+h}, 2, v{T+4+h} dst_sel:DWORD dst_unused:UNUSED_PAD src0_sel:DWORD src1_sel:WORD_0")
        a(f"v_cmp_gt_u32 s[{sM+8*h}:{sM+8*h+1}], v{T+7+h}, v{T+3}")
        a(f"v_add_u32 v{T+4+h}, v{T+4+h}, v{T+2}")
        a(f"s_or_b64 exec, s[{sM+8*h}:{sM+8*h+1}], 1")
        a(f"buffer_load_dwordx4 v[{KEYR+4*h}:{KEYR+4*h+3}], v{T+4+h}, s[{SWS}:{SWS+3}], s{sT2} offen{LD}")
        a("s_mov_b64 exec, -1")
        if h < 2:
            a(f"s_add_u32 s{sT2}, s{sT2}, {4*CH*4}")
    a(f"s_cmp_lg_u64 s[{sTM}:{sTM+1}], 0")
    a("s_cbranch_scc1 K2_TAIL")
    a.lab("K2_TAILR")
    a(f"v_lshlrev_b32 v{T}, 4, v0")
    for i in range(4):
        a(f"v_mov_b32 v{20+i}, 0")
    a.stamp(3)
    a("s_barrier")
    a.stamp(1)
    a(f"s_cmp_ge_u32 s{sW}, 6")
    a("s_cbranch_scc1 K2_INIT_DONE")
    a(f"s_cmp_eq_u32 s{sW}, 5")
    a("s_cbranch_scc1 K2_INIT_5")
    a(f"s_lshr_b32 s{sT0}, s{sW}, 1")
    a(f"s_cmp_eq_u32 s{sT0}, 1")
    a("s_cbranch_scc0 K2_INIT_Z")
    for i in range(4):
        a(f"v_mov_b32 v{20+i}, {DUMMY_NODE}")
    a.lab("K2_INIT_Z")
    a(f"ds_write_b128 v{T}, v[20:23]")
    a("s_branch K2_INIT_A")
    a.lab("K2_INIT_5")
    a(f"v_mov_b32 v64, {L_EA + EA_ZERO*8}")
    a("ds_write_b64 v64, v[20:21]")
    a.lab("K2_INIT_A")
    sb_arrive(5)
    a.lab("K2_INIT_DONE")
    unsafe_or()
    for c in range(1, 4):
        a(f"v_add_u32 v{T+3}, 1, v{T+3}")
        for h in range(3):
            a(f"v_cmp_gt_u32 s[{sM+8*h+2*c}:{sM+8*h+2*c+1}], v{T+7+h}, v{T+3}")
    a(f"s_lshl_b32 s{sT0}, s{sT3}, 6")
    a(f"v_add_u32 v{vIdx}, s{sT0}, v{vL4}")
    a(f"v_mov_b32 v{v64c}, 64")
    consts()
    wcloads()
    sb_wait(5, 6, "B1")
    a.stamp(4)
    a(f"s_cmp_eq_u32 s{sOvf}, 0")
    a("s_cbranch_scc1 K2_NOOVF")
    a(f"ds_write_b32 v123, v{T+15} offset:{L_FLAG}")
    a.lab("K2_NOOVF")
    a("s_waitcnt vmcnt(4)")
    a.stamp(5)
    for i in range(NR):
        a(f"v_and_b32 v{HA+i}, 0xffff, v{KEYR+i}")
        a(f"s_mov_b64 exec, s[{sM+2*i}:{sM+2*i+1}]")
        a(f"ds_add_rtn_u32 v{RK+i}, v{HA+i}, v{v64c}")
        a("s_mov_b64 exec, -1")
    for i in range(NR):
        if i == NR - 1:
            a(f"s_lshl_b32 s{sT0}, s{sW}, 6")
            a(f"s_add_u32 s{sT0}, s{sT0}, {EA_TAIL}")
            a(f"v_add_u32 v{vIdx}, s{sT0}, v{vLane}")
        a(f"v_mov_b32_sdwa v{KEYR+i}, v{vIdx} dst_sel:WORD_0 dst_unused:UNUSED_PRESERVE src0_sel:DWORD")
        if i < NR - 2:
            a(f"v_add_u32 v{vIdx}, {253 if i % 4 == 3 else 1}, v{vIdx}")
    sb_arrive(0)
    a(f"s_cmp_ge_u32 s{sW}, 7")
    a("s_cbranch_scc1 K2_W5")
    a(f"v_cmp_gt_u32 vcc, {BN}, v0")
    a(f"v_lshlrev_b32 v{T}, 2, v0")
    a(f"v_and_b32 v{T+8}, 7, v0")
    a(f"v_lshlrev_b32 v{T+8}, 4, v{T+8}")
    a(f"v_lshl_add_u32 v{T+8}, v0, 7, v{T+8}")
    a(f"s_mov_b64 s[{sSave}:{sSave+1}], vcc")
    sb_wait(0, NKW, "2")
    a.stamp(6)
    a.c("node phase A")
    a(f"s_mov_b64 exec, s[{sSave}:{sSave+1}]")
    a(f"ds_read_b32 v{T+1}, v{T}")
    a("s_waitcnt lgkmcnt(0)")
    a(f"v_lshrrev_b32 v{T+1}, 6, v{T+1}")
    a(f"v_min_u32 v{T+2}, 63, v{T+1}")
    a(f"v_sub_u32 v{T+2}, 63, v{T+2}")
    a(f"v_lshlrev_b32 v{T+2}, 2, v{T+2}")
    a(f"ds_add_rtn_u32 v{T+3}, v{T+2}, v{T+15} offset:{L_DH}")
    a(f"v_add_u32 v{T+7}, 1, v{T+1}")
    a(f"v_lshrrev_b32 v{T+7}, 1, v{T+7}")
    a(f"v_max_u32 v{T+7}, 1, v{T+7}")
    sb_arrive(1)
    sb_wait(1, 7, "3")
    a.stamp(7)
    a.c("node phase B")
    a(f"ds_read_b32 v{T+5}, v{vL4} offset:{L_DH}")
    a("s_waitcnt lgkmcnt(0)")
    a(f"v_mov_b32 v{T+6}, v{T+5}")
    scan64(a, T + 6)
    a(f"v_sub_u32 v{T+6}, v{T+6}, v{T+5}")
    a("s_nop 0")
    a(f"ds_bpermute_b32 v{T+9}, v{T+2}, v{T+6}")
    a("s_waitcnt lgkmcnt(0)")
    a(f"s_mov_b64 exec, s[{sSave}:{sSave+1}]")
    a(f"v_add_u32 v{T+3}, v{T+3}, v{T+9}")
    a(f"v_lshlrev_b32 v{T+9}, 2, v{T+3}")
    a(f"ds_write_b32 v{T+9}, v{T+8} offset:{L_ORD}")
    a(f"v_lshrrev_b32 v{T+10}, 4, v{T+3}")
    a(f"v_lshlrev_b32 v{T+10}, 2, v{T+10}")
    a(f"ds_max_u32 v{T+10}, v{T+7} offset:{L_BST}")
    a(f"v_and_b32 v{T+9}, 60, v{T+9}")
    sb_arrive(2)
    sb_wait(2, 7, "4")
    a.stamp(8)
    a.c("node phase C")
    a(f"ds_read_b32 v{T+5}, v{vL4} offset:{L_BST}")
    a("s_waitcnt lgkmcnt(0)")
    a(f"v_min_u32 v{T+5}, 0x1ff, v{T+5}")
    a(f"v_lshlrev_b32 v{T+5}, 7, v{T+5}")
    a(f"v_mov_b32 v{T+6}, v{T+5}")
    scan64(a, T + 6)
    a("s_nop 0")
    a(f"v_readlane_b32 s{sT0}, v{T+6}, 63")
    a(f"v_sub_u32 v{T+6}, v{T+6}, v{T+5}")
    a(f"v_add_u32 v{T+6}, {L_ELL}, v{T+6}")
    a("s_nop 1")
    a(f"ds_bpermute_b32 v{T+10}, v{T+10}, v{T+6}")
    a(f"s_cmp_le_u32 s{sT0}, {CAP*4}")
    a("s_cbranch_scc1 K2_NC_OK")
    a(f"ds_write_b32 v123, v{T+15} offset:{L_FLAG}")
    a.lab("K2_NC_OK")
    a("s_waitcnt lgkmcnt(0)")
    a(f"s_mov_b64 exec, s[{sSave}:{sSave+1}]")
    a(f"v_add_u32 v{T+10}, v{T+10}, v{T+9}")
    a(f"ds_write_b32 v{T}, v{T+10}")
    sb_arrive(3)
    a.lab("K2_W5")
    sb_wait(3, 8, "5")
    a.stamp(9)
    a(f"ds_read_b32 v{T+8}, v123 offset:{L_FLAG}")
    for i in range(NR):
        a(f"s_mov_b64 exec, s[{sM+2*i}:{sM+2*i+1}]")
        a(f"ds_read_b32 v{HA+i}, v{HA+i}")
    a("s_mov_b64 exec, -1")
    a("s_waitcnt lgkmcnt(0)")
    a(f"v_cmp_ne_u32 vcc, 0, v{T+8}")
    a("s_cbranch_vccnz K2_NOSC")
    for i in range(NR):
        a(f"v_add_u32 v{HA+i}, v{HA+i}, v{RK+i}")
        a(f"s_mov_b64 exec, s[{sM+2*i}:{sM+2*i+1}]")
        a(f"ds_write_b32 v{HA+i}, v{KEYR+i}")
        a("s_mov_b64 exec, -1")
    a.lab("K2_NOSC")
    batchinfo()
    a(f"s_lshl_b32 s{sT2}, s{sW}, 9")
    a(f"s_add_u32 s{sT2}, s{sT2}, {L_EA + EA_TAIL*8}")
    a(f"v_lshl_add_u32 v63, v{vLane}, 3, s{sT2}")
    a(f"ds_write_b64 v63, v[{ET}:{ET+1}]")
    a.stamp(10)
    a("s_branch K2_FINB")
    a.lab("K2_LW")
    a(f"v_lshrrev_b32 v{T+4}, 5, v{vLane}")
    a(f"v_lshlrev_b32 v{T+5}, 2, v{T+4}")
    a(f"v_and_b32 v{T+6}, 31, v{vLane}")
    a(f"v_lshlrev_b32 v{T+7}, 1, v{T+6}")
    a(f"v_lshlrev_b32 v{T+6}, 4, v{T+6}")
    a(f"s_mov_b32 s{sT0}, {CH*8}")
    a(f"v_mad_u32_u24 v{T+6}, v{T+4}, s{sT0}, v{T+6}")
    a(f"s_lshl_b32 s{sT0}, s{sT3}, 9")
    a(f"v_add_u32 v{T+8}, s{sT0}, v{vL16}")
    a("s_waitcnt vmcnt(0)")
    a(f"v_mov_b32 v{vDesc}, v3")
    consts()
    wcloads()
    a(f"s_mul_i32 s{sT2}, s{sT3}, {CH*8}")
    a(f"s_add_u32 s{sT2}, s{sT2}, {EAT_OFF}")
    a.stamp(2)
    a(f"s_cmp_eq_u32 s{sW}, 15")
    a("s_cbranch_scc1 K2_SW")
    BP = 105
    for q in range(8):
        a(f"ds_bpermute_b32 v{BP+q}, v{T+5}, v{vDesc} offset:{8*q}")
    a("s_waitcnt lgkmcnt(0)")
    a("s_barrier")
    a.stamp(1)
    LWD = [16, 20, 24, 28, 32, 36, 40, 44, 48, 52, 56, 60, 96, 100, 6, 10]
    for q in range(16):
        b = BP + (q % 8)
        a(f"v_lshrrev_b32 v{T+9}, 16, v{b}")
        a(f"v_lshlrev_b32_sdwa v{T+10}, 3, v{b} dst_sel:DWORD dst_unused:UNUSED_PAD src0_sel:DWORD src1_sel:WORD_0")
        a(f"v_cmp_gt_u32 vcc, v{T+9}, v{T+7}")
        a(f"v_add_u32 v{T+10}, v{T+10}, v{T+6}")
        if q < 8:
            a(f"ds_bpermute_b32 v{b}, v{T+5}, v{vDesc} offset:{8*(q+8)}")
        a("s_or_b64 exec, vcc, 1")
        a(f"buffer_load_dwordx4 v[{LWD[q]}:{LWD[q]+3}], v{T+10}, s[{SWS}:{SWS+3}], s{sT2} offen{LD}")
        a("s_mov_b64 exec, -1")
        if q < 15:
            a(f"s_add_u32 s{sT2}, s{sT2}, {2*CH*8}")
        if q == 7:
            a("s_waitcnt lgkmcnt(0)")
    a.stamp(5)
    unsafe_or()
    for q in range(16):
        a(f"s_waitcnt vmcnt({15-q})")
        a(f"ds_write_b128 v{T+8}, v[{LWD[q]}:{LWD[q]+3}] offset:{L_EA + q*1024}")
    a.stamp(10)
    a("s_branch K2_FINB")
    a.lab("K2_SW")
    a("s_waitcnt lgkmcnt(0)")
    for i in range(4):
        a(f"v_mov_b32 v{16+i}, {hex(DUMMY)}")
    a("s_barrier")
    a.stamp(1)
    for i in range(33):
        if i == 32:
            a("s_bfm_b64 exec, 32, 0")
        a(f"ds_write_b128 v{vL16}, v[16:19] offset:{L_ELL + i*1024}")
    sb_arrive(3)
    poll(a, "G", 53, 128, None, SLP)
    a(f"v_readfirstlane_b32 s{sT0}, v53")
    a("s_nop 3")
    a(f"s_lshr_b32 s{sT0}, s{sT0}, 16")
    a(f"s_or_b32 s95, s95, s{sT0}")
    unsafe_or()
    a.stamp(10)
    a.lab("K2_FINB")
    a("s_mov_b64 exec, -1")
    a.c("Wc magnitude check (|w| < 2)")
    a("s_waitcnt vmcnt(0)")
    a(f"v_or3_b32 v{T}, v{WR}, v{WR+1}, v{WR+2}")
    a(f"v_or3_b32 v{T+1}, v{WR+3}, v{WR+4}, v{WR+5}")
    a(f"v_or3_b32 v{T}, v{WR+6}, v{WR+7}, v{T}")
    a(f"v_or_b32 v{T}, v{T}, v{T+1}")
    a(f"v_and_b32 v{T}, 0x40004000, v{T}")
    a(f"v_cmp_ne_u32 vcc, 0, v{T}")
    a("s_cbranch_vccz K2_WOK")
    a(f"ds_or_b32 v{T+14}, v{T+15} offset:32")
    a.lab("K2_WOK")
    wperm()
    a("s_waitcnt lgkmcnt(0)")
    a.stamp(12)
    a("s_barrier")
    a(f"s_cmp_lt_u32 s{sW}, {NKW}")
    a("s_cbranch_scc1 K2_HAVEBI")
    batchinfo()
    a.lab("K2_HAVEBI")
    a(f"s_cmp_lg_u32 s{sOvf}, 0")
    a("s_cbranch_scc1 K2_FALLBACK")
    a(f"s_mov_b32 s{sKK}, {hex(NL2E)}")
    a(f"s_mov_b32 s{sKK+1}, {hex(NL2E)}")
    a(f"ds_read_b32 v{D+2}, v{T+14} offset:32")
    auread(NA)
    a.stamp(13)
    a.stampc(30)

    sw_sites = []

    def advance(tag):
        a(f"s_add_u32 s{sA}, s{sA}, 128")
        a(f"s_sub_u32 s{sCntS}, s{sCntS}, 1")
        a(f"s_cbranch_scc1 K2_SW{tag}")
        a.lab(f"K2_SWR{tag}")
        sw_sites.append(tag)

    def gathers(P):
        for j in range(4):
            a(f"v_add_u32_dpp v{AD+j}, v{vSrc}, v{vC8} quad_perm:[{j},{j},{j},{j}] row_mask:0xf bank_mask:0xf")
        for j in range(4):
            a(f"buffer_load_dwordx4 v[{P+4*j}:{P+4*j+3}], v{AD+j}, s[{SP}:{SP+3}], 0 offen{LD}")

    def split(S):
        a(f"v_lshlrev_b32_sdwa v{vSrc}, 7, v{S} dst_sel:DWORD dst_unused:UNUSED_PAD src0_sel:DWORD src1_sel:WORD_1")
        a(f"v_lshlrev_b32_sdwa v{vEa}, 3, v{S} dst_sel:DWORD dst_unused:UNUSED_PAD src0_sel:DWORD src1_sel:WORD_0")

    def setup_ac():
        for m in range(4):
            a(f"v_cvt_f32_f16 v{AC+4*m}, v{ACC+m}")
            a(f"v_cvt_f32_f16 v{AC+4*m+2}, v{ACC+4+m}")
        for m in range(4):
            a(f"v_mov_b32 v{AC+4*m+1}, v{AC+4*m}")
            a(f"v_mov_b32 v{AC+4*m+3}, v{AC+4*m+2}")

    def compute(P):
        for m in range(4):
            for j in range(4):
                a(f"v_fma_mix_f32 v{D+4*m+j}, v{D+4*m+j}, s{sK}, v{P+4*j+m} op_sel_hi:[0,0,1]")
        for i in range(16):
            a(f"v_exp_f32 v{D+i}, v{D+i}")
        for i in range(8):
            a(f"v_pk_add_f32 v[{D+2*i}:{D+2*i+1}], v[{D+2*i}:{D+2*i+1}], 1.0 op_sel_hi:[1,0]")
        for j in range(4):
            r = R + 4 * (j & 1)
            for m in range(4):
                a(f"v_rcp_f32 v{r+m}, v{D+4*m+j}")
            acc = ACC + 4 * (j >> 1)
            a(f"v_pk_fma_f32 v[{acc}:{acc+1}], v[{P+4*j}:{P+4*j+1}], v[{r}:{r+1}], v[{acc}:{acc+1}]")
            a(f"v_pk_fma_f32 v[{acc+2}:{acc+3}], v[{P+4*j+2}:{P+4*j+3}], v[{r+2}:{r+3}], v[{acc+2}:{acc+3}]")

    def pk(op, d, *src, mod=""):
        a(f"v_pk_{op}_f32 v[{d}:{d+1}], " + ", ".join(x if isinstance(x, str) else f"v[{x}:{x+1}]" for x in src) + mod)

    def compute_fast(P):
        for j in range(4):
            for m in range(4):
                a(f"v_fma_mix_f32 v{D+4*m+j}, v{D+4*m+j}, s{sK}, v{P+4*j+m} op_sel_hi:[0,0,1]")

        def exps(j0):
            for m in range(4):
                a(f"v_exp_f32 v{R+m}, v{D+4*m+j0}")
            for m in range(4):
                a(f"v_exp_f32 v{R+4+m}, v{D+4*m+j0+1}")

        def mid(j0):
            H1, H2 = P + 4 * j0, P + 4 * j0 + 4
            N, Q = (D + j0, D + 4 + j0), (D + 8 + j0, D + 12 + j0)
            for h in range(2):
                pk("add", R + 2 * h, R + 2 * h, "1.0", mod=" op_sel_hi:[1,0]")
            for h in range(2):
                pk("fma", N[h], H2 + 2 * h, R + 2 * h, H1 + 2 * h)
            for h in range(2):
                pk("fma", Q[h], R + 2 * h, R + 4 + 2 * h, R + 2 * h)
            for h in range(2):
                pk("fma", N[h], H1 + 2 * h, R + 4 + 2 * h, N[h])

        def rcps(j0):
            for q in (D + 8 + j0, D + 9 + j0, D + 12 + j0, D + 13 + j0):
                a(f"v_rcp_f32 v{q}, v{q}")

        def fin(j0):
            acc = ACC + 2 * j0
            pk("fma", acc, D + j0, D + 8 + j0, acc)
            pk("fma", acc + 2, D + 4 + j0, D + 12 + j0, acc + 2)
        exps(0)
        mid(0)
        exps(2)
        rcps(0)
        mid(2)
        fin(0)
        rcps(2)
        a("s_nop 0")
        fin(2)

    a(f"v_add_u32 v{vT}, s{sA}, v{vRec4}")
    a(f"ds_read_b32 v{D}, v{vT}")
    advance("F0")
    a(f"v_add_u32 v{vT}, s{sA}, v{vRec4}")
    a(f"ds_read_b32 v{D+1}, v{vT}")
    advance("F1")
    a(f"v_add_u32 v{vT}, s{sA}, v{vRec4}")
    a(f"ds_read_b32 v{vS}, v{vT}")
    a("s_waitcnt lgkmcnt(2)")
    split(D)
    a("s_nop 0")
    a(f"ds_read_b64 v[{EE}:{EE+1}], v{vEa} offset:{L_EA}")
    gathers(PP[0])
    a("s_waitcnt lgkmcnt(2)")
    split(D + 1)
    a("s_nop 1")
    gathers(PP[1])
    setup_ac()
    def loop(sfx, comp):
        for o in OPTS:
            if o.startswith("al="):
                a(f".p2align {o[3:]}")
            if o.startswith("pad="):
                for _ in range(int(o[4:])):
                    a("s_nop 0")
        a.lab(f"K2_LOOP{sfx}")
        for ph in range(3):
            a("s_waitcnt lgkmcnt(0)")
            for m in range(4):
                a(f"v_mfma_f32_4x4x4_16b_bf16 v[{D+4*m}:{D+4*m+3}], v[{EE}:{EE+1}], v[{WB+2*m}:{WB+2*m+1}], v[{AC+4*m}:{AC+4*m+3}]")
            a(f"ds_read_b64 v[{EE}:{EE+1}], v{vEa} offset:{L_EA}")
            split(vS)
            advance(f"L{sfx}{ph}")
            gathers(PP[(ph + 2) % 3])
            a(f"v_add_u32 v{vT}, s{sA}, v{vRec4}")
            a(f"ds_read_b32 v{vS}, v{vT}")
            a("s_waitcnt vmcnt(8)")
            comp(PP[ph])
            a(f"s_sub_u32 s{sRem}, s{sRem}, 1")
            if ph < 2:
                a(f"s_cbranch_scc0 K2_C{sfx}{ph}")
                a(f"s_call_b64 s[{sRet}:{sRet+1}], K2_EPI")
                a.lab(f"K2_C{sfx}{ph}")
            else:
                a(f"s_cbranch_scc0 K2_LOOP{sfx}")
                a(f"s_call_b64 s[{sRet}:{sRet+1}], K2_EPI")
                a(f"s_branch K2_LOOP{sfx}")
    a(f"v_cmp_ne_u32 vcc, 0, v{D+2}")
    if "safeonly" in OPTS:
        a("s_branch K2_LOOPS")
    a("s_cbranch_vccnz K2_LOOPS")
    loop("F", compute_fast)
    loop("S", compute)

    def epilogue(acc, tmp, nregs):
        for i in range(0, nregs, 2):
            a(f"v_pk_mul_f32 v[{tmp+i}:{tmp+i+1}], v[{acc+i}:{acc+i+1}], s[{sKK}:{sKK+1}]")
        for i in range(nregs):
            a(f"v_exp_f32 v{tmp+i}, v{tmp+i}")
        a("s_nop 0")
        for i in range(0, nregs, 2):
            a(f"v_pk_add_f32 v[{tmp+i}:{tmp+i+1}], v[{tmp+i}:{tmp+i+1}], 1.0 op_sel_hi:[1,0]")
        for i in range(nregs):
            a(f"v_rcp_f32 v{tmp+i}, v{tmp+i}")
        a("s_nop 0")
        for i in range(0, nregs, 2):
            a(f"v_pk_mul_f32 v[{tmp+i}:{tmp+i+1}], v[{tmp+i}:{tmp+i+1}], v[{acc+i}:{acc+i+1}]")
        for i in range(0, nregs, 2):
            a(f"v_cvt_pk_bf16_f32 v{tmp+i//2}, v{tmp+i}, v{tmp+i+1}")

    a.lab("K2_EPI")
    epilogue(ACC, D, 8)
    auread(N2)
    a(f"v_lshrrev_b32 v{AD}, 7, v{NA}")
    a(f"v_lshrrev_b32 v{AD+1}, 7, v{NA+1}")
    a(f"v_lshl_add_u32 v{AD}, v{AD}, 8, v{vCo}")
    a(f"v_lshl_add_u32 v{AD+1}, v{AD+1}, 8, v{vCo}")
    a(f"v_cmp_gt_u32 vcc, {BN*128}, v{NA}")
    a("s_mov_b64 exec, vcc")
    a(f"buffer_store_dwordx2 v[{D}:{D+1}], v{AD}, s[{SO}:{SO+3}], s{sOutOff} offen{K2_ST}")
    a("s_mov_b64 exec, -1")
    a(f"v_cmp_gt_u32 vcc, {BN*128}, v{NA+1}")
    a("s_mov_b64 exec, vcc")
    a(f"buffer_store_dwordx2 v[{D+2}:{D+3}], v{AD+1}, s[{SO}:{SO+3}], s{sOutOff} offen{K2_ST}")
    a("s_mov_b64 exec, -1")
    a(f"s_cmp_eq_u32 s{sN2}, 0")
    a("s_cbranch_scc1 K2_FIN")
    a.stamp(14)
    a(f"s_sub_u32 s{sRem}, s{sN2}, 1")
    a(f"s_mov_b32 s{sN2}, 0")
    a(f"v_mov_b32 v{NA}, v{N2}")
    a(f"v_mov_b32 v{NA+1}, v{N2+1}")
    a("s_waitcnt lgkmcnt(0)")
    setup_ac()
    a(f"s_setpc_b64 s[{sRet}:{sRet+1}]")
    a.lab("K2_FIN")
    a.stamp(15)
    a.stampc(31)
    a.stamp_flush(1, sW)
    a("s_endpgm")

    for tag in sw_sites:
        a.lab(f"K2_SW{tag}")
        a(f"s_mov_b32 s{sA}, s{sNxtA}")
        a(f"s_mov_b32 s{sCntS}, s{sNxtCnt}")
        a(f"s_mov_b32 s{sNxtA}, {L_DUM}")
        a(f"s_mov_b32 s{sNxtCnt}, 100")
        a(f"s_branch K2_SWR{tag}")

    a.lab("K2_TAIL")
    a(f"v_lshlrev_b32 v64, 3, v{vLane}")
    a.lab("K2_TAIL_LOOP")
    a(f"s_ff1_i32_b64 s{sT0}, s[{sTM}:{sTM+1}]")
    a(f"s_bitset0_b64 s[{sTM}:{sTM+1}], s{sT0}")
    a(f"v_readlane_b32 s{sT1}, v{vDesc}, s{sT0}")
    a(f"s_add_u32 s{sT0}, s{sT0}, s{sT3}")
    a(f"s_mul_i32 s{sT0}, s{sT0}, {CH}")
    a(f"s_and_b32 s{sT2}, s{sT1}, 0xffff")
    a(f"s_add_u32 s{sT0}, s{sT0}, s{sT2}")
    a(f"s_add_u32 s{sT0}, s{sT0}, 64")
    a(f"s_sub_u32 s{sT0}, s{sT0}, s{sSp}")
    a(f"s_lshr_b32 s{sT1}, s{sT1}, 16")
    a(f"s_sub_u32 s{sT1}, s{sT1}, 64")
    a(f"s_add_u32 s{sT2}, s{sSp}, s{sT1}")
    a(f"s_cmp_gt_u32 s{sT2}, 63")
    a("s_cbranch_scc1 K2_TAILF")
    a(f"s_bfm_b64 s[{sSave}:{sSave+1}], s{sT1}, s{sSp}")
    a(f"s_or_b64 s[{sM+24}:{sM+25}], s[{sM+24}:{sM+25}], s[{sSave}:{sSave+1}]")
    a(f"s_mov_b32 s{sSp}, s{sT2}")
    a(f"s_lshl_b32 s{sT1}, s{sT0}, 2")
    a(f"s_add_u32 s{sT1}, s{sT1}, {KEY_OFF}")
    a(f"s_lshl_b32 s{sT2}, s{sT0}, 3")
    a(f"s_add_u32 s{sT2}, s{sT2}, {EAT_OFF}")
    a(f"s_mov_b64 exec, s[{sSave}:{sSave+1}]")
    a(f"buffer_load_dword v{KEYR+12}, v{vL4}, s[{SWS}:{SWS+3}], s{sT1} offen{LD}")
    a(f"buffer_load_dwordx2 v[{ET}:{ET+1}], v64, s[{SWS}:{SWS+3}], s{sT2} offen{LD}")
    a("s_mov_b64 exec, -1")
    a(f"s_cmp_lg_u64 s[{sTM}:{sTM+1}], 0")
    a("s_cbranch_scc1 K2_TAIL_LOOP")
    a("s_branch K2_TAILR")
    a.lab("K2_TAILF")
    a(f"s_mov_b32 s{sOvf}, 1")
    a("s_branch K2_TAILR")

    L_AGG = L_EA
    a.lab("K2_FALLBACK")
    a("s_waitcnt vmcnt(0) lgkmcnt(0)")
    a(f"s_mov_b32 s{sKK}, {hex(NL2E)}")
    a(f"s_mov_b32 s{sKK+1}, {hex(NL2E)}")
    a("s_barrier")
    a("v_lshlrev_b32 v51, 4, v0")
    a(f"v_add_u32 v51, {L_AGG}, v51")
    for i in range(4):
        a(f"v_mov_b32 v{56+i}, 0")
    for i in range(4):
        a(f"ds_write_b128 v51, v[56:59] offset:{i*16384}")
    a("s_waitcnt lgkmcnt(0)")
    a("s_barrier")
    srd(a, SF0, 10, E * 4)
    srd(a, SF1, 8, E * 4)
    srd(a, SF2, 6, E * 8)
    a(f"s_mul_i32 s{sT3}, s{sBk}, {BN}")
    a(f"s_mul_i32 s{sT2}, s{sBk}, {BN*128}")
    a(f"s_lshl_b32 s{sT0}, s{sW}, 5")
    a(f"v_lshrrev_b32 v51, 1, v{vG8}")
    a.lab("K2_FB_LOOP")
    a(f"s_lshl_b32 s{sT1}, s{sT0}, 1")
    a(f"buffer_load_dword v52, v51, s[{SF0}:{SF0+3}], s{sT0} offen")
    a(f"buffer_load_dword v53, v51, s[{SF1}:{SF1+3}], s{sT0} offen")
    a(f"buffer_load_dwordx2 v[54:55], v{vG8}, s[{SF2}:{SF2+3}], s{sT1} offen")
    a("s_waitcnt vmcnt(0)")
    a(f"v_subrev_u32 v52, s{sT3}, v52")
    a(f"v_cmp_gt_u32 vcc, {BN}, v52")
    a("s_mov_b64 exec, vcc")
    a("s_cbranch_execz K2_FB_NEXT")
    a(f"v_lshl_add_u32 v53, v53, 7, v{vC8}")
    a("v_and_b32 v56, 7, v52")
    a("v_lshlrev_b32 v56, 4, v56")
    a(f"v_lshl_add_u32 v52, v52, 7, v{vC8}")
    a("v_xor_b32 v56, v56, v52")
    a(f"v_add_u32 v56, {L_AUR}, v56")
    a(f"buffer_load_dwordx4 v[16:19], v53, s[{SP}:{SP+3}], 0 offen{LD}")
    a("ds_read_b128 v[20:23], v56")
    a(f"v_add_u32 v52, {L_AGG}, v52")
    a("s_waitcnt vmcnt(0) lgkmcnt(0)")
    for m in range(4):
        a(f"v_cvt_f32_f16 v{20+m}, v{20+m}")
    for m in range(4):
        a(f"v_dot2_f32_bf16 v{20+m}, v54, v{WB+2*m}, v{20+m}")
    for m in range(4):
        a(f"v_dot2_f32_bf16 v{20+m}, v55, v{WB+2*m+1}, v{20+m}")
    a("s_nop 3")
    for m in range(4):
        a(f"v_fma_mix_f32 v{20+m}, v{20+m}, s{sK}, v{16+m} op_sel_hi:[0,0,1]")
    for m in range(4):
        a(f"v_exp_f32 v{20+m}, v{20+m}")
    a("s_nop 0")
    for m in range(4):
        a(f"v_add_f32 v{20+m}, 1.0, v{20+m}")
    for m in range(4):
        a(f"v_rcp_f32 v{20+m}, v{20+m}")
    a("s_nop 0")
    for m in range(4):
        a(f"v_mul_f32 v{20+m}, v{20+m}, v{16+m}")
    for m in range(4):
        a(f"ds_add_f32 v52, v{20+m} offset:{4*m}")
    a.lab("K2_FB_NEXT")
    a("s_mov_b64 exec, -1")
    a(f"s_add_u32 s{sT0}, s{sT0}, 512")
    a(f"s_cmp_lt_u32 s{sT0}, {E*4}")
    a("s_cbranch_scc1 K2_FB_LOOP")
    a("s_waitcnt lgkmcnt(0)")
    a("s_barrier")
    a(f"s_lshl_b32 s{sT0}, s{sW}, 10")
    a(f"v_lshlrev_b32 v51, 4, v{vG8}")
    a.lab("K2_FB_OUT")
    a(f"v_add_u32 v52, s{sT0}, v51")
    a(f"v_add_u32 v53, v52, v{vC8}")
    a(f"v_lshlrev_b32 v56, 1, v{vG8}")
    a("v_xor_b32 v56, v56, v53")
    a(f"v_min_u32 v56, {399*128+112}, v56")
    a(f"v_add_u32 v56, {L_AUR}, v56")
    a("ds_read_b128 v[16:19], v56")
    a(f"v_add_u32 v53, {L_AGG}, v53")
    a("ds_read_b128 v[20:23], v53")
    a("s_waitcnt vmcnt(0) lgkmcnt(0)")
    for m in range(4):
        a(f"v_add_f32 v{16+m}, v{16+m}, v{20+m}")
    epilogue(16, 24, 4)
    a(f"v_lshl_add_u32 v53, v52, 1, v{vCo}")
    a(f"v_cmp_gt_u32 vcc, {BN*128}, v52")
    a("s_mov_b64 exec, vcc")
    a(f"buffer_store_dwordx2 v[24:25], v53, s[{SO}:{SO+3}], s{sOutOff} offen{K2_ST}")
    a("s_mov_b64 exec, -1")
    a(f"s_add_u32 s{sT0}, s{sT0}, 16384")
    a(f"s_cmp_lt_u32 s{sT0}, {BN*128}")
    a("s_cbranch_scc1 K2_FB_OUT")
    a.lab("K2_END")
    a("s_endpgm")


def kd(name, vgpr, sgpr, extra=""):
    acc = (vgpr + 3) // 4 * 4
    return f""".amdhsa_kernel {name}
  .amdhsa_next_free_vgpr {vgpr}
  .amdhsa_next_free_sgpr {sgpr}
  .amdhsa_accum_offset {acc}
  .amdhsa_group_segment_fixed_size 0
  .amdhsa_kernarg_size 80
  .amdhsa_user_sgpr_count 2
  .amdhsa_user_sgpr_kernarg_segment_ptr 1
  .amdhsa_system_sgpr_workgroup_id_x 1
{extra}.end_amdhsa_kernel
"""


def main():
    out = HEADER
    if FUSED:
        out += f"; @launch grid=(256,1,1) block=(1024,1,1) lds={K1_LDS}\n"
    else:
        out += f"; @launch kernel=k1_kernel grid=(256,1,1) block=(1024,1,1) lds={K1_LDS}\n"
        out += f"; @launch kernel=k2_kernel grid=(256,1,1) block=(1024,1,1) lds={K2_LDS}\n"
    out += '.amdgcn_target "amdgcn-amd-amdhsa--gfx950"\n.text\n'
    for name, g in ((KNAME if FUSED else "k1_kernel", gen_k1), ("k2_kernel", gen_k2)):
        a = A()
        g(a)
        if not (FUSED and g is gen_k2):
            out += f".globl {name}\n.p2align 8\n.type {name},@function\n"
        out += "\n".join(a.l) + "\n"
    out += '.section .rodata,"a"\n.p2align 6\n'
    out += kd(KNAME if FUSED else "k1_kernel", 128, 102, "  .amdhsa_fp16_overflow 1\n")
    if not FUSED:
        out += ".p2align 6\n"
        out += kd("k2_kernel", 128, 102)
    path = sys.argv[1] if len(sys.argv) > 1 else "gather_scatter__edge_featured_mpnn_egc__graph.s"
    open(path, "w").write(out)


if __name__ == "__main__":
    main()
```

```python
import sys

N = 25000
E = 400000
NB = 64
BN = 391
CH = 3200
NCH = 125
PS = 25040 * 128
P_OFF = 0
AU_OFF = 0x1000000
KEY_OFF = 0x2000000
EAT_OFF = 0x2200000
DESC_OFF = 0x2800000
GCNT_OFF = 0x2810000
WS_USED = 0x2900000
NL2E = 0xBFB8AA3B
MAGIC = 85817

OPTS = set(sys.argv[2:])
STAMPS = "stamps" in OPTS
STAMP_OFF = 0x3000000
K1_ST = ""
K2_ST = " nt"
NT_E = "" if "noent" in OPTS else " nt"
NT_X = " nt" if "xnt" in OPTS else ""
FUSED = "split" not in OPTS
K1_ST = " sc1"
LD = " sc1" if FUSED else ""
KNAME = "gather_scatter__edge_featured_mpnn_egc__graph_kernel"
SDB = 96
SLP = 1 if "slp1" in OPTS else 4
for o in OPTS:
    if o.startswith("k1st="):
        K1_ST = " " + o[5:].replace("+", " ")
    if o.startswith("k2st="):
        K2_ST = " " + o[5:].replace("+", " ")

HEADER = """; Kernarg layout for this problem (80 bytes, ptrs only, base s[0:1]):
"""


class A:
    def __init__(self):
        self.l = []
        self.vst = None

    def __call__(self, s):
        for x in s.strip().split("\n"):
            self.l.append("    " + x.strip())

    def lab(self, s):
        self.l.append(s + ":")

    def c(self, s):
        self.l.append("    ; " + s)

    def stamp(self, idx):
        if not STAMPS:
            return
        self("s_memrealtime s[100:101]")
        self("s_waitcnt lgkmcnt(0)")
        self(f"v_writelane_b32 v{self.vst}, s100, {idx}")

    def stampc(self, idx):
        if not STAMPS:
            return
        self("s_memtime s[100:101]")
        self("s_waitcnt lgkmcnt(0)")
        self(f"v_writelane_b32 v{self.vst}, s100, {idx}")

    def stamp_flush(self, kidx, sw):
        if not STAMPS:
            return
        self("s_mov_b64 exec, -1")
        self(f"s_add_u32 s12, s20, {STAMP_OFF + kidx*0x100000}")
        self("s_addc_u32 s13, s21, 0")
        self("s_mov_b32 s14, 0x100000")
        self("s_mov_b32 s15, 0x20000")
        self("s_lshl_b32 s100, s2, 12")
        self(f"v_mbcnt_lo_u32_b32 v{self.vst+1}, -1, 0")
        self(f"v_mbcnt_hi_u32_b32 v{self.vst+1}, -1, v{self.vst+1}")
        self(f"v_lshlrev_b32 v{self.vst+1}, 2, v{self.vst+1}")
        self(f"s_lshl_b32 s101, s{sw}, 8")
        self("s_add_u32 s100, s100, s101")
        self(f"buffer_store_dword v{self.vst}, v{self.vst+1}, s[12:15], s100 offen")


def srd(a, d, base, size, off=0):
    if off:
        a(f"s_add_u32 s{d}, s{base}, {off}")
        a(f"s_addc_u32 s{d+1}, s{base+1}, 0")
    else:
        a(f"s_mov_b32 s{d}, s{base}")
        a(f"s_mov_b32 s{d+1}, s{base+1}")
    a(f"s_mov_b32 s{d+2}, {size}")
    a(f"s_mov_b32 s{d+3}, 0x20000")


def scan64(a, v):
    for sh in (1, 2, 4, 8):
        a("s_nop 1")
        a(f"v_add_u32_dpp v{v}, v{v}, v{v} row_shr:{sh} row_mask:0xf bank_mask:0xf bound_ctrl:0")
    a("s_nop 1")
    a(f"v_add_u32_dpp v{v}, v{v}, v{v} row_bcast:15 row_mask:0xa bank_mask:0xf")
    a("s_nop 1")
    a(f"v_add_u32_dpp v{v}, v{v}, v{v} row_bcast:31 row_mask:0xc bank_mask:0xf")


K1_WP = 98304
K1_WAU = 102400
K1_CNT = 118784
K1_STK = K1_CNT + 2048
K1_STE = K1_STK + 12800
K1_SCR = 131072
L_AUR = 112640
L_GW = 103936
K1_LDS = 163840
assert K1_STE + 25600 <= K1_LDS


def poll(a, tag, vP, off, val=None, slp=2):
    a("s_mov_b32 s101, 0x40000")
    a("s_mov_b64 exec, 1")
    a.lab(f"POLL{tag}")
    a(f"buffer_load_dword v{vP}, off, s[{SDB}:{SDB+3}], 0 offset:{off} sc1")
    a("s_waitcnt vmcnt(0)")
    a(f"v_cmp_ne_u32 vcc, 0, v{vP}" if val is None else f"v_cmp_eq_u32 vcc, {val}, v{vP}")
    a("s_sub_u32 s101, s101, 1")
    a(f"s_cbranch_scc1 POLLD{tag}")
    a(f"s_cbranch_vccnz POLLD{tag}")
    a(f"s_sleep {slp}")
    a(f"s_branch POLL{tag}")
    a.lab(f"POLLD{tag}")
    a("s_mov_b64 exec, -1")


def gen_k1(a):
    sW, sSl, sBk, sT0, sT1, sT2, sT3 = 22, 23, 24, 25, 26, 27, 28
    sG = 29
    sEx = 30
    SD, SS, SE, SWS, SX, SWL, SWH = 32, 36, 40, 44, 48, 52, 56
    sScale, sOut, sS, sQ, sX0, sDl, sJ, sSlot = 60, 61, 62, 63, 64, 65, 66, 67
    sUns = 94
    vLane = 1
    VX = 40
    VW = 44
    a.lab(KNAME)
    a.vst = 11
    a("s_cmp_ge_u32 s2, 256")
    a("s_cbranch_scc1 K1_END2")
    a.stamp(0)
    a.stampc(30)
    a("s_load_dwordx16 s[4:19], s[0:1], 0")
    a("s_load_dwordx2 s[20:21], s[0:1], 72")
    a(f"s_load_dwordx2 s[{SDB}:{SDB+1}], s[0:1], 64")
    a("v_lshrrev_b32 v2, 6, v0")
    a(f"v_and_b32 v{vLane}, 63, v0")
    a(f"v_readfirstlane_b32 s{sW}, v2")
    a(f"s_mov_b32 s{SDB+2}, 256")
    a(f"s_mov_b32 s{SDB+3}, 0x20000")
    a(f"s_and_b32 s{sSl}, s2, 3")
    a(f"s_lshr_b32 s{sT0}, s2, 2")
    if "oldmap" in OPTS:
        a(f"s_mov_b32 s{sBk}, s{sT0}")
    else:
        a.c("bucket = 32*((wg>>2)&1) + (wg>>3): workgroups that share an L2 take neighbouring buckets")
        a(f"s_and_b32 s{sBk}, s{sT0}, 1")
        a(f"s_lshl_b32 s{sBk}, s{sBk}, 5")
        a(f"s_lshr_b32 s{sT1}, s2, 3")
        a(f"s_or_b32 s{sBk}, s{sBk}, s{sT1}")
    a(f"s_lshl_b32 s{sG}, s{sT0}, 1")
    a(f"s_add_u32 s{sG}, s{sG}, s{sSl}")
    a(f"s_mul_i32 s{sX0}, s{sBk}, {BN*256}")
    a(f"s_cmp_eq_u32 s{sSl}, 2")
    a(f"s_cselect_b32 s{sDl}, 1, 0")
    a("v_lshlrev_b32 v2, 4, v0")
    a("v_lshlrev_b32 v3, 5, v0")
    a(f"v_lshrrev_b32 v4, 4, v{vLane}")
    a(f"v_and_b32 v5, 15, v{vLane}")
    a("v_xor_b32 v6, v5, v4")
    a("v_lshlrev_b32 v6, 4, v6")
    a(f"v_lshl_add_u32 v{VX}, v4, 8, v6")
    a(f"v_xor_b32 v{VX+1}, 64, v{VX}")
    a(f"v_xor_b32 v{VX+2}, 0x80, v{VX}")
    a(f"v_xor_b32 v{VX+3}, 0xc0, v{VX}")
    a("v_lshrrev_b32 v6, 1, v5")
    a("v_xor_b32 v6, v6, v4")
    a("v_lshlrev_b32 v6, 5, v6")
    a("v_lshl_add_u32 v6, v4, 8, v6")
    a(f"v_and_b32 v7, 1, v{vLane}")
    a(f"v_lshl_add_u32 v{VW}, v7, 4, v6")
    a(f"v_xor_b32 v{VW+1}, 0x80, v{VW}")
    a(f"v_lshrrev_b32 v6, 2, v{vLane}")
    a("v_lshlrev_b32 v6, 8, v6")
    a(f"v_and_b32 v7, 3, v{vLane}")
    a(f"v_lshrrev_b32 v8, 4, v{vLane}")
    a("v_and_b32 v8, 2, v8")
    a("v_xor_b32 v7, v7, v8")
    a(f"v_lshl_add_u32 v{VW+2}, v7, 4, v6")
    if "icode" in OPTS:
        a.c("pull this kernel's code into the XCD's L2 (wave 15 of the first workgroups)")
        a(f"s_cmp_lg_u32 s{sW}, 15")
        a("s_cbranch_scc1 K1_NOIC")
        a("s_cmp_ge_u32 s2, 16")
        a("s_cbranch_scc1 K1_NOIC")
        a("s_getpc_b64 s[68:69]")
        a(f"v_lshlrev_b32 v60, 7, v{vLane}")
        a.lab("K1_ICB")
        a("global_load_dword v61, v60, s[68:69]")
        a("s_add_u32 s68, s68, 8192")
        a("s_addc_u32 s69, s69, 0")
        a("s_bfm_b64 exec, (K2_END-K1_ICB-8192)/128, 0")
        a("global_load_dword v62, v60, s[68:69]")
        a("s_mov_b64 exec, -1")
        a.lab("K1_NOIC")
    a("s_waitcnt lgkmcnt(0)")
    a.stamp(1)
    srd(a, SX, 4, N * 256)
    a(f"s_cmp_ge_u32 s{sSl}, 2")
    a("s_cbranch_scc1 K1_TB")

    def xdma(slot_sgpr, tag):
        a(f"s_lshl_b32 s{sT0}, s{slot_sgpr}, 12")
        a(f"s_mov_b32 m0, s{sT0}")
        a(f"s_sub_u32 s{sT1}, s{slot_sgpr}, s{sDl}")
        a(f"s_cselect_b32 s{sT1}, 24, s{sT1}")
        a(f"s_lshl_b32 s{sT1}, s{sT1}, 12")
        a(f"s_add_u32 s{sT1}, s{sT1}, s{sX0}")
        for pp in range(4):
            a(f"buffer_load_dwordx4 v{VX+pp}, s[{SX}:{SX+3}], s{sT1} offen offset:{pp*1024}{NT_X} lds")

    def waudma(piece_sgpr):
        a(f"s_lshl_b32 s{sT0}, s{piece_sgpr}, 10")
        a(f"s_add_u32 s{sT0}, s{sT0}, {K1_WAU}")
        a(f"s_mov_b32 m0, s{sT0}")
        a(f"s_and_b32 s{sT1}, s{piece_sgpr}, 7")
        a(f"s_lshl_b32 s{sT1}, s{sT1}, 12")
        a(f"s_lshl_b32 s{sT0}, s{sSl}, 6")
        a(f"s_add_u32 s{sT1}, s{sT1}, s{sT0}")
        a(f"s_cmp_lt_u32 s{piece_sgpr}, 8")
        a(f"s_cselect_b32 s{SWL}, s16, s12")
        a(f"s_cselect_b32 s{SWL+1}, s17, s13")
        a(f"s_mov_b32 s{SWL+2}, 32768")
        a(f"s_mov_b32 s{SWL+3}, 0x20000")
        a(f"buffer_load_dwordx4 v{VW+2}, s[{SWL}:{SWL+3}], s{sT1} offen lds")

    a(f"s_cmp_ge_u32 s{sG}, {NCH}")
    a("s_cbranch_scc1 K1_NOEDGE")
    a(f"s_cmp_ge_u32 s{sW}, 13")
    a("s_cbranch_scc1 K1_NOEDGE")
    srd(a, SD, 10, E * 4)
    srd(a, SS, 8, E * 4)
    srd(a, SE, 6, E * 8)
    a("v_cmp_gt_u32 vcc, 800, v0")
    a(f"s_mul_i32 s{sT0}, s{sG}, {CH*4}")
    a(f"s_mul_i32 s{sT1}, s{sG}, {CH*8}")
    a(f"s_mov_b64 s[{sEx}:{sEx+1}], vcc")
    a("s_mov_b64 exec, vcc")
    a(f"buffer_load_dwordx4 v[16:19], v2, s[{SD}:{SD+3}], s{sT0} offen{NT_E}")
    a(f"buffer_load_dwordx4 v[20:23], v2, s[{SS}:{SS+3}], s{sT0} offen{NT_E}")
    a(f"buffer_load_dwordx4 v[24:27], v3, s[{SE}:{SE+3}], s{sT1} offen{NT_E}")
    a(f"buffer_load_dwordx4 v[28:31], v3, s[{SE}:{SE+3}], s{sT1} offen offset:16{NT_E}")
    a("s_mov_b64 exec, -1")
    a.lab("K1_NOEDGE")
    srd(a, SWS, 20, WS_USED)
    a(f"v_lshlrev_b32 v6, 2, v{vLane}")
    a(f"v_add_u32 v6, {K1_CNT}, v6")
    a("v_mov_b32 v7, 0")
    a(f"v_mov_b32 v12, {K1_CNT+1024}")
    a(f"s_cmp_lg_u32 s{sW}, 0")
    a("s_cbranch_scc1 K1_P1")
    a("ds_write_b32 v6, v7")
    a("ds_write_b32 v6, v7 offset:256")
    a("ds_write_b32 v6, v7 offset:1024")
    a("s_waitcnt lgkmcnt(0)")
    a.lab("K1_P1")
    a("s_barrier")
    a(f"s_cmp_lt_u32 s{sW}, 13")
    a("s_cbranch_scc1 K1_PW")
    a.c("loader waves 13..15 : W_AU pieces and x tiles by LDS-DMA")
    a(f"s_sub_u32 s{sJ}, s{sW}, 13")
    a.lab("K1_LA1")
    waudma(sJ)
    a(f"s_add_u32 s{sJ}, s{sJ}, 3")
    a(f"s_cmp_lt_u32 s{sJ}, 16")
    a("s_cbranch_scc1 K1_LA1")
    a(f"s_sub_u32 s{sJ}, s{sW}, 13")
    xdma(sJ, "A0")
    a(f"s_add_u32 s{sJ}, s{sJ}, 3")
    xdma(sJ, "A1")
    a(f"s_add_u32 s{sJ}, s{sJ}, 3")
    a("v_mov_b32 v7, 1")
    a("s_waitcnt vmcnt(8)")
    a("s_mov_b64 exec, 1")
    a("ds_add_u32 v12, v7 offset:12")
    a("s_mov_b64 exec, -1")
    a.lab("K1_LA2")
    xdma(sJ, "A")
    a(f"s_add_u32 s{sJ}, s{sJ}, 3")
    a(f"s_cmp_lt_u32 s{sJ}, 25")
    a("s_cbranch_scc1 K1_LA2")
    a.stamp(2)
    a("s_branch K1_AUA")
    a.lab("K1_PW")
    a(f"s_cmp_ge_u32 s{sG}, {NCH}")
    a("s_cbranch_scc1 K1_AUA")

    def sb(k, tag):
        a("s_waitcnt lgkmcnt(0)")
        a("s_mov_b64 exec, 1")
        a(f"ds_add_u32 v12, v7 offset:{4+4*k}")
        a("s_mov_b64 exec, -1")
        a.lab(f"K1_SB{tag}")
        a(f"ds_read_b32 v13, v12 offset:{4+4*k}")
        a("s_waitcnt lgkmcnt(0)")
        a("v_cmp_gt_u32 vcc, 13, v13")
        a(f"s_cbranch_vccnz K1_SB{tag}")
    a(f"s_mov_b32 s{sT0}, {MAGIC}")
    a(f"s_mov_b32 s{sT1}, {-BN & 0xffffffff}")
    a("v_mov_b32 v7, 1")
    a(f"s_mov_b64 exec, s[{sEx}:{sEx+1}]")
    a("s_waitcnt vmcnt(3)")
    a.stamp(3)
    for i in range(4):
        a(f"v_mul_u32_u24 v{32+i}, s{sT0}, v{16+i}")
    for i in range(4):
        a(f"v_lshrrev_b32 v{32+i}, 25, v{32+i}")
    for i in range(4):
        a(f"v_mad_i32_i24 v{16+i}, v{32+i}, s{sT1}, v{16+i}")
    for i in range(4):
        a(f"v_lshlrev_b32 v{32+i}, 2, v{32+i}")
    for i in range(4):
        a(f"v_add_u32 v{32+i}, {K1_CNT}, v{32+i}")
    for i in range(4):
        a(f"ds_add_rtn_u32 v{36+i}, v{32+i}, v7")
    for i in range(4):
        a(f"v_lshlrev_b32 v{16+i}, 2, v{16+i}")
    a("s_waitcnt vmcnt(2)")
    for i in range(4):
        a(f"v_lshl_or_b32 v{20+i}, v{20+i}, 16, v{16+i}")
    sb(0, "2")
    a.stamp(4)
    a("ds_read_b32 v8, v6")
    a("s_waitcnt lgkmcnt(0)")
    a("v_mov_b32 v9, v8")
    scan64(a, 9)
    a("v_sub_u32 v9, v9, v8")
    a("ds_write_b32 v6, v9 offset:512")
    a("v_lshl_or_b32 v8, v8, 16, v9")
    a(f"s_mov_b64 exec, s[{sEx}:{sEx+1}]")
    for i in range(4):
        a(f"ds_read_b32 v{32+i}, v{32+i} offset:512")
    a("s_waitcnt lgkmcnt(0)")
    for i in range(4):
        a(f"v_add_u32 v{32+i}, v{32+i}, v{36+i}")
    for i in range(4):
        a(f"v_lshlrev_b32 v{36+i}, 2, v{32+i}")
        a(f"v_lshlrev_b32 v{32+i}, 3, v{32+i}")
    for i in range(4):
        a(f"v_add_u32 v{36+i}, {K1_STK}, v{36+i}")
        a(f"v_add_u32 v{32+i}, {K1_STE}, v{32+i}")
    for i in range(4):
        a(f"ds_write_b32 v{36+i}, v{20+i}")
    a("s_waitcnt vmcnt(0)")
    for i in range(4):
        a(f"ds_write_b64 v{32+i}, v[{24+2*i}:{25+2*i}]")
    a("v_or3_b32 v16, v24, v25, v26")
    a("v_or3_b32 v17, v27, v28, v29")
    a("v_or3_b32 v16, v30, v31, v16")
    a("v_or_b32 v16, v16, v17")
    a("v_and_b32 v16, 0x40004000, v16")
    a("v_cmp_ne_u32 vcc, 0, v16")
    a(f"s_cmp_lg_u64 vcc, 0")
    a(f"s_cselect_b32 s{sUns}, 0x101, 1")
    sb(1, "3")
    a.stamp(5)
    a(f"s_mov_b64 exec, s[{sEx}:{sEx+1}]")
    a(f"v_add_u32 v6, {K1_STK}, v2")
    a("ds_read_b128 v[16:19], v6")
    a("ds_read_b128 v[20:23], v6 offset:12800")
    a("ds_read_b128 v[24:27], v6 offset:25600")
    a(f"s_mul_i32 s{sT0}, s{sG}, {CH*4}")
    a(f"s_add_u32 s{sT0}, s{sT0}, {KEY_OFF}")
    a(f"s_mul_i32 s{sT1}, s{sG}, {CH*8}")
    a(f"s_add_u32 s{sT1}, s{sT1}, {EAT_OFF}")
    a(f"s_add_u32 s{sT2}, s{sT1}, 12800")
    a("s_waitcnt lgkmcnt(2)")
    a(f"buffer_store_dwordx4 v[16:19], v2, s[{SWS}:{SWS+3}], s{sT0} offen{K1_ST}")
    a("s_waitcnt lgkmcnt(1)")
    a(f"buffer_store_dwordx4 v[20:23], v2, s[{SWS}:{SWS+3}], s{sT1} offen{K1_ST}")
    a("s_waitcnt lgkmcnt(0)")
    a(f"buffer_store_dwordx4 v[24:27], v2, s[{SWS}:{SWS+3}], s{sT2} offen{K1_ST}")
    a("s_mov_b64 exec, -1")
    a(f"s_cmp_lg_u32 s{sW}, 0")
    a("s_cbranch_scc1 K1_P2B")
    a(f"v_lshlrev_b32 v9, 2, v{vLane}")
    a(f"s_lshl_b32 s{sT0}, s{sG}, 8")
    a(f"s_add_u32 s{sT0}, s{sT0}, {DESC_OFF}")
    a(f"buffer_store_dword v8, v9, s[{SWS}:{SWS+3}], s{sT0} offen{K1_ST}")
    a.lab("K1_P2B")
    a.c("publish the partition: the last of the 13 storing waves counts this workgroup into R")
    a(f"v_mov_b32 v15, s{sUns}")
    a("s_waitcnt vmcnt(0)")
    a("s_mov_b64 exec, 1")
    a("ds_add_rtn_u32 v14, v12, v15")
    a("s_waitcnt lgkmcnt(0)")
    a("v_add_u32 v14, v14, v15")
    a("v_and_b32 v15, 0xff, v14")
    a("v_cmp_eq_u32 vcc, 13, v15")
    a("s_cbranch_vccz K1_NOR2")
    a("v_lshrrev_b32 v14, 8, v14")
    a("v_lshl_or_b32 v14, v14, 16, 1")
    a("v_mov_b32 v15, v14")
    a(f"buffer_atomic_add v15, off, s[{SDB}:{SDB+3}], 0 sc0 sc1")
    a("s_waitcnt vmcnt(0)")
    a("v_add_u32 v15, v15, v14")
    a("v_and_b32 v14, 0xffff, v15")
    a(f"v_cmp_eq_u32 vcc, {NCH}, v14")
    a("s_cbranch_vccz K1_NOR2")
    a(f"buffer_store_dword v15, off, s[{SDB}:{SDB+3}], 0 offset:192 sc1")
    a.lab("K1_NOR2")
    a("s_mov_b64 exec, -1")
    a.stamp(6)
    a.lab("K1_AUA")
    a("ds_read_b32 v13, v12 offset:12")
    a("s_waitcnt lgkmcnt(0)")
    a("v_cmp_gt_u32 vcc, 3, v13")
    a("s_cbranch_vccnz K1_AUA")
    a("s_branch K1_AU")

    a.lab("K1_TB")
    a(f"s_add_u32 s{sT0}, s16, 32768")
    a(f"s_addc_u32 s{sT1}, s17, 0")
    a(f"s_cmp_lt_u32 s{sW}, 8")
    a(f"s_cselect_b32 s{SWH}, s{sT0}, s14")
    a(f"s_cselect_b32 s{SWH+1}, s{sT1}, s15")
    a(f"s_mov_b32 s{SWH+2}, 32768")
    a(f"s_mov_b32 s{SWH+3}, 0x20000")
    a(f"s_lshl_b32 s{sT0}, s{sW}, 12")
    a(f"s_add_u32 s{sT1}, s{sT0}, {K1_WP}")
    a(f"s_mov_b32 m0, s{sT1}")
    a(f"s_and_b32 s{sT0}, s{sT0}, 0x7fff")
    for pp in range(4):
        a(f"buffer_load_dwordx4 v{VW+(pp>>1)}, s[{SWH}:{SWH+3}], s{sT0} offen offset:{pp*1024} lds")
    srd(a, SWS, 20, WS_USED)

    def xup():
        a(f"s_cmp_ge_u32 s{sW}, 13")
        a("s_cbranch_scc1 K1_B0")
        a(f"s_lshl_b32 s{sJ}, s{sW}, 1")
        a(f"s_add_u32 s{sJ}, s{sJ}, 1")
        a(f"s_cmp_eq_u32 s{sW}, 12")
        a(f"s_cselect_b32 s{sJ}, 0, s{sJ}")
        xdma(sJ, "B")
        a.lab("K1_B0")
    if "wfirst" not in OPTS:
        xup()
    a(f"s_and_b32 s{sS}, s{sW}, 3")
    a(f"s_lshr_b32 s{sQ}, s{sW}, 2")
    a(f"v_lshrrev_b32 v2, 4, v{vLane}")
    a(f"v_and_b32 v3, 15, v{vLane}")
    a("v_lshrrev_b32 v48, 2, v3")
    a("v_and_b32 v49, 1, v2")
    a("v_lshl_or_b32 v49, v49, 2, v48")
    a(f"s_lshl_b32 s{sT0}, s{sS}, 1")
    a(f"v_xor_b32 v49, s{sT0}, v49")
    a("v_lshlrev_b32 v49, 5, v49")
    a("v_lshl_add_u32 v48, v2, 3, v48")
    a("v_lshl_add_u32 v48, v48, 8, v49")
    a(f"v_and_b32 v49, 3, v{vLane}")
    a("v_lshl_add_u32 v48, v49, 3, v48")
    a(f"v_add_u32 v48, {K1_WP}, v48")
    a("v_xor_b32 v49, 32, v48")
    a("v_and_b32 v10, 7, v3")
    a("v_xor_b32 v10, v10, v2")
    a("v_lshlrev_b32 v10, 4, v10")
    a("v_lshl_add_u32 v10, v3, 7, v10")
    a(f"s_lshl_b32 s{sT0}, s{sW}, 11")
    a(f"s_add_u32 s{sT0}, s{sT0}, {K1_SCR}")
    a(f"v_add_u32 v10, s{sT0}, v10")
    a("v_xor_b32 v0, 64, v10")
    a(f"v_lshlrev_b32 v2, 4, v{vLane}")
    a(f"v_add_u32 v2, s{sT0}, v2")
    a(f"v_lshrrev_b32 v3, 3, v{vLane}")
    a(f"v_and_b32 v28, 7, v{vLane}")
    a("v_xor_b32 v28, v28, v3")
    a("v_lshlrev_b32 v28, 4, v28")
    a("v_lshl_add_u32 v3, v3, 7, v28")
    a(f"s_mov_b32 s{sScale}, {hex(NL2E)}")
    if "wfirst" in OPTS:
        a("s_waitcnt vmcnt(0)")
        xup()
    else:
        a(f"s_cmp_ge_u32 s{sW}, 13")
        a("s_cbranch_scc1 K1_B1")
        a("s_waitcnt vmcnt(4)")
        a("s_branch K1_B2")
        a.lab("K1_B1")
        a("s_waitcnt vmcnt(0)")
        a.lab("K1_B2")
    a.stamp(2)
    a("s_barrier")
    WF = 64

    def wf(mat, ct, ks):
        return WF + ((mat * 2 + ct) * 4 + ks) * 4
    for ks in range(4):
        for mat in range(2):
            for ct in range(2):
                b = wf(mat, ct, ks)
                off = mat * 32768 + ks * 8192
                a(f"ds_read_b64_tr_b16 v[{b}:{b+1}], v{48+ct} offset:{off}")
                a(f"ds_read_b64_tr_b16 v[{b+2}:{b+3}], v{48+ct} offset:{off+1024}")
    a("s_waitcnt lgkmcnt(0)")
    a.stamp(3)
    a("s_barrier")
    waudma(sW)

    def xlate(tag):
        a(f"s_cmp_ge_u32 s{sW}, 12")
        a(f"s_cbranch_scc1 K1_B3{tag}")
        a(f"s_lshl_b32 s{sJ}, s{sW}, 1")
        a(f"s_add_u32 s{sJ}, s{sJ}, 2")
        xdma(sJ, "C")
        if tag:
            a("s_waitcnt vmcnt(4)")
            a("s_branch K1_B4")
        a.lab(f"K1_B3{tag}")
        if tag:
            a("s_waitcnt vmcnt(0)")
            a.lab("K1_B4")
    if "early" in OPTS:
        a("s_barrier")
        xlate("E")
    XF = [32, 48]

    def xconst():
        a(f"v_lshrrev_b32 v4, 4, v{vLane}")
        a(f"v_and_b32 v5, 15, v{vLane}")
        a("v_xor_b32 v4, v4, v5")
        a("v_lshlrev_b32 v4, 4, v4")
        a("v_lshl_add_u32 v5, v5, 8, v4")

    def xread(buf, slot_sgpr):
        a(f"s_lshl_b32 s{sT0}, s{slot_sgpr}, 12")
        a(f"v_add_u32 v6, s{sT0}, v5")
        a("v_xor_b32 v7, 64, v6")
        a("v_xor_b32 v8, 0x80, v6")
        a("v_xor_b32 v9, 0xc0, v6")
        for ks in range(4):
            a(f"ds_read_b128 v[{XF[buf]+4*ks}:{XF[buf]+4*ks+3}], v{6+ks}")

    def mfmas(buf, mid=None):
        for ks in range(4):
            for mat in range(2):
                for ct in range(2):
                    d = 16 + (mat * 2 + ct) * 4
                    b = wf(mat, ct, ks)
                    cin = "0" if ks == 0 else f"v[{d}:{d+3}]"
                    a(f"v_mfma_f32_16x16x32_bf16 v[{d}:{d+3}], v[{b}:{b+3}], v[{XF[buf]+4*ks}:{XF[buf]+4*ks+3}], {cin}")
            if ks == 0 and mid:
                mid()
    xconst()
    a(f"s_lshl_b32 s{sSlot}, s{sQ}, 1")
    a(f"s_add_u32 s{sSlot}, s{sSlot}, 1")
    a(f"s_mul_i32 s{sOut}, s{sS}, {PS}")
    a(f"s_lshr_b32 s{sT0}, s{sX0}, 1")
    a(f"s_add_u32 s{sOut}, s{sOut}, s{sT0}")
    a(f"s_sub_u32 s{sT0}, s{sSlot}, s{sDl}")
    a(f"s_lshl_b32 s{sT0}, s{sT0}, 11")
    a(f"s_add_u32 s{sOut}, s{sOut}, s{sT0}")
    a.stamp(4)
    a("v_mov_b32 v4, 0")
    if "early" not in OPTS:
        a("s_waitcnt vmcnt(0)")
    a.stamp(5)
    a("s_barrier")
    a.stamp(7)
    a.stampc(31)
    if "early" not in OPTS:
        xlate("")
    xread(0, sSlot)
    for i in range(4):
        buf = i & 1
        if i == 3:
            a.c("13th P tile (tile 24, slot 0): slice 2, set 0 only")
            a(f"s_cmp_lg_u32 s{sQ}, 0")
            a("s_cbranch_scc1 K1_PDONE")
            a(f"s_cmp_eq_u32 s{sDl}, 0")
            a("s_cbranch_scc1 K1_PDONE")
        if i < 2:
            a(f"s_add_u32 s{sSlot}, s{sSlot}, 8")
        elif i == 2:
            a(f"s_mov_b32 s{sSlot}, 0")
        a("s_waitcnt lgkmcnt(0)")
        mfmas(buf, (lambda: xread(buf ^ 1, sSlot)) if i < 3 else None)
        a("s_nop 7")
        for r in range(16, 32, 2):
            a(f"v_max3_f32 v4, abs(v{r}), abs(v{r+1}), v4")
        for ct in range(2):
            for j in range(4):
                a(f"v_fma_mixlo_f16 v{24+4*ct+j}, v{16+4*ct+j}, s{sScale}, 0")
        a("ds_write_b128 v10, v[24:27]")
        a("ds_write_b128 v0, v[28:31]")
        a("ds_read_b128 v[12:15], v2")
        a("ds_read_b128 v[16:19], v2 offset:1024")
        a("s_waitcnt lgkmcnt(1)")
        a(f"buffer_store_dwordx4 v[12:15], v3, s[{SWS}:{SWS+3}], s{sOut} offen{K1_ST}")
        a("s_waitcnt lgkmcnt(0)")
        a(f"buffer_store_dwordx4 v[16:19], v3, s[{SWS}:{SWS+3}], s{sOut} offen offset:1024{K1_ST}")
        a.stamp(8 + i)
        if i < 3:
            a(f"s_add_u32 s{sOut}, s{sOut}, 16384")
            a("s_nop 1")
    a.lab("K1_PDONE")
    a("v_cmp_le_f32 vcc, 4.0, v4")
    a("s_cbranch_vccz K1_PSAFE")
    a("v_mov_b32 v13, 0x10000")
    a("s_mov_b64 exec, 1")
    a(f"buffer_atomic_add v13, off, s[{SDB}:{SDB+3}], 0 offset:64 sc1")
    a("s_mov_b64 exec, -1")
    a.lab("K1_PSAFE")
    a.lab("K1_AU")
    xconst()
    a(f"v_lshrrev_b32 v2, 4, v{vLane}")
    a(f"v_and_b32 v3, 15, v{vLane}")
    a("v_lshrrev_b32 v48, 2, v3")
    a("v_lshl_add_u32 v48, v2, 3, v48")
    a("v_lshlrev_b32 v48, 6, v48")
    a(f"v_and_b32 v49, 3, v{vLane}")
    a("v_lshl_add_u32 v48, v49, 3, v48")
    a("v_and_b32 v49, 1, v2")
    a("v_lshl_add_u32 v48, v49, 5, v48")
    a(f"v_add_u32 v48, {K1_WAU}, v48")
    a("v_xor_b32 v49, 32, v48")
    a("s_waitcnt lgkmcnt(0)")
    for ks in range(4):
        for mat in range(2):
            for ct in range(2):
                b = wf(mat, ct, ks)
                off = mat * 8192 + ks * 2048
                a(f"ds_read_b64_tr_b16 v[{b}:{b+1}], v{48+ct} offset:{off}")
                a(f"ds_read_b64_tr_b16 v[{b+2}:{b+3}], v{48+ct} offset:{off+256}")
    a("v_and_b32 v10, 7, v3")
    a("v_xor_b32 v10, v10, v2")
    a("v_lshlrev_b32 v10, 4, v10")
    a("v_lshl_add_u32 v10, v3, 7, v10")
    a(f"v_add_u32 v10, {L_AUR}, v10")
    a(f"s_mov_b32 s{sSlot}, s{sW}")
    a.c("first chunk of this wave: key waves 12w (12 chunks), loader waves 32(w-11) (32 chunks)")
    a(f"s_mul_i32 s{sT2}, s{sW}, 12")
    a(f"s_lshl_b32 s{sT3}, s{sW}, 5")
    a(f"s_sub_u32 s{sT3}, s{sT3}, {32*11}")
    a(f"s_cmp_lt_u32 s{sW}, 11")
    a(f"s_cselect_b32 s{sT3}, s{sT2}, s{sT3}")
    a(f"s_cselect_b32 s{sT2}, 12, 32")
    a(f"s_bfm_b64 s[54:55], s{sT2}, 0")
    a(f"s_lshl_b32 s90, s{sT3}, 8")
    a(f"s_lshl_b32 s{sT1}, s{sBk}, 2")
    a(f"s_add_u32 s90, s90, s{sT1}")
    a(f"s_add_u32 s48, s20, {DESC_OFF}")
    a("s_addc_u32 s49, s21, 0")
    a(f"s_mov_b32 s50, {NCH*256}")
    a("s_mov_b32 s51, 0x20000")
    a.stamp(14)
    a("s_waitcnt vmcnt(0) lgkmcnt(0)")
    a.stamp(13)
    a("s_barrier")
    a.stamp(15)
    xread(0, sSlot)
    a(f"s_cmp_lg_u32 s{sW}, 15")
    a("s_cbranch_scc1 K1_NZ")
    a(f"v_lshlrev_b32 v14, 2, v{vLane}")
    a(f"v_add_u32 v14, {L_GW}, v14")
    a("v_mov_b32 v3, 0")
    a("ds_write_b32 v14, v3")
    a(f"s_cmp_lt_u32 s{sSl}, 2")
    a("s_cbranch_scc1 K1_NZ2")
    a.c("count this workgroup's P tiles in")
    a("v_mov_b32 v15, 1")
    a("v_mov_b32 v14, 1")
    a("s_mov_b64 exec, 1")
    a(f"buffer_atomic_add v14, off, s[{SDB}:{SDB+3}], 0 offset:64 sc0 sc1")
    a("s_mov_b64 exec, -1")
    a("s_branch K1_NZ2")
    a.lab("K1_NZ")
    a("s_mov_b64 exec, 1")
    a(f"buffer_load_dword v2, off, s[{SDB}:{SDB+3}], 0 offset:192 sc1")
    a("s_mov_b64 exec, -1")
    a(f"v_lshlrev_b32 v14, 8, v{vLane}")
    a.lab("K1_NZ2")
    a("v_mov_b32 v4, 0")
    a(f"s_mov_b32 s{sUns+1}, 0")
    a.stamp(16)
    for i in range(2):
        a(f"s_sub_u32 s{sT1}, s{sSlot}, s{sDl}")
        a(f"s_cselect_b32 s{sT1}, 24, s{sT1}")
        a(f"s_lshl_b32 s{sT1}, s{sT1}, 11")
        a(f"v_add_u32 v12, s{sT1}, v10")
        a("v_xor_b32 v13, 64, v12")
        if i == 0:
            a(f"s_add_u32 s{sSlot}, s{sSlot}, 16")
            a(f"s_min_u32 s{sJ}, s{sSlot}, 24")
        a("s_waitcnt lgkmcnt(0)")
        mfmas(i, (lambda: xread(1, sJ)) if i == 0 else None)
        a("s_nop 7")
        for r in range(16, 24, 2):
            a(f"v_max3_f32 v4, abs(v{r}), abs(v{r+1}), v4")
        for ct in range(2):
            for j in range(4):
                a(f"v_fma_mixlo_f16 v{24+4*ct+j}, v{16+4*ct+j}, 1.0, 0")
        a("ds_write_b128 v12, v[24:27]")
        a("ds_write_b128 v13, v[28:31]")
        if i == 0:
            a(f"s_cmp_eq_u32 s{sW}, 15")
            a("s_cbranch_scc1 K1_END")
            a.c("partition published? then fetch this wave's segment descriptors")
            a("s_mov_b64 exec, 1")
            a("s_waitcnt vmcnt(0)")
            a("v_cmp_ne_u32 vcc, 0, v2")
            a("s_cbranch_vccnz K1_ROK")
            poll(a, "R", 2, 192, None, SLP)
            a.lab("K1_ROK")
            a("s_mov_b64 exec, s[54:55]")
            a(f"buffer_load_dword v3, v14, s[48:51], s90 offen{LD}")
            a("s_mov_b64 exec, -1")
            a(f"v_readfirstlane_b32 s{sUns+1}, v2")
            a.stamp(17)
            a(f"s_cmp_ge_u32 s{sSlot}, 25")
            a(f"s_lshr_b32 s{sUns+1}, s{sUns+1}, 16")
            a(f"s_cmp_ge_u32 s{sSlot}, 25")
            a("s_cbranch_scc1 K1_END")
    a.lab("K1_END")
    a("v_cmp_le_f32 vcc, 4.0, v4")
    a("s_cmp_lg_u64 vcc, 0")
    a(f"s_cselect_b32 s{sUns+1}, 1, s{sUns+1}")
    a.stamp(12)
    a.stampc(32)
    a.stamp_flush(0, sW)
    a.c("wave 15 waits until every partition workgroup has counted into R")
    a(f"s_cmp_lg_u32 s{sW}, 15")
    a("s_cbranch_scc1 K1_RDONE")
    a(f"s_cmp_lt_u32 s{sSl}, 2")
    a("s_cbranch_scc1 K1_NG")
    a("s_mov_b64 exec, 1")
    a("s_waitcnt vmcnt(0)")
    a("v_add_u32 v14, v14, v15")
    a("v_and_b32 v15, 0xffff, v14")
    a("v_cmp_eq_u32 vcc, 0x80, v15")
    a("s_cbranch_vccz K1_NG")
    a(f"buffer_store_dword v14, off, s[{SDB}:{SDB+3}], 0 offset:128 sc1")
    a.lab("K1_NG")
    a("s_mov_b64 exec, -1")
    a.lab("K1_RDONE")
    a(f"s_lshl_b32 s{sT0}, s{sW}, 6")
    a(f"v_add_u32 v0, s{sT0}, v{vLane}")
    a("s_branch K2_ENTRY")
    a.lab("K1_END2")
    a("s_endpgm")


CAP = 8192
L_CNT = 0
L_ORD = 2048
L_DH = 4096
L_BST = 4352
L_SB = 4608
L_FLAG = 4864
L_GD = L_FLAG + 4
L_ELL = 5120
L_DUM = L_ELL + CAP * 4
L_EA = L_DUM + 512
NKW = 11
EA_TAIL = NKW * 12 * 64
EA_ZERO = EA_TAIL + NKW * 64
assert L_EA + EA_ZERO * 8 + 8 <= L_AUR
DUMMY = 0xFFFF0000 | EA_ZERO
DUMMY_NODE = 399 * 128
NBATCH = (BN + 15) // 16
NR = 13


def gen_k2(a):
    assert FUSED
    sW, sSl, sBk = 22, 23, 24
    sT0, sT1, sT2, sT3 = 25, 26, 27, 28
    sK = 29
    sSp, sOvf = 30, 31
    SWS, SP, SO, SG = 32, 36, 40, 44
    SDS = 48
    sSave = 54
    sM = 56
    sKK = 56
    sRet = 82
    SA = 84
    SF0, SF1, SF2 = 64, 44, 60
    sTM, sEarly, sOutOff, sK2, sK1 = 88, 90, 91, 92, 93
    sA, sCntS, sNxtA, sNxtCnt, sRem, sN2 = 48, 49, 50, 51, 52, 53
    vLane, vC8, vG8, vRec4, vCo, vS, vSrc, vEa, vT = 1, 2, 3, 4, 5, 6, 7, 8, 9
    NA, N2, EE = 10, 12, 14
    ACC, AC, D = 16, 24, 40
    PP = [56, 72, 88]
    R, WB, vStg = 104, 112, 122
    AD = R
    KEYR, RK, HA = 24, 37, 50
    ET, WR, AU2 = 70, 88, 96
    vDesc = 104
    vL4, vL16, vIdx, v64c = 65, 66, 67, 68
    T = 72
    a.vst = 120

    def auread(n):
        a(f"v_xor_b32 v{vT}, v{n}, v{vC8}")
        a(f"v_xor_b32 v{AD+2}, v{n+1}, v{vC8}")
        a(f"v_add_u32 v{vT}, {L_AUR}, v{vT}")
        a(f"v_add_u32 v{AD+2}, {L_AUR}, v{AD+2}")
        a(f"ds_read_b128 v[{ACC}:{ACC+3}], v{vT}")
        a(f"ds_read_b128 v[{ACC+4}:{ACC+7}], v{AD+2}")

    def sb_arrive(k):
        a("s_waitcnt lgkmcnt(0)")
        a("s_mov_b64 exec, 1")
        a(f"ds_add_u32 v{T+14}, v{T+15} offset:{4*k}")
        a("s_mov_b64 exec, -1")

    def sb_wait(k, n, tag):
        a.lab(f"K2_SBW{tag}")
        a(f"ds_read_b32 v{T+13}, v{T+14} offset:{4*k}")
        a("s_waitcnt lgkmcnt(0)")
        a(f"v_cmp_gt_u32 vcc, {n}, v{T+13}")
        a(f"s_cbranch_vccnz K2_SBW{tag}")

    def batchinfo():
        a(f"s_lshl_b32 s{sT0}, s{sK1}, 6")
        a(f"v_add_u32 v{T}, s{sT0}, v{vG8}")
        a(f"ds_read_b64 v[{NA}:{NA+1}], v{T} offset:{L_ORD}")
        a(f"s_min_u32 s{sT0}, s{sK2}, 25")
        a(f"s_lshl_b32 s{sT0}, s{sT0}, 6")
        a(f"v_add_u32 v{T}, s{sT0}, v{vG8}")
        a(f"ds_read_b64 v[{N2}:{N2+1}], v{T} offset:{L_ORD}")
        a(f"ds_read_b32 v{T+4}, v{vL4} offset:{L_BST}")
        a(f"ds_read_b32 v{T+8}, v123 offset:{L_FLAG}")
        a("s_waitcnt lgkmcnt(0)")
        a(f"v_min_u32 v{T+4}, 0x1ff, v{T+4}")
        a(f"v_lshlrev_b32 v{T+5}, 7, v{T+4}")
        a(f"v_mov_b32 v{T+6}, v{T+5}")
        scan64(a, T + 6)
        a(f"v_readfirstlane_b32 s{sOvf}, v{T+8}")
        a(f"v_sub_u32 v{T+6}, v{T+6}, v{T+5}")
        a(f"v_add_u32 v{T+6}, {L_ELL}, v{T+6}")
        a("s_nop 0")
        a(f"v_readlane_b32 s{sA}, v{T+6}, s{sK1}")
        a(f"v_readlane_b32 s{sRem}, v{T+4}, s{sK1}")
        a(f"v_readlane_b32 s{sNxtA}, v{T+6}, s{sK2}")
        a(f"v_readlane_b32 s{sN2}, v{T+4}, s{sK2}")
        a("s_nop 3")
        a(f"s_sub_u32 s{sRem}, s{sRem}, 1")
        a(f"s_mov_b32 s{sCntS}, s{sRem}")
        a(f"s_sub_u32 s{sNxtCnt}, s{sN2}, 1")
        a(f"s_cmp_eq_u32 s{sN2}, 0")
        a(f"s_cselect_b32 s{sNxtA}, {L_DUM}, s{sNxtA}")
        a(f"s_cselect_b32 s{sNxtCnt}, 100, s{sNxtCnt}")

    def wperm():
        a(f"s_mov_b32 s{sT0}, 0x05040100")
        a(f"s_mov_b32 s{sT1}, 0x07060302")
        for m in range(4):
            sel = sT0 if m % 2 == 0 else sT1
            h = m >> 1
            a(f"v_perm_b32 v{WB+2*m}, v{WR+2+h}, v{WR+h}, s{sel}")
            a(f"v_perm_b32 v{WB+2*m+1}, v{WR+6+h}, v{WR+4+h}, s{sel}")

    def wcloads():
        a(f"s_lshl_b32 s{sT1}, s{sSl}, 6")
        a(f"s_add_u32 s{sT1}, s{sT1}, 65536")
        for k in range(4):
            a(f"buffer_load_dwordx2 v[{WR+2*k}:{WR+1+2*k}], v{vCo}, s[{SG}:{SG+3}], s{sT1} offen offset:{k*256}")

    def unsafe_or():
        a(f"v_mov_b32 v{T+12}, s95")
        a("s_mov_b64 exec, 1")
        a(f"ds_or_b32 v{T+14}, v{T+12} offset:32")
        a("s_mov_b64 exec, -1")

    a.lab("K2_ENTRY")
    a.stamp(0)
    a.stampc(29)
    a(f"v_mov_b32 v{vDesc}, v3") if False else None
    srd(a, SWS, 20, WS_USED)
    a(f"v_lshlrev_b32 v{vL4}, 2, v{vLane}")
    a(f"v_lshlrev_b32 v{vL16}, 4, v{vLane}")
    a(f"v_mov_b32 v{T+14}, {L_GW}")
    a(f"v_mov_b32 v{T+15}, 1")
    a("v_mov_b32 v123, 0")

    def consts():
        srd(a, SG, 16, 260 * 256)
        a(f"s_mul_i32 s{sT0}, s{sSl}, {PS}")
        a(f"s_add_u32 s{SP}, s20, s{sT0}")
        a(f"s_addc_u32 s{SP+1}, s21, 0")
        a(f"s_mov_b32 s{SP+2}, {N*128}")
        a(f"s_mov_b32 s{SP+3}, 0x20000")
        srd(a, SO, 18, N * 256)
        a(f"s_mov_b32 s{sK}, {hex(NL2E)}")
        a(f"v_and_b32 v{vCo}, 7, v{vLane}")
        a(f"v_lshlrev_b32 v{vCo}, 3, v{vCo}")
        a(f"v_lshlrev_b32 v{vC8}, 1, v{vCo}")
        a(f"v_and_b32 v{vG8}, 56, v{vLane}")
        a(f"v_and_b32 v64, 2, v{vLane}")
        a(f"v_lshl_add_u32 v{vRec4}, v64, 1, v{vG8}")
        a(f"v_and_b32 v64, 1, v{vLane}")
        a(f"v_lshl_add_u32 v{vRec4}, v64, 6, v{vRec4}")
        LISTS = [[0, 10, 11, 12, 20, 23], [1, 2, 7, 16, 17, 21], [6, 8, 9, 15, 18, 22, 24], [3, 4, 5, 13, 14, 19]]
        if "oldasg" in OPTS:
            LISTS = [[q, 7-q, 8+q, 15-q, 16+q, 23-q] + ([24] if q == 3 else []) for q in range(4)]
        assert sorted(sum(LISTS, [])) == list(range(NBATCH))
        a(f"s_and_b32 s{sT0}, s{sW}, 3")
        for q in range(4):
            L = LISTS[q] + [31] * (8 - len(LISTS[q]))
            if "ord2" in OPTS:
                X = LISTS[q]
                L = [X[0], X[1], X[2], X[-1], X[3], X[4], X[5] if len(X) > 6 else 31, 31]
            if "ord1" not in OPTS and "ord2" not in OPTS:
                X = LISTS[q]
                L = [X[0], X[2], X[4], X[-1], X[1], X[3], X[5] if len(X) > 6 else 31, 31]
            c1 = sum(L[r] << (8 * r) for r in range(4))
            c2 = sum(L[4 + r] << (8 * r) for r in range(4))
            if q == 0:
                a(f"s_mov_b32 s{sK1}, {hex(c1)}")
                a(f"s_mov_b32 s{sK2}, {hex(c2)}")
            else:
                a(f"s_cmp_eq_u32 s{sT0}, {q}")
                a(f"s_cselect_b32 s{sK1}, {hex(c1)}, s{sK1}")
                a(f"s_cselect_b32 s{sK2}, {hex(c2)}, s{sK2}")
        a(f"s_and_b32 s{sT1}, s{sW}, 12")
        a(f"s_lshl_b32 s{sT1}, s{sT1}, 1")
        a(f"s_lshr_b32 s{sK1}, s{sK1}, s{sT1}")
        a(f"s_lshr_b32 s{sK2}, s{sK2}, s{sT1}")
        a(f"s_and_b32 s{sK1}, s{sK1}, 0xff")
        a(f"s_and_b32 s{sK2}, s{sK2}, 0xff")
        a(f"s_mul_i32 s{sOutOff}, s{sBk}, {BN*256}")
        a(f"s_lshl_b32 s{sT0}, s{sSl}, 6")
        a(f"s_add_u32 s{sOutOff}, s{sOutOff}, s{sT0}")
    a(f"s_cmp_ge_u32 s{sW}, {NKW}")
    a("s_cbranch_scc1 K2_LW")
    a(f"v_lshrrev_b32 v{T}, 4, v{vLane}")
    a(f"v_lshlrev_b32 v{T+1}, 2, v{T}")
    a(f"s_mov_b32 s{sT0}, {CH*4}")
    a(f"v_and_b32 v{T+2}, 15, v{vLane}")
    a(f"v_lshlrev_b32 v{T+3}, 2, v{T+2}")
    a(f"v_lshlrev_b32 v{T+2}, 4, v{T+2}")
    a(f"v_mad_u32_u24 v{T+2}, v{T}, s{sT0}, v{T+2}")
    a(f"s_mov_b32 s{sSp}, 0")
    a(f"s_mov_b32 s{sOvf}, 0")
    a(f"s_mov_b64 s[{sM+24}:{sM+25}], 0")
    a(f"s_mul_i32 s{sT2}, s{sT3}, {CH*4}")
    a(f"s_add_u32 s{sT2}, s{sT2}, {KEY_OFF}")
    a(f"s_mov_b32 s{sT0}, 0x40ffff")
    a("s_waitcnt vmcnt(0)")
    a.stamp(2)
    a(f"v_mov_b32 v{vDesc}, v3")
    for h in range(3):
        a(f"ds_bpermute_b32 v{T+4+h}, v{T+1}, v3 offset:{16*h}")
    a(f"v_cmp_lt_u32 vcc, s{sT0}, v3")
    a(f"s_and_b64 s[{sTM}:{sTM+1}], vcc, s[{sSave}:{sSave+1}]")
    a("s_waitcnt lgkmcnt(0)")
    for h in range(3):
        a(f"v_lshrrev_b32 v{T+7+h}, 16, v{T+4+h}")
        a(f"v_lshlrev_b32_sdwa v{T+4+h}, 2, v{T+4+h} dst_sel:DWORD dst_unused:UNUSED_PAD src0_sel:DWORD src1_sel:WORD_0")
        a(f"v_cmp_gt_u32 s[{sM+8*h}:{sM+8*h+1}], v{T+7+h}, v{T+3}")
        a(f"v_add_u32 v{T+4+h}, v{T+4+h}, v{T+2}")
        a(f"s_or_b64 exec, s[{sM+8*h}:{sM+8*h+1}], 1")
        a(f"buffer_load_dwordx4 v[{KEYR+4*h}:{KEYR+4*h+3}], v{T+4+h}, s[{SWS}:{SWS+3}], s{sT2} offen{LD}")
        a("s_mov_b64 exec, -1")
        if h < 2:
            a(f"s_add_u32 s{sT2}, s{sT2}, {4*CH*4}")
    a(f"s_cmp_lg_u64 s[{sTM}:{sTM+1}], 0")
    a("s_cbranch_scc1 K2_TAIL")
    a.lab("K2_TAILR")
    a(f"v_lshlrev_b32 v{T}, 4, v0")
    for i in range(4):
        a(f"v_mov_b32 v{20+i}, 0")
    a.stamp(3)
    a("s_barrier")
    a.stamp(1)
    a(f"s_cmp_ge_u32 s{sW}, 6")
    a("s_cbranch_scc1 K2_INIT_DONE")
    a(f"s_cmp_eq_u32 s{sW}, 5")
    a("s_cbranch_scc1 K2_INIT_5")
    a(f"s_lshr_b32 s{sT0}, s{sW}, 1")
    a(f"s_cmp_eq_u32 s{sT0}, 1")
    a("s_cbranch_scc0 K2_INIT_Z")
    for i in range(4):
        a(f"v_mov_b32 v{20+i}, {DUMMY_NODE}")
    a.lab("K2_INIT_Z")
    a(f"ds_write_b128 v{T}, v[20:23]")
    a("s_branch K2_INIT_A")
    a.lab("K2_INIT_5")
    a(f"v_mov_b32 v64, {L_EA + EA_ZERO*8}")
    a("ds_write_b64 v64, v[20:21]")
    a.lab("K2_INIT_A")
    sb_arrive(5)
    a.lab("K2_INIT_DONE")
    unsafe_or()
    for c in range(1, 4):
        a(f"v_add_u32 v{T+3}, 1, v{T+3}")
        for h in range(3):
            a(f"v_cmp_gt_u32 s[{sM+8*h+2*c}:{sM+8*h+2*c+1}], v{T+7+h}, v{T+3}")
    a(f"s_lshl_b32 s{sT0}, s{sT3}, 6")
    a(f"v_add_u32 v{vIdx}, s{sT0}, v{vL4}")
    a(f"v_mov_b32 v{v64c}, 64")
    consts()
    wcloads()
    sb_wait(5, 6, "B1")
    a.stamp(4)
    a(f"s_cmp_eq_u32 s{sOvf}, 0")
    a("s_cbranch_scc1 K2_NOOVF")
    a(f"ds_write_b32 v123, v{T+15} offset:{L_FLAG}")
    a.lab("K2_NOOVF")
    a("s_waitcnt vmcnt(4)")
    a.stamp(5)
    for i in range(NR):
        a(f"v_and_b32 v{HA+i}, 0xffff, v{KEYR+i}")
        a(f"s_mov_b64 exec, s[{sM+2*i}:{sM+2*i+1}]")
        a(f"ds_add_rtn_u32 v{RK+i}, v{HA+i}, v{v64c}")
        a("s_mov_b64 exec, -1")
    for i in range(NR):
        if i == NR - 1:
            a(f"s_lshl_b32 s{sT0}, s{sW}, 6")
            a(f"s_add_u32 s{sT0}, s{sT0}, {EA_TAIL}")
            a(f"v_add_u32 v{vIdx}, s{sT0}, v{vLane}")
        a(f"v_mov_b32_sdwa v{KEYR+i}, v{vIdx} dst_sel:WORD_0 dst_unused:UNUSED_PRESERVE src0_sel:DWORD")
        if i < NR - 2:
            a(f"v_add_u32 v{vIdx}, {253 if i % 4 == 3 else 1}, v{vIdx}")
    sb_arrive(0)
    a(f"s_cmp_ge_u32 s{sW}, 7")
    a("s_cbranch_scc1 K2_W5")
    a(f"v_cmp_gt_u32 vcc, {BN}, v0")
    a(f"v_lshlrev_b32 v{T}, 2, v0")
    a(f"v_and_b32 v{T+8}, 7, v0")
    a(f"v_lshlrev_b32 v{T+8}, 4, v{T+8}")
    a(f"v_lshl_add_u32 v{T+8}, v0, 7, v{T+8}")
    a(f"s_mov_b64 s[{sSave}:{sSave+1}], vcc")
    sb_wait(0, NKW, "2")
    a.stamp(6)
    a.c("node phase A")
    a(f"s_mov_b64 exec, s[{sSave}:{sSave+1}]")
    a(f"ds_read_b32 v{T+1}, v{T}")
    a("s_waitcnt lgkmcnt(0)")
    a(f"v_lshrrev_b32 v{T+1}, 6, v{T+1}")
    a(f"v_min_u32 v{T+2}, 63, v{T+1}")
    a(f"v_sub_u32 v{T+2}, 63, v{T+2}")
    a(f"v_lshlrev_b32 v{T+2}, 2, v{T+2}")
    a(f"ds_add_rtn_u32 v{T+3}, v{T+2}, v{T+15} offset:{L_DH}")
    a(f"v_add_u32 v{T+7}, 1, v{T+1}")
    a(f"v_lshrrev_b32 v{T+7}, 1, v{T+7}")
    a(f"v_max_u32 v{T+7}, 1, v{T+7}")
    sb_arrive(1)
    sb_wait(1, 7, "3")
    a.stamp(7)
    a.c("node phase B")
    a(f"ds_read_b32 v{T+5}, v{vL4} offset:{L_DH}")
    a("s_waitcnt lgkmcnt(0)")
    a(f"v_mov_b32 v{T+6}, v{T+5}")
    scan64(a, T + 6)
    a(f"v_sub_u32 v{T+6}, v{T+6}, v{T+5}")
    a("s_nop 0")
    a(f"ds_bpermute_b32 v{T+9}, v{T+2}, v{T+6}")
    a("s_waitcnt lgkmcnt(0)")
    a(f"s_mov_b64 exec, s[{sSave}:{sSave+1}]")
    a(f"v_add_u32 v{T+3}, v{T+3}, v{T+9}")
    a(f"v_lshlrev_b32 v{T+9}, 2, v{T+3}")
    a(f"ds_write_b32 v{T+9}, v{T+8} offset:{L_ORD}")
    a(f"v_lshrrev_b32 v{T+10}, 4, v{T+3}")
    a(f"v_lshlrev_b32 v{T+10}, 2, v{T+10}")
    a(f"ds_max_u32 v{T+10}, v{T+7} offset:{L_BST}")
    a(f"v_and_b32 v{T+9}, 60, v{T+9}")
    sb_arrive(2)
    sb_wait(2, 7, "4")
    a.stamp(8)
    a.c("node phase C")
    a(f"ds_read_b32 v{T+5}, v{vL4} offset:{L_BST}")
    a("s_waitcnt lgkmcnt(0)")
    a(f"v_min_u32 v{T+5}, 0x1ff, v{T+5}")
    a(f"v_lshlrev_b32 v{T+5}, 7, v{T+5}")
    a(f"v_mov_b32 v{T+6}, v{T+5}")
    scan64(a, T + 6)
    a("s_nop 0")
    a(f"v_readlane_b32 s{sT0}, v{T+6}, 63")
    a(f"v_sub_u32 v{T+6}, v{T+6}, v{T+5}")
    a(f"v_add_u32 v{T+6}, {L_ELL}, v{T+6}")
    a("s_nop 1")
    a(f"ds_bpermute_b32 v{T+10}, v{T+10}, v{T+6}")
    a(f"s_cmp_le_u32 s{sT0}, {CAP*4}")
    a("s_cbranch_scc1 K2_NC_OK")
    a(f"ds_write_b32 v123, v{T+15} offset:{L_FLAG}")
    a.lab("K2_NC_OK")
    a("s_waitcnt lgkmcnt(0)")
    a(f"s_mov_b64 exec, s[{sSave}:{sSave+1}]")
    a(f"v_add_u32 v{T+10}, v{T+10}, v{T+9}")
    a(f"ds_write_b32 v{T}, v{T+10}")
    sb_arrive(3)
    a.lab("K2_W5")
    sb_wait(3, 8, "5")
    a.stamp(9)
    a(f"ds_read_b32 v{T+8}, v123 offset:{L_FLAG}")
    for i in range(NR):
        a(f"s_mov_b64 exec, s[{sM+2*i}:{sM+2*i+1}]")
        a(f"ds_read_b32 v{HA+i}, v{HA+i}")
    a("s_mov_b64 exec, -1")
    a("s_waitcnt lgkmcnt(0)")
    a(f"v_cmp_ne_u32 vcc, 0, v{T+8}")
    a("s_cbranch_vccnz K2_NOSC")
    for i in range(NR):
        a(f"v_add_u32 v{HA+i}, v{HA+i}, v{RK+i}")
        a(f"s_mov_b64 exec, s[{sM+2*i}:{sM+2*i+1}]")
        a(f"ds_write_b32 v{HA+i}, v{KEYR+i}")
        a("s_mov_b64 exec, -1")
    a.lab("K2_NOSC")
    batchinfo()
    a(f"s_lshl_b32 s{sT2}, s{sW}, 9")
    a(f"s_add_u32 s{sT2}, s{sT2}, {L_EA + EA_TAIL*8}")
    a(f"v_lshl_add_u32 v63, v{vLane}, 3, s{sT2}")
    a(f"ds_write_b64 v63, v[{ET}:{ET+1}]")
    a.stamp(10)
    a("s_branch K2_FINB")
    a.lab("K2_LW")
    a(f"v_lshrrev_b32 v{T+4}, 5, v{vLane}")
    a(f"v_lshlrev_b32 v{T+5}, 2, v{T+4}")
    a(f"v_and_b32 v{T+6}, 31, v{vLane}")
    a(f"v_lshlrev_b32 v{T+7}, 1, v{T+6}")
    a(f"v_lshlrev_b32 v{T+6}, 4, v{T+6}")
    a(f"s_mov_b32 s{sT0}, {CH*8}")
    a(f"v_mad_u32_u24 v{T+6}, v{T+4}, s{sT0}, v{T+6}")
    a(f"s_lshl_b32 s{sT0}, s{sT3}, 9")
    a(f"v_add_u32 v{T+8}, s{sT0}, v{vL16}")
    a("s_waitcnt vmcnt(0)")
    a(f"v_mov_b32 v{vDesc}, v3")
    consts()
    wcloads()
    a(f"s_mul_i32 s{sT2}, s{sT3}, {CH*8}")
    a(f"s_add_u32 s{sT2}, s{sT2}, {EAT_OFF}")
    a.stamp(2)
    a(f"s_cmp_eq_u32 s{sW}, 15")
    a("s_cbranch_scc1 K2_SW")
    BP = 105
    for q in range(8):
        a(f"ds_bpermute_b32 v{BP+q}, v{T+5}, v{vDesc} offset:{8*q}")
    a("s_waitcnt lgkmcnt(0)")
    a("s_barrier")
    a.stamp(1)
    LWD = [16, 20, 24, 28, 32, 36, 40, 44, 48, 52, 56, 60, 96, 100, 6, 10]
    for q in range(16):
        b = BP + (q % 8)
        a(f"v_lshrrev_b32 v{T+9}, 16, v{b}")
        a(f"v_lshlrev_b32_sdwa v{T+10}, 3, v{b} dst_sel:DWORD dst_unused:UNUSED_PAD src0_sel:DWORD src1_sel:WORD_0")
        a(f"v_cmp_gt_u32 vcc, v{T+9}, v{T+7}")
        a(f"v_add_u32 v{T+10}, v{T+10}, v{T+6}")
        if q < 8:
            a(f"ds_bpermute_b32 v{b}, v{T+5}, v{vDesc} offset:{8*(q+8)}")
        a("s_or_b64 exec, vcc, 1")
        a(f"buffer_load_dwordx4 v[{LWD[q]}:{LWD[q]+3}], v{T+10}, s[{SWS}:{SWS+3}], s{sT2} offen{LD}")
        a("s_mov_b64 exec, -1")
        if q < 15:
            a(f"s_add_u32 s{sT2}, s{sT2}, {2*CH*8}")
        if q == 7:
            a("s_waitcnt lgkmcnt(0)")
    a.stamp(5)
    unsafe_or()
    for q in range(16):
        a(f"s_waitcnt vmcnt({15-q})")
        a(f"ds_write_b128 v{T+8}, v[{LWD[q]}:{LWD[q]+3}] offset:{L_EA + q*1024}")
    a.stamp(10)
    a("s_branch K2_FINB")
    a.lab("K2_SW")
    a("s_waitcnt lgkmcnt(0)")
    for i in range(4):
        a(f"v_mov_b32 v{16+i}, {hex(DUMMY)}")
    a("s_barrier")
    a.stamp(1)
    for i in range(33):
        if i == 32:
            a("s_bfm_b64 exec, 32, 0")
        a(f"ds_write_b128 v{vL16}, v[16:19] offset:{L_ELL + i*1024}")
    sb_arrive(3)
    poll(a, "G", 53, 128, None, SLP)
    a(f"v_readfirstlane_b32 s{sT0}, v53")
    a("s_nop 3")
    a(f"s_lshr_b32 s{sT0}, s{sT0}, 16")
    a(f"s_or_b32 s95, s95, s{sT0}")
    unsafe_or()
    a.stamp(10)
    a.lab("K2_FINB")
    a("s_mov_b64 exec, -1")
    a.c("Wc magnitude check (|w| < 2)")
    a("s_waitcnt vmcnt(0)")
    a(f"v_or3_b32 v{T}, v{WR}, v{WR+1}, v{WR+2}")
    a(f"v_or3_b32 v{T+1}, v{WR+3}, v{WR+4}, v{WR+5}")
    a(f"v_or3_b32 v{T}, v{WR+6}, v{WR+7}, v{T}")
    a(f"v_or_b32 v{T}, v{T}, v{T+1}")
    a(f"v_and_b32 v{T}, 0x40004000, v{T}")
    a(f"v_cmp_ne_u32 vcc, 0, v{T}")
    a("s_cbranch_vccz K2_WOK")
    a(f"ds_or_b32 v{T+14}, v{T+15} offset:32")
    a.lab("K2_WOK")
    wperm()
    a("s_waitcnt lgkmcnt(0)")
    a.stamp(12)
    a("s_barrier")
    a(f"s_cmp_lt_u32 s{sW}, {NKW}")
    a("s_cbranch_scc1 K2_HAVEBI")
    batchinfo()
    a.lab("K2_HAVEBI")
    a(f"s_cmp_lg_u32 s{sOvf}, 0")
    a("s_cbranch_scc1 K2_FALLBACK")
    a(f"s_mov_b32 s{sKK}, {hex(NL2E)}")
    a(f"s_mov_b32 s{sKK+1}, {hex(NL2E)}")
    a(f"ds_read_b32 v{D+2}, v{T+14} offset:32")
    auread(NA)
    a.stamp(13)
    a.stampc(30)

    sw_sites = []

    def advance(tag):
        a(f"s_add_u32 s{sA}, s{sA}, 128")
        a(f"s_sub_u32 s{sCntS}, s{sCntS}, 1")
        a(f"s_cbranch_scc1 K2_SW{tag}")
        a.lab(f"K2_SWR{tag}")
        sw_sites.append(tag)

    def gathers(P):
        for j in range(4):
            a(f"v_add_u32_dpp v{AD+j}, v{vSrc}, v{vC8} quad_perm:[{j},{j},{j},{j}] row_mask:0xf bank_mask:0xf")
        for j in range(4):
            a(f"buffer_load_dwordx4 v[{P+4*j}:{P+4*j+3}], v{AD+j}, s[{SP}:{SP+3}], 0 offen{LD}")

    def split(S):
        a(f"v_lshlrev_b32_sdwa v{vSrc}, 7, v{S} dst_sel:DWORD dst_unused:UNUSED_PAD src0_sel:DWORD src1_sel:WORD_1")
        a(f"v_lshlrev_b32_sdwa v{vEa}, 3, v{S} dst_sel:DWORD dst_unused:UNUSED_PAD src0_sel:DWORD src1_sel:WORD_0")

    def setup_ac():
        for m in range(4):
            a(f"v_cvt_f32_f16 v{AC+4*m}, v{ACC+m}")
            a(f"v_cvt_f32_f16 v{AC+4*m+2}, v{ACC+4+m}")
        for m in range(4):
            a(f"v_mov_b32 v{AC+4*m+1}, v{AC+4*m}")
            a(f"v_mov_b32 v{AC+4*m+3}, v{AC+4*m+2}")

    def compute(P):
        for m in range(4):
            for j in range(4):
                a(f"v_fma_mix_f32 v{D+4*m+j}, v{D+4*m+j}, s{sK}, v{P+4*j+m} op_sel_hi:[0,0,1]")
        for i in range(16):
            a(f"v_exp_f32 v{D+i}, v{D+i}")
        for i in range(8):
            a(f"v_pk_add_f32 v[{D+2*i}:{D+2*i+1}], v[{D+2*i}:{D+2*i+1}], 1.0 op_sel_hi:[1,0]")
        for j in range(4):
            r = R + 4 * (j & 1)
            for m in range(4):
                a(f"v_rcp_f32 v{r+m}, v{D+4*m+j}")
            acc = ACC + 4 * (j >> 1)
            a(f"v_pk_fma_f32 v[{acc}:{acc+1}], v[{P+4*j}:{P+4*j+1}], v[{r}:{r+1}], v[{acc}:{acc+1}]")
            a(f"v_pk_fma_f32 v[{acc+2}:{acc+3}], v[{P+4*j+2}:{P+4*j+3}], v[{r+2}:{r+3}], v[{acc+2}:{acc+3}]")

    def pk(op, d, *src, mod=""):
        a(f"v_pk_{op}_f32 v[{d}:{d+1}], " + ", ".join(x if isinstance(x, str) else f"v[{x}:{x+1}]" for x in src) + mod)

    def compute_fast(P):
        for j in range(4):
            for m in range(4):
                a(f"v_fma_mix_f32 v{D+4*m+j}, v{D+4*m+j}, s{sK}, v{P+4*j+m} op_sel_hi:[0,0,1]")

        def exps(j0):
            for m in range(4):
                a(f"v_exp_f32 v{R+m}, v{D+4*m+j0}")
            for m in range(4):
                a(f"v_exp_f32 v{R+4+m}, v{D+4*m+j0+1}")

        def mid(j0):
            H1, H2 = P + 4 * j0, P + 4 * j0 + 4
            N, Q = (D + j0, D + 4 + j0), (D + 8 + j0, D + 12 + j0)
            for h in range(2):
                pk("add", R + 2 * h, R + 2 * h, "1.0", mod=" op_sel_hi:[1,0]")
            for h in range(2):
                pk("fma", N[h], H2 + 2 * h, R + 2 * h, H1 + 2 * h)
            for h in range(2):
                pk("fma", Q[h], R + 2 * h, R + 4 + 2 * h, R + 2 * h)
            for h in range(2):
                pk("fma", N[h], H1 + 2 * h, R + 4 + 2 * h, N[h])

        def rcps(j0):
            for q in (D + 8 + j0, D + 9 + j0, D + 12 + j0, D + 13 + j0):
                a(f"v_rcp_f32 v{q}, v{q}")

        def fin(j0):
            acc = ACC + 2 * j0
            pk("fma", acc, D + j0, D + 8 + j0, acc)
            pk("fma", acc + 2, D + 4 + j0, D + 12 + j0, acc + 2)
        exps(0)
        mid(0)
        exps(2)
        rcps(0)
        mid(2)
        fin(0)
        rcps(2)
        a("s_nop 0")
        fin(2)

    a(f"v_add_u32 v{vT}, s{sA}, v{vRec4}")
    a(f"ds_read_b32 v{D}, v{vT}")
    advance("F0")
    a(f"v_add_u32 v{vT}, s{sA}, v{vRec4}")
    a(f"ds_read_b32 v{D+1}, v{vT}")
    advance("F1")
    a(f"v_add_u32 v{vT}, s{sA}, v{vRec4}")
    a(f"ds_read_b32 v{vS}, v{vT}")
    a("s_waitcnt lgkmcnt(2)")
    split(D)
    a("s_nop 0")
    a(f"ds_read_b64 v[{EE}:{EE+1}], v{vEa} offset:{L_EA}")
    gathers(PP[0])
    a("s_waitcnt lgkmcnt(2)")
    split(D + 1)
    a("s_nop 1")
    gathers(PP[1])
    setup_ac()
    def loop(sfx, comp):
        for o in OPTS:
            if o.startswith("al="):
                a(f".p2align {o[3:]}")
            if o.startswith("pad="):
                for _ in range(int(o[4:])):
                    a("s_nop 0")
        a.lab(f"K2_LOOP{sfx}")
        for ph in range(3):
            a("s_waitcnt lgkmcnt(0)")
            for m in range(4):
                a(f"v_mfma_f32_4x4x4_16b_bf16 v[{D+4*m}:{D+4*m+3}], v[{EE}:{EE+1}], v[{WB+2*m}:{WB+2*m+1}], v[{AC+4*m}:{AC+4*m+3}]")
            a(f"ds_read_b64 v[{EE}:{EE+1}], v{vEa} offset:{L_EA}")
            split(vS)
            advance(f"L{sfx}{ph}")
            gathers(PP[(ph + 2) % 3])
            a(f"v_add_u32 v{vT}, s{sA}, v{vRec4}")
            a(f"ds_read_b32 v{vS}, v{vT}")
            a("s_waitcnt vmcnt(8)")
            comp(PP[ph])
            a(f"s_sub_u32 s{sRem}, s{sRem}, 1")
            if ph < 2:
                a(f"s_cbranch_scc0 K2_C{sfx}{ph}")
                a(f"s_call_b64 s[{sRet}:{sRet+1}], K2_EPI")
                a.lab(f"K2_C{sfx}{ph}")
            else:
                a(f"s_cbranch_scc0 K2_LOOP{sfx}")
                a(f"s_call_b64 s[{sRet}:{sRet+1}], K2_EPI")
                a(f"s_branch K2_LOOP{sfx}")
    a(f"v_cmp_ne_u32 vcc, 0, v{D+2}")
    if "safeonly" in OPTS:
        a("s_branch K2_LOOPS")
    a("s_cbranch_vccnz K2_LOOPS")
    loop("F", compute_fast)
    loop("S", compute)

    def epilogue(acc, tmp, nregs):
        for i in range(0, nregs, 2):
            a(f"v_pk_mul_f32 v[{tmp+i}:{tmp+i+1}], v[{acc+i}:{acc+i+1}], s[{sKK}:{sKK+1}]")
        for i in range(nregs):
            a(f"v_exp_f32 v{tmp+i}, v{tmp+i}")
        a("s_nop 0")
        for i in range(0, nregs, 2):
            a(f"v_pk_add_f32 v[{tmp+i}:{tmp+i+1}], v[{tmp+i}:{tmp+i+1}], 1.0 op_sel_hi:[1,0]")
        for i in range(nregs):
            a(f"v_rcp_f32 v{tmp+i}, v{tmp+i}")
        a("s_nop 0")
        for i in range(0, nregs, 2):
            a(f"v_pk_mul_f32 v[{tmp+i}:{tmp+i+1}], v[{tmp+i}:{tmp+i+1}], v[{acc+i}:{acc+i+1}]")
        for i in range(0, nregs, 2):
            a(f"v_cvt_pk_bf16_f32 v{tmp+i//2}, v{tmp+i}, v{tmp+i+1}")

    a.lab("K2_EPI")
    epilogue(ACC, D, 8)
    auread(N2)
    a(f"v_lshrrev_b32 v{AD}, 7, v{NA}")
    a(f"v_lshrrev_b32 v{AD+1}, 7, v{NA+1}")
    a(f"v_lshl_add_u32 v{AD}, v{AD}, 8, v{vCo}")
    a(f"v_lshl_add_u32 v{AD+1}, v{AD+1}, 8, v{vCo}")
    a(f"v_cmp_gt_u32 vcc, {BN*128}, v{NA}")
    a("s_mov_b64 exec, vcc")
    a(f"buffer_store_dwordx2 v[{D}:{D+1}], v{AD}, s[{SO}:{SO+3}], s{sOutOff} offen{K2_ST}")
    a("s_mov_b64 exec, -1")
    a(f"v_cmp_gt_u32 vcc, {BN*128}, v{NA+1}")
    a("s_mov_b64 exec, vcc")
    a(f"buffer_store_dwordx2 v[{D+2}:{D+3}], v{AD+1}, s[{SO}:{SO+3}], s{sOutOff} offen{K2_ST}")
    a("s_mov_b64 exec, -1")
    a(f"s_cmp_eq_u32 s{sN2}, 0")
    a("s_cbranch_scc1 K2_FIN")
    a.stamp(14)
    a(f"s_sub_u32 s{sRem}, s{sN2}, 1")
    a(f"s_mov_b32 s{sN2}, 0")
    a(f"v_mov_b32 v{NA}, v{N2}")
    a(f"v_mov_b32 v{NA+1}, v{N2+1}")
    a("s_waitcnt lgkmcnt(0)")
    setup_ac()
    a(f"s_setpc_b64 s[{sRet}:{sRet+1}]")
    a.lab("K2_FIN")
    a.stamp(15)
    a.stampc(31)
    a.stamp_flush(1, sW)
    a("s_endpgm")

    for tag in sw_sites:
        a.lab(f"K2_SW{tag}")
        a(f"s_mov_b32 s{sA}, s{sNxtA}")
        a(f"s_mov_b32 s{sCntS}, s{sNxtCnt}")
        a(f"s_mov_b32 s{sNxtA}, {L_DUM}")
        a(f"s_mov_b32 s{sNxtCnt}, 100")
        a(f"s_branch K2_SWR{tag}")

    a.lab("K2_TAIL")
    a(f"v_lshlrev_b32 v64, 3, v{vLane}")
    a.lab("K2_TAIL_LOOP")
    a(f"s_ff1_i32_b64 s{sT0}, s[{sTM}:{sTM+1}]")
    a(f"s_bitset0_b64 s[{sTM}:{sTM+1}], s{sT0}")
    a(f"v_readlane_b32 s{sT1}, v{vDesc}, s{sT0}")
    a(f"s_add_u32 s{sT0}, s{sT0}, s{sT3}")
    a(f"s_mul_i32 s{sT0}, s{sT0}, {CH}")
    a(f"s_and_b32 s{sT2}, s{sT1}, 0xffff")
    a(f"s_add_u32 s{sT0}, s{sT0}, s{sT2}")
    a(f"s_add_u32 s{sT0}, s{sT0}, 64")
    a(f"s_sub_u32 s{sT0}, s{sT0}, s{sSp}")
    a(f"s_lshr_b32 s{sT1}, s{sT1}, 16")
    a(f"s_sub_u32 s{sT1}, s{sT1}, 64")
    a(f"s_add_u32 s{sT2}, s{sSp}, s{sT1}")
    a(f"s_cmp_gt_u32 s{sT2}, 63")
    a("s_cbranch_scc1 K2_TAILF")
    a(f"s_bfm_b64 s[{sSave}:{sSave+1}], s{sT1}, s{sSp}")
    a(f"s_or_b64 s[{sM+24}:{sM+25}], s[{sM+24}:{sM+25}], s[{sSave}:{sSave+1}]")
    a(f"s_mov_b32 s{sSp}, s{sT2}")
    a(f"s_lshl_b32 s{sT1}, s{sT0}, 2")
    a(f"s_add_u32 s{sT1}, s{sT1}, {KEY_OFF}")
    a(f"s_lshl_b32 s{sT2}, s{sT0}, 3")
    a(f"s_add_u32 s{sT2}, s{sT2}, {EAT_OFF}")
    a(f"s_mov_b64 exec, s[{sSave}:{sSave+1}]")
    a(f"buffer_load_dword v{KEYR+12}, v{vL4}, s[{SWS}:{SWS+3}], s{sT1} offen{LD}")
    a(f"buffer_load_dwordx2 v[{ET}:{ET+1}], v64, s[{SWS}:{SWS+3}], s{sT2} offen{LD}")
    a("s_mov_b64 exec, -1")
    a(f"s_cmp_lg_u64 s[{sTM}:{sTM+1}], 0")
    a("s_cbranch_scc1 K2_TAIL_LOOP")
    a("s_branch K2_TAILR")
    a.lab("K2_TAILF")
    a(f"s_mov_b32 s{sOvf}, 1")
    a("s_branch K2_TAILR")

    L_AGG = L_EA
    a.lab("K2_FALLBACK")
    a("s_waitcnt vmcnt(0) lgkmcnt(0)")
    a(f"s_mov_b32 s{sKK}, {hex(NL2E)}")
    a(f"s_mov_b32 s{sKK+1}, {hex(NL2E)}")
    a("s_barrier")
    a("v_lshlrev_b32 v51, 4, v0")
    a(f"v_add_u32 v51, {L_AGG}, v51")
    for i in range(4):
        a(f"v_mov_b32 v{56+i}, 0")
    for i in range(4):
        a(f"ds_write_b128 v51, v[56:59] offset:{i*16384}")
    a("s_waitcnt lgkmcnt(0)")
    a("s_barrier")
    srd(a, SF0, 10, E * 4)
    srd(a, SF1, 8, E * 4)
    srd(a, SF2, 6, E * 8)
    a(f"s_mul_i32 s{sT3}, s{sBk}, {BN}")
    a(f"s_mul_i32 s{sT2}, s{sBk}, {BN*128}")
    a(f"s_lshl_b32 s{sT0}, s{sW}, 5")
    a(f"v_lshrrev_b32 v51, 1, v{vG8}")
    a.lab("K2_FB_LOOP")
    a(f"s_lshl_b32 s{sT1}, s{sT0}, 1")
    a(f"buffer_load_dword v52, v51, s[{SF0}:{SF0+3}], s{sT0} offen")
    a(f"buffer_load_dword v53, v51, s[{SF1}:{SF1+3}], s{sT0} offen")
    a(f"buffer_load_dwordx2 v[54:55], v{vG8}, s[{SF2}:{SF2+3}], s{sT1} offen")
    a("s_waitcnt vmcnt(0)")
    a(f"v_subrev_u32 v52, s{sT3}, v52")
    a(f"v_cmp_gt_u32 vcc, {BN}, v52")
    a("s_mov_b64 exec, vcc")
    a("s_cbranch_execz K2_FB_NEXT")
    a(f"v_lshl_add_u32 v53, v53, 7, v{vC8}")
    a("v_and_b32 v56, 7, v52")
    a("v_lshlrev_b32 v56, 4, v56")
    a(f"v_lshl_add_u32 v52, v52, 7, v{vC8}")
    a("v_xor_b32 v56, v56, v52")
    a(f"v_add_u32 v56, {L_AUR}, v56")
    a(f"buffer_load_dwordx4 v[16:19], v53, s[{SP}:{SP+3}], 0 offen{LD}")
    a("ds_read_b128 v[20:23], v56")
    a(f"v_add_u32 v52, {L_AGG}, v52")
    a("s_waitcnt vmcnt(0) lgkmcnt(0)")
    for m in range(4):
        a(f"v_cvt_f32_f16 v{20+m}, v{20+m}")
    for m in range(4):
        a(f"v_dot2_f32_bf16 v{20+m}, v54, v{WB+2*m}, v{20+m}")
    for m in range(4):
        a(f"v_dot2_f32_bf16 v{20+m}, v55, v{WB+2*m+1}, v{20+m}")
    a("s_nop 3")
    for m in range(4):
        a(f"v_fma_mix_f32 v{20+m}, v{20+m}, s{sK}, v{16+m} op_sel_hi:[0,0,1]")
    for m in range(4):
        a(f"v_exp_f32 v{20+m}, v{20+m}")
    a("s_nop 0")
    for m in range(4):
        a(f"v_add_f32 v{20+m}, 1.0, v{20+m}")
    for m in range(4):
        a(f"v_rcp_f32 v{20+m}, v{20+m}")
    a("s_nop 0")
    for m in range(4):
        a(f"v_mul_f32 v{20+m}, v{20+m}, v{16+m}")
    for m in range(4):
        a(f"ds_add_f32 v52, v{20+m} offset:{4*m}")
    a.lab("K2_FB_NEXT")
    a("s_mov_b64 exec, -1")
    a(f"s_add_u32 s{sT0}, s{sT0}, 512")
    a(f"s_cmp_lt_u32 s{sT0}, {E*4}")
    a("s_cbranch_scc1 K2_FB_LOOP")
    a("s_waitcnt lgkmcnt(0)")
    a("s_barrier")
    a(f"s_lshl_b32 s{sT0}, s{sW}, 10")
    a(f"v_lshlrev_b32 v51, 4, v{vG8}")
    a.lab("K2_FB_OUT")
    a(f"v_add_u32 v52, s{sT0}, v51")
    a(f"v_add_u32 v53, v52, v{vC8}")
    a(f"v_lshlrev_b32 v56, 1, v{vG8}")
    a("v_xor_b32 v56, v56, v53")
    a(f"v_min_u32 v56, {399*128+112}, v56")
    a(f"v_add_u32 v56, {L_AUR}, v56")
    a("ds_read_b128 v[16:19], v56")
    a(f"v_add_u32 v53, {L_AGG}, v53")
    a("ds_read_b128 v[20:23], v53")
    a("s_waitcnt vmcnt(0) lgkmcnt(0)")
    for m in range(4):
        a(f"v_add_f32 v{16+m}, v{16+m}, v{20+m}")
    epilogue(16, 24, 4)
    a(f"v_lshl_add_u32 v53, v52, 1, v{vCo}")
    a(f"v_cmp_gt_u32 vcc, {BN*128}, v52")
    a("s_mov_b64 exec, vcc")
    a(f"buffer_store_dwordx2 v[24:25], v53, s[{SO}:{SO+3}], s{sOutOff} offen{K2_ST}")
    a("s_mov_b64 exec, -1")
    a(f"s_add_u32 s{sT0}, s{sT0}, 16384")
    a(f"s_cmp_lt_u32 s{sT0}, {BN*128}")
    a("s_cbranch_scc1 K2_FB_OUT")
    a.lab("K2_END")
    a("s_endpgm")


def kd(name, vgpr, sgpr, extra=""):
    acc = (vgpr + 3) // 4 * 4
    return f""".amdhsa_kernel {name}
  .amdhsa_next_free_vgpr {vgpr}
  .amdhsa_next_free_sgpr {sgpr}
  .amdhsa_accum_offset {acc}
  .amdhsa_group_segment_fixed_size 0
  .amdhsa_kernarg_size 80
  .amdhsa_user_sgpr_count 2
  .amdhsa_user_sgpr_kernarg_segment_ptr 1
  .amdhsa_system_sgpr_workgroup_id_x 1
{extra}.end_amdhsa_kernel
"""


def main():
    out = HEADER
    if FUSED:
        out += f"; @launch grid=(256,1,1) block=(1024,1,1) lds={K1_LDS}\n"
    else:
        out += f"; @launch kernel=k1_kernel grid=(256,1,1) block=(1024,1,1) lds={K1_LDS}\n"
        out += f"; @launch kernel=k2_kernel grid=(256,1,1) block=(1024,1,1) lds={K2_LDS}\n"
    out += '.amdgcn_target "amdgcn-amd-amdhsa--gfx950"\n.text\n'
    for name, g in ((KNAME if FUSED else "k1_kernel", gen_k1), ("k2_kernel", gen_k2)):
        a = A()
        g(a)
        if not (FUSED and g is gen_k2):
            out += f".globl {name}\n.p2align 8\n.type {name},@function\n"
        out += "\n".join(a.l) + "\n"
    out += '.section .rodata,"a"\n.p2align 6\n'
    out += kd(KNAME if FUSED else "k1_kernel", 128, 102, "  .amdhsa_fp16_overflow 1\n")
    if not FUSED:
        out += ".p2align 6\n"
        out += kd("k2_kernel", 128, 102)
    path = sys.argv[1] if len(sys.argv) > 1 else "gather_scatter__edge_featured_mpnn_egc__graph.s"
    open(path, "w").write(out)


if __name__ == "__main__":
    main()
```

```python
import sys

N = 25000
E = 400000
NB = 64
BN = 391
CH = 3200
NCH = 125
PS = 25040 * 128
P_OFF = 0
AU_OFF = 0x1000000
KEY_OFF = 0x2000000
EAT_OFF = 0x2200000
DESC_OFF = 0x2800000
GCNT_OFF = 0x2810000
WS_USED = 0x2900000
NL2E = 0xBFB8AA3B
MAGIC = 85817

OPTS = set(sys.argv[2:])
STAMPS = "stamps" in OPTS
STAMP_OFF = 0x3000000
K1_ST = ""
K2_ST = " nt"
NT_E = "" if "noent" in OPTS else " nt"
NT_X = " nt" if "xnt" in OPTS else ""
FUSED = "split" not in OPTS
K1_ST = " sc1"
P_ST = " sc1 nt" if "pnt" in OPTS else (" sc0 sc1" if "p01" in OPTS else " sc1")
G_LD = "" if "gplain" in OPTS else " sc1"
LD = " sc1" if FUSED else ""
KNAME = "gather_scatter__edge_featured_mpnn_egc__graph_kernel"
SDB = 96
TMAP = "notmap" not in OPTS
SLP = 1 if "slp1" in OPTS else 4
for o in OPTS:
    if o.startswith("k1st="):
        K1_ST = " " + o[5:].replace("+", " ")
    if o.startswith("k2st="):
        K2_ST = " " + o[5:].replace("+", " ")

HEADER = """; Kernarg layout for this problem (80 bytes, ptrs only, base s[0:1]):
"""


class A:
    def __init__(self):
        self.l = []
        self.vst = None

    def __call__(self, s):
        for x in s.strip().split("\n"):
            self.l.append("    " + x.strip())

    def lab(self, s):
        self.l.append(s + ":")

    def c(self, s):
        self.l.append("    ; " + s)

    def stamp(self, idx):
        if not STAMPS:
            return
        self("s_memrealtime s[100:101]")
        self("s_waitcnt lgkmcnt(0)")
        self(f"v_writelane_b32 v{self.vst}, s100, {idx}")

    def stampc(self, idx):
        if not STAMPS:
            return
        self("s_memtime s[100:101]")
        self("s_waitcnt lgkmcnt(0)")
        self(f"v_writelane_b32 v{self.vst}, s100, {idx}")

    def stamp_flush(self, kidx, sw):
        if not STAMPS:
            return
        self("s_mov_b64 exec, -1")
        self(f"s_add_u32 s12, s20, {STAMP_OFF + kidx*0x100000}")
        self("s_addc_u32 s13, s21, 0")
        self("s_mov_b32 s14, 0x100000")
        self("s_mov_b32 s15, 0x20000")
        self("s_lshl_b32 s100, s2, 12")
        self(f"v_mbcnt_lo_u32_b32 v{self.vst+1}, -1, 0")
        self(f"v_mbcnt_hi_u32_b32 v{self.vst+1}, -1, v{self.vst+1}")
        self(f"v_lshlrev_b32 v{self.vst+1}, 2, v{self.vst+1}")
        self(f"s_lshl_b32 s101, s{sw}, 8")
        self("s_add_u32 s100, s100, s101")
        self(f"buffer_store_dword v{self.vst}, v{self.vst+1}, s[12:15], s100 offen")


def srd(a, d, base, size, off=0):
    if off:
        a(f"s_add_u32 s{d}, s{base}, {off}")
        a(f"s_addc_u32 s{d+1}, s{base+1}, 0")
    else:
        a(f"s_mov_b32 s{d}, s{base}")
        a(f"s_mov_b32 s{d+1}, s{base+1}")
    a(f"s_mov_b32 s{d+2}, {size}")
    a(f"s_mov_b32 s{d+3}, 0x20000")


def scan64(a, v):
    for sh in (1, 2, 4, 8):
        a("s_nop 1")
        a(f"v_add_u32_dpp v{v}, v{v}, v{v} row_shr:{sh} row_mask:0xf bank_mask:0xf bound_ctrl:0")
    a("s_nop 1")
    a(f"v_add_u32_dpp v{v}, v{v}, v{v} row_bcast:15 row_mask:0xa bank_mask:0xf")
    a("s_nop 1")
    a(f"v_add_u32_dpp v{v}, v{v}, v{v} row_bcast:31 row_mask:0xc bank_mask:0xf")


K1_WP = 98304
K1_WAU = 102400
K1_CNT = 118784
K1_STK = K1_CNT + 2048
K1_STE = K1_STK + 12800
K1_SCR = 131072
L_AUR = 112640
L_GW = 103936
K1_LDS = 163840
assert K1_STE + 25600 <= K1_LDS


def poll(a, tag, vP, off, val=None, slp=2):
    a("s_mov_b32 s101, 0x40000")
    a("s_mov_b64 exec, 1")
    a.lab(f"POLL{tag}")
    a(f"buffer_load_dword v{vP}, off, s[{SDB}:{SDB+3}], 0 offset:{off} sc1")
    a("s_waitcnt vmcnt(0)")
    a(f"v_cmp_ne_u32 vcc, 0, v{vP}" if val is None else f"v_cmp_eq_u32 vcc, {val}, v{vP}")
    a("s_sub_u32 s101, s101, 1")
    a(f"s_cbranch_scc1 POLLD{tag}")
    a(f"s_cbranch_vccnz POLLD{tag}")
    a(f"s_sleep {slp}")
    a(f"s_branch POLL{tag}")
    a.lab(f"POLLD{tag}")
    a("s_mov_b64 exec, -1")


def gen_k1(a):
    sW, sSl, sBk, sT0, sT1, sT2, sT3 = 22, 23, 24, 25, 26, 27, 28
    sG = 29
    sEx = 30
    SD, SS, SE, SWS, SX, SWL, SWH = 32, 36, 40, 44, 48, 52, 56
    sScale, sOut, sS, sQ, sX0, sDl, sJ, sSlot = 60, 61, 62, 63, 64, 65, 66, 67
    sUns = 94
    vLane = 1
    VX = 40
    VW = 44
    a.lab(KNAME)
    a.vst = 11
    a("s_cmp_ge_u32 s2, 256")
    a("s_cbranch_scc1 K1_END2")
    a.stamp(0)
    a.stampc(30)
    a("s_load_dwordx16 s[4:19], s[0:1], 0")
    a("s_load_dwordx2 s[20:21], s[0:1], 72")
    a(f"s_load_dwordx2 s[{SDB}:{SDB+1}], s[0:1], 64")
    a("v_lshrrev_b32 v2, 6, v0")
    a(f"v_and_b32 v{vLane}, 63, v0")
    a(f"v_readfirstlane_b32 s{sW}, v2")
    a(f"s_mov_b32 s{SDB+2}, 256")
    a(f"s_mov_b32 s{SDB+3}, 0x20000")
    a(f"s_and_b32 s{sSl}, s2, 3")
    a(f"s_lshr_b32 s{sT0}, s2, 2")
    if "oldmap" in OPTS:
        a(f"s_mov_b32 s{sBk}, s{sT0}")
    else:
        a.c("bucket = 32*((wg>>2)&1) + (wg>>3): workgroups that share an L2 take neighbouring buckets")
        a(f"s_and_b32 s{sBk}, s{sT0}, 1")
        a(f"s_lshl_b32 s{sBk}, s{sBk}, 5")
        a(f"s_lshr_b32 s{sT1}, s2, 3")
        if TMAP:
            a(f"s_lshl_b32 s{sT2}, s2, 3")
            a(f"s_and_b32 s{sT2}, s{sT2}, 16")
            a(f"s_xor_b32 s{sT1}, s{sT1}, s{sT2}")
        a(f"s_or_b32 s{sBk}, s{sBk}, s{sT1}")
    if TMAP:
        a(f"s_mov_b32 s{sG}, s2")
    else:
        a(f"s_lshl_b32 s{sG}, s{sT0}, 1")
        a(f"s_add_u32 s{sG}, s{sG}, s{sSl}")
    a(f"s_mul_i32 s{sX0}, s{sBk}, {BN*256}")
    if TMAP:
        a(f"s_and_b32 s{sT2}, s2, 0x81")
        a(f"s_cmp_eq_u32 s{sT2}, 0x80")
    else:
        a(f"s_cmp_eq_u32 s{sSl}, 2")
    a(f"s_cselect_b32 s{sDl}, 1, 0")
    a("v_lshlrev_b32 v2, 4, v0")
    a("v_lshlrev_b32 v3, 5, v0")
    a(f"v_lshrrev_b32 v4, 4, v{vLane}")
    a(f"v_and_b32 v5, 15, v{vLane}")
    a("v_xor_b32 v6, v5, v4")
    a("v_lshlrev_b32 v6, 4, v6")
    a(f"v_lshl_add_u32 v{VX}, v4, 8, v6")
    a(f"v_xor_b32 v{VX+1}, 64, v{VX}")
    a(f"v_xor_b32 v{VX+2}, 0x80, v{VX}")
    a(f"v_xor_b32 v{VX+3}, 0xc0, v{VX}")
    a("v_lshrrev_b32 v6, 1, v5")
    a("v_xor_b32 v6, v6, v4")
    a("v_lshlrev_b32 v6, 5, v6")
    a("v_lshl_add_u32 v6, v4, 8, v6")
    a(f"v_and_b32 v7, 1, v{vLane}")
    a(f"v_lshl_add_u32 v{VW}, v7, 4, v6")
    a(f"v_xor_b32 v{VW+1}, 0x80, v{VW}")
    a(f"v_lshrrev_b32 v6, 2, v{vLane}")
    a("v_lshlrev_b32 v6, 8, v6")
    a(f"v_and_b32 v7, 3, v{vLane}")
    a(f"v_lshrrev_b32 v8, 4, v{vLane}")
    a("v_and_b32 v8, 2, v8")
    a("v_xor_b32 v7, v7, v8")
    a(f"v_lshl_add_u32 v{VW+2}, v7, 4, v6")
    if "icode" in OPTS:
        a.c("pull this kernel's code into the XCD's L2 (wave 15 of the first workgroups)")
        a(f"s_cmp_lg_u32 s{sW}, 15")
        a("s_cbranch_scc1 K1_NOIC")
        a("s_cmp_ge_u32 s2, 16")
        a("s_cbranch_scc1 K1_NOIC")
        a("s_getpc_b64 s[68:69]")
        a(f"v_lshlrev_b32 v60, 7, v{vLane}")
        a.lab("K1_ICB")
        a("global_load_dword v61, v60, s[68:69]")
        a("s_add_u32 s68, s68, 8192")
        a("s_addc_u32 s69, s69, 0")
        a("s_bfm_b64 exec, (K2_END-K1_ICB-8192)/128, 0")
        a("global_load_dword v62, v60, s[68:69]")
        a("s_mov_b64 exec, -1")
        a.lab("K1_NOIC")
    a("s_waitcnt lgkmcnt(0)")
    a.stamp(1)
    srd(a, SX, 4, N * 256)
    a("s_cmp_ge_u32 s2, 128" if TMAP else f"s_cmp_ge_u32 s{sSl}, 2")
    a("s_cbranch_scc1 K1_TB")

    def xdma(slot_sgpr, tag):
        a(f"s_lshl_b32 s{sT0}, s{slot_sgpr}, 12")
        a(f"s_mov_b32 m0, s{sT0}")
        a(f"s_sub_u32 s{sT1}, s{slot_sgpr}, s{sDl}")
        a(f"s_cselect_b32 s{sT1}, 24, s{sT1}")
        a(f"s_lshl_b32 s{sT1}, s{sT1}, 12")
        a(f"s_add_u32 s{sT1}, s{sT1}, s{sX0}")
        for pp in range(4):
            a(f"buffer_load_dwordx4 v{VX+pp}, s[{SX}:{SX+3}], s{sT1} offen offset:{pp*1024}{NT_X} lds")

    def waudma(piece_sgpr):
        a(f"s_lshl_b32 s{sT0}, s{piece_sgpr}, 10")
        a(f"s_add_u32 s{sT0}, s{sT0}, {K1_WAU}")
        a(f"s_mov_b32 m0, s{sT0}")
        a(f"s_and_b32 s{sT1}, s{piece_sgpr}, 7")
        a(f"s_lshl_b32 s{sT1}, s{sT1}, 12")
        a(f"s_lshl_b32 s{sT0}, s{sSl}, 6")
        a(f"s_add_u32 s{sT1}, s{sT1}, s{sT0}")
        a(f"s_cmp_lt_u32 s{piece_sgpr}, 8")
        a(f"s_cselect_b32 s{SWL}, s16, s12")
        a(f"s_cselect_b32 s{SWL+1}, s17, s13")
        a(f"s_mov_b32 s{SWL+2}, 32768")
        a(f"s_mov_b32 s{SWL+3}, 0x20000")
        a(f"buffer_load_dwordx4 v{VW+2}, s[{SWL}:{SWL+3}], s{sT1} offen lds")

    a(f"s_cmp_ge_u32 s{sG}, {NCH}")
    a("s_cbranch_scc1 K1_NOEDGE")
    a(f"s_cmp_ge_u32 s{sW}, 13")
    a("s_cbranch_scc1 K1_NOEDGE")
    srd(a, SD, 10, E * 4)
    srd(a, SS, 8, E * 4)
    srd(a, SE, 6, E * 8)
    a("v_cmp_gt_u32 vcc, 800, v0")
    a(f"s_mul_i32 s{sT0}, s{sG}, {CH*4}")
    a(f"s_mul_i32 s{sT1}, s{sG}, {CH*8}")
    a(f"s_mov_b64 s[{sEx}:{sEx+1}], vcc")
    a("s_mov_b64 exec, vcc")
    a(f"buffer_load_dwordx4 v[16:19], v2, s[{SD}:{SD+3}], s{sT0} offen{NT_E}")
    a(f"buffer_load_dwordx4 v[20:23], v2, s[{SS}:{SS+3}], s{sT0} offen{NT_E}")
    a(f"buffer_load_dwordx4 v[24:27], v3, s[{SE}:{SE+3}], s{sT1} offen{NT_E}")
    a(f"buffer_load_dwordx4 v[28:31], v3, s[{SE}:{SE+3}], s{sT1} offen offset:16{NT_E}")
    a("s_mov_b64 exec, -1")
    a.lab("K1_NOEDGE")
    srd(a, SWS, 20, WS_USED)
    a(f"v_lshlrev_b32 v6, 2, v{vLane}")
    a(f"v_add_u32 v6, {K1_CNT}, v6")
    a("v_mov_b32 v7, 0")
    a(f"v_mov_b32 v12, {K1_CNT+1024}")
    a(f"s_cmp_lg_u32 s{sW}, 0")
    a("s_cbranch_scc1 K1_P1")
    a("ds_write_b32 v6, v7")
    a("ds_write_b32 v6, v7 offset:256")
    a("ds_write_b32 v6, v7 offset:1024")
    a("s_waitcnt lgkmcnt(0)")
    a.lab("K1_P1")
    a("s_barrier")
    a(f"s_cmp_lt_u32 s{sW}, 13")
    a("s_cbranch_scc1 K1_PW")
    a.c("loader waves 13..15 : W_AU pieces and x tiles by LDS-DMA")
    a(f"s_sub_u32 s{sJ}, s{sW}, 13")
    a.lab("K1_LA1")
    waudma(sJ)
    a(f"s_add_u32 s{sJ}, s{sJ}, 3")
    a(f"s_cmp_lt_u32 s{sJ}, 16")
    a("s_cbranch_scc1 K1_LA1")
    a(f"s_sub_u32 s{sJ}, s{sW}, 13")
    xdma(sJ, "A0")
    a(f"s_add_u32 s{sJ}, s{sJ}, 3")
    xdma(sJ, "A1")
    a(f"s_add_u32 s{sJ}, s{sJ}, 3")
    a("v_mov_b32 v7, 1")
    a("s_waitcnt vmcnt(8)")
    a("s_mov_b64 exec, 1")
    a("ds_add_u32 v12, v7 offset:12")
    a("s_mov_b64 exec, -1")
    HOLD = [int(o[5:]) for o in OPTS if o.startswith("hold=")]
    if HOLD:
        for h in range(HOLD[0] - 2):
            xdma(sJ, f"AH{h}")
            a(f"s_add_u32 s{sJ}, s{sJ}, 3")
        a.c("let the partition's record stores go out first")
        a(f"s_cmp_ge_u32 s{sG}, {NCH}")
        a("s_cbranch_scc1 K1_LA2")
        a.lab("K1_HOLD")
        a("ds_read_b32 v13, v12 offset:16")
        a("s_waitcnt lgkmcnt(0)")
        a("v_cmp_gt_u32 vcc, 13, v13")
        a("s_cbranch_vccnz K1_HOLD")
    a.lab("K1_LA2")
    xdma(sJ, "A")
    a(f"s_add_u32 s{sJ}, s{sJ}, 3")
    a(f"s_cmp_lt_u32 s{sJ}, 25")
    a("s_cbranch_scc1 K1_LA2")
    a.stamp(2)
    a("s_branch K1_AUA")
    a.lab("K1_PW")
    a(f"s_cmp_ge_u32 s{sG}, {NCH}")
    a("s_cbranch_scc1 K1_AUA")

    def sb(k, tag):
        a("s_waitcnt lgkmcnt(0)")
        a("s_mov_b64 exec, 1")
        a(f"ds_add_u32 v12, v7 offset:{4+4*k}")
        a("s_mov_b64 exec, -1")
        a.lab(f"K1_SB{tag}")
        a(f"ds_read_b32 v13, v12 offset:{4+4*k}")
        a("s_waitcnt lgkmcnt(0)")
        a("v_cmp_gt_u32 vcc, 13, v13")
        a(f"s_cbranch_vccnz K1_SB{tag}")
    a(f"s_mov_b32 s{sT0}, {MAGIC}")
    a(f"s_mov_b32 s{sT1}, {-BN & 0xffffffff}")
    a("v_mov_b32 v7, 1")
    a(f"s_mov_b64 exec, s[{sEx}:{sEx+1}]")
    a("s_waitcnt vmcnt(3)")
    a.stamp(3)
    for i in range(4):
        a(f"v_mul_u32_u24 v{32+i}, s{sT0}, v{16+i}")
    for i in range(4):
        a(f"v_lshrrev_b32 v{32+i}, 25, v{32+i}")
    for i in range(4):
        a(f"v_mad_i32_i24 v{16+i}, v{32+i}, s{sT1}, v{16+i}")
    for i in range(4):
        a(f"v_lshlrev_b32 v{32+i}, 2, v{32+i}")
    for i in range(4):
        a(f"v_add_u32 v{32+i}, {K1_CNT}, v{32+i}")
    for i in range(4):
        a(f"ds_add_rtn_u32 v{36+i}, v{32+i}, v7")
    for i in range(4):
        a(f"v_lshlrev_b32 v{16+i}, 2, v{16+i}")
    a("s_waitcnt vmcnt(2)")
    for i in range(4):
        a(f"v_lshl_or_b32 v{20+i}, v{20+i}, 16, v{16+i}")
    sb(0, "2")
    a.stamp(4)
    a("ds_read_b32 v8, v6")
    a("s_waitcnt lgkmcnt(0)")
    a("v_mov_b32 v9, v8")
    scan64(a, 9)
    a("v_sub_u32 v9, v9, v8")
    a("ds_write_b32 v6, v9 offset:512")
    a("v_lshl_or_b32 v8, v8, 16, v9")
    a(f"s_mov_b64 exec, s[{sEx}:{sEx+1}]")
    for i in range(4):
        a(f"ds_read_b32 v{32+i}, v{32+i} offset:512")
    a("s_waitcnt lgkmcnt(0)")
    for i in range(4):
        a(f"v_add_u32 v{32+i}, v{32+i}, v{36+i}")
    for i in range(4):
        a(f"v_lshlrev_b32 v{36+i}, 2, v{32+i}")
        a(f"v_lshlrev_b32 v{32+i}, 3, v{32+i}")
    for i in range(4):
        a(f"v_add_u32 v{36+i}, {K1_STK}, v{36+i}")
        a(f"v_add_u32 v{32+i}, {K1_STE}, v{32+i}")
    for i in range(4):
        a(f"ds_write_b32 v{36+i}, v{20+i}")
    a("s_waitcnt vmcnt(0)")
    for i in range(4):
        a(f"ds_write_b64 v{32+i}, v[{24+2*i}:{25+2*i}]")
    a("v_or3_b32 v16, v24, v25, v26")
    a("v_or3_b32 v17, v27, v28, v29")
    a("v_or3_b32 v16, v30, v31, v16")
    a("v_or_b32 v16, v16, v17")
    a("v_and_b32 v16, 0x40004000, v16")
    a("v_cmp_ne_u32 vcc, 0, v16")
    a(f"s_cmp_lg_u64 vcc, 0")
    a(f"s_cselect_b32 s{sUns}, 0x101, 1")
    sb(1, "3")
    a.stamp(5)
    a(f"s_mov_b64 exec, s[{sEx}:{sEx+1}]")
    a(f"v_add_u32 v6, {K1_STK}, v2")
    a("ds_read_b128 v[16:19], v6")
    a("ds_read_b128 v[20:23], v6 offset:12800")
    a("ds_read_b128 v[24:27], v6 offset:25600")
    a(f"s_mul_i32 s{sT0}, s{sG}, {CH*4}")
    a(f"s_add_u32 s{sT0}, s{sT0}, {KEY_OFF}")
    a(f"s_mul_i32 s{sT1}, s{sG}, {CH*8}")
    a(f"s_add_u32 s{sT1}, s{sT1}, {EAT_OFF}")
    a(f"s_add_u32 s{sT2}, s{sT1}, 12800")
    a("s_waitcnt lgkmcnt(2)")
    a(f"buffer_store_dwordx4 v[16:19], v2, s[{SWS}:{SWS+3}], s{sT0} offen{K1_ST}")
    a("s_waitcnt lgkmcnt(1)")
    a(f"buffer_store_dwordx4 v[20:23], v2, s[{SWS}:{SWS+3}], s{sT1} offen{K1_ST}")
    a("s_waitcnt lgkmcnt(0)")
    a(f"buffer_store_dwordx4 v[24:27], v2, s[{SWS}:{SWS+3}], s{sT2} offen{K1_ST}")
    a("s_mov_b64 exec, -1")
    a(f"s_cmp_lg_u32 s{sW}, 0")
    a("s_cbranch_scc1 K1_P2B")
    a(f"v_lshlrev_b32 v9, 2, v{vLane}")
    a(f"s_lshl_b32 s{sT0}, s{sG}, 8")
    a(f"s_add_u32 s{sT0}, s{sT0}, {DESC_OFF}")
    a(f"buffer_store_dword v8, v9, s[{SWS}:{SWS+3}], s{sT0} offen{K1_ST}")
    a.lab("K1_P2B")
    if HOLD:
        a("s_mov_b64 exec, 1")
        a("ds_add_u32 v12, v7 offset:16")
        a("s_mov_b64 exec, -1")
    a.c("publish the partition: the last of the 13 storing waves counts this workgroup into R")
    a(f"v_mov_b32 v15, s{sUns}")
    a("s_waitcnt vmcnt(0)")
    a("s_mov_b64 exec, 1")
    a("ds_add_rtn_u32 v14, v12, v15")
    a("s_waitcnt lgkmcnt(0)")
    a("v_add_u32 v14, v14, v15")
    a("v_and_b32 v15, 0xff, v14")
    a("v_cmp_eq_u32 vcc, 13, v15")
    a("s_cbranch_vccz K1_NOR2")
    a("v_lshrrev_b32 v14, 8, v14")
    a("v_lshl_or_b32 v14, v14, 16, 1")
    a("v_mov_b32 v15, v14")
    a(f"buffer_atomic_add v15, off, s[{SDB}:{SDB+3}], 0 sc0 sc1")
    a("s_waitcnt vmcnt(0)")
    a("v_add_u32 v15, v15, v14")
    a("v_and_b32 v14, 0xffff, v15")
    a(f"v_cmp_eq_u32 vcc, {NCH}, v14")
    a("s_cbranch_vccz K1_NOR2")
    a(f"buffer_store_dword v15, off, s[{SDB}:{SDB+3}], 0 offset:192 sc1")
    a.lab("K1_NOR2")
    a("s_mov_b64 exec, -1")
    a.stamp(6)
    a.lab("K1_AUA")
    a("ds_read_b32 v13, v12 offset:12")
    a("s_waitcnt lgkmcnt(0)")
    a("v_cmp_gt_u32 vcc, 3, v13")
    a("s_cbranch_vccnz K1_AUA")
    a("s_branch K1_AU")

    a.lab("K1_TB")
    a(f"s_add_u32 s{sT0}, s16, 32768")
    a(f"s_addc_u32 s{sT1}, s17, 0")
    a(f"s_cmp_lt_u32 s{sW}, 8")
    a(f"s_cselect_b32 s{SWH}, s{sT0}, s14")
    a(f"s_cselect_b32 s{SWH+1}, s{sT1}, s15")
    a(f"s_mov_b32 s{SWH+2}, 32768")
    a(f"s_mov_b32 s{SWH+3}, 0x20000")
    a(f"s_lshl_b32 s{sT0}, s{sW}, 12")
    a(f"s_add_u32 s{sT1}, s{sT0}, {K1_WP}")
    a(f"s_mov_b32 m0, s{sT1}")
    a(f"s_and_b32 s{sT0}, s{sT0}, 0x7fff")
    for pp in range(4):
        a(f"buffer_load_dwordx4 v{VW+(pp>>1)}, s[{SWH}:{SWH+3}], s{sT0} offen offset:{pp*1024} lds")
    srd(a, SWS, 20, WS_USED)

    def xup():
        a(f"s_cmp_ge_u32 s{sW}, 13")
        a("s_cbranch_scc1 K1_B0")
        a(f"s_lshl_b32 s{sJ}, s{sW}, 1")
        a(f"s_add_u32 s{sJ}, s{sJ}, 1")
        a(f"s_cmp_eq_u32 s{sW}, 12")
        a(f"s_cselect_b32 s{sJ}, 0, s{sJ}")
        xdma(sJ, "B")
        a.lab("K1_B0")
    if "wfirst" not in OPTS:
        xup()
    a(f"s_and_b32 s{sS}, s{sW}, 3")
    a(f"s_lshr_b32 s{sQ}, s{sW}, 2")
    a(f"v_lshrrev_b32 v2, 4, v{vLane}")
    a(f"v_and_b32 v3, 15, v{vLane}")
    a("v_lshrrev_b32 v48, 2, v3")
    a("v_and_b32 v49, 1, v2")
    a("v_lshl_or_b32 v49, v49, 2, v48")
    a(f"s_lshl_b32 s{sT0}, s{sS}, 1")
    a(f"v_xor_b32 v49, s{sT0}, v49")
    a("v_lshlrev_b32 v49, 5, v49")
    a("v_lshl_add_u32 v48, v2, 3, v48")
    a("v_lshl_add_u32 v48, v48, 8, v49")
    a(f"v_and_b32 v49, 3, v{vLane}")
    a("v_lshl_add_u32 v48, v49, 3, v48")
    a(f"v_add_u32 v48, {K1_WP}, v48")
    a("v_xor_b32 v49, 32, v48")
    a("v_and_b32 v10, 7, v3")
    a("v_xor_b32 v10, v10, v2")
    a("v_lshlrev_b32 v10, 4, v10")
    a("v_lshl_add_u32 v10, v3, 7, v10")
    a(f"s_lshl_b32 s{sT0}, s{sW}, 11")
    a(f"s_add_u32 s{sT0}, s{sT0}, {K1_SCR}")
    a(f"v_add_u32 v10, s{sT0}, v10")
    a("v_xor_b32 v0, 64, v10")
    a(f"v_lshlrev_b32 v2, 4, v{vLane}")
    a(f"v_add_u32 v2, s{sT0}, v2")
    a(f"v_lshrrev_b32 v3, 3, v{vLane}")
    a(f"v_and_b32 v28, 7, v{vLane}")
    a("v_xor_b32 v28, v28, v3")
    a("v_lshlrev_b32 v28, 4, v28")
    a("v_lshl_add_u32 v3, v3, 7, v28")
    a(f"s_mov_b32 s{sScale}, {hex(NL2E)}")
    if "wfirst" in OPTS:
        a("s_waitcnt vmcnt(0)")
        xup()
    else:
        a(f"s_cmp_ge_u32 s{sW}, 13")
        a("s_cbranch_scc1 K1_B1")
        a("s_waitcnt vmcnt(4)")
        a("s_branch K1_B2")
        a.lab("K1_B1")
        a("s_waitcnt vmcnt(0)")
        a.lab("K1_B2")
    a.stamp(2)
    a("s_barrier")
    WF = 64

    def wf(mat, ct, ks):
        return WF + ((mat * 2 + ct) * 4 + ks) * 4
    for ks in range(4):
        for mat in range(2):
            for ct in range(2):
                b = wf(mat, ct, ks)
                off = mat * 32768 + ks * 8192
                a(f"ds_read_b64_tr_b16 v[{b}:{b+1}], v{48+ct} offset:{off}")
                a(f"ds_read_b64_tr_b16 v[{b+2}:{b+3}], v{48+ct} offset:{off+1024}")
    a("s_waitcnt lgkmcnt(0)")
    a.stamp(3)
    a("s_barrier")
    waudma(sW)

    def xlate(tag):
        a(f"s_cmp_ge_u32 s{sW}, 12")
        a(f"s_cbranch_scc1 K1_B3{tag}")
        a(f"s_lshl_b32 s{sJ}, s{sW}, 1")
        a(f"s_add_u32 s{sJ}, s{sJ}, 2")
        xdma(sJ, "C")
        if tag:
            a("s_waitcnt vmcnt(4)")
            a("s_branch K1_B4")
        a.lab(f"K1_B3{tag}")
        if tag:
            a("s_waitcnt vmcnt(0)")
            a.lab("K1_B4")
    if "early" in OPTS:
        a("s_barrier")
        xlate("E")
    XF = [32, 48]

    def xconst():
        a(f"v_lshrrev_b32 v4, 4, v{vLane}")
        a(f"v_and_b32 v5, 15, v{vLane}")
        a("v_xor_b32 v4, v4, v5")
        a("v_lshlrev_b32 v4, 4, v4")
        a("v_lshl_add_u32 v5, v5, 8, v4")

    def xread(buf, slot_sgpr):
        a(f"s_lshl_b32 s{sT0}, s{slot_sgpr}, 12")
        a(f"v_add_u32 v6, s{sT0}, v5")
        a("v_xor_b32 v7, 64, v6")
        a("v_xor_b32 v8, 0x80, v6")
        a("v_xor_b32 v9, 0xc0, v6")
        for ks in range(4):
            a(f"ds_read_b128 v[{XF[buf]+4*ks}:{XF[buf]+4*ks+3}], v{6+ks}")

    def mfmas(buf, mid=None):
        for ks in range(4):
            for mat in range(2):
                for ct in range(2):
                    d = 16 + (mat * 2 + ct) * 4
                    b = wf(mat, ct, ks)
                    cin = "0" if ks == 0 else f"v[{d}:{d+3}]"
                    a(f"v_mfma_f32_16x16x32_bf16 v[{d}:{d+3}], v[{b}:{b+3}], v[{XF[buf]+4*ks}:{XF[buf]+4*ks+3}], {cin}")
            if ks == 0 and mid:
                mid()
    xconst()
    a(f"s_lshl_b32 s{sSlot}, s{sQ}, 1")
    a(f"s_add_u32 s{sSlot}, s{sSlot}, 1")
    a(f"s_mul_i32 s{sOut}, s{sS}, {PS}")
    a(f"s_lshr_b32 s{sT0}, s{sX0}, 1")
    a(f"s_add_u32 s{sOut}, s{sOut}, s{sT0}")
    a(f"s_sub_u32 s{sT0}, s{sSlot}, s{sDl}")
    a(f"s_lshl_b32 s{sT0}, s{sT0}, 11")
    a(f"s_add_u32 s{sOut}, s{sOut}, s{sT0}")
    a.stamp(4)
    a("v_mov_b32 v4, 0")
    if "early" not in OPTS:
        a("s_waitcnt vmcnt(0)")
    a.stamp(5)
    a("s_barrier")
    a.stamp(7)
    a.stampc(31)
    if "early" not in OPTS:
        xlate("")
    xread(0, sSlot)
    for i in range(4):
        buf = i & 1
        if i == 3:
            a.c("13th P tile (tile 24, slot 0): slice 2, set 0 only")
            a(f"s_cmp_lg_u32 s{sQ}, 0")
            a("s_cbranch_scc1 K1_PDONE")
            a(f"s_cmp_eq_u32 s{sDl}, 0")
            a("s_cbranch_scc1 K1_PDONE")
        if i < 2:
            a(f"s_add_u32 s{sSlot}, s{sSlot}, 8")
        elif i == 2:
            a(f"s_mov_b32 s{sSlot}, 0")
        a("s_waitcnt lgkmcnt(0)")
        mfmas(buf, (lambda: xread(buf ^ 1, sSlot)) if i < 3 else None)
        a("s_nop 7")
        for r in range(16, 32, 2):
            a(f"v_max3_f32 v4, abs(v{r}), abs(v{r+1}), v4")
        for ct in range(2):
            for j in range(4):
                a(f"v_fma_mixlo_f16 v{24+4*ct+j}, v{16+4*ct+j}, s{sScale}, 0")
        a("ds_write_b128 v10, v[24:27]")
        a("ds_write_b128 v0, v[28:31]")
        a("ds_read_b128 v[12:15], v2")
        a("ds_read_b128 v[16:19], v2 offset:1024")
        a("s_waitcnt lgkmcnt(1)")
        a(f"buffer_store_dwordx4 v[12:15], v3, s[{SWS}:{SWS+3}], s{sOut} offen{P_ST}")
        a("s_waitcnt lgkmcnt(0)")
        a(f"buffer_store_dwordx4 v[16:19], v3, s[{SWS}:{SWS+3}], s{sOut} offen offset:1024{P_ST}")
        a.stamp(8 + i)
        if i < 3:
            a(f"s_add_u32 s{sOut}, s{sOut}, 16384")
            a("s_nop 1")
    a.lab("K1_PDONE")
    a("v_cmp_le_f32 vcc, 4.0, v4")
    a("s_cbranch_vccz K1_PSAFE")
    a("v_mov_b32 v13, 0x10000")
    a("s_mov_b64 exec, 1")
    a(f"buffer_atomic_add v13, off, s[{SDB}:{SDB+3}], 0 offset:64 sc1")
    a("s_mov_b64 exec, -1")
    a.lab("K1_PSAFE")
    a.lab("K1_AU")
    xconst()
    a(f"v_lshrrev_b32 v2, 4, v{vLane}")
    a(f"v_and_b32 v3, 15, v{vLane}")
    a("v_lshrrev_b32 v48, 2, v3")
    a("v_lshl_add_u32 v48, v2, 3, v48")
    a("v_lshlrev_b32 v48, 6, v48")
    a(f"v_and_b32 v49, 3, v{vLane}")
    a("v_lshl_add_u32 v48, v49, 3, v48")
    a("v_and_b32 v49, 1, v2")
    a("v_lshl_add_u32 v48, v49, 5, v48")
    a(f"v_add_u32 v48, {K1_WAU}, v48")
    a("v_xor_b32 v49, 32, v48")
    a("s_waitcnt lgkmcnt(0)")
    for ks in range(4):
        for mat in range(2):
            for ct in range(2):
                b = wf(mat, ct, ks)
                off = mat * 8192 + ks * 2048
                a(f"ds_read_b64_tr_b16 v[{b}:{b+1}], v{48+ct} offset:{off}")
                a(f"ds_read_b64_tr_b16 v[{b+2}:{b+3}], v{48+ct} offset:{off+256}")
    a("v_and_b32 v10, 7, v3")
    a("v_xor_b32 v10, v10, v2")
    a("v_lshlrev_b32 v10, 4, v10")
    a("v_lshl_add_u32 v10, v3, 7, v10")
    a(f"v_add_u32 v10, {L_AUR}, v10")
    a(f"s_mov_b32 s{sSlot}, s{sW}")
    a.c("first chunk of this wave: key waves 12w (12 chunks), loader waves 32(w-11) (32 chunks)")
    a(f"s_mul_i32 s{sT2}, s{sW}, 12")
    a(f"s_lshl_b32 s{sT3}, s{sW}, 5")
    a(f"s_sub_u32 s{sT3}, s{sT3}, {32*11}")
    a(f"s_cmp_lt_u32 s{sW}, 11")
    a(f"s_cselect_b32 s{sT3}, s{sT2}, s{sT3}")
    a(f"s_cselect_b32 s{sT2}, 12, 32")
    a(f"s_bfm_b64 s[54:55], s{sT2}, 0")
    a(f"s_lshl_b32 s90, s{sT3}, 8")
    a(f"s_lshl_b32 s{sT1}, s{sBk}, 2")
    a(f"s_add_u32 s90, s90, s{sT1}")
    a(f"s_add_u32 s48, s20, {DESC_OFF}")
    a("s_addc_u32 s49, s21, 0")
    a(f"s_mov_b32 s50, {NCH*256}")
    a("s_mov_b32 s51, 0x20000")
    a.stamp(14)
    a("s_waitcnt vmcnt(0) lgkmcnt(0)")
    a.stamp(13)
    a("s_barrier")
    a.stamp(15)
    xread(0, sSlot)
    a(f"s_cmp_lg_u32 s{sW}, 15")
    a("s_cbranch_scc1 K1_NZ")
    a(f"v_lshlrev_b32 v14, 2, v{vLane}")
    a(f"v_add_u32 v14, {L_GW}, v14")
    a("v_mov_b32 v3, 0")
    a("ds_write_b32 v14, v3")
    a("s_cmp_lt_u32 s2, 128" if TMAP else f"s_cmp_lt_u32 s{sSl}, 2")
    a("s_cbranch_scc1 K1_NZ2")
    a.c("count this workgroup's P tiles in")
    a("v_mov_b32 v15, 1")
    a("v_mov_b32 v14, 1")
    a("s_mov_b64 exec, 1")
    a(f"buffer_atomic_add v14, off, s[{SDB}:{SDB+3}], 0 offset:64 sc0 sc1")
    a("s_mov_b64 exec, -1")
    a("s_branch K1_NZ2")
    a.lab("K1_NZ")
    a("s_mov_b64 exec, 1")
    a(f"buffer_load_dword v2, off, s[{SDB}:{SDB+3}], 0 offset:192 sc1")
    a("s_mov_b64 exec, -1")
    a(f"v_lshlrev_b32 v14, 8, v{vLane}")
    a.lab("K1_NZ2")
    a("v_mov_b32 v4, 0")
    a(f"s_mov_b32 s{sUns+1}, 0")
    a.stamp(16)
    for i in range(2):
        a(f"s_sub_u32 s{sT1}, s{sSlot}, s{sDl}")
        a(f"s_cselect_b32 s{sT1}, 24, s{sT1}")
        a(f"s_lshl_b32 s{sT1}, s{sT1}, 11")
        a(f"v_add_u32 v12, s{sT1}, v10")
        a("v_xor_b32 v13, 64, v12")
        if i == 0:
            a(f"s_add_u32 s{sSlot}, s{sSlot}, 16")
            a(f"s_min_u32 s{sJ}, s{sSlot}, 24")
        a("s_waitcnt lgkmcnt(0)")
        mfmas(i, (lambda: xread(1, sJ)) if i == 0 else None)
        a("s_nop 7")
        for r in range(16, 24, 2):
            a(f"v_max3_f32 v4, abs(v{r}), abs(v{r+1}), v4")
        for ct in range(2):
            for j in range(4):
                a(f"v_fma_mixlo_f16 v{24+4*ct+j}, v{16+4*ct+j}, 1.0, 0")
        a("ds_write_b128 v12, v[24:27]")
        a("ds_write_b128 v13, v[28:31]")
        if i == 0:
            a(f"s_cmp_eq_u32 s{sW}, 15")
            a("s_cbranch_scc1 K1_END")
            a.c("partition published? then fetch this wave's segment descriptors")
            a("s_mov_b64 exec, 1")
            a("s_waitcnt vmcnt(0)")
            a("v_cmp_ne_u32 vcc, 0, v2")
            a("s_cbranch_vccnz K1_ROK")
            poll(a, "R", 2, 192, None, SLP)
            a.lab("K1_ROK")
            a("s_mov_b64 exec, s[54:55]")
            a(f"buffer_load_dword v3, v14, s[48:51], s90 offen{LD}")
            a("s_mov_b64 exec, -1")
            a(f"v_readfirstlane_b32 s{sUns+1}, v2")
            a.stamp(17)
            a(f"s_cmp_ge_u32 s{sSlot}, 25")
            a(f"s_lshr_b32 s{sUns+1}, s{sUns+1}, 16")
            a(f"s_cmp_ge_u32 s{sSlot}, 25")
            a("s_cbranch_scc1 K1_END")
    a.lab("K1_END")
    a("v_cmp_le_f32 vcc, 4.0, v4")
    a("s_cmp_lg_u64 vcc, 0")
    a(f"s_cselect_b32 s{sUns+1}, 1, s{sUns+1}")
    a.stamp(12)
    a.stampc(32)
    a.stamp_flush(0, sW)
    a.c("wave 15 waits until every partition workgroup has counted into R")
    a(f"s_cmp_lg_u32 s{sW}, 15")
    a("s_cbranch_scc1 K1_RDONE")
    a("s_cmp_lt_u32 s2, 128" if TMAP else f"s_cmp_lt_u32 s{sSl}, 2")
    a("s_cbranch_scc1 K1_NG")
    a("s_mov_b64 exec, 1")
    a("s_waitcnt vmcnt(0)")
    a("v_add_u32 v14, v14, v15")
    a("v_and_b32 v15, 0xffff, v14")
    a("v_cmp_eq_u32 vcc, 0x80, v15")
    a("s_cbranch_vccz K1_NG")
    a(f"buffer_store_dword v14, off, s[{SDB}:{SDB+3}], 0 offset:128 sc1")
    a.lab("K1_NG")
    a("s_mov_b64 exec, -1")
    a.lab("K1_RDONE")
    a(f"s_lshl_b32 s{sT0}, s{sW}, 6")
    a(f"v_add_u32 v0, s{sT0}, v{vLane}")
    a("s_branch K2_ENTRY")
    a.lab("K1_END2")
    a("s_endpgm")


CAP = 8192
L_CNT = 0
L_ORD = 2048
L_DH = 4096
L_BST = 4352
L_SB = 4608
L_FLAG = 4864
L_GD = L_FLAG + 4
L_ELL = 5120
L_DUM = L_ELL + CAP * 4
L_EA = L_DUM + 512
NKW = 11
EA_TAIL = NKW * 12 * 64
EA_ZERO = EA_TAIL + NKW * 64
assert L_EA + EA_ZERO * 8 + 8 <= L_AUR
DUMMY = 0xFFFF0000 | EA_ZERO
DUMMY_NODE = 399 * 128
NBATCH = (BN + 15) // 16
NR = 13


def gen_k2(a):
    assert FUSED
    sW, sSl, sBk = 22, 23, 24
    sT0, sT1, sT2, sT3 = 25, 26, 27, 28
    sK = 29
    sSp, sOvf = 30, 31
    SWS, SP, SO, SG = 32, 36, 40, 44
    SDS = 48
    sSave = 54
    sM = 56
    sKK = 56
    sRet = 82
    SA = 84
    SF0, SF1, SF2 = 64, 44, 60
    sTM, sEarly, sOutOff, sK2, sK1 = 88, 90, 91, 92, 93
    sA, sCntS, sNxtA, sNxtCnt, sRem, sN2 = 48, 49, 50, 51, 52, 53
    vLane, vC8, vG8, vRec4, vCo, vS, vSrc, vEa, vT = 1, 2, 3, 4, 5, 6, 7, 8, 9
    NA, N2, EE = 10, 12, 14
    ACC, AC, D = 16, 24, 40
    PP = [56, 72, 88]
    R, WB, vStg = 104, 112, 122
    AD = R
    KEYR, RK, HA = 24, 37, 50
    ET, WR, AU2 = 70, 88, 96
    vDesc = 104
    vL4, vL16, vIdx, v64c = 65, 66, 67, 68
    T = 72
    a.vst = 120

    def auread(n):
        a(f"v_xor_b32 v{vT}, v{n}, v{vC8}")
        a(f"v_xor_b32 v{AD+2}, v{n+1}, v{vC8}")
        a(f"v_add_u32 v{vT}, {L_AUR}, v{vT}")
        a(f"v_add_u32 v{AD+2}, {L_AUR}, v{AD+2}")
        a(f"ds_read_b128 v[{ACC}:{ACC+3}], v{vT}")
        a(f"ds_read_b128 v[{ACC+4}:{ACC+7}], v{AD+2}")

    def sb_arrive(k):
        a("s_waitcnt lgkmcnt(0)")
        a("s_mov_b64 exec, 1")
        a(f"ds_add_u32 v{T+14}, v{T+15} offset:{4*k}")
        a("s_mov_b64 exec, -1")

    def sb_wait(k, n, tag):
        a.lab(f"K2_SBW{tag}")
        a(f"ds_read_b32 v{T+13}, v{T+14} offset:{4*k}")
        a("s_waitcnt lgkmcnt(0)")
        a(f"v_cmp_gt_u32 vcc, {n}, v{T+13}")
        a(f"s_cbranch_vccnz K2_SBW{tag}")

    def batchinfo():
        a(f"s_lshl_b32 s{sT0}, s{sK1}, 6")
        a(f"v_add_u32 v{T}, s{sT0}, v{vG8}")
        a(f"ds_read_b64 v[{NA}:{NA+1}], v{T} offset:{L_ORD}")
        a(f"s_min_u32 s{sT0}, s{sK2}, 25")
        a(f"s_lshl_b32 s{sT0}, s{sT0}, 6")
        a(f"v_add_u32 v{T}, s{sT0}, v{vG8}")
        a(f"ds_read_b64 v[{N2}:{N2+1}], v{T} offset:{L_ORD}")
        a(f"ds_read_b32 v{T+4}, v{vL4} offset:{L_BST}")
        a(f"ds_read_b32 v{T+8}, v123 offset:{L_FLAG}")
        a("s_waitcnt lgkmcnt(0)")
        a(f"v_min_u32 v{T+4}, 0x1ff, v{T+4}")
        a(f"v_lshlrev_b32 v{T+5}, 7, v{T+4}")
        a(f"v_mov_b32 v{T+6}, v{T+5}")
        scan64(a, T + 6)
        a(f"v_readfirstlane_b32 s{sOvf}, v{T+8}")
        a(f"v_sub_u32 v{T+6}, v{T+6}, v{T+5}")
        a(f"v_add_u32 v{T+6}, {L_ELL}, v{T+6}")
        a("s_nop 0")
        a(f"v_readlane_b32 s{sA}, v{T+6}, s{sK1}")
        a(f"v_readlane_b32 s{sRem}, v{T+4}, s{sK1}")
        a(f"v_readlane_b32 s{sNxtA}, v{T+6}, s{sK2}")
        a(f"v_readlane_b32 s{sN2}, v{T+4}, s{sK2}")
        a("s_nop 3")
        a(f"s_sub_u32 s{sRem}, s{sRem}, 1")
        a(f"s_mov_b32 s{sCntS}, s{sRem}")
        a(f"s_sub_u32 s{sNxtCnt}, s{sN2}, 1")
        a(f"s_cmp_eq_u32 s{sN2}, 0")
        a(f"s_cselect_b32 s{sNxtA}, {L_DUM}, s{sNxtA}")
        a(f"s_cselect_b32 s{sNxtCnt}, 100, s{sNxtCnt}")

    def wperm():
        a(f"s_mov_b32 s{sT0}, 0x05040100")
        a(f"s_mov_b32 s{sT1}, 0x07060302")
        for m in range(4):
            sel = sT0 if m % 2 == 0 else sT1
            h = m >> 1
            a(f"v_perm_b32 v{WB+2*m}, v{WR+2+h}, v{WR+h}, s{sel}")
            a(f"v_perm_b32 v{WB+2*m+1}, v{WR+6+h}, v{WR+4+h}, s{sel}")

    def wcloads():
        a(f"s_lshl_b32 s{sT1}, s{sSl}, 6")
        a(f"s_add_u32 s{sT1}, s{sT1}, 65536")
        for k in range(4):
            a(f"buffer_load_dwordx2 v[{WR+2*k}:{WR+1+2*k}], v{vCo}, s[{SG}:{SG+3}], s{sT1} offen offset:{k*256}")

    def unsafe_or():
        a(f"v_mov_b32 v{T+12}, s95")
        a("s_mov_b64 exec, 1")
        a(f"ds_or_b32 v{T+14}, v{T+12} offset:32")
        a("s_mov_b64 exec, -1")

    a.lab("K2_ENTRY")
    a.stamp(0)
    a.stampc(29)
    a(f"v_mov_b32 v{vDesc}, v3") if False else None
    srd(a, SWS, 20, WS_USED)
    a(f"v_lshlrev_b32 v{vL4}, 2, v{vLane}")
    a(f"v_lshlrev_b32 v{vL16}, 4, v{vLane}")
    a(f"v_mov_b32 v{T+14}, {L_GW}")
    a(f"v_mov_b32 v{T+15}, 1")
    a("v_mov_b32 v123, 0")

    def consts():
        srd(a, SG, 16, 260 * 256)
        a(f"s_mul_i32 s{sT0}, s{sSl}, {PS}")
        a(f"s_add_u32 s{SP}, s20, s{sT0}")
        a(f"s_addc_u32 s{SP+1}, s21, 0")
        a(f"s_mov_b32 s{SP+2}, {N*128}")
        a(f"s_mov_b32 s{SP+3}, 0x20000")
        srd(a, SO, 18, N * 256)
        a(f"s_mov_b32 s{sK}, {hex(NL2E)}")
        a(f"v_and_b32 v{vCo}, 7, v{vLane}")
        a(f"v_lshlrev_b32 v{vCo}, 3, v{vCo}")
        a(f"v_lshlrev_b32 v{vC8}, 1, v{vCo}")
        a(f"v_and_b32 v{vG8}, 56, v{vLane}")
        a(f"v_and_b32 v64, 2, v{vLane}")
        a(f"v_lshl_add_u32 v{vRec4}, v64, 1, v{vG8}")
        a(f"v_and_b32 v64, 1, v{vLane}")
        a(f"v_lshl_add_u32 v{vRec4}, v64, 6, v{vRec4}")
        LISTS = [[0, 10, 11, 12, 20, 23], [1, 2, 7, 16, 17, 21], [6, 8, 9, 15, 18, 22, 24], [3, 4, 5, 13, 14, 19]]
        if "oldasg" in OPTS:
            LISTS = [[q, 7-q, 8+q, 15-q, 16+q, 23-q] + ([24] if q == 3 else []) for q in range(4)]
        assert sorted(sum(LISTS, [])) == list(range(NBATCH))
        a(f"s_and_b32 s{sT0}, s{sW}, 3")
        for q in range(4):
            L = LISTS[q] + [31] * (8 - len(LISTS[q]))
            if "ord2" in OPTS:
                X = LISTS[q]
                L = [X[0], X[1], X[2], X[-1], X[3], X[4], X[5] if len(X) > 6 else 31, 31]
            if "ord1" not in OPTS and "ord2" not in OPTS:
                X = LISTS[q]
                L = [X[0], X[2], X[4], X[-1], X[1], X[3], X[5] if len(X) > 6 else 31, 31]
            c1 = sum(L[r] << (8 * r) for r in range(4))
            c2 = sum(L[4 + r] << (8 * r) for r in range(4))
            if q == 0:
                a(f"s_mov_b32 s{sK1}, {hex(c1)}")
                a(f"s_mov_b32 s{sK2}, {hex(c2)}")
            else:
                a(f"s_cmp_eq_u32 s{sT0}, {q}")
                a(f"s_cselect_b32 s{sK1}, {hex(c1)}, s{sK1}")
                a(f"s_cselect_b32 s{sK2}, {hex(c2)}, s{sK2}")
        a(f"s_and_b32 s{sT1}, s{sW}, 12")
        a(f"s_lshl_b32 s{sT1}, s{sT1}, 1")
        a(f"s_lshr_b32 s{sK1}, s{sK1}, s{sT1}")
        a(f"s_lshr_b32 s{sK2}, s{sK2}, s{sT1}")
        a(f"s_and_b32 s{sK1}, s{sK1}, 0xff")
        a(f"s_and_b32 s{sK2}, s{sK2}, 0xff")
        a(f"s_mul_i32 s{sOutOff}, s{sBk}, {BN*256}")
        a(f"s_lshl_b32 s{sT0}, s{sSl}, 6")
        a(f"s_add_u32 s{sOutOff}, s{sOutOff}, s{sT0}")
    a(f"s_cmp_ge_u32 s{sW}, {NKW}")
    a("s_cbranch_scc1 K2_LW")
    a(f"v_lshrrev_b32 v{T}, 4, v{vLane}")
    a(f"v_lshlrev_b32 v{T+1}, 2, v{T}")
    a(f"s_mov_b32 s{sT0}, {CH*4}")
    a(f"v_and_b32 v{T+2}, 15, v{vLane}")
    a(f"v_lshlrev_b32 v{T+3}, 2, v{T+2}")
    a(f"v_lshlrev_b32 v{T+2}, 4, v{T+2}")
    a(f"v_mad_u32_u24 v{T+2}, v{T}, s{sT0}, v{T+2}")
    a(f"s_mov_b32 s{sSp}, 0")
    a(f"s_mov_b32 s{sOvf}, 0")
    a(f"s_mov_b64 s[{sM+24}:{sM+25}], 0")
    a(f"s_mul_i32 s{sT2}, s{sT3}, {CH*4}")
    a(f"s_add_u32 s{sT2}, s{sT2}, {KEY_OFF}")
    a(f"s_mov_b32 s{sT0}, 0x40ffff")
    a("s_waitcnt vmcnt(0)")
    a.stamp(2)
    a(f"v_mov_b32 v{vDesc}, v3")
    for h in range(3):
        a(f"ds_bpermute_b32 v{T+4+h}, v{T+1}, v3 offset:{16*h}")
    a(f"v_cmp_lt_u32 vcc, s{sT0}, v3")
    a(f"s_and_b64 s[{sTM}:{sTM+1}], vcc, s[{sSave}:{sSave+1}]")
    a("s_waitcnt lgkmcnt(0)")
    for h in range(3):
        a(f"v_lshrrev_b32 v{T+7+h}, 16, v{T+4+h}")
        a(f"v_lshlrev_b32_sdwa v{T+4+h}, 2, v{T+4+h} dst_sel:DWORD dst_unused:UNUSED_PAD src0_sel:DWORD src1_sel:WORD_0")
        a(f"v_cmp_gt_u32 s[{sM+8*h}:{sM+8*h+1}], v{T+7+h}, v{T+3}")
        a(f"v_add_u32 v{T+4+h}, v{T+4+h}, v{T+2}")
        a(f"s_or_b64 exec, s[{sM+8*h}:{sM+8*h+1}], 1")
        a(f"buffer_load_dwordx4 v[{KEYR+4*h}:{KEYR+4*h+3}], v{T+4+h}, s[{SWS}:{SWS+3}], s{sT2} offen{LD}")
        a("s_mov_b64 exec, -1")
        if h < 2:
            a(f"s_add_u32 s{sT2}, s{sT2}, {4*CH*4}")
    a(f"s_cmp_lg_u64 s[{sTM}:{sTM+1}], 0")
    a("s_cbranch_scc1 K2_TAIL")
    a.lab("K2_TAILR")
    a(f"v_lshlrev_b32 v{T}, 4, v0")
    for i in range(4):
        a(f"v_mov_b32 v{20+i}, 0")
    a.stamp(3)
    a("s_barrier")
    a.stamp(1)
    a(f"s_cmp_ge_u32 s{sW}, 6")
    a("s_cbranch_scc1 K2_INIT_DONE")
    a(f"s_cmp_eq_u32 s{sW}, 5")
    a("s_cbranch_scc1 K2_INIT_5")
    a(f"s_lshr_b32 s{sT0}, s{sW}, 1")
    a(f"s_cmp_eq_u32 s{sT0}, 1")
    a("s_cbranch_scc0 K2_INIT_Z")
    for i in range(4):
        a(f"v_mov_b32 v{20+i}, {DUMMY_NODE}")
    a.lab("K2_INIT_Z")
    a(f"ds_write_b128 v{T}, v[20:23]")
    a("s_branch K2_INIT_A")
    a.lab("K2_INIT_5")
    a(f"v_mov_b32 v64, {L_EA + EA_ZERO*8}")
    a("ds_write_b64 v64, v[20:21]")
    a.lab("K2_INIT_A")
    sb_arrive(5)
    a.lab("K2_INIT_DONE")
    unsafe_or()
    for c in range(1, 4):
        a(f"v_add_u32 v{T+3}, 1, v{T+3}")
        for h in range(3):
            a(f"v_cmp_gt_u32 s[{sM+8*h+2*c}:{sM+8*h+2*c+1}], v{T+7+h}, v{T+3}")
    a(f"s_lshl_b32 s{sT0}, s{sT3}, 6")
    a(f"v_add_u32 v{vIdx}, s{sT0}, v{vL4}")
    a(f"v_mov_b32 v{v64c}, 64")
    consts()
    wcloads()
    sb_wait(5, 6, "B1")
    a.stamp(4)
    a(f"s_cmp_eq_u32 s{sOvf}, 0")
    a("s_cbranch_scc1 K2_NOOVF")
    a(f"ds_write_b32 v123, v{T+15} offset:{L_FLAG}")
    a.lab("K2_NOOVF")
    a("s_waitcnt vmcnt(4)")
    a.stamp(5)
    for i in range(NR):
        a(f"v_and_b32 v{HA+i}, 0xffff, v{KEYR+i}")
        a(f"s_mov_b64 exec, s[{sM+2*i}:{sM+2*i+1}]")
        a(f"ds_add_rtn_u32 v{RK+i}, v{HA+i}, v{v64c}")
        a("s_mov_b64 exec, -1")
    for i in range(NR):
        if i == NR - 1:
            a(f"s_lshl_b32 s{sT0}, s{sW}, 6")
            a(f"s_add_u32 s{sT0}, s{sT0}, {EA_TAIL}")
            a(f"v_add_u32 v{vIdx}, s{sT0}, v{vLane}")
        a(f"v_mov_b32_sdwa v{KEYR+i}, v{vIdx} dst_sel:WORD_0 dst_unused:UNUSED_PRESERVE src0_sel:DWORD")
        if i < NR - 2:
            a(f"v_add_u32 v{vIdx}, {253 if i % 4 == 3 else 1}, v{vIdx}")
    sb_arrive(0)
    a(f"s_cmp_ge_u32 s{sW}, 7")
    a("s_cbranch_scc1 K2_W5")
    a(f"v_cmp_gt_u32 vcc, {BN}, v0")
    a(f"v_lshlrev_b32 v{T}, 2, v0")
    a(f"v_and_b32 v{T+8}, 7, v0")
    a(f"v_lshlrev_b32 v{T+8}, 4, v{T+8}")
    a(f"v_lshl_add_u32 v{T+8}, v0, 7, v{T+8}")
    a(f"s_mov_b64 s[{sSave}:{sSave+1}], vcc")
    sb_wait(0, NKW, "2")
    a.stamp(6)
    a.c("node phase A")
    a(f"s_mov_b64 exec, s[{sSave}:{sSave+1}]")
    a(f"ds_read_b32 v{T+1}, v{T}")
    a("s_waitcnt lgkmcnt(0)")
    a(f"v_lshrrev_b32 v{T+1}, 6, v{T+1}")
    a(f"v_min_u32 v{T+2}, 63, v{T+1}")
    a(f"v_sub_u32 v{T+2}, 63, v{T+2}")
    a(f"v_lshlrev_b32 v{T+2}, 2, v{T+2}")
    a(f"ds_add_rtn_u32 v{T+3}, v{T+2}, v{T+15} offset:{L_DH}")
    a(f"v_add_u32 v{T+7}, 1, v{T+1}")
    a(f"v_lshrrev_b32 v{T+7}, 1, v{T+7}")
    a(f"v_max_u32 v{T+7}, 1, v{T+7}")
    sb_arrive(1)
    sb_wait(1, 7, "3")
    a.stamp(7)
    a.c("node phase B")
    a(f"ds_read_b32 v{T+5}, v{vL4} offset:{L_DH}")
    a("s_waitcnt lgkmcnt(0)")
    a(f"v_mov_b32 v{T+6}, v{T+5}")
    scan64(a, T + 6)
    a(f"v_sub_u32 v{T+6}, v{T+6}, v{T+5}")
    a("s_nop 0")
    a(f"ds_bpermute_b32 v{T+9}, v{T+2}, v{T+6}")
    a("s_waitcnt lgkmcnt(0)")
    a(f"s_mov_b64 exec, s[{sSave}:{sSave+1}]")
    a(f"v_add_u32 v{T+3}, v{T+3}, v{T+9}")
    a(f"v_lshlrev_b32 v{T+9}, 2, v{T+3}")
    a(f"ds_write_b32 v{T+9}, v{T+8} offset:{L_ORD}")
    a(f"v_lshrrev_b32 v{T+10}, 4, v{T+3}")
    a(f"v_lshlrev_b32 v{T+10}, 2, v{T+10}")
    a(f"ds_max_u32 v{T+10}, v{T+7} offset:{L_BST}")
    a(f"v_and_b32 v{T+9}, 60, v{T+9}")
    sb_arrive(2)
    sb_wait(2, 7, "4")
    a.stamp(8)
    a.c("node phase C")
    a(f"ds_read_b32 v{T+5}, v{vL4} offset:{L_BST}")
    a("s_waitcnt lgkmcnt(0)")
    a(f"v_min_u32 v{T+5}, 0x1ff, v{T+5}")
    a(f"v_lshlrev_b32 v{T+5}, 7, v{T+5}")
    a(f"v_mov_b32 v{T+6}, v{T+5}")
    scan64(a, T + 6)
    a("s_nop 0")
    a(f"v_readlane_b32 s{sT0}, v{T+6}, 63")
    a(f"v_sub_u32 v{T+6}, v{T+6}, v{T+5}")
    a(f"v_add_u32 v{T+6}, {L_ELL}, v{T+6}")
    a("s_nop 1")
    a(f"ds_bpermute_b32 v{T+10}, v{T+10}, v{T+6}")
    a(f"s_cmp_le_u32 s{sT0}, {CAP*4}")
    a("s_cbranch_scc1 K2_NC_OK")
    a(f"ds_write_b32 v123, v{T+15} offset:{L_FLAG}")
    a.lab("K2_NC_OK")
    a("s_waitcnt lgkmcnt(0)")
    a(f"s_mov_b64 exec, s[{sSave}:{sSave+1}]")
    a(f"v_add_u32 v{T+10}, v{T+10}, v{T+9}")
    a(f"ds_write_b32 v{T}, v{T+10}")
    sb_arrive(3)
    a.lab("K2_W5")
    sb_wait(3, 8, "5")
    a.stamp(9)
    a(f"ds_read_b32 v{T+8}, v123 offset:{L_FLAG}")
    for i in range(NR):
        a(f"s_mov_b64 exec, s[{sM+2*i}:{sM+2*i+1}]")
        a(f"ds_read_b32 v{HA+i}, v{HA+i}")
    a("s_mov_b64 exec, -1")
    a("s_waitcnt lgkmcnt(0)")
    a(f"v_cmp_ne_u32 vcc, 0, v{T+8}")
    a("s_cbranch_vccnz K2_NOSC")
    for i in range(NR):
        a(f"v_add_u32 v{HA+i}, v{HA+i}, v{RK+i}")
        a(f"s_mov_b64 exec, s[{sM+2*i}:{sM+2*i+1}]")
        a(f"ds_write_b32 v{HA+i}, v{KEYR+i}")
        a("s_mov_b64 exec, -1")
    a.lab("K2_NOSC")
    batchinfo()
    a(f"s_lshl_b32 s{sT2}, s{sW}, 9")
    a(f"s_add_u32 s{sT2}, s{sT2}, {L_EA + EA_TAIL*8}")
    a(f"v_lshl_add_u32 v63, v{vLane}, 3, s{sT2}")
    a(f"ds_write_b64 v63, v[{ET}:{ET+1}]")
    a.stamp(10)
    a("s_branch K2_FINB")
    a.lab("K2_LW")
    a(f"v_lshrrev_b32 v{T+4}, 5, v{vLane}")
    a(f"v_lshlrev_b32 v{T+5}, 2, v{T+4}")
    a(f"v_and_b32 v{T+6}, 31, v{vLane}")
    a(f"v_lshlrev_b32 v{T+7}, 1, v{T+6}")
    a(f"v_lshlrev_b32 v{T+6}, 4, v{T+6}")
    a(f"s_mov_b32 s{sT0}, {CH*8}")
    a(f"v_mad_u32_u24 v{T+6}, v{T+4}, s{sT0}, v{T+6}")
    a(f"s_lshl_b32 s{sT0}, s{sT3}, 9")
    a(f"v_add_u32 v{T+8}, s{sT0}, v{vL16}")
    a("s_waitcnt vmcnt(0)")
    a(f"v_mov_b32 v{vDesc}, v3")
    consts()
    wcloads()
    a(f"s_mul_i32 s{sT2}, s{sT3}, {CH*8}")
    a(f"s_add_u32 s{sT2}, s{sT2}, {EAT_OFF}")
    a.stamp(2)
    a(f"s_cmp_eq_u32 s{sW}, 15")
    a("s_cbranch_scc1 K2_SW")
    BP = 105
    for q in range(8):
        a(f"ds_bpermute_b32 v{BP+q}, v{T+5}, v{vDesc} offset:{8*q}")
    a("s_waitcnt lgkmcnt(0)")
    a("s_barrier")
    a.stamp(1)
    LWD = [16, 20, 24, 28, 32, 36, 40, 44, 48, 52, 56, 60, 96, 100, 6, 10]
    for q in range(16):
        b = BP + (q % 8)
        a(f"v_lshrrev_b32 v{T+9}, 16, v{b}")
        a(f"v_lshlrev_b32_sdwa v{T+10}, 3, v{b} dst_sel:DWORD dst_unused:UNUSED_PAD src0_sel:DWORD src1_sel:WORD_0")
        a(f"v_cmp_gt_u32 vcc, v{T+9}, v{T+7}")
        a(f"v_add_u32 v{T+10}, v{T+10}, v{T+6}")
        if q < 8:
            a(f"ds_bpermute_b32 v{b}, v{T+5}, v{vDesc} offset:{8*(q+8)}")
        a("s_or_b64 exec, vcc, 1")
        a(f"buffer_load_dwordx4 v[{LWD[q]}:{LWD[q]+3}], v{T+10}, s[{SWS}:{SWS+3}], s{sT2} offen{LD}")
        a("s_mov_b64 exec, -1")
        if q < 15:
            a(f"s_add_u32 s{sT2}, s{sT2}, {2*CH*8}")
        if q == 7:
            a("s_waitcnt lgkmcnt(0)")
    a.stamp(5)
    unsafe_or()
    for q in range(16):
        a(f"s_waitcnt vmcnt({15-q})")
        a(f"ds_write_b128 v{T+8}, v[{LWD[q]}:{LWD[q]+3}] offset:{L_EA + q*1024}")
    a.stamp(10)
    a("s_branch K2_FINB")
    a.lab("K2_SW")
    a("s_waitcnt lgkmcnt(0)")
    for i in range(4):
        a(f"v_mov_b32 v{16+i}, {hex(DUMMY)}")
    a("s_barrier")
    a.stamp(1)
    for i in range(33):
        if i == 32:
            a("s_bfm_b64 exec, 32, 0")
        a(f"ds_write_b128 v{vL16}, v[16:19] offset:{L_ELL + i*1024}")
    sb_arrive(3)
    poll(a, "G", 53, 128, None, SLP)
    a(f"v_readfirstlane_b32 s{sT0}, v53")
    a("s_nop 3")
    a(f"s_lshr_b32 s{sT0}, s{sT0}, 16")
    a(f"s_or_b32 s95, s95, s{sT0}")
    unsafe_or()
    a.stamp(10)
    a.lab("K2_FINB")
    a("s_mov_b64 exec, -1")
    a.c("Wc magnitude check (|w| < 2)")
    a("s_waitcnt vmcnt(0)")
    a(f"v_or3_b32 v{T}, v{WR}, v{WR+1}, v{WR+2}")
    a(f"v_or3_b32 v{T+1}, v{WR+3}, v{WR+4}, v{WR+5}")
    a(f"v_or3_b32 v{T}, v{WR+6}, v{WR+7}, v{T}")
    a(f"v_or_b32 v{T}, v{T}, v{T+1}")
    a(f"v_and_b32 v{T}, 0x40004000, v{T}")
    a(f"v_cmp_ne_u32 vcc, 0, v{T}")
    a("s_cbranch_vccz K2_WOK")
    a(f"ds_or_b32 v{T+14}, v{T+15} offset:32")
    a.lab("K2_WOK")
    wperm()
    a("s_waitcnt lgkmcnt(0)")
    a.stamp(12)
    a("s_barrier")
    a(f"s_cmp_lt_u32 s{sW}, {NKW}")
    a("s_cbranch_scc1 K2_HAVEBI")
    batchinfo()
    a.lab("K2_HAVEBI")
    a(f"s_cmp_lg_u32 s{sOvf}, 0")
    a("s_cbranch_scc1 K2_FALLBACK")
    a(f"s_mov_b32 s{sKK}, {hex(NL2E)}")
    a(f"s_mov_b32 s{sKK+1}, {hex(NL2E)}")
    a(f"ds_read_b32 v{D+2}, v{T+14} offset:32")
    auread(NA)
    a.stamp(13)
    a.stampc(30)

    sw_sites = []

    def advance(tag):
        a(f"s_add_u32 s{sA}, s{sA}, 128")
        a(f"s_sub_u32 s{sCntS}, s{sCntS}, 1")
        a(f"s_cbranch_scc1 K2_SW{tag}")
        a.lab(f"K2_SWR{tag}")
        sw_sites.append(tag)

    def gathers(P):
        for j in range(4):
            a(f"v_add_u32_dpp v{AD+j}, v{vSrc}, v{vC8} quad_perm:[{j},{j},{j},{j}] row_mask:0xf bank_mask:0xf")
        for j in range(4):
            a(f"buffer_load_dwordx4 v[{P+4*j}:{P+4*j+3}], v{AD+j}, s[{SP}:{SP+3}], 0 offen{G_LD}")

    def split(S):
        a(f"v_lshlrev_b32_sdwa v{vSrc}, 7, v{S} dst_sel:DWORD dst_unused:UNUSED_PAD src0_sel:DWORD src1_sel:WORD_1")
        a(f"v_lshlrev_b32_sdwa v{vEa}, 3, v{S} dst_sel:DWORD dst_unused:UNUSED_PAD src0_sel:DWORD src1_sel:WORD_0")

    def setup_ac():
        for m in range(4):
            a(f"v_cvt_f32_f16 v{AC+4*m}, v{ACC+m}")
            a(f"v_cvt_f32_f16 v{AC+4*m+2}, v{ACC+4+m}")
        for m in range(4):
            a(f"v_mov_b32 v{AC+4*m+1}, v{AC+4*m}")
            a(f"v_mov_b32 v{AC+4*m+3}, v{AC+4*m+2}")

    def compute(P):
        for m in range(4):
            for j in range(4):
                a(f"v_fma_mix_f32 v{D+4*m+j}, v{D+4*m+j}, s{sK}, v{P+4*j+m} op_sel_hi:[0,0,1]")
        for i in range(16):
            a(f"v_exp_f32 v{D+i}, v{D+i}")
        for i in range(8):
            a(f"v_pk_add_f32 v[{D+2*i}:{D+2*i+1}], v[{D+2*i}:{D+2*i+1}], 1.0 op_sel_hi:[1,0]")
        for j in range(4):
            r = R + 4 * (j & 1)
            for m in range(4):
                a(f"v_rcp_f32 v{r+m}, v{D+4*m+j}")
            acc = ACC + 4 * (j >> 1)
            a(f"v_pk_fma_f32 v[{acc}:{acc+1}], v[{P+4*j}:{P+4*j+1}], v[{r}:{r+1}], v[{acc}:{acc+1}]")
            a(f"v_pk_fma_f32 v[{acc+2}:{acc+3}], v[{P+4*j+2}:{P+4*j+3}], v[{r+2}:{r+3}], v[{acc+2}:{acc+3}]")

    def pk(op, d, *src, mod=""):
        a(f"v_pk_{op}_f32 v[{d}:{d+1}], " + ", ".join(x if isinstance(x, str) else f"v[{x}:{x+1}]" for x in src) + mod)

    def compute_fast(P):
        for j in range(4):
            for m in range(4):
                a(f"v_fma_mix_f32 v{D+4*m+j}, v{D+4*m+j}, s{sK}, v{P+4*j+m} op_sel_hi:[0,0,1]")

        def exps(j0):
            for m in range(4):
                a(f"v_exp_f32 v{R+m}, v{D+4*m+j0}")
            for m in range(4):
                a(f"v_exp_f32 v{R+4+m}, v{D+4*m+j0+1}")

        def mid(j0):
            H1, H2 = P + 4 * j0, P + 4 * j0 + 4
            N, Q = (D + j0, D + 4 + j0), (D + 8 + j0, D + 12 + j0)
            for h in range(2):
                pk("add", R + 2 * h, R + 2 * h, "1.0", mod=" op_sel_hi:[1,0]")
            for h in range(2):
                pk("fma", N[h], H2 + 2 * h, R + 2 * h, H1 + 2 * h)
            for h in range(2):
                pk("fma", Q[h], R + 2 * h, R + 4 + 2 * h, R + 2 * h)
            for h in range(2):
                pk("fma", N[h], H1 + 2 * h, R + 4 + 2 * h, N[h])

        def rcps(j0):
            for q in (D + 8 + j0, D + 9 + j0, D + 12 + j0, D + 13 + j0):
                a(f"v_rcp_f32 v{q}, v{q}")

        def fin(j0):
            acc = ACC + 2 * j0
            pk("fma", acc, D + j0, D + 8 + j0, acc)
            pk("fma", acc + 2, D + 4 + j0, D + 12 + j0, acc + 2)
        exps(0)
        mid(0)
        exps(2)
        rcps(0)
        mid(2)
        fin(0)
        rcps(2)
        a("s_nop 0")
        fin(2)

    a(f"v_add_u32 v{vT}, s{sA}, v{vRec4}")
    a(f"ds_read_b32 v{D}, v{vT}")
    advance("F0")
    a(f"v_add_u32 v{vT}, s{sA}, v{vRec4}")
    a(f"ds_read_b32 v{D+1}, v{vT}")
    advance("F1")
    a(f"v_add_u32 v{vT}, s{sA}, v{vRec4}")
    a(f"ds_read_b32 v{vS}, v{vT}")
    a("s_waitcnt lgkmcnt(2)")
    split(D)
    a("s_nop 0")
    a(f"ds_read_b64 v[{EE}:{EE+1}], v{vEa} offset:{L_EA}")
    gathers(PP[0])
    a("s_waitcnt lgkmcnt(2)")
    split(D + 1)
    a("s_nop 1")
    gathers(PP[1])
    setup_ac()
    def loop(sfx, comp):
        for o in OPTS:
            if o.startswith("al="):
                a(f".p2align {o[3:]}")
            if o.startswith("pad="):
                for _ in range(int(o[4:])):
                    a("s_nop 0")
        a.lab(f"K2_LOOP{sfx}")
        for ph in range(3):
            a("s_waitcnt lgkmcnt(0)")
            for m in range(4):
                a(f"v_mfma_f32_4x4x4_16b_bf16 v[{D+4*m}:{D+4*m+3}], v[{EE}:{EE+1}], v[{WB+2*m}:{WB+2*m+1}], v[{AC+4*m}:{AC+4*m+3}]")
            a(f"ds_read_b64 v[{EE}:{EE+1}], v{vEa} offset:{L_EA}")
            split(vS)
            advance(f"L{sfx}{ph}")
            gathers(PP[(ph + 2) % 3])
            a(f"v_add_u32 v{vT}, s{sA}, v{vRec4}")
            a(f"ds_read_b32 v{vS}, v{vT}")
            a("s_waitcnt vmcnt(8)")
            comp(PP[ph])
            a(f"s_sub_u32 s{sRem}, s{sRem}, 1")
            if ph < 2:
                a(f"s_cbranch_scc0 K2_C{sfx}{ph}")
                a(f"s_call_b64 s[{sRet}:{sRet+1}], K2_EPI")
                a.lab(f"K2_C{sfx}{ph}")
            else:
                a(f"s_cbranch_scc0 K2_LOOP{sfx}")
                a(f"s_call_b64 s[{sRet}:{sRet+1}], K2_EPI")
                a(f"s_branch K2_LOOP{sfx}")
    a(f"v_cmp_ne_u32 vcc, 0, v{D+2}")
    if "safeonly" in OPTS:
        a("s_branch K2_LOOPS")
    a("s_cbranch_vccnz K2_LOOPS")
    loop("F", compute_fast)
    loop("S", compute)

    def epilogue(acc, tmp, nregs):
        for i in range(0, nregs, 2):
            a(f"v_pk_mul_f32 v[{tmp+i}:{tmp+i+1}], v[{acc+i}:{acc+i+1}], s[{sKK}:{sKK+1}]")
        for i in range(nregs):
            a(f"v_exp_f32 v{tmp+i}, v{tmp+i}")
        a("s_nop 0")
        for i in range(0, nregs, 2):
            a(f"v_pk_add_f32 v[{tmp+i}:{tmp+i+1}], v[{tmp+i}:{tmp+i+1}], 1.0 op_sel_hi:[1,0]")
        for i in range(nregs):
            a(f"v_rcp_f32 v{tmp+i}, v{tmp+i}")
        a("s_nop 0")
        for i in range(0, nregs, 2):
            a(f"v_pk_mul_f32 v[{tmp+i}:{tmp+i+1}], v[{tmp+i}:{tmp+i+1}], v[{acc+i}:{acc+i+1}]")
        for i in range(0, nregs, 2):
            a(f"v_cvt_pk_bf16_f32 v{tmp+i//2}, v{tmp+i}, v{tmp+i+1}")

    a.lab("K2_EPI")
    epilogue(ACC, D, 8)
    auread(N2)
    a(f"v_lshrrev_b32 v{AD}, 7, v{NA}")
    a(f"v_lshrrev_b32 v{AD+1}, 7, v{NA+1}")
    a(f"v_lshl_add_u32 v{AD}, v{AD}, 8, v{vCo}")
    a(f"v_lshl_add_u32 v{AD+1}, v{AD+1}, 8, v{vCo}")
    a(f"v_cmp_gt_u32 vcc, {BN*128}, v{NA}")
    a("s_mov_b64 exec, vcc")
    a(f"buffer_store_dwordx2 v[{D}:{D+1}], v{AD}, s[{SO}:{SO+3}], s{sOutOff} offen{K2_ST}")
    a("s_mov_b64 exec, -1")
    a(f"v_cmp_gt_u32 vcc, {BN*128}, v{NA+1}")
    a("s_mov_b64 exec, vcc")
    a(f"buffer_store_dwordx2 v[{D+2}:{D+3}], v{AD+1}, s[{SO}:{SO+3}], s{sOutOff} offen{K2_ST}")
    a("s_mov_b64 exec, -1")
    a(f"s_cmp_eq_u32 s{sN2}, 0")
    a("s_cbranch_scc1 K2_FIN")
    a.stamp(14)
    a(f"s_sub_u32 s{sRem}, s{sN2}, 1")
    a(f"s_mov_b32 s{sN2}, 0")
    a(f"v_mov_b32 v{NA}, v{N2}")
    a(f"v_mov_b32 v{NA+1}, v{N2+1}")
    a("s_waitcnt lgkmcnt(0)")
    setup_ac()
    a(f"s_setpc_b64 s[{sRet}:{sRet+1}]")
    a.lab("K2_FIN")
    a.stamp(15)
    a.stampc(31)
    a.stamp_flush(1, sW)
    a("s_endpgm")

    for tag in sw_sites:
        a.lab(f"K2_SW{tag}")
        a(f"s_mov_b32 s{sA}, s{sNxtA}")
        a(f"s_mov_b32 s{sCntS}, s{sNxtCnt}")
        a(f"s_mov_b32 s{sNxtA}, {L_DUM}")
        a(f"s_mov_b32 s{sNxtCnt}, 100")
        a(f"s_branch K2_SWR{tag}")

    a.lab("K2_TAIL")
    a(f"v_lshlrev_b32 v64, 3, v{vLane}")
    a.lab("K2_TAIL_LOOP")
    a(f"s_ff1_i32_b64 s{sT0}, s[{sTM}:{sTM+1}]")
    a(f"s_bitset0_b64 s[{sTM}:{sTM+1}], s{sT0}")
    a(f"v_readlane_b32 s{sT1}, v{vDesc}, s{sT0}")
    a(f"s_add_u32 s{sT0}, s{sT0}, s{sT3}")
    a(f"s_mul_i32 s{sT0}, s{sT0}, {CH}")
    a(f"s_and_b32 s{sT2}, s{sT1}, 0xffff")
    a(f"s_add_u32 s{sT0}, s{sT0}, s{sT2}")
    a(f"s_add_u32 s{sT0}, s{sT0}, 64")
    a(f"s_sub_u32 s{sT0}, s{sT0}, s{sSp}")
    a(f"s_lshr_b32 s{sT1}, s{sT1}, 16")
    a(f"s_sub_u32 s{sT1}, s{sT1}, 64")
    a(f"s_add_u32 s{sT2}, s{sSp}, s{sT1}")
    a(f"s_cmp_gt_u32 s{sT2}, 63")
    a("s_cbranch_scc1 K2_TAILF")
    a(f"s_bfm_b64 s[{sSave}:{sSave+1}], s{sT1}, s{sSp}")
    a(f"s_or_b64 s[{sM+24}:{sM+25}], s[{sM+24}:{sM+25}], s[{sSave}:{sSave+1}]")
    a(f"s_mov_b32 s{sSp}, s{sT2}")
    a(f"s_lshl_b32 s{sT1}, s{sT0}, 2")
    a(f"s_add_u32 s{sT1}, s{sT1}, {KEY_OFF}")
    a(f"s_lshl_b32 s{sT2}, s{sT0}, 3")
    a(f"s_add_u32 s{sT2}, s{sT2}, {EAT_OFF}")
    a(f"s_mov_b64 exec, s[{sSave}:{sSave+1}]")
    a(f"buffer_load_dword v{KEYR+12}, v{vL4}, s[{SWS}:{SWS+3}], s{sT1} offen{LD}")
    a(f"buffer_load_dwordx2 v[{ET}:{ET+1}], v64, s[{SWS}:{SWS+3}], s{sT2} offen{LD}")
    a("s_mov_b64 exec, -1")
    a(f"s_cmp_lg_u64 s[{sTM}:{sTM+1}], 0")
    a("s_cbranch_scc1 K2_TAIL_LOOP")
    a("s_branch K2_TAILR")
    a.lab("K2_TAILF")
    a(f"s_mov_b32 s{sOvf}, 1")
    a("s_branch K2_TAILR")

    L_AGG = L_EA
    a.lab("K2_FALLBACK")
    a("s_waitcnt vmcnt(0) lgkmcnt(0)")
    a(f"s_mov_b32 s{sKK}, {hex(NL2E)}")
    a(f"s_mov_b32 s{sKK+1}, {hex(NL2E)}")
    a("s_barrier")
    a("v_lshlrev_b32 v51, 4, v0")
    a(f"v_add_u32 v51, {L_AGG}, v51")
    for i in range(4):
        a(f"v_mov_b32 v{56+i}, 0")
    for i in range(4):
        a(f"ds_write_b128 v51, v[56:59] offset:{i*16384}")
    a("s_waitcnt lgkmcnt(0)")
    a("s_barrier")
    srd(a, SF0, 10, E * 4)
    srd(a, SF1, 8, E * 4)
    srd(a, SF2, 6, E * 8)
    a(f"s_mul_i32 s{sT3}, s{sBk}, {BN}")
    a(f"s_mul_i32 s{sT2}, s{sBk}, {BN*128}")
    a(f"s_lshl_b32 s{sT0}, s{sW}, 5")
    a(f"v_lshrrev_b32 v51, 1, v{vG8}")
    a.lab("K2_FB_LOOP")
    a(f"s_lshl_b32 s{sT1}, s{sT0}, 1")
    a(f"buffer_load_dword v52, v51, s[{SF0}:{SF0+3}], s{sT0} offen")
    a(f"buffer_load_dword v53, v51, s[{SF1}:{SF1+3}], s{sT0} offen")
    a(f"buffer_load_dwordx2 v[54:55], v{vG8}, s[{SF2}:{SF2+3}], s{sT1} offen")
    a("s_waitcnt vmcnt(0)")
    a(f"v_subrev_u32 v52, s{sT3}, v52")
    a(f"v_cmp_gt_u32 vcc, {BN}, v52")
    a("s_mov_b64 exec, vcc")
    a("s_cbranch_execz K2_FB_NEXT")
    a(f"v_lshl_add_u32 v53, v53, 7, v{vC8}")
    a("v_and_b32 v56, 7, v52")
    a("v_lshlrev_b32 v56, 4, v56")
    a(f"v_lshl_add_u32 v52, v52, 7, v{vC8}")
    a("v_xor_b32 v56, v56, v52")
    a(f"v_add_u32 v56, {L_AUR}, v56")
    a(f"buffer_load_dwordx4 v[16:19], v53, s[{SP}:{SP+3}], 0 offen{LD}")
    a("ds_read_b128 v[20:23], v56")
    a(f"v_add_u32 v52, {L_AGG}, v52")
    a("s_waitcnt vmcnt(0) lgkmcnt(0)")
    for m in range(4):
        a(f"v_cvt_f32_f16 v{20+m}, v{20+m}")
    for m in range(4):
        a(f"v_dot2_f32_bf16 v{20+m}, v54, v{WB+2*m}, v{20+m}")
    for m in range(4):
        a(f"v_dot2_f32_bf16 v{20+m}, v55, v{WB+2*m+1}, v{20+m}")
    a("s_nop 3")
    for m in range(4):
        a(f"v_fma_mix_f32 v{20+m}, v{20+m}, s{sK}, v{16+m} op_sel_hi:[0,0,1]")
    for m in range(4):
        a(f"v_exp_f32 v{20+m}, v{20+m}")
    a("s_nop 0")
    for m in range(4):
        a(f"v_add_f32 v{20+m}, 1.0, v{20+m}")
    for m in range(4):
        a(f"v_rcp_f32 v{20+m}, v{20+m}")
    a("s_nop 0")
    for m in range(4):
        a(f"v_mul_f32 v{20+m}, v{20+m}, v{16+m}")
    for m in range(4):
        a(f"ds_add_f32 v52, v{20+m} offset:{4*m}")
    a.lab("K2_FB_NEXT")
    a("s_mov_b64 exec, -1")
    a(f"s_add_u32 s{sT0}, s{sT0}, 512")
    a(f"s_cmp_lt_u32 s{sT0}, {E*4}")
    a("s_cbranch_scc1 K2_FB_LOOP")
    a("s_waitcnt lgkmcnt(0)")
    a("s_barrier")
    a(f"s_lshl_b32 s{sT0}, s{sW}, 10")
    a(f"v_lshlrev_b32 v51, 4, v{vG8}")
    a.lab("K2_FB_OUT")
    a(f"v_add_u32 v52, s{sT0}, v51")
    a(f"v_add_u32 v53, v52, v{vC8}")
    a(f"v_lshlrev_b32 v56, 1, v{vG8}")
    a("v_xor_b32 v56, v56, v53")
    a(f"v_min_u32 v56, {399*128+112}, v56")
    a(f"v_add_u32 v56, {L_AUR}, v56")
    a("ds_read_b128 v[16:19], v56")
    a(f"v_add_u32 v53, {L_AGG}, v53")
    a("ds_read_b128 v[20:23], v53")
    a("s_waitcnt vmcnt(0) lgkmcnt(0)")
    for m in range(4):
        a(f"v_add_f32 v{16+m}, v{16+m}, v{20+m}")
    epilogue(16, 24, 4)
    a(f"v_lshl_add_u32 v53, v52, 1, v{vCo}")
    a(f"v_cmp_gt_u32 vcc, {BN*128}, v52")
    a("s_mov_b64 exec, vcc")
    a(f"buffer_store_dwordx2 v[24:25], v53, s[{SO}:{SO+3}], s{sOutOff} offen{K2_ST}")
    a("s_mov_b64 exec, -1")
    a(f"s_add_u32 s{sT0}, s{sT0}, 16384")
    a(f"s_cmp_lt_u32 s{sT0}, {BN*128}")
    a("s_cbranch_scc1 K2_FB_OUT")
    a.lab("K2_END")
    a("s_endpgm")


def kd(name, vgpr, sgpr, extra=""):
    acc = (vgpr + 3) // 4 * 4
    return f""".amdhsa_kernel {name}
  .amdhsa_next_free_vgpr {vgpr}
  .amdhsa_next_free_sgpr {sgpr}
  .amdhsa_accum_offset {acc}
  .amdhsa_group_segment_fixed_size 0
  .amdhsa_kernarg_size 80
  .amdhsa_user_sgpr_count 2
  .amdhsa_user_sgpr_kernarg_segment_ptr 1
  .amdhsa_system_sgpr_workgroup_id_x 1
{extra}.end_amdhsa_kernel
"""


def main():
    out = HEADER
    if FUSED:
        out += f"; @launch grid=(256,1,1) block=(1024,1,1) lds={K1_LDS}\n"
    else:
        out += f"; @launch kernel=k1_kernel grid=(256,1,1) block=(1024,1,1) lds={K1_LDS}\n"
        out += f"; @launch kernel=k2_kernel grid=(256,1,1) block=(1024,1,1) lds={K2_LDS}\n"
    out += '.amdgcn_target "amdgcn-amd-amdhsa--gfx950"\n.text\n'
    for name, g in ((KNAME if FUSED else "k1_kernel", gen_k1), ("k2_kernel", gen_k2)):
        a = A()
        g(a)
        if not (FUSED and g is gen_k2):
            out += f".globl {name}\n.p2align 8\n.type {name},@function\n"
        out += "\n".join(a.l) + "\n"
    out += '.section .rodata,"a"\n.p2align 6\n'
    out += kd(KNAME if FUSED else "k1_kernel", 128, 102, "  .amdhsa_fp16_overflow 1\n")
    if not FUSED:
        out += ".p2align 6\n"
        out += kd("k2_kernel", 128, 102)
    path = sys.argv[1] if len(sys.argv) > 1 else "gather_scatter__edge_featured_mpnn_egc__graph.s"
    open(path, "w").write(out)


if __name__ == "__main__":
    main()
```

```python
import sys

N = 25000
E = 400000
NB = 64
BN = 391
CH = 3200
NCH = 125
PS = 25040 * 128
P_OFF = 0
AU_OFF = 0x1000000
KEY_OFF = 0x2000000
EAT_OFF = 0x2200000
DESC_OFF = 0x2800000
GCNT_OFF = 0x2810000
WS_USED = 0x2900000
NL2E = 0xBFB8AA3B
MAGIC = 85817

OPTS = set(sys.argv[2:])
STAMPS = "stamps" in OPTS
STAMP_OFF = 0x3000000
K1_ST = ""
K2_ST = " nt"
NT_E = "" if "noent" in OPTS else " nt"
NT_X = " nt" if "xnt" in OPTS else ""
FUSED = "split" not in OPTS
K1_ST = " sc1"
P_ST = " sc1 nt" if "pnt" in OPTS else (" sc0 sc1" if "p01" in OPTS else " sc1")
G_LD = "" if "gplain" in OPTS else " sc1"
LD = " sc1" if FUSED else ""
KNAME = "gather_scatter__edge_featured_mpnn_egc__graph_kernel"
SDB = 96
TCH = [tuple(int(x) for x in o[4:].split(",")) for o in OPTS if o.startswith("tch=")]
TCH = TCH[0] if TCH else None
TMAP = "notmap" not in OPTS
SLP = 1 if "slp1" in OPTS else 4
for o in OPTS:
    if o.startswith("k1st="):
        K1_ST = " " + o[5:].replace("+", " ")
    if o.startswith("k2st="):
        K2_ST = " " + o[5:].replace("+", " ")

HEADER = """; Kernarg layout for this problem (80 bytes, ptrs only, base s[0:1]):
"""


class A:
    def __init__(self):
        self.l = []
        self.vst = None

    def __call__(self, s):
        for x in s.strip().split("\n"):
            self.l.append("    " + x.strip())

    def lab(self, s):
        self.l.append(s + ":")

    def c(self, s):
        self.l.append("    ; " + s)

    def stamp(self, idx):
        if not STAMPS:
            return
        self("s_memrealtime s[100:101]")
        self("s_waitcnt lgkmcnt(0)")
        self(f"v_writelane_b32 v{self.vst}, s100, {idx}")

    def stampc(self, idx):
        if not STAMPS:
            return
        self("s_memtime s[100:101]")
        self("s_waitcnt lgkmcnt(0)")
        self(f"v_writelane_b32 v{self.vst}, s100, {idx}")

    def stamp_flush(self, kidx, sw):
        if not STAMPS:
            return
        self("s_mov_b64 exec, -1")
        self(f"s_add_u32 s12, s20, {STAMP_OFF + kidx*0x100000}")
        self("s_addc_u32 s13, s21, 0")
        self("s_mov_b32 s14, 0x100000")
        self("s_mov_b32 s15, 0x20000")
        self("s_lshl_b32 s100, s2, 12")
        self(f"v_mbcnt_lo_u32_b32 v{self.vst+1}, -1, 0")
        self(f"v_mbcnt_hi_u32_b32 v{self.vst+1}, -1, v{self.vst+1}")
        self(f"v_lshlrev_b32 v{self.vst+1}, 2, v{self.vst+1}")
        self(f"s_lshl_b32 s101, s{sw}, 8")
        self("s_add_u32 s100, s100, s101")
        self(f"buffer_store_dword v{self.vst}, v{self.vst+1}, s[12:15], s100 offen")


def srd(a, d, base, size, off=0):
    if off:
        a(f"s_add_u32 s{d}, s{base}, {off}")
        a(f"s_addc_u32 s{d+1}, s{base+1}, 0")
    else:
        a(f"s_mov_b32 s{d}, s{base}")
        a(f"s_mov_b32 s{d+1}, s{base+1}")
    a(f"s_mov_b32 s{d+2}, {size}")
    a(f"s_mov_b32 s{d+3}, 0x20000")


def scan64(a, v):
    for sh in (1, 2, 4, 8):
        a("s_nop 1")
        a(f"v_add_u32_dpp v{v}, v{v}, v{v} row_shr:{sh} row_mask:0xf bank_mask:0xf bound_ctrl:0")
    a("s_nop 1")
    a(f"v_add_u32_dpp v{v}, v{v}, v{v} row_bcast:15 row_mask:0xa bank_mask:0xf")
    a("s_nop 1")
    a(f"v_add_u32_dpp v{v}, v{v}, v{v} row_bcast:31 row_mask:0xc bank_mask:0xf")


K1_WP = 98304
K1_WAU = 102400
K1_CNT = 118784
K1_STK = K1_CNT + 2048
K1_STE = K1_STK + 12800
K1_SCR = 131072
L_AUR = 112640
L_GW = 103936
K1_LDS = 163840
assert K1_STE + 25600 <= K1_LDS


def poll(a, tag, vP, off, val=None, slp=2):
    a("s_mov_b32 s101, 0x40000")
    a("s_mov_b64 exec, 1")
    a.lab(f"POLL{tag}")
    a(f"buffer_load_dword v{vP}, off, s[{SDB}:{SDB+3}], 0 offset:{off} sc1")
    a("s_waitcnt vmcnt(0)")
    a(f"v_cmp_ne_u32 vcc, 0, v{vP}" if val is None else f"v_cmp_eq_u32 vcc, {val}, v{vP}")
    a("s_sub_u32 s101, s101, 1")
    a(f"s_cbranch_scc1 POLLD{tag}")
    a(f"s_cbranch_vccnz POLLD{tag}")
    a(f"s_sleep {slp}")
    a(f"s_branch POLL{tag}")
    a.lab(f"POLLD{tag}")
    a("s_mov_b64 exec, -1")


def gen_k1(a):
    sW, sSl, sBk, sT0, sT1, sT2, sT3 = 22, 23, 24, 25, 26, 27, 28
    sG = 29
    sEx = 30
    SD, SS, SE, SWS, SX, SWL, SWH = 32, 36, 40, 44, 48, 52, 56
    sScale, sOut, sS, sQ, sX0, sDl, sJ, sSlot = 60, 61, 62, 63, 64, 65, 66, 67
    sUns = 94
    vLane = 1
    VX = 40
    VW = 44
    a.lab(KNAME)
    a.vst = 11
    a("s_cmp_ge_u32 s2, 256")
    a("s_cbranch_scc1 K1_END2")
    a.stamp(0)
    a.stampc(30)
    a("s_load_dwordx16 s[4:19], s[0:1], 0")
    a("s_load_dwordx2 s[20:21], s[0:1], 72")
    a(f"s_load_dwordx2 s[{SDB}:{SDB+1}], s[0:1], 64")
    a("v_lshrrev_b32 v2, 6, v0")
    a(f"v_and_b32 v{vLane}, 63, v0")
    a(f"v_readfirstlane_b32 s{sW}, v2")
    a(f"s_mov_b32 s{SDB+2}, 256")
    a(f"s_mov_b32 s{SDB+3}, 0x20000")
    a(f"s_and_b32 s{sSl}, s2, 3")
    a(f"s_lshr_b32 s{sT0}, s2, 2")
    if "oldmap" in OPTS:
        a(f"s_mov_b32 s{sBk}, s{sT0}")
    else:
        a.c("bucket = 32*((wg>>2)&1) + (wg>>3): workgroups that share an L2 take neighbouring buckets")
        a(f"s_and_b32 s{sBk}, s{sT0}, 1")
        a(f"s_lshl_b32 s{sBk}, s{sBk}, 5")
        a(f"s_lshr_b32 s{sT1}, s2, 3")
        if TMAP:
            a(f"s_lshl_b32 s{sT2}, s2, 3")
            a(f"s_and_b32 s{sT2}, s{sT2}, 16")
            a(f"s_xor_b32 s{sT1}, s{sT1}, s{sT2}")
        a(f"s_or_b32 s{sBk}, s{sBk}, s{sT1}")
    if TMAP:
        a(f"s_mov_b32 s{sG}, s2")
    else:
        a(f"s_lshl_b32 s{sG}, s{sT0}, 1")
        a(f"s_add_u32 s{sG}, s{sG}, s{sSl}")
    a(f"s_mul_i32 s{sX0}, s{sBk}, {BN*256}")
    if TMAP:
        a(f"s_and_b32 s{sT2}, s2, 0x81")
        a(f"s_cmp_eq_u32 s{sT2}, 0x80")
    else:
        a(f"s_cmp_eq_u32 s{sSl}, 2")
    a(f"s_cselect_b32 s{sDl}, 1, 0")
    a("v_lshlrev_b32 v2, 4, v0")
    a("v_lshlrev_b32 v3, 5, v0")
    a(f"v_lshrrev_b32 v4, 4, v{vLane}")
    a(f"v_and_b32 v5, 15, v{vLane}")
    a("v_xor_b32 v6, v5, v4")
    a("v_lshlrev_b32 v6, 4, v6")
    a(f"v_lshl_add_u32 v{VX}, v4, 8, v6")
    a(f"v_xor_b32 v{VX+1}, 64, v{VX}")
    a(f"v_xor_b32 v{VX+2}, 0x80, v{VX}")
    a(f"v_xor_b32 v{VX+3}, 0xc0, v{VX}")
    a("v_lshrrev_b32 v6, 1, v5")
    a("v_xor_b32 v6, v6, v4")
    a("v_lshlrev_b32 v6, 5, v6")
    a("v_lshl_add_u32 v6, v4, 8, v6")
    a(f"v_and_b32 v7, 1, v{vLane}")
    a(f"v_lshl_add_u32 v{VW}, v7, 4, v6")
    a(f"v_xor_b32 v{VW+1}, 0x80, v{VW}")
    a(f"v_lshrrev_b32 v6, 2, v{vLane}")
    a("v_lshlrev_b32 v6, 8, v6")
    a(f"v_and_b32 v7, 3, v{vLane}")
    a(f"v_lshrrev_b32 v8, 4, v{vLane}")
    a("v_and_b32 v8, 2, v8")
    a("v_xor_b32 v7, v7, v8")
    a(f"v_lshl_add_u32 v{VW+2}, v7, 4, v6")
    if "icode" in OPTS:
        a.c("pull this kernel's code into the XCD's L2 (wave 15 of the first workgroups)")
        a(f"s_cmp_lg_u32 s{sW}, 15")
        a("s_cbranch_scc1 K1_NOIC")
        a("s_cmp_ge_u32 s2, 16")
        a("s_cbranch_scc1 K1_NOIC")
        a("s_getpc_b64 s[68:69]")
        a(f"v_lshlrev_b32 v60, 7, v{vLane}")
        a.lab("K1_ICB")
        a("global_load_dword v61, v60, s[68:69]")
        a("s_add_u32 s68, s68, 8192")
        a("s_addc_u32 s69, s69, 0")
        a("s_bfm_b64 exec, (K2_END-K1_ICB-8192)/128, 0")
        a("global_load_dword v62, v60, s[68:69]")
        a("s_mov_b64 exec, -1")
        a.lab("K1_NOIC")
    a("s_waitcnt lgkmcnt(0)")
    a.stamp(1)
    srd(a, SX, 4, N * 256)
    a("s_cmp_ge_u32 s2, 128" if TMAP else f"s_cmp_ge_u32 s{sSl}, 2")
    a("s_cbranch_scc1 K1_TB")

    def xdma(slot_sgpr, tag):
        a(f"s_lshl_b32 s{sT0}, s{slot_sgpr}, 12")
        a(f"s_mov_b32 m0, s{sT0}")
        a(f"s_sub_u32 s{sT1}, s{slot_sgpr}, s{sDl}")
        a(f"s_cselect_b32 s{sT1}, 24, s{sT1}")
        a(f"s_lshl_b32 s{sT1}, s{sT1}, 12")
        a(f"s_add_u32 s{sT1}, s{sT1}, s{sX0}")
        for pp in range(4):
            a(f"buffer_load_dwordx4 v{VX+pp}, s[{SX}:{SX+3}], s{sT1} offen offset:{pp*1024}{NT_X} lds")

    def waudma(piece_sgpr):
        a(f"s_lshl_b32 s{sT0}, s{piece_sgpr}, 10")
        a(f"s_add_u32 s{sT0}, s{sT0}, {K1_WAU}")
        a(f"s_mov_b32 m0, s{sT0}")
        a(f"s_and_b32 s{sT1}, s{piece_sgpr}, 7")
        a(f"s_lshl_b32 s{sT1}, s{sT1}, 12")
        a(f"s_lshl_b32 s{sT0}, s{sSl}, 6")
        a(f"s_add_u32 s{sT1}, s{sT1}, s{sT0}")
        a(f"s_cmp_lt_u32 s{piece_sgpr}, 8")
        a(f"s_cselect_b32 s{SWL}, s16, s12")
        a(f"s_cselect_b32 s{SWL+1}, s17, s13")
        a(f"s_mov_b32 s{SWL+2}, 32768")
        a(f"s_mov_b32 s{SWL+3}, 0x20000")
        a(f"buffer_load_dwordx4 v{VW+2}, s[{SWL}:{SWL+3}], s{sT1} offen lds")

    a(f"s_cmp_ge_u32 s{sG}, {NCH}")
    a("s_cbranch_scc1 K1_NOEDGE")
    a(f"s_cmp_ge_u32 s{sW}, 13")
    a("s_cbranch_scc1 K1_NOEDGE")
    srd(a, SD, 10, E * 4)
    srd(a, SS, 8, E * 4)
    srd(a, SE, 6, E * 8)
    a("v_cmp_gt_u32 vcc, 800, v0")
    a(f"s_mul_i32 s{sT0}, s{sG}, {CH*4}")
    a(f"s_mul_i32 s{sT1}, s{sG}, {CH*8}")
    a(f"s_mov_b64 s[{sEx}:{sEx+1}], vcc")
    a("s_mov_b64 exec, vcc")
    a(f"buffer_load_dwordx4 v[16:19], v2, s[{SD}:{SD+3}], s{sT0} offen{NT_E}")
    a(f"buffer_load_dwordx4 v[20:23], v2, s[{SS}:{SS+3}], s{sT0} offen{NT_E}")
    a(f"buffer_load_dwordx4 v[24:27], v3, s[{SE}:{SE+3}], s{sT1} offen{NT_E}")
    a(f"buffer_load_dwordx4 v[28:31], v3, s[{SE}:{SE+3}], s{sT1} offen offset:16{NT_E}")
    a("s_mov_b64 exec, -1")
    a.lab("K1_NOEDGE")
    srd(a, SWS, 20, WS_USED)
    a(f"v_lshlrev_b32 v6, 2, v{vLane}")
    a(f"v_add_u32 v6, {K1_CNT}, v6")
    a("v_mov_b32 v7, 0")
    a(f"v_mov_b32 v12, {K1_CNT+1024}")
    a(f"s_cmp_lg_u32 s{sW}, 0")
    a("s_cbranch_scc1 K1_P1")
    a("ds_write_b32 v6, v7")
    a("ds_write_b32 v6, v7 offset:256")
    a("ds_write_b32 v6, v7 offset:1024")
    a("s_waitcnt lgkmcnt(0)")
    a.lab("K1_P1")
    a("s_barrier")
    a(f"s_cmp_lt_u32 s{sW}, 13")
    a("s_cbranch_scc1 K1_PW")
    a.c("loader waves 13..15 : W_AU pieces and x tiles by LDS-DMA")
    a(f"s_sub_u32 s{sJ}, s{sW}, 13")
    a.lab("K1_LA1")
    waudma(sJ)
    a(f"s_add_u32 s{sJ}, s{sJ}, 3")
    a(f"s_cmp_lt_u32 s{sJ}, 16")
    a("s_cbranch_scc1 K1_LA1")
    a(f"s_sub_u32 s{sJ}, s{sW}, 13")
    H0 = [int(o[3:]) for o in OPTS if o.startswith("h0=")]
    if H0:
        a.c("edge loads first")
        a(f"s_cmp_ge_u32 s{sG}, {NCH}")
        a("s_cbranch_scc1 K1_H0D")
        a.lab("K1_H0")
        a(f"ds_read_b32 v13, v12 offset:{H0[0]}")
        a("s_waitcnt lgkmcnt(0)")
        a("v_cmp_gt_u32 vcc, 13, v13")
        a("s_cbranch_vccnz K1_H0")
        a.lab("K1_H0D")
    xdma(sJ, "A0")
    a(f"s_add_u32 s{sJ}, s{sJ}, 3")
    xdma(sJ, "A1")
    a(f"s_add_u32 s{sJ}, s{sJ}, 3")
    a("v_mov_b32 v7, 1")
    a("s_waitcnt vmcnt(8)")
    a("s_mov_b64 exec, 1")
    a("ds_add_u32 v12, v7 offset:12")
    a("s_mov_b64 exec, -1")
    HOLD = [int(o[5:]) for o in OPTS if o.startswith("hold=")]
    if HOLD:
        for h in range(HOLD[0] - 2):
            xdma(sJ, f"AH{h}")
            a(f"s_add_u32 s{sJ}, s{sJ}, 3")
        a.c("let the partition's record stores go out first")
        a(f"s_cmp_ge_u32 s{sG}, {NCH}")
        a("s_cbranch_scc1 K1_LA2")
        a.lab("K1_HOLD")
        a("ds_read_b32 v13, v12 offset:16")
        a("s_waitcnt lgkmcnt(0)")
        a("v_cmp_gt_u32 vcc, 13, v13")
        a("s_cbranch_vccnz K1_HOLD")
    a.lab("K1_LA2")
    xdma(sJ, "A")
    a(f"s_add_u32 s{sJ}, s{sJ}, 3")
    a(f"s_cmp_lt_u32 s{sJ}, 25")
    a("s_cbranch_scc1 K1_LA2")
    a.stamp(2)
    a("s_branch K1_AUA")
    a.lab("K1_PW")
    a(f"s_cmp_ge_u32 s{sG}, {NCH}")
    a("s_cbranch_scc1 K1_AUA")

    def sb(k, tag):
        a("s_waitcnt lgkmcnt(0)")
        a("s_mov_b64 exec, 1")
        a(f"ds_add_u32 v12, v7 offset:{4+4*k}")
        a("s_mov_b64 exec, -1")
        a.lab(f"K1_SB{tag}")
        a(f"ds_read_b32 v13, v12 offset:{4+4*k}")
        a("s_waitcnt lgkmcnt(0)")
        a("v_cmp_gt_u32 vcc, 13, v13")
        a(f"s_cbranch_vccnz K1_SB{tag}")
    a(f"s_mov_b32 s{sT0}, {MAGIC}")
    a(f"s_mov_b32 s{sT1}, {-BN & 0xffffffff}")
    a("v_mov_b32 v7, 1")
    a(f"s_mov_b64 exec, s[{sEx}:{sEx+1}]")
    a("s_waitcnt vmcnt(3)")
    a.stamp(3)
    for i in range(4):
        a(f"v_mul_u32_u24 v{32+i}, s{sT0}, v{16+i}")
    for i in range(4):
        a(f"v_lshrrev_b32 v{32+i}, 25, v{32+i}")
    for i in range(4):
        a(f"v_mad_i32_i24 v{16+i}, v{32+i}, s{sT1}, v{16+i}")
    for i in range(4):
        a(f"v_lshlrev_b32 v{32+i}, 2, v{32+i}")
    for i in range(4):
        a(f"v_add_u32 v{32+i}, {K1_CNT}, v{32+i}")
    for i in range(4):
        a(f"ds_add_rtn_u32 v{36+i}, v{32+i}, v7")
    for i in range(4):
        a(f"v_lshlrev_b32 v{16+i}, 2, v{16+i}")
    a("s_waitcnt vmcnt(2)")
    for i in range(4):
        a(f"v_lshl_or_b32 v{20+i}, v{20+i}, 16, v{16+i}")
    sb(0, "2")
    a.stamp(4)
    a("ds_read_b32 v8, v6")
    a("s_waitcnt lgkmcnt(0)")
    a("v_mov_b32 v9, v8")
    scan64(a, 9)
    a("v_sub_u32 v9, v9, v8")
    a("ds_write_b32 v6, v9 offset:512")
    a("v_lshl_or_b32 v8, v8, 16, v9")
    a(f"s_mov_b64 exec, s[{sEx}:{sEx+1}]")
    for i in range(4):
        a(f"ds_read_b32 v{32+i}, v{32+i} offset:512")
    a("s_waitcnt lgkmcnt(0)")
    for i in range(4):
        a(f"v_add_u32 v{32+i}, v{32+i}, v{36+i}")
    for i in range(4):
        a(f"v_lshlrev_b32 v{36+i}, 2, v{32+i}")
        a(f"v_lshlrev_b32 v{32+i}, 3, v{32+i}")
    for i in range(4):
        a(f"v_add_u32 v{36+i}, {K1_STK}, v{36+i}")
        a(f"v_add_u32 v{32+i}, {K1_STE}, v{32+i}")
    for i in range(4):
        a(f"ds_write_b32 v{36+i}, v{20+i}")
    a("s_waitcnt vmcnt(0)")
    for i in range(4):
        a(f"ds_write_b64 v{32+i}, v[{24+2*i}:{25+2*i}]")
    a("v_or3_b32 v16, v24, v25, v26")
    a("v_or3_b32 v17, v27, v28, v29")
    a("v_or3_b32 v16, v30, v31, v16")
    a("v_or_b32 v16, v16, v17")
    a("v_and_b32 v16, 0x40004000, v16")
    a("v_cmp_ne_u32 vcc, 0, v16")
    a(f"s_cmp_lg_u64 vcc, 0")
    a(f"s_cselect_b32 s{sUns}, 0x101, 1")
    sb(1, "3")
    a.stamp(5)
    a(f"s_mov_b64 exec, s[{sEx}:{sEx+1}]")
    a(f"v_add_u32 v6, {K1_STK}, v2")
    a("ds_read_b128 v[16:19], v6")
    a("ds_read_b128 v[20:23], v6 offset:12800")
    a("ds_read_b128 v[24:27], v6 offset:25600")
    a(f"s_mul_i32 s{sT0}, s{sG}, {CH*4}")
    a(f"s_add_u32 s{sT0}, s{sT0}, {KEY_OFF}")
    a(f"s_mul_i32 s{sT1}, s{sG}, {CH*8}")
    a(f"s_add_u32 s{sT1}, s{sT1}, {EAT_OFF}")
    a(f"s_add_u32 s{sT2}, s{sT1}, 12800")
    a("s_waitcnt lgkmcnt(2)")
    a(f"buffer_store_dwordx4 v[16:19], v2, s[{SWS}:{SWS+3}], s{sT0} offen{K1_ST}")
    a("s_waitcnt lgkmcnt(1)")
    a(f"buffer_store_dwordx4 v[20:23], v2, s[{SWS}:{SWS+3}], s{sT1} offen{K1_ST}")
    a("s_waitcnt lgkmcnt(0)")
    a(f"buffer_store_dwordx4 v[24:27], v2, s[{SWS}:{SWS+3}], s{sT2} offen{K1_ST}")
    a("s_mov_b64 exec, -1")
    a(f"s_cmp_lg_u32 s{sW}, 0")
    a("s_cbranch_scc1 K1_P2B")
    a(f"v_lshlrev_b32 v9, 2, v{vLane}")
    a(f"s_lshl_b32 s{sT0}, s{sG}, 8")
    a(f"s_add_u32 s{sT0}, s{sT0}, {DESC_OFF}")
    a(f"buffer_store_dword v8, v9, s[{SWS}:{SWS+3}], s{sT0} offen{K1_ST}")
    a.lab("K1_P2B")
    if HOLD:
        a("s_mov_b64 exec, 1")
        a("ds_add_u32 v12, v7 offset:16")
        a("s_mov_b64 exec, -1")
    a.c("publish the partition: the last of the 13 storing waves counts this workgroup into R")
    a(f"v_mov_b32 v15, s{sUns}")
    a("s_waitcnt vmcnt(0)")
    a("s_mov_b64 exec, 1")
    a("ds_add_rtn_u32 v14, v12, v15")
    a("s_waitcnt lgkmcnt(0)")
    a("v_add_u32 v14, v14, v15")
    a("v_and_b32 v15, 0xff, v14")
    a("v_cmp_eq_u32 vcc, 13, v15")
    a("s_cbranch_vccz K1_NOR2")
    a("v_lshrrev_b32 v14, 8, v14")
    a("v_lshl_or_b32 v14, v14, 16, 1")
    a("v_mov_b32 v15, v14")
    a(f"buffer_atomic_add v15, off, s[{SDB}:{SDB+3}], 0 sc0 sc1")
    a("s_waitcnt vmcnt(0)")
    a("v_add_u32 v15, v15, v14")
    a("v_and_b32 v14, 0xffff, v15")
    a(f"v_cmp_eq_u32 vcc, {NCH}, v14")
    a("s_cbranch_vccz K1_NOR2")
    a(f"buffer_store_dword v15, off, s[{SDB}:{SDB+3}], 0 offset:192 sc1")
    a.lab("K1_NOR2")
    a("s_mov_b64 exec, -1")
    a.stamp(6)
    a.lab("K1_AUA")
    a("ds_read_b32 v13, v12 offset:12")
    a("s_waitcnt lgkmcnt(0)")
    a("v_cmp_gt_u32 vcc, 3, v13")
    a("s_cbranch_vccnz K1_AUA")
    a("s_branch K1_AU")

    a.lab("K1_TB")
    a(f"s_add_u32 s{sT0}, s16, 32768")
    a(f"s_addc_u32 s{sT1}, s17, 0")
    a(f"s_cmp_lt_u32 s{sW}, 8")
    a(f"s_cselect_b32 s{SWH}, s{sT0}, s14")
    a(f"s_cselect_b32 s{SWH+1}, s{sT1}, s15")
    a(f"s_mov_b32 s{SWH+2}, 32768")
    a(f"s_mov_b32 s{SWH+3}, 0x20000")
    a(f"s_lshl_b32 s{sT0}, s{sW}, 12")
    a(f"s_add_u32 s{sT1}, s{sT0}, {K1_WP}")
    a(f"s_mov_b32 m0, s{sT1}")
    a(f"s_and_b32 s{sT0}, s{sT0}, 0x7fff")
    for pp in range(4):
        a(f"buffer_load_dwordx4 v{VW+(pp>>1)}, s[{SWH}:{SWH+3}], s{sT0} offen offset:{pp*1024} lds")
    srd(a, SWS, 20, WS_USED)

    def xup():
        a(f"s_cmp_ge_u32 s{sW}, 13")
        a("s_cbranch_scc1 K1_B0")
        a(f"s_lshl_b32 s{sJ}, s{sW}, 1")
        a(f"s_add_u32 s{sJ}, s{sJ}, 1")
        a(f"s_cmp_eq_u32 s{sW}, 12")
        a(f"s_cselect_b32 s{sJ}, 0, s{sJ}")
        xdma(sJ, "B")
        a.lab("K1_B0")
    if "wfirst" not in OPTS:
        xup()
    a(f"s_and_b32 s{sS}, s{sW}, 3")
    a(f"s_lshr_b32 s{sQ}, s{sW}, 2")
    a(f"v_lshrrev_b32 v2, 4, v{vLane}")
    a(f"v_and_b32 v3, 15, v{vLane}")
    a("v_lshrrev_b32 v48, 2, v3")
    a("v_and_b32 v49, 1, v2")
    a("v_lshl_or_b32 v49, v49, 2, v48")
    a(f"s_lshl_b32 s{sT0}, s{sS}, 1")
    a(f"v_xor_b32 v49, s{sT0}, v49")
    a("v_lshlrev_b32 v49, 5, v49")
    a("v_lshl_add_u32 v48, v2, 3, v48")
    a("v_lshl_add_u32 v48, v48, 8, v49")
    a(f"v_and_b32 v49, 3, v{vLane}")
    a("v_lshl_add_u32 v48, v49, 3, v48")
    a(f"v_add_u32 v48, {K1_WP}, v48")
    a("v_xor_b32 v49, 32, v48")
    a("v_and_b32 v10, 7, v3")
    a("v_xor_b32 v10, v10, v2")
    a("v_lshlrev_b32 v10, 4, v10")
    a("v_lshl_add_u32 v10, v3, 7, v10")
    a(f"s_lshl_b32 s{sT0}, s{sW}, 11")
    a(f"s_add_u32 s{sT0}, s{sT0}, {K1_SCR}")
    a(f"v_add_u32 v10, s{sT0}, v10")
    a("v_xor_b32 v0, 64, v10")
    a(f"v_lshlrev_b32 v2, 4, v{vLane}")
    a(f"v_add_u32 v2, s{sT0}, v2")
    a(f"v_lshrrev_b32 v3, 3, v{vLane}")
    a(f"v_and_b32 v28, 7, v{vLane}")
    a("v_xor_b32 v28, v28, v3")
    a("v_lshlrev_b32 v28, 4, v28")
    a("v_lshl_add_u32 v3, v3, 7, v28")
    a(f"s_mov_b32 s{sScale}, {hex(NL2E)}")
    if "wfirst" in OPTS:
        a("s_waitcnt vmcnt(0)")
        xup()
    else:
        a(f"s_cmp_ge_u32 s{sW}, 13")
        a("s_cbranch_scc1 K1_B1")
        a("s_waitcnt vmcnt(4)")
        a("s_branch K1_B2")
        a.lab("K1_B1")
        a("s_waitcnt vmcnt(0)")
        a.lab("K1_B2")
    a.stamp(2)
    a("s_barrier")
    WF = 64

    def wf(mat, ct, ks):
        return WF + ((mat * 2 + ct) * 4 + ks) * 4
    for ks in range(4):
        for mat in range(2):
            for ct in range(2):
                b = wf(mat, ct, ks)
                off = mat * 32768 + ks * 8192
                a(f"ds_read_b64_tr_b16 v[{b}:{b+1}], v{48+ct} offset:{off}")
                a(f"ds_read_b64_tr_b16 v[{b+2}:{b+3}], v{48+ct} offset:{off+1024}")
    a("s_waitcnt lgkmcnt(0)")
    a.stamp(3)
    a("s_barrier")
    waudma(sW)

    def xlate(tag):
        a(f"s_cmp_ge_u32 s{sW}, 12")
        a(f"s_cbranch_scc1 K1_B3{tag}")
        a(f"s_lshl_b32 s{sJ}, s{sW}, 1")
        a(f"s_add_u32 s{sJ}, s{sJ}, 2")
        xdma(sJ, "C")
        if tag:
            a("s_waitcnt vmcnt(4)")
            a("s_branch K1_B4")
        a.lab(f"K1_B3{tag}")
        if tag:
            a("s_waitcnt vmcnt(0)")
            a.lab("K1_B4")
    if "early" in OPTS:
        a("s_barrier")
        xlate("E")
    XF = [32, 48]

    def xconst():
        a(f"v_lshrrev_b32 v4, 4, v{vLane}")
        a(f"v_and_b32 v5, 15, v{vLane}")
        a("v_xor_b32 v4, v4, v5")
        a("v_lshlrev_b32 v4, 4, v4")
        a("v_lshl_add_u32 v5, v5, 8, v4")

    def xread(buf, slot_sgpr):
        a(f"s_lshl_b32 s{sT0}, s{slot_sgpr}, 12")
        a(f"v_add_u32 v6, s{sT0}, v5")
        a("v_xor_b32 v7, 64, v6")
        a("v_xor_b32 v8, 0x80, v6")
        a("v_xor_b32 v9, 0xc0, v6")
        for ks in range(4):
            a(f"ds_read_b128 v[{XF[buf]+4*ks}:{XF[buf]+4*ks+3}], v{6+ks}")

    def mfmas(buf, mid=None):
        for ks in range(4):
            for mat in range(2):
                for ct in range(2):
                    d = 16 + (mat * 2 + ct) * 4
                    b = wf(mat, ct, ks)
                    cin = "0" if ks == 0 else f"v[{d}:{d+3}]"
                    a(f"v_mfma_f32_16x16x32_bf16 v[{d}:{d+3}], v[{b}:{b+3}], v[{XF[buf]+4*ks}:{XF[buf]+4*ks+3}], {cin}")
            if ks == 0 and mid:
                mid()
    xconst()
    a(f"s_lshl_b32 s{sSlot}, s{sQ}, 1")
    a(f"s_add_u32 s{sSlot}, s{sSlot}, 1")
    a(f"s_mul_i32 s{sOut}, s{sS}, {PS}")
    a(f"s_lshr_b32 s{sT0}, s{sX0}, 1")
    a(f"s_add_u32 s{sOut}, s{sOut}, s{sT0}")
    a(f"s_sub_u32 s{sT0}, s{sSlot}, s{sDl}")
    a(f"s_lshl_b32 s{sT0}, s{sT0}, 11")
    a(f"s_add_u32 s{sOut}, s{sOut}, s{sT0}")
    a.stamp(4)
    a("v_mov_b32 v4, 0")
    if "early" not in OPTS:
        a("s_waitcnt vmcnt(0)")
    a.stamp(5)
    a("s_barrier")
    a.stamp(7)
    a.stampc(31)
    if "early" not in OPTS:
        xlate("")
    xread(0, sSlot)
    for i in range(4):
        buf = i & 1
        if i == 3:
            a.c("13th P tile (tile 24, slot 0): slice 2, set 0 only")
            a(f"s_cmp_lg_u32 s{sQ}, 0")
            a("s_cbranch_scc1 K1_PDONE")
            a(f"s_cmp_eq_u32 s{sDl}, 0")
            a("s_cbranch_scc1 K1_PDONE")
        if i < 2:
            a(f"s_add_u32 s{sSlot}, s{sSlot}, 8")
        elif i == 2:
            a(f"s_mov_b32 s{sSlot}, 0")
        a("s_waitcnt lgkmcnt(0)")
        mfmas(buf, (lambda: xread(buf ^ 1, sSlot)) if i < 3 else None)
        a("s_nop 7")
        for r in range(16, 32, 2):
            a(f"v_max3_f32 v4, abs(v{r}), abs(v{r+1}), v4")
        for ct in range(2):
            for j in range(4):
                a(f"v_fma_mixlo_f16 v{24+4*ct+j}, v{16+4*ct+j}, s{sScale}, 0")
        a("ds_write_b128 v10, v[24:27]")
        a("ds_write_b128 v0, v[28:31]")
        a("ds_read_b128 v[12:15], v2")
        a("ds_read_b128 v[16:19], v2 offset:1024")
        a("s_waitcnt lgkmcnt(1)")
        a(f"buffer_store_dwordx4 v[12:15], v3, s[{SWS}:{SWS+3}], s{sOut} offen{P_ST}")
        a("s_waitcnt lgkmcnt(0)")
        a(f"buffer_store_dwordx4 v[16:19], v3, s[{SWS}:{SWS+3}], s{sOut} offen offset:1024{P_ST}")
        a.stamp(8 + i)
        if i < 3:
            a(f"s_add_u32 s{sOut}, s{sOut}, 16384")
            a("s_nop 1")
    a.lab("K1_PDONE")
    a("v_cmp_le_f32 vcc, 4.0, v4")
    a("s_cbranch_vccz K1_PSAFE")
    a("v_mov_b32 v13, 0x10000")
    a("s_mov_b64 exec, 1")
    a(f"buffer_atomic_add v13, off, s[{SDB}:{SDB+3}], 0 offset:64 sc1")
    a("s_mov_b64 exec, -1")
    a.lab("K1_PSAFE")
    a.lab("K1_AU")
    xconst()
    a(f"v_lshrrev_b32 v2, 4, v{vLane}")
    a(f"v_and_b32 v3, 15, v{vLane}")
    a("v_lshrrev_b32 v48, 2, v3")
    a("v_lshl_add_u32 v48, v2, 3, v48")
    a("v_lshlrev_b32 v48, 6, v48")
    a(f"v_and_b32 v49, 3, v{vLane}")
    a("v_lshl_add_u32 v48, v49, 3, v48")
    a("v_and_b32 v49, 1, v2")
    a("v_lshl_add_u32 v48, v49, 5, v48")
    a(f"v_add_u32 v48, {K1_WAU}, v48")
    a("v_xor_b32 v49, 32, v48")
    a("s_waitcnt lgkmcnt(0)")
    for ks in range(4):
        for mat in range(2):
            for ct in range(2):
                b = wf(mat, ct, ks)
                off = mat * 8192 + ks * 2048
                a(f"ds_read_b64_tr_b16 v[{b}:{b+1}], v{48+ct} offset:{off}")
                a(f"ds_read_b64_tr_b16 v[{b+2}:{b+3}], v{48+ct} offset:{off+256}")
    a("v_and_b32 v10, 7, v3")
    a("v_xor_b32 v10, v10, v2")
    a("v_lshlrev_b32 v10, 4, v10")
    a("v_lshl_add_u32 v10, v3, 7, v10")
    a(f"v_add_u32 v10, {L_AUR}, v10")
    a(f"s_mov_b32 s{sSlot}, s{sW}")
    a.c("first chunk of this wave: key waves 12w (12 chunks), loader waves 32(w-11) (32 chunks)")
    a(f"s_mul_i32 s{sT2}, s{sW}, 12")
    a(f"s_lshl_b32 s{sT3}, s{sW}, 5")
    a(f"s_sub_u32 s{sT3}, s{sT3}, {32*11}")
    a(f"s_cmp_lt_u32 s{sW}, 11")
    a(f"s_cselect_b32 s{sT3}, s{sT2}, s{sT3}")
    a(f"s_cselect_b32 s{sT2}, 12, 32")
    a(f"s_bfm_b64 s[54:55], s{sT2}, 0")
    a(f"s_lshl_b32 s90, s{sT3}, 8")
    a(f"s_lshl_b32 s{sT1}, s{sBk}, 2")
    a(f"s_add_u32 s90, s90, s{sT1}")
    a(f"s_add_u32 s48, s20, {DESC_OFF}")
    a("s_addc_u32 s49, s21, 0")
    a(f"s_mov_b32 s50, {NCH*256}")
    a("s_mov_b32 s51, 0x20000")
    a.stamp(14)
    a("s_waitcnt vmcnt(0) lgkmcnt(0)")
    a.stamp(13)
    a("s_barrier")
    a.stamp(15)
    xread(0, sSlot)
    a(f"s_cmp_lg_u32 s{sW}, 15")
    a("s_cbranch_scc1 K1_NZ")
    a(f"v_lshlrev_b32 v14, 2, v{vLane}")
    a(f"v_add_u32 v14, {L_GW}, v14")
    a("v_mov_b32 v3, 0")
    a("ds_write_b32 v14, v3")
    a("s_cmp_lt_u32 s2, 128" if TMAP else f"s_cmp_lt_u32 s{sSl}, 2")
    a("s_cbranch_scc1 K1_NZ2")
    a.c("count this workgroup's P tiles in")
    a("v_mov_b32 v15, 1")
    a("v_mov_b32 v14, 1")
    a("s_mov_b64 exec, 1")
    a(f"buffer_atomic_add v14, off, s[{SDB}:{SDB+3}], 0 offset:64 sc0 sc1")
    a("s_mov_b64 exec, -1")
    a("s_branch K1_NZ2")
    a.lab("K1_NZ")
    a("s_mov_b64 exec, 1")
    a(f"buffer_load_dword v2, off, s[{SDB}:{SDB+3}], 0 offset:192 sc1")
    a("s_mov_b64 exec, -1")
    a(f"v_lshlrev_b32 v14, 8, v{vLane}")
    a.lab("K1_NZ2")
    a("v_mov_b32 v4, 0")
    a(f"s_mov_b32 s{sUns+1}, 0")
    a.stamp(16)
    for i in range(2):
        a(f"s_sub_u32 s{sT1}, s{sSlot}, s{sDl}")
        a(f"s_cselect_b32 s{sT1}, 24, s{sT1}")
        a(f"s_lshl_b32 s{sT1}, s{sT1}, 11")
        a(f"v_add_u32 v12, s{sT1}, v10")
        a("v_xor_b32 v13, 64, v12")
        if i == 0:
            a(f"s_add_u32 s{sSlot}, s{sSlot}, 16")
            a(f"s_min_u32 s{sJ}, s{sSlot}, 24")
        a("s_waitcnt lgkmcnt(0)")
        mfmas(i, (lambda: xread(1, sJ)) if i == 0 else None)
        a("s_nop 7")
        for r in range(16, 24, 2):
            a(f"v_max3_f32 v4, abs(v{r}), abs(v{r+1}), v4")
        for ct in range(2):
            for j in range(4):
                a(f"v_fma_mixlo_f16 v{24+4*ct+j}, v{16+4*ct+j}, 1.0, 0")
        a("ds_write_b128 v12, v[24:27]")
        a("ds_write_b128 v13, v[28:31]")
        if i == 0:
            a(f"s_cmp_eq_u32 s{sW}, 15")
            a("s_cbranch_scc1 K1_END")
            a.c("partition published? then fetch this wave's segment descriptors")
            a("s_mov_b64 exec, 1")
            a("s_waitcnt vmcnt(0)")
            a("v_cmp_ne_u32 vcc, 0, v2")
            a("s_cbranch_vccnz K1_ROK")
            poll(a, "R", 2, 192, None, SLP)
            a.lab("K1_ROK")
            a("s_mov_b64 exec, s[54:55]")
            a(f"buffer_load_dword v3, v14, s[48:51], s90 offen{LD}")
            a("s_mov_b64 exec, -1")
            a(f"v_readfirstlane_b32 s{sUns+1}, v2")
            a.stamp(17)
            a(f"s_cmp_ge_u32 s{sSlot}, 25")
            a(f"s_lshr_b32 s{sUns+1}, s{sUns+1}, 16")
            a(f"s_cmp_ge_u32 s{sSlot}, 25")
            a("s_cbranch_scc1 K1_END")
    a.lab("K1_END")
    a("v_cmp_le_f32 vcc, 4.0, v4")
    a("s_cmp_lg_u64 vcc, 0")
    a(f"s_cselect_b32 s{sUns+1}, 1, s{sUns+1}")
    a.stamp(12)
    a.stampc(32)
    a.stamp_flush(0, sW)
    a.c("wave 15 waits until every partition workgroup has counted into R")
    a(f"s_cmp_lg_u32 s{sW}, 15")
    a("s_cbranch_scc1 K1_RDONE")
    a("s_cmp_lt_u32 s2, 128" if TMAP else f"s_cmp_lt_u32 s{sSl}, 2")
    a("s_cbranch_scc1 K1_NG")
    a("s_mov_b64 exec, 1")
    a("s_waitcnt vmcnt(0)")
    a("v_add_u32 v14, v14, v15")
    a("v_and_b32 v15, 0xffff, v14")
    a("v_cmp_eq_u32 vcc, 0x80, v15")
    a("s_cbranch_vccz K1_NG")
    a(f"buffer_store_dword v14, off, s[{SDB}:{SDB+3}], 0 offset:128 sc1")
    a.lab("K1_NG")
    a("s_mov_b64 exec, -1")
    a.lab("K1_RDONE")
    a(f"s_lshl_b32 s{sT0}, s{sW}, 6")
    a(f"v_add_u32 v0, s{sT0}, v{vLane}")
    a("s_branch K2_ENTRY")
    a.lab("K1_END2")
    a("s_endpgm")


CAP = 8192
L_CNT = 0
L_ORD = 2048
L_DH = 4096
L_BST = 4352
L_SB = 4608
L_FLAG = 4864
L_GD = L_FLAG + 4
L_ELL = 5120
L_DUM = L_ELL + CAP * 4
L_EA = L_DUM + 512
NKW = 11
EA_TAIL = NKW * 12 * 64
EA_ZERO = EA_TAIL + NKW * 64
assert L_EA + EA_ZERO * 8 + 8 <= L_AUR
DUMMY = 0xFFFF0000 | EA_ZERO
DUMMY_NODE = 399 * 128
NBATCH = (BN + 15) // 16
NR = 13


def gen_k2(a):
    assert FUSED
    sW, sSl, sBk = 22, 23, 24
    sT0, sT1, sT2, sT3 = 25, 26, 27, 28
    sK = 29
    sSp, sOvf = 30, 31
    SWS, SP, SO, SG = 32, 36, 40, 44
    SDS = 48
    sSave = 54
    sM = 56
    sKK = 56
    sRet = 82
    SA = 84
    SF0, SF1, SF2 = 64, 44, 60
    sTM, sEarly, sOutOff, sK2, sK1 = 88, 90, 91, 92, 93
    sA, sCntS, sNxtA, sNxtCnt, sRem, sN2 = 48, 49, 50, 51, 52, 53
    vLane, vC8, vG8, vRec4, vCo, vS, vSrc, vEa, vT = 1, 2, 3, 4, 5, 6, 7, 8, 9
    NA, N2, EE = 10, 12, 14
    ACC, AC, D = 16, 24, 40
    PP = [56, 72, 88]
    R, WB, vStg = 104, 112, 122
    AD = R
    KEYR, RK, HA = 24, 37, 50
    ET, WR, AU2 = 70, 88, 96
    vDesc = 104
    vL4, vL16, vIdx, v64c = 65, 66, 67, 68
    T = 72
    a.vst = 120

    def auread(n):
        a(f"v_xor_b32 v{vT}, v{n}, v{vC8}")
        a(f"v_xor_b32 v{AD+2}, v{n+1}, v{vC8}")
        a(f"v_add_u32 v{vT}, {L_AUR}, v{vT}")
        a(f"v_add_u32 v{AD+2}, {L_AUR}, v{AD+2}")
        a(f"ds_read_b128 v[{ACC}:{ACC+3}], v{vT}")
        a(f"ds_read_b128 v[{ACC+4}:{ACC+7}], v{AD+2}")

    def sb_arrive(k):
        a("s_waitcnt lgkmcnt(0)")
        a("s_mov_b64 exec, 1")
        a(f"ds_add_u32 v{T+14}, v{T+15} offset:{4*k}")
        a("s_mov_b64 exec, -1")

    def sb_wait(k, n, tag):
        a.lab(f"K2_SBW{tag}")
        a(f"ds_read_b32 v{T+13}, v{T+14} offset:{4*k}")
        a("s_waitcnt lgkmcnt(0)")
        a(f"v_cmp_gt_u32 vcc, {n}, v{T+13}")
        a(f"s_cbranch_vccnz K2_SBW{tag}")

    def batchinfo():
        a(f"s_lshl_b32 s{sT0}, s{sK1}, 6")
        a(f"v_add_u32 v{T}, s{sT0}, v{vG8}")
        a(f"ds_read_b64 v[{NA}:{NA+1}], v{T} offset:{L_ORD}")
        a(f"s_min_u32 s{sT0}, s{sK2}, 25")
        a(f"s_lshl_b32 s{sT0}, s{sT0}, 6")
        a(f"v_add_u32 v{T}, s{sT0}, v{vG8}")
        a(f"ds_read_b64 v[{N2}:{N2+1}], v{T} offset:{L_ORD}")
        a(f"ds_read_b32 v{T+4}, v{vL4} offset:{L_BST}")
        a(f"ds_read_b32 v{T+8}, v123 offset:{L_FLAG}")
        a("s_waitcnt lgkmcnt(0)")
        a(f"v_min_u32 v{T+4}, 0x1ff, v{T+4}")
        a(f"v_lshlrev_b32 v{T+5}, 7, v{T+4}")
        a(f"v_mov_b32 v{T+6}, v{T+5}")
        scan64(a, T + 6)
        a(f"v_readfirstlane_b32 s{sOvf}, v{T+8}")
        a(f"v_sub_u32 v{T+6}, v{T+6}, v{T+5}")
        a(f"v_add_u32 v{T+6}, {L_ELL}, v{T+6}")
        a("s_nop 0")
        a(f"v_readlane_b32 s{sA}, v{T+6}, s{sK1}")
        a(f"v_readlane_b32 s{sRem}, v{T+4}, s{sK1}")
        a(f"v_readlane_b32 s{sNxtA}, v{T+6}, s{sK2}")
        a(f"v_readlane_b32 s{sN2}, v{T+4}, s{sK2}")
        a("s_nop 3")
        a(f"s_sub_u32 s{sRem}, s{sRem}, 1")
        a(f"s_mov_b32 s{sCntS}, s{sRem}")
        a(f"s_sub_u32 s{sNxtCnt}, s{sN2}, 1")
        a(f"s_cmp_eq_u32 s{sN2}, 0")
        a(f"s_cselect_b32 s{sNxtA}, {L_DUM}, s{sNxtA}")
        a(f"s_cselect_b32 s{sNxtCnt}, 100, s{sNxtCnt}")

    def wperm():
        a(f"s_mov_b32 s{sT0}, 0x05040100")
        a(f"s_mov_b32 s{sT1}, 0x07060302")
        for m in range(4):
            sel = sT0 if m % 2 == 0 else sT1
            h = m >> 1
            a(f"v_perm_b32 v{WB+2*m}, v{WR+2+h}, v{WR+h}, s{sel}")
            a(f"v_perm_b32 v{WB+2*m+1}, v{WR+6+h}, v{WR+4+h}, s{sel}")

    def wcloads():
        a(f"s_lshl_b32 s{sT1}, s{sSl}, 6")
        a(f"s_add_u32 s{sT1}, s{sT1}, 65536")
        for k in range(4):
            a(f"buffer_load_dwordx2 v[{WR+2*k}:{WR+1+2*k}], v{vCo}, s[{SG}:{SG+3}], s{sT1} offen offset:{k*256}")

    def unsafe_or():
        a(f"v_mov_b32 v{T+12}, s95")
        a("s_mov_b64 exec, 1")
        a(f"ds_or_b32 v{T+14}, v{T+12} offset:32")
        a("s_mov_b64 exec, -1")

    a.lab("K2_ENTRY")
    a.stamp(0)
    a.stampc(29)
    a(f"v_mov_b32 v{vDesc}, v3") if False else None
    srd(a, SWS, 20, WS_USED)
    a(f"v_lshlrev_b32 v{vL4}, 2, v{vLane}")
    a(f"v_lshlrev_b32 v{vL16}, 4, v{vLane}")
    a(f"v_mov_b32 v{T+14}, {L_GW}")
    a(f"v_mov_b32 v{T+15}, 1")
    a("v_mov_b32 v123, 0")

    def consts():
        srd(a, SG, 16, 260 * 256)
        a(f"s_mul_i32 s{sT0}, s{sSl}, {PS}")
        a(f"s_add_u32 s{SP}, s20, s{sT0}")
        a(f"s_addc_u32 s{SP+1}, s21, 0")
        a(f"s_mov_b32 s{SP+2}, {N*128}")
        a(f"s_mov_b32 s{SP+3}, 0x20000")
        srd(a, SO, 18, N * 256)
        a(f"s_mov_b32 s{sK}, {hex(NL2E)}")
        a(f"v_and_b32 v{vCo}, 7, v{vLane}")
        a(f"v_lshlrev_b32 v{vCo}, 3, v{vCo}")
        a(f"v_lshlrev_b32 v{vC8}, 1, v{vCo}")
        a(f"v_and_b32 v{vG8}, 56, v{vLane}")
        a(f"v_and_b32 v64, 2, v{vLane}")
        a(f"v_lshl_add_u32 v{vRec4}, v64, 1, v{vG8}")
        a(f"v_and_b32 v64, 1, v{vLane}")
        a(f"v_lshl_add_u32 v{vRec4}, v64, 6, v{vRec4}")
        LISTS = [[0, 10, 11, 12, 20, 23], [1, 2, 7, 16, 17, 21], [6, 8, 9, 15, 18, 22, 24], [3, 4, 5, 13, 14, 19]]
        if "oldasg" in OPTS:
            LISTS = [[q, 7-q, 8+q, 15-q, 16+q, 23-q] + ([24] if q == 3 else []) for q in range(4)]
        assert sorted(sum(LISTS, [])) == list(range(NBATCH))
        a(f"s_and_b32 s{sT0}, s{sW}, 3")
        for q in range(4):
            L = LISTS[q] + [31] * (8 - len(LISTS[q]))
            if "ord2" in OPTS:
                X = LISTS[q]
                L = [X[0], X[1], X[2], X[-1], X[3], X[4], X[5] if len(X) > 6 else 31, 31]
            if "ord1" not in OPTS and "ord2" not in OPTS:
                X = LISTS[q]
                L = [X[0], X[2], X[4], X[-1], X[1], X[3], X[5] if len(X) > 6 else 31, 31]
            c1 = sum(L[r] << (8 * r) for r in range(4))
            c2 = sum(L[4 + r] << (8 * r) for r in range(4))
            if q == 0:
                a(f"s_mov_b32 s{sK1}, {hex(c1)}")
                a(f"s_mov_b32 s{sK2}, {hex(c2)}")
            else:
                a(f"s_cmp_eq_u32 s{sT0}, {q}")
                a(f"s_cselect_b32 s{sK1}, {hex(c1)}, s{sK1}")
                a(f"s_cselect_b32 s{sK2}, {hex(c2)}, s{sK2}")
        a(f"s_and_b32 s{sT1}, s{sW}, 12")
        a(f"s_lshl_b32 s{sT1}, s{sT1}, 1")
        a(f"s_lshr_b32 s{sK1}, s{sK1}, s{sT1}")
        a(f"s_lshr_b32 s{sK2}, s{sK2}, s{sT1}")
        a(f"s_and_b32 s{sK1}, s{sK1}, 0xff")
        a(f"s_and_b32 s{sK2}, s{sK2}, 0xff")
        a(f"s_mul_i32 s{sOutOff}, s{sBk}, {BN*256}")
        a(f"s_lshl_b32 s{sT0}, s{sSl}, 6")
        a(f"s_add_u32 s{sOutOff}, s{sOutOff}, s{sT0}")
    a(f"s_cmp_ge_u32 s{sW}, {NKW}")
    a("s_cbranch_scc1 K2_LW")
    a(f"v_lshrrev_b32 v{T}, 4, v{vLane}")
    a(f"v_lshlrev_b32 v{T+1}, 2, v{T}")
    a(f"s_mov_b32 s{sT0}, {CH*4}")
    a(f"v_and_b32 v{T+2}, 15, v{vLane}")
    a(f"v_lshlrev_b32 v{T+3}, 2, v{T+2}")
    a(f"v_lshlrev_b32 v{T+2}, 4, v{T+2}")
    a(f"v_mad_u32_u24 v{T+2}, v{T}, s{sT0}, v{T+2}")
    a(f"s_mov_b32 s{sSp}, 0")
    a(f"s_mov_b32 s{sOvf}, 0")
    a(f"s_mov_b64 s[{sM+24}:{sM+25}], 0")
    a(f"s_mul_i32 s{sT2}, s{sT3}, {CH*4}")
    a(f"s_add_u32 s{sT2}, s{sT2}, {KEY_OFF}")
    a(f"s_mov_b32 s{sT0}, 0x40ffff")
    a("s_waitcnt vmcnt(0)")
    a.stamp(2)
    a(f"v_mov_b32 v{vDesc}, v3")
    for h in range(3):
        a(f"ds_bpermute_b32 v{T+4+h}, v{T+1}, v3 offset:{16*h}")
    a(f"v_cmp_lt_u32 vcc, s{sT0}, v3")
    a(f"s_and_b64 s[{sTM}:{sTM+1}], vcc, s[{sSave}:{sSave+1}]")
    a("s_waitcnt lgkmcnt(0)")
    for h in range(3):
        a(f"v_lshrrev_b32 v{T+7+h}, 16, v{T+4+h}")
        a(f"v_lshlrev_b32_sdwa v{T+4+h}, 2, v{T+4+h} dst_sel:DWORD dst_unused:UNUSED_PAD src0_sel:DWORD src1_sel:WORD_0")
        a(f"v_cmp_gt_u32 s[{sM+8*h}:{sM+8*h+1}], v{T+7+h}, v{T+3}")
        a(f"v_add_u32 v{T+4+h}, v{T+4+h}, v{T+2}")
        a(f"s_or_b64 exec, s[{sM+8*h}:{sM+8*h+1}], 1")
        a(f"buffer_load_dwordx4 v[{KEYR+4*h}:{KEYR+4*h+3}], v{T+4+h}, s[{SWS}:{SWS+3}], s{sT2} offen{LD}")
        a("s_mov_b64 exec, -1")
        if h < 2:
            a(f"s_add_u32 s{sT2}, s{sT2}, {4*CH*4}")
    a(f"s_cmp_lg_u64 s[{sTM}:{sTM+1}], 0")
    a("s_cbranch_scc1 K2_TAIL")
    a.lab("K2_TAILR")
    a(f"v_lshlrev_b32 v{T}, 4, v0")
    for i in range(4):
        a(f"v_mov_b32 v{20+i}, 0")
    a.stamp(3)
    a("s_barrier")
    a.stamp(1)
    a(f"s_cmp_ge_u32 s{sW}, 6")
    a("s_cbranch_scc1 K2_INIT_DONE")
    a(f"s_cmp_eq_u32 s{sW}, 5")
    a("s_cbranch_scc1 K2_INIT_5")
    a(f"s_lshr_b32 s{sT0}, s{sW}, 1")
    a(f"s_cmp_eq_u32 s{sT0}, 1")
    a("s_cbranch_scc0 K2_INIT_Z")
    for i in range(4):
        a(f"v_mov_b32 v{20+i}, {DUMMY_NODE}")
    a.lab("K2_INIT_Z")
    a(f"ds_write_b128 v{T}, v[20:23]")
    a("s_branch K2_INIT_A")
    a.lab("K2_INIT_5")
    a(f"v_mov_b32 v64, {L_EA + EA_ZERO*8}")
    a("ds_write_b64 v64, v[20:21]")
    a.lab("K2_INIT_A")
    sb_arrive(5)
    a.lab("K2_INIT_DONE")
    unsafe_or()
    for c in range(1, 4):
        a(f"v_add_u32 v{T+3}, 1, v{T+3}")
        for h in range(3):
            a(f"v_cmp_gt_u32 s[{sM+8*h+2*c}:{sM+8*h+2*c+1}], v{T+7+h}, v{T+3}")
    a(f"s_lshl_b32 s{sT0}, s{sT3}, 6")
    a(f"v_add_u32 v{vIdx}, s{sT0}, v{vL4}")
    a(f"v_mov_b32 v{v64c}, 64")
    consts()
    wcloads()
    sb_wait(5, 6, "B1")
    a.stamp(4)
    a(f"s_cmp_eq_u32 s{sOvf}, 0")
    a("s_cbranch_scc1 K2_NOOVF")
    a(f"ds_write_b32 v123, v{T+15} offset:{L_FLAG}")
    a.lab("K2_NOOVF")
    a("s_waitcnt vmcnt(4)")
    a.stamp(5)
    for i in range(NR):
        a(f"v_and_b32 v{HA+i}, 0xffff, v{KEYR+i}")
        a(f"s_mov_b64 exec, s[{sM+2*i}:{sM+2*i+1}]")
        a(f"ds_add_rtn_u32 v{RK+i}, v{HA+i}, v{v64c}")
        a("s_mov_b64 exec, -1")
    for i in range(NR):
        if i == NR - 1:
            a(f"s_lshl_b32 s{sT0}, s{sW}, 6")
            a(f"s_add_u32 s{sT0}, s{sT0}, {EA_TAIL}")
            a(f"v_add_u32 v{vIdx}, s{sT0}, v{vLane}")
        a(f"v_mov_b32_sdwa v{KEYR+i}, v{vIdx} dst_sel:WORD_0 dst_unused:UNUSED_PRESERVE src0_sel:DWORD")
        if i < NR - 2:
            a(f"v_add_u32 v{vIdx}, {253 if i % 4 == 3 else 1}, v{vIdx}")
    sb_arrive(0)
    a(f"s_cmp_ge_u32 s{sW}, 7")
    a("s_cbranch_scc1 K2_W5")
    a(f"v_cmp_gt_u32 vcc, {BN}, v0")
    a(f"v_lshlrev_b32 v{T}, 2, v0")
    a(f"v_and_b32 v{T+8}, 7, v0")
    a(f"v_lshlrev_b32 v{T+8}, 4, v{T+8}")
    a(f"v_lshl_add_u32 v{T+8}, v0, 7, v{T+8}")
    a(f"s_mov_b64 s[{sSave}:{sSave+1}], vcc")
    sb_wait(0, NKW, "2")
    a.stamp(6)
    a.c("node phase A")
    a(f"s_mov_b64 exec, s[{sSave}:{sSave+1}]")
    a(f"ds_read_b32 v{T+1}, v{T}")
    a("s_waitcnt lgkmcnt(0)")
    a(f"v_lshrrev_b32 v{T+1}, 6, v{T+1}")
    a(f"v_min_u32 v{T+2}, 63, v{T+1}")
    a(f"v_sub_u32 v{T+2}, 63, v{T+2}")
    a(f"v_lshlrev_b32 v{T+2}, 2, v{T+2}")
    a(f"ds_add_rtn_u32 v{T+3}, v{T+2}, v{T+15} offset:{L_DH}")
    a(f"v_add_u32 v{T+7}, 1, v{T+1}")
    a(f"v_lshrrev_b32 v{T+7}, 1, v{T+7}")
    a(f"v_max_u32 v{T+7}, 1, v{T+7}")
    sb_arrive(1)
    sb_wait(1, 7, "3")
    a.stamp(7)
    a.c("node phase B")
    a(f"ds_read_b32 v{T+5}, v{vL4} offset:{L_DH}")
    a("s_waitcnt lgkmcnt(0)")
    a(f"v_mov_b32 v{T+6}, v{T+5}")
    scan64(a, T + 6)
    a(f"v_sub_u32 v{T+6}, v{T+6}, v{T+5}")
    a("s_nop 0")
    a(f"ds_bpermute_b32 v{T+9}, v{T+2}, v{T+6}")
    a("s_waitcnt lgkmcnt(0)")
    a(f"s_mov_b64 exec, s[{sSave}:{sSave+1}]")
    a(f"v_add_u32 v{T+3}, v{T+3}, v{T+9}")
    a(f"v_lshlrev_b32 v{T+9}, 2, v{T+3}")
    a(f"ds_write_b32 v{T+9}, v{T+8} offset:{L_ORD}")
    a(f"v_lshrrev_b32 v{T+10}, 4, v{T+3}")
    a(f"v_lshlrev_b32 v{T+10}, 2, v{T+10}")
    a(f"ds_max_u32 v{T+10}, v{T+7} offset:{L_BST}")
    a(f"v_and_b32 v{T+9}, 60, v{T+9}")
    sb_arrive(2)
    sb_wait(2, 7, "4")
    a.stamp(8)
    a.c("node phase C")
    a(f"ds_read_b32 v{T+5}, v{vL4} offset:{L_BST}")
    a("s_waitcnt lgkmcnt(0)")
    a(f"v_min_u32 v{T+5}, 0x1ff, v{T+5}")
    a(f"v_lshlrev_b32 v{T+5}, 7, v{T+5}")
    a(f"v_mov_b32 v{T+6}, v{T+5}")
    scan64(a, T + 6)
    a("s_nop 0")
    a(f"v_readlane_b32 s{sT0}, v{T+6}, 63")
    a(f"v_sub_u32 v{T+6}, v{T+6}, v{T+5}")
    a(f"v_add_u32 v{T+6}, {L_ELL}, v{T+6}")
    a("s_nop 1")
    a(f"ds_bpermute_b32 v{T+10}, v{T+10}, v{T+6}")
    a(f"s_cmp_le_u32 s{sT0}, {CAP*4}")
    a("s_cbranch_scc1 K2_NC_OK")
    a(f"ds_write_b32 v123, v{T+15} offset:{L_FLAG}")
    a.lab("K2_NC_OK")
    a("s_waitcnt lgkmcnt(0)")
    a(f"s_mov_b64 exec, s[{sSave}:{sSave+1}]")
    a(f"v_add_u32 v{T+10}, v{T+10}, v{T+9}")
    a(f"ds_write_b32 v{T}, v{T+10}")
    sb_arrive(3)
    a.lab("K2_W5")
    sb_wait(3, 8, "5")
    a.stamp(9)
    a(f"ds_read_b32 v{T+8}, v123 offset:{L_FLAG}")
    for i in range(NR):
        a(f"s_mov_b64 exec, s[{sM+2*i}:{sM+2*i+1}]")
        a(f"ds_read_b32 v{HA+i}, v{HA+i}")
    a("s_mov_b64 exec, -1")
    a("s_waitcnt lgkmcnt(0)")
    a(f"v_cmp_ne_u32 vcc, 0, v{T+8}")
    a("s_cbranch_vccnz K2_NOSC")
    for i in range(NR):
        a(f"v_add_u32 v{HA+i}, v{HA+i}, v{RK+i}")
        a(f"s_mov_b64 exec, s[{sM+2*i}:{sM+2*i+1}]")
        a(f"ds_write_b32 v{HA+i}, v{KEYR+i}")
        a("s_mov_b64 exec, -1")
    a.lab("K2_NOSC")
    batchinfo()
    a(f"s_lshl_b32 s{sT2}, s{sW}, 9")
    a(f"s_add_u32 s{sT2}, s{sT2}, {L_EA + EA_TAIL*8}")
    a(f"v_lshl_add_u32 v63, v{vLane}, 3, s{sT2}")
    a(f"ds_write_b64 v63, v[{ET}:{ET+1}]")
    a.stamp(10)
    a("s_branch K2_FINB")
    a.lab("K2_LW")
    a(f"v_lshrrev_b32 v{T+4}, 5, v{vLane}")
    a(f"v_lshlrev_b32 v{T+5}, 2, v{T+4}")
    a(f"v_and_b32 v{T+6}, 31, v{vLane}")
    a(f"v_lshlrev_b32 v{T+7}, 1, v{T+6}")
    a(f"v_lshlrev_b32 v{T+6}, 4, v{T+6}")
    a(f"s_mov_b32 s{sT0}, {CH*8}")
    a(f"v_mad_u32_u24 v{T+6}, v{T+4}, s{sT0}, v{T+6}")
    a(f"s_lshl_b32 s{sT0}, s{sT3}, 9")
    a(f"v_add_u32 v{T+8}, s{sT0}, v{vL16}")
    a("s_waitcnt vmcnt(0)")
    a(f"v_mov_b32 v{vDesc}, v3")
    consts()
    wcloads()
    a(f"s_mul_i32 s{sT2}, s{sT3}, {CH*8}")
    a(f"s_add_u32 s{sT2}, s{sT2}, {EAT_OFF}")
    a.stamp(2)
    a(f"s_cmp_eq_u32 s{sW}, 15")
    a("s_cbranch_scc1 K2_SW")
    BP = 105
    for q in range(8):
        a(f"ds_bpermute_b32 v{BP+q}, v{T+5}, v{vDesc} offset:{8*q}")
    a("s_waitcnt lgkmcnt(0)")
    a("s_barrier")
    a.stamp(1)
    LWD = [16, 20, 24, 28, 32, 36, 40, 44, 48, 52, 56, 60, 96, 100, 6, 10]
    a(f"s_lshl_b32 s{sT0}, s{sT3}, 9")
    a(f"s_add_u32 s{sT0}, s{sT0}, {L_EA}")
    for q in range(16):
        b = BP + (q % 8)
        a(f"v_lshrrev_b32 v{T+9}, 16, v{b}")
        a(f"v_lshlrev_b32_sdwa v{T+10}, 3, v{b} dst_sel:DWORD dst_unused:UNUSED_PAD src0_sel:DWORD src1_sel:WORD_0")
        a(f"v_cmp_gt_u32 vcc, v{T+9}, v{T+7}")
        a(f"v_add_u32 v{T+10}, v{T+10}, v{T+6}")
        if q < 8:
            a(f"ds_bpermute_b32 v{b}, v{T+5}, v{vDesc} offset:{8*(q+8)}")
        a("s_or_b64 exec, vcc, 1")
        if "eadma" in OPTS:
            a(f"s_mov_b32 m0, s{sT0}")
            a(f"s_add_u32 s{sT0}, s{sT0}, 1024")
            a(f"buffer_load_dwordx4 v{T+10}, s[{SWS}:{SWS+3}], s{sT2} offen{LD} lds")
        else:
            a(f"buffer_load_dwordx4 v[{LWD[q]}:{LWD[q]+3}], v{T+10}, s[{SWS}:{SWS+3}], s{sT2} offen{LD}")
        a("s_mov_b64 exec, -1")
        if q < 15:
            a(f"s_add_u32 s{sT2}, s{sT2}, {2*CH*8}")
        if q == 7:
            a("s_waitcnt lgkmcnt(0)")
    a.stamp(5)
    unsafe_or()
    for q in range(16 if "eadma" not in OPTS else 0):
        a(f"s_waitcnt vmcnt({15-q})")
        if TCH and q == TCH[1]:
            sb_arrive(6)
        a(f"ds_write_b128 v{T+8}, v[{LWD[q]}:{LWD[q]+3}] offset:{L_EA + q*1024}")
    if TCH:
        pass
    a.stamp(10)
    a("s_branch K2_FINB")
    a.lab("K2_SW")
    a("s_waitcnt lgkmcnt(0)")
    for i in range(4):
        a(f"v_mov_b32 v{16+i}, {hex(DUMMY)}")
    a("s_barrier")
    a.stamp(1)
    for i in range(33):
        if i == 32:
            a("s_bfm_b64 exec, 32, 0")
        a(f"ds_write_b128 v{vL16}, v[16:19] offset:{L_ELL + i*1024}")
    sb_arrive(3)
    poll(a, "G", 53, 128, None, SLP)
    a(f"v_readfirstlane_b32 s{sT0}, v53")
    a("s_nop 3")
    a(f"s_lshr_b32 s{sT0}, s{sT0}, 16")
    a(f"s_or_b32 s95, s95, s{sT0}")
    unsafe_or()
    if TCH:
        a.c("warm this XCD's L2 with part of the P slice once most of the e_attr records have arrived")
        sb_wait(6, 4, "LI")
        a(f"s_lshr_b32 s{sT0}, s2, 3")
        a(f"s_mul_i32 s{sT0}, s{sT0}, {782*128}")
        a(f"v_lshlrev_b32 v52, 7, v{vLane}")
        for i in range(TCH[0]):
            a(f"buffer_load_dword v{24+i}, v52, s[{SP}:{SP+3}], s{sT0} offen{LD}")
            a(f"s_add_u32 s{sT0}, s{sT0}, 8192")
        a(f"s_waitcnt vmcnt({TCH[0]})")
        a("s_branch K2_FINC")
    a.stamp(10)
    a.lab("K2_FINB")
    a("s_mov_b64 exec, -1")
    a.c("Wc magnitude check (|w| < 2)")
    a("s_waitcnt vmcnt(0)")
    a.lab("K2_FINC")
    a(f"v_or3_b32 v{T}, v{WR}, v{WR+1}, v{WR+2}")
    a(f"v_or3_b32 v{T+1}, v{WR+3}, v{WR+4}, v{WR+5}")
    a(f"v_or3_b32 v{T}, v{WR+6}, v{WR+7}, v{T}")
    a(f"v_or_b32 v{T}, v{T}, v{T+1}")
    a(f"v_and_b32 v{T}, 0x40004000, v{T}")
    a(f"v_cmp_ne_u32 vcc, 0, v{T}")
    a("s_cbranch_vccz K2_WOK")
    a(f"ds_or_b32 v{T+14}, v{T+15} offset:32")
    a.lab("K2_WOK")
    wperm()
    a("s_waitcnt lgkmcnt(0)")
    a.stamp(12)
    a("s_barrier")
    a(f"s_cmp_lt_u32 s{sW}, {NKW}")
    a("s_cbranch_scc1 K2_HAVEBI")
    batchinfo()
    a.lab("K2_HAVEBI")
    a(f"s_cmp_lg_u32 s{sOvf}, 0")
    a("s_cbranch_scc1 K2_FALLBACK")
    a(f"s_mov_b32 s{sKK}, {hex(NL2E)}")
    a(f"s_mov_b32 s{sKK+1}, {hex(NL2E)}")
    a(f"ds_read_b32 v{D+2}, v{T+14} offset:32")
    auread(NA)
    a.stamp(13)
    a.stampc(30)

    sw_sites = []

    def advance(tag):
        a(f"s_add_u32 s{sA}, s{sA}, 128")
        a(f"s_sub_u32 s{sCntS}, s{sCntS}, 1")
        a(f"s_cbranch_scc1 K2_SW{tag}")
        a.lab(f"K2_SWR{tag}")
        sw_sites.append(tag)

    def gathers(P):
        for j in range(4):
            a(f"v_add_u32_dpp v{AD+j}, v{vSrc}, v{vC8} quad_perm:[{j},{j},{j},{j}] row_mask:0xf bank_mask:0xf")
        for j in range(4):
            a(f"buffer_load_dwordx4 v[{P+4*j}:{P+4*j+3}], v{AD+j}, s[{SP}:{SP+3}], 0 offen{G_LD}")

    def split(S):
        a(f"v_lshlrev_b32_sdwa v{vSrc}, 7, v{S} dst_sel:DWORD dst_unused:UNUSED_PAD src0_sel:DWORD src1_sel:WORD_1")
        a(f"v_lshlrev_b32_sdwa v{vEa}, 3, v{S} dst_sel:DWORD dst_unused:UNUSED_PAD src0_sel:DWORD src1_sel:WORD_0")

    def setup_ac():
        for m in range(4):
            a(f"v_cvt_f32_f16 v{AC+4*m}, v{ACC+m}")
            a(f"v_cvt_f32_f16 v{AC+4*m+2}, v{ACC+4+m}")
        for m in range(4):
            a(f"v_mov_b32 v{AC+4*m+1}, v{AC+4*m}")
            a(f"v_mov_b32 v{AC+4*m+3}, v{AC+4*m+2}")

    def compute(P):
        for m in range(4):
            for j in range(4):
                a(f"v_fma_mix_f32 v{D+4*m+j}, v{D+4*m+j}, s{sK}, v{P+4*j+m} op_sel_hi:[0,0,1]")
        for i in range(16):
            a(f"v_exp_f32 v{D+i}, v{D+i}")
        for i in range(8):
            a(f"v_pk_add_f32 v[{D+2*i}:{D+2*i+1}], v[{D+2*i}:{D+2*i+1}], 1.0 op_sel_hi:[1,0]")
        for j in range(4):
            r = R + 4 * (j & 1)
            for m in range(4):
                a(f"v_rcp_f32 v{r+m}, v{D+4*m+j}")
            acc = ACC + 4 * (j >> 1)
            a(f"v_pk_fma_f32 v[{acc}:{acc+1}], v[{P+4*j}:{P+4*j+1}], v[{r}:{r+1}], v[{acc}:{acc+1}]")
            a(f"v_pk_fma_f32 v[{acc+2}:{acc+3}], v[{P+4*j+2}:{P+4*j+3}], v[{r+2}:{r+3}], v[{acc+2}:{acc+3}]")

    def pk(op, d, *src, mod=""):
        a(f"v_pk_{op}_f32 v[{d}:{d+1}], " + ", ".join(x if isinstance(x, str) else f"v[{x}:{x+1}]" for x in src) + mod)

    def compute_fast(P):
        for j in range(4):
            for m in range(4):
                a(f"v_fma_mix_f32 v{D+4*m+j}, v{D+4*m+j}, s{sK}, v{P+4*j+m} op_sel_hi:[0,0,1]")

        def exps(j0):
            for m in range(4):
                a(f"v_exp_f32 v{R+m}, v{D+4*m+j0}")
            for m in range(4):
                a(f"v_exp_f32 v{R+4+m}, v{D+4*m+j0+1}")

        def mid(j0):
            H1, H2 = P + 4 * j0, P + 4 * j0 + 4
            N, Q = (D + j0, D + 4 + j0), (D + 8 + j0, D + 12 + j0)
            for h in range(2):
                pk("add", R + 2 * h, R + 2 * h, "1.0", mod=" op_sel_hi:[1,0]")
            for h in range(2):
                pk("fma", N[h], H2 + 2 * h, R + 2 * h, H1 + 2 * h)
            for h in range(2):
                pk("fma", Q[h], R + 2 * h, R + 4 + 2 * h, R + 2 * h)
            for h in range(2):
                pk("fma", N[h], H1 + 2 * h, R + 4 + 2 * h, N[h])

        def rcps(j0):
            for q in (D + 8 + j0, D + 9 + j0, D + 12 + j0, D + 13 + j0):
                a(f"v_rcp_f32 v{q}, v{q}")

        def fin(j0):
            acc = ACC + 2 * j0
            pk("fma", acc, D + j0, D + 8 + j0, acc)
            pk("fma", acc + 2, D + 4 + j0, D + 12 + j0, acc + 2)
        exps(0)
        mid(0)
        exps(2)
        rcps(0)
        mid(2)
        fin(0)
        rcps(2)
        a("s_nop 0")
        fin(2)

    a(f"v_add_u32 v{vT}, s{sA}, v{vRec4}")
    a(f"ds_read_b32 v{D}, v{vT}")
    advance("F0")
    a(f"v_add_u32 v{vT}, s{sA}, v{vRec4}")
    a(f"ds_read_b32 v{D+1}, v{vT}")
    advance("F1")
    a(f"v_add_u32 v{vT}, s{sA}, v{vRec4}")
    a(f"ds_read_b32 v{vS}, v{vT}")
    a("s_waitcnt lgkmcnt(2)")
    split(D)
    a("s_nop 0")
    a(f"ds_read_b64 v[{EE}:{EE+1}], v{vEa} offset:{L_EA}")
    gathers(PP[0])
    a("s_waitcnt lgkmcnt(2)")
    split(D + 1)
    a("s_nop 1")
    gathers(PP[1])
    setup_ac()
    def loop(sfx, comp):
        for o in OPTS:
            if o.startswith("al="):
                a(f".p2align {o[3:]}")
            if o.startswith("pad="):
                for _ in range(int(o[4:])):
                    a("s_nop 0")
        a.lab(f"K2_LOOP{sfx}")
        for ph in range(3):
            a("s_waitcnt lgkmcnt(0)")
            for m in range(4):
                a(f"v_mfma_f32_4x4x4_16b_bf16 v[{D+4*m}:{D+4*m+3}], v[{EE}:{EE+1}], v[{WB+2*m}:{WB+2*m+1}], v[{AC+4*m}:{AC+4*m+3}]")
            a(f"ds_read_b64 v[{EE}:{EE+1}], v{vEa} offset:{L_EA}")
            split(vS)
            advance(f"L{sfx}{ph}")
            gathers(PP[(ph + 2) % 3])
            a(f"v_add_u32 v{vT}, s{sA}, v{vRec4}")
            a(f"ds_read_b32 v{vS}, v{vT}")
            a("s_waitcnt vmcnt(8)")
            comp(PP[ph])
            a(f"s_sub_u32 s{sRem}, s{sRem}, 1")
            if ph < 2:
                a(f"s_cbranch_scc0 K2_C{sfx}{ph}")
                a(f"s_call_b64 s[{sRet}:{sRet+1}], K2_EPI")
                a.lab(f"K2_C{sfx}{ph}")
            else:
                a(f"s_cbranch_scc0 K2_LOOP{sfx}")
                a(f"s_call_b64 s[{sRet}:{sRet+1}], K2_EPI")
                a(f"s_branch K2_LOOP{sfx}")
    a(f"v_cmp_ne_u32 vcc, 0, v{D+2}")
    if "safeonly" in OPTS:
        a("s_branch K2_LOOPS")
    a("s_cbranch_vccnz K2_LOOPS")
    loop("F", compute_fast)
    loop("S", compute)

    def epilogue(acc, tmp, nregs):
        for i in range(0, nregs, 2):
            a(f"v_pk_mul_f32 v[{tmp+i}:{tmp+i+1}], v[{acc+i}:{acc+i+1}], s[{sKK}:{sKK+1}]")
        for i in range(nregs):
            a(f"v_exp_f32 v{tmp+i}, v{tmp+i}")
        a("s_nop 0")
        for i in range(0, nregs, 2):
            a(f"v_pk_add_f32 v[{tmp+i}:{tmp+i+1}], v[{tmp+i}:{tmp+i+1}], 1.0 op_sel_hi:[1,0]")
        for i in range(nregs):
            a(f"v_rcp_f32 v{tmp+i}, v{tmp+i}")
        a("s_nop 0")
        for i in range(0, nregs, 2):
            a(f"v_pk_mul_f32 v[{tmp+i}:{tmp+i+1}], v[{tmp+i}:{tmp+i+1}], v[{acc+i}:{acc+i+1}]")
        for i in range(0, nregs, 2):
            a(f"v_cvt_pk_bf16_f32 v{tmp+i//2}, v{tmp+i}, v{tmp+i+1}")

    a.lab("K2_EPI")
    epilogue(ACC, D, 8)
    auread(N2)
    a(f"v_lshrrev_b32 v{AD}, 7, v{NA}")
    a(f"v_lshrrev_b32 v{AD+1}, 7, v{NA+1}")
    a(f"v_lshl_add_u32 v{AD}, v{AD}, 8, v{vCo}")
    a(f"v_lshl_add_u32 v{AD+1}, v{AD+1}, 8, v{vCo}")
    a(f"v_cmp_gt_u32 vcc, {BN*128}, v{NA}")
    a("s_mov_b64 exec, vcc")
    a(f"buffer_store_dwordx2 v[{D}:{D+1}], v{AD}, s[{SO}:{SO+3}], s{sOutOff} offen{K2_ST}")
    a("s_mov_b64 exec, -1")
    a(f"v_cmp_gt_u32 vcc, {BN*128}, v{NA+1}")
    a("s_mov_b64 exec, vcc")
    a(f"buffer_store_dwordx2 v[{D+2}:{D+3}], v{AD+1}, s[{SO}:{SO+3}], s{sOutOff} offen{K2_ST}")
    a("s_mov_b64 exec, -1")
    a(f"s_cmp_eq_u32 s{sN2}, 0")
    a("s_cbranch_scc1 K2_FIN")
    a.stamp(14)
    a(f"s_sub_u32 s{sRem}, s{sN2}, 1")
    a(f"s_mov_b32 s{sN2}, 0")
    a(f"v_mov_b32 v{NA}, v{N2}")
    a(f"v_mov_b32 v{NA+1}, v{N2+1}")
    a("s_waitcnt lgkmcnt(0)")
    setup_ac()
    a(f"s_setpc_b64 s[{sRet}:{sRet+1}]")
    a.lab("K2_FIN")
    a.stamp(15)
    a.stampc(31)
    a.stamp_flush(1, sW)
    a("s_endpgm")

    for tag in sw_sites:
        a.lab(f"K2_SW{tag}")
        a(f"s_mov_b32 s{sA}, s{sNxtA}")
        a(f"s_mov_b32 s{sCntS}, s{sNxtCnt}")
        a(f"s_mov_b32 s{sNxtA}, {L_DUM}")
        a(f"s_mov_b32 s{sNxtCnt}, 100")
        a(f"s_branch K2_SWR{tag}")

    a.lab("K2_TAIL")
    a(f"v_lshlrev_b32 v64, 3, v{vLane}")
    a.lab("K2_TAIL_LOOP")
    a(f"s_ff1_i32_b64 s{sT0}, s[{sTM}:{sTM+1}]")
    a(f"s_bitset0_b64 s[{sTM}:{sTM+1}], s{sT0}")
    a(f"v_readlane_b32 s{sT1}, v{vDesc}, s{sT0}")
    a(f"s_add_u32 s{sT0}, s{sT0}, s{sT3}")
    a(f"s_mul_i32 s{sT0}, s{sT0}, {CH}")
    a(f"s_and_b32 s{sT2}, s{sT1}, 0xffff")
    a(f"s_add_u32 s{sT0}, s{sT0}, s{sT2}")
    a(f"s_add_u32 s{sT0}, s{sT0}, 64")
    a(f"s_sub_u32 s{sT0}, s{sT0}, s{sSp}")
    a(f"s_lshr_b32 s{sT1}, s{sT1}, 16")
    a(f"s_sub_u32 s{sT1}, s{sT1}, 64")
    a(f"s_add_u32 s{sT2}, s{sSp}, s{sT1}")
    a(f"s_cmp_gt_u32 s{sT2}, 63")
    a("s_cbranch_scc1 K2_TAILF")
    a(f"s_bfm_b64 s[{sSave}:{sSave+1}], s{sT1}, s{sSp}")
    a(f"s_or_b64 s[{sM+24}:{sM+25}], s[{sM+24}:{sM+25}], s[{sSave}:{sSave+1}]")
    a(f"s_mov_b32 s{sSp}, s{sT2}")
    a(f"s_lshl_b32 s{sT1}, s{sT0}, 2")
    a(f"s_add_u32 s{sT1}, s{sT1}, {KEY_OFF}")
    a(f"s_lshl_b32 s{sT2}, s{sT0}, 3")
    a(f"s_add_u32 s{sT2}, s{sT2}, {EAT_OFF}")
    a(f"s_mov_b64 exec, s[{sSave}:{sSave+1}]")
    a(f"buffer_load_dword v{KEYR+12}, v{vL4}, s[{SWS}:{SWS+3}], s{sT1} offen{LD}")
    a(f"buffer_load_dwordx2 v[{ET}:{ET+1}], v64, s[{SWS}:{SWS+3}], s{sT2} offen{LD}")
    a("s_mov_b64 exec, -1")
    a(f"s_cmp_lg_u64 s[{sTM}:{sTM+1}], 0")
    a("s_cbranch_scc1 K2_TAIL_LOOP")
    a("s_branch K2_TAILR")
    a.lab("K2_TAILF")
    a(f"s_mov_b32 s{sOvf}, 1")
    a("s_branch K2_TAILR")

    L_AGG = L_EA
    a.lab("K2_FALLBACK")
    a("s_waitcnt vmcnt(0) lgkmcnt(0)")
    a(f"s_mov_b32 s{sKK}, {hex(NL2E)}")
    a(f"s_mov_b32 s{sKK+1}, {hex(NL2E)}")
    a("s_barrier")
    a("v_lshlrev_b32 v51, 4, v0")
    a(f"v_add_u32 v51, {L_AGG}, v51")
    for i in range(4):
        a(f"v_mov_b32 v{56+i}, 0")
    for i in range(4):
        a(f"ds_write_b128 v51, v[56:59] offset:{i*16384}")
    a("s_waitcnt lgkmcnt(0)")
    a("s_barrier")
    srd(a, SF0, 10, E * 4)
    srd(a, SF1, 8, E * 4)
    srd(a, SF2, 6, E * 8)
    a(f"s_mul_i32 s{sT3}, s{sBk}, {BN}")
    a(f"s_mul_i32 s{sT2}, s{sBk}, {BN*128}")
    a(f"s_lshl_b32 s{sT0}, s{sW}, 5")
    a(f"v_lshrrev_b32 v51, 1, v{vG8}")
    a.lab("K2_FB_LOOP")
    a(f"s_lshl_b32 s{sT1}, s{sT0}, 1")
    a(f"buffer_load_dword v52, v51, s[{SF0}:{SF0+3}], s{sT0} offen")
    a(f"buffer_load_dword v53, v51, s[{SF1}:{SF1+3}], s{sT0} offen")
    a(f"buffer_load_dwordx2 v[54:55], v{vG8}, s[{SF2}:{SF2+3}], s{sT1} offen")
    a("s_waitcnt vmcnt(0)")
    a(f"v_subrev_u32 v52, s{sT3}, v52")
    a(f"v_cmp_gt_u32 vcc, {BN}, v52")
    a("s_mov_b64 exec, vcc")
    a("s_cbranch_execz K2_FB_NEXT")
    a(f"v_lshl_add_u32 v53, v53, 7, v{vC8}")
    a("v_and_b32 v56, 7, v52")
    a("v_lshlrev_b32 v56, 4, v56")
    a(f"v_lshl_add_u32 v52, v52, 7, v{vC8}")
    a("v_xor_b32 v56, v56, v52")
    a(f"v_add_u32 v56, {L_AUR}, v56")
    a(f"buffer_load_dwordx4 v[16:19], v53, s[{SP}:{SP+3}], 0 offen{LD}")
    a("ds_read_b128 v[20:23], v56")
    a(f"v_add_u32 v52, {L_AGG}, v52")
    a("s_waitcnt vmcnt(0) lgkmcnt(0)")
    for m in range(4):
        a(f"v_cvt_f32_f16 v{20+m}, v{20+m}")
    for m in range(4):
        a(f"v_dot2_f32_bf16 v{20+m}, v54, v{WB+2*m}, v{20+m}")
    for m in range(4):
        a(f"v_dot2_f32_bf16 v{20+m}, v55, v{WB+2*m+1}, v{20+m}")
    a("s_nop 3")
    for m in range(4):
        a(f"v_fma_mix_f32 v{20+m}, v{20+m}, s{sK}, v{16+m} op_sel_hi:[0,0,1]")
    for m in range(4):
        a(f"v_exp_f32 v{20+m}, v{20+m}")
    a("s_nop 0")
    for m in range(4):
        a(f"v_add_f32 v{20+m}, 1.0, v{20+m}")
    for m in range(4):
        a(f"v_rcp_f32 v{20+m}, v{20+m}")
    a("s_nop 0")
    for m in range(4):
        a(f"v_mul_f32 v{20+m}, v{20+m}, v{16+m}")
    for m in range(4):
        a(f"ds_add_f32 v52, v{20+m} offset:{4*m}")
    a.lab("K2_FB_NEXT")
    a("s_mov_b64 exec, -1")
    a(f"s_add_u32 s{sT0}, s{sT0}, 512")
    a(f"s_cmp_lt_u32 s{sT0}, {E*4}")
    a("s_cbranch_scc1 K2_FB_LOOP")
    a("s_waitcnt lgkmcnt(0)")
    a("s_barrier")
    a(f"s_lshl_b32 s{sT0}, s{sW}, 10")
    a(f"v_lshlrev_b32 v51, 4, v{vG8}")
    a.lab("K2_FB_OUT")
    a(f"v_add_u32 v52, s{sT0}, v51")
    a(f"v_add_u32 v53, v52, v{vC8}")
    a(f"v_lshlrev_b32 v56, 1, v{vG8}")
    a("v_xor_b32 v56, v56, v53")
    a(f"v_min_u32 v56, {399*128+112}, v56")
    a(f"v_add_u32 v56, {L_AUR}, v56")
    a("ds_read_b128 v[16:19], v56")
    a(f"v_add_u32 v53, {L_AGG}, v53")
    a("ds_read_b128 v[20:23], v53")
    a("s_waitcnt vmcnt(0) lgkmcnt(0)")
    for m in range(4):
        a(f"v_add_f32 v{16+m}, v{16+m}, v{20+m}")
    epilogue(16, 24, 4)
    a(f"v_lshl_add_u32 v53, v52, 1, v{vCo}")
    a(f"v_cmp_gt_u32 vcc, {BN*128}, v52")
    a("s_mov_b64 exec, vcc")
    a(f"buffer_store_dwordx2 v[24:25], v53, s[{SO}:{SO+3}], s{sOutOff} offen{K2_ST}")
    a("s_mov_b64 exec, -1")
    a(f"s_add_u32 s{sT0}, s{sT0}, 16384")
    a(f"s_cmp_lt_u32 s{sT0}, {BN*128}")
    a("s_cbranch_scc1 K2_FB_OUT")
    a.lab("K2_END")
    a("s_endpgm")


def kd(name, vgpr, sgpr, extra=""):
    acc = (vgpr + 3) // 4 * 4
    return f""".amdhsa_kernel {name}
  .amdhsa_next_free_vgpr {vgpr}
  .amdhsa_next_free_sgpr {sgpr}
  .amdhsa_accum_offset {acc}
  .amdhsa_group_segment_fixed_size 0
  .amdhsa_kernarg_size 80
  .amdhsa_user_sgpr_count 2
  .amdhsa_user_sgpr_kernarg_segment_ptr 1
  .amdhsa_system_sgpr_workgroup_id_x 1
{extra}.end_amdhsa_kernel
"""


def main():
    out = HEADER
    if FUSED:
        out += f"; @launch grid=(256,1,1) block=(1024,1,1) lds={K1_LDS}\n"
    else:
        out += f"; @launch kernel=k1_kernel grid=(256,1,1) block=(1024,1,1) lds={K1_LDS}\n"
        out += f"; @launch kernel=k2_kernel grid=(256,1,1) block=(1024,1,1) lds={K2_LDS}\n"
    out += '.amdgcn_target "amdgcn-amd-amdhsa--gfx950"\n.text\n'
    for name, g in ((KNAME if FUSED else "k1_kernel", gen_k1), ("k2_kernel", gen_k2)):
        a = A()
        g(a)
        if not (FUSED and g is gen_k2):
            out += f".globl {name}\n.p2align 8\n.type {name},@function\n"
        out += "\n".join(a.l) + "\n"
    out += '.section .rodata,"a"\n.p2align 6\n'
    out += kd(KNAME if FUSED else "k1_kernel", 128, 102, "  .amdhsa_fp16_overflow 1\n")
    if not FUSED:
        out += ".p2align 6\n"
        out += kd("k2_kernel", 128, 102)
    path = sys.argv[1] if len(sys.argv) > 1 else "gather_scatter__edge_featured_mpnn_egc__graph.s"
    open(path, "w").write(out)


if __name__ == "__main__":
    main()
```

```python
import sys

N = 25000
E = 400000
NB = 64
BN = 391
CH = 3200
NCH = 125
PS = 25040 * 128
P_OFF = 0
AU_OFF = 0x1000000
KEY_OFF = 0x2000000
EAT_OFF = 0x2200000
DESC_OFF = 0x2800000
GCNT_OFF = 0x2810000
WS_USED = 0x2900000
NL2E = 0xBFB8AA3B
MAGIC = 85817

OPTS = set(sys.argv[2:])
STAMPS = "stamps" in OPTS
STAMP_OFF = 0x3000000
K1_ST = ""
K2_ST = " nt"
NT_E = "" if "noent" in OPTS else " nt"
NT_X = " nt" if "xnt" in OPTS else ""
FUSED = "split" not in OPTS
K1_ST = " sc1"
P_ST = " sc1 nt" if "pnt" in OPTS else (" sc0 sc1" if "p01" in OPTS else " sc1")
G_LD = "" if "gplain" in OPTS else " sc1"
LD = " sc1" if FUSED else ""
KNAME = "gather_scatter__edge_featured_mpnn_egc__graph_kernel"
SDB = 96
TCH = [tuple(int(x) for x in o[4:].split(",")) for o in OPTS if o.startswith("tch=")]
TCH = TCH[0] if TCH else None
TMAP = "notmap" not in OPTS
SLP = 1 if "slp1" in OPTS else 4
for o in OPTS:
    if o.startswith("k1st="):
        K1_ST = " " + o[5:].replace("+", " ")
    if o.startswith("k2st="):
        K2_ST = " " + o[5:].replace("+", " ")

HEADER = """; Kernarg layout for this problem (80 bytes, ptrs only, base s[0:1]):
"""


class A:
    def __init__(self):
        self.l = []
        self.vst = None

    def __call__(self, s):
        for x in s.strip().split("\n"):
            self.l.append("    " + x.strip())

    def lab(self, s):
        self.l.append(s + ":")

    def c(self, s):
        self.l.append("    ; " + s)

    def stamp(self, idx):
        if not STAMPS:
            return
        self("s_memrealtime s[100:101]")
        self("s_waitcnt lgkmcnt(0)")
        self(f"v_writelane_b32 v{self.vst}, s100, {idx}")

    def stampc(self, idx):
        if not STAMPS:
            return
        self("s_memtime s[100:101]")
        self("s_waitcnt lgkmcnt(0)")
        self(f"v_writelane_b32 v{self.vst}, s100, {idx}")

    def stamp_flush(self, kidx, sw):
        if not STAMPS:
            return
        self("s_mov_b64 exec, -1")
        self(f"s_add_u32 s12, s20, {STAMP_OFF + kidx*0x100000}")
        self("s_addc_u32 s13, s21, 0")
        self("s_mov_b32 s14, 0x100000")
        self("s_mov_b32 s15, 0x20000")
        self("s_lshl_b32 s100, s2, 12")
        self(f"v_mbcnt_lo_u32_b32 v{self.vst+1}, -1, 0")
        self(f"v_mbcnt_hi_u32_b32 v{self.vst+1}, -1, v{self.vst+1}")
        self(f"v_lshlrev_b32 v{self.vst+1}, 2, v{self.vst+1}")
        self(f"s_lshl_b32 s101, s{sw}, 8")
        self("s_add_u32 s100, s100, s101")
        self(f"buffer_store_dword v{self.vst}, v{self.vst+1}, s[12:15], s100 offen")


def srd(a, d, base, size, off=0):
    if off:
        a(f"s_add_u32 s{d}, s{base}, {off}")
        a(f"s_addc_u32 s{d+1}, s{base+1}, 0")
    else:
        a(f"s_mov_b32 s{d}, s{base}")
        a(f"s_mov_b32 s{d+1}, s{base+1}")
    a(f"s_mov_b32 s{d+2}, {size}")
    a(f"s_mov_b32 s{d+3}, 0x20000")


def scan64(a, v):
    for sh in (1, 2, 4, 8):
        a("s_nop 1")
        a(f"v_add_u32_dpp v{v}, v{v}, v{v} row_shr:{sh} row_mask:0xf bank_mask:0xf bound_ctrl:0")
    a("s_nop 1")
    a(f"v_add_u32_dpp v{v}, v{v}, v{v} row_bcast:15 row_mask:0xa bank_mask:0xf")
    a("s_nop 1")
    a(f"v_add_u32_dpp v{v}, v{v}, v{v} row_bcast:31 row_mask:0xc bank_mask:0xf")


K1_WP = 98304
K1_WAU = 102400
K1_CNT = 118784
K1_STK = K1_CNT + 2048
K1_STE = K1_STK + 12800
K1_SCR = 131072
L_AUR = 112640
L_GW = 103936
K1_LDS = 163840
assert K1_STE + 25600 <= K1_LDS


def poll(a, tag, vP, off, val=None, slp=2):
    a("s_mov_b32 s101, 0x40000")
    a("s_mov_b64 exec, 1")
    a.lab(f"POLL{tag}")
    a(f"buffer_load_dword v{vP}, off, s[{SDB}:{SDB+3}], 0 offset:{off} sc1")
    a("s_waitcnt vmcnt(0)")
    a(f"v_cmp_ne_u32 vcc, 0, v{vP}" if val is None else f"v_cmp_eq_u32 vcc, {val}, v{vP}")
    a("s_sub_u32 s101, s101, 1")
    a(f"s_cbranch_scc1 POLLD{tag}")
    a(f"s_cbranch_vccnz POLLD{tag}")
    a(f"s_sleep {slp}")
    a(f"s_branch POLL{tag}")
    a.lab(f"POLLD{tag}")
    a("s_mov_b64 exec, -1")


def gen_k1(a):
    sW, sSl, sBk, sT0, sT1, sT2, sT3 = 22, 23, 24, 25, 26, 27, 28
    sG = 29
    sEx = 30
    SD, SS, SE, SWS, SX, SWL, SWH = 32, 36, 40, 44, 48, 52, 56
    sScale, sOut, sS, sQ, sX0, sDl, sJ, sSlot = 60, 61, 62, 63, 64, 65, 66, 67
    sUns = 94
    vLane = 1
    VX = 40
    VW = 44
    a.lab(KNAME)
    a.vst = 11
    a("s_cmp_ge_u32 s2, 256")
    a("s_cbranch_scc1 K1_END2")
    a.stamp(0)
    a.stampc(30)
    a("s_load_dwordx16 s[4:19], s[0:1], 0")
    a("s_load_dwordx2 s[20:21], s[0:1], 72")
    a(f"s_load_dwordx2 s[{SDB}:{SDB+1}], s[0:1], 64")
    a("v_lshrrev_b32 v2, 6, v0")
    a(f"v_and_b32 v{vLane}, 63, v0")
    a(f"v_readfirstlane_b32 s{sW}, v2")
    a(f"s_mov_b32 s{SDB+2}, 256")
    a(f"s_mov_b32 s{SDB+3}, 0x20000")
    a(f"s_and_b32 s{sSl}, s2, 3")
    a(f"s_lshr_b32 s{sT0}, s2, 2")
    if "oldmap" in OPTS:
        a(f"s_mov_b32 s{sBk}, s{sT0}")
    else:
        a.c("bucket = 32*((wg>>2)&1) + (wg>>3): workgroups that share an L2 take neighbouring buckets")
        a(f"s_and_b32 s{sBk}, s{sT0}, 1")
        a(f"s_lshl_b32 s{sBk}, s{sBk}, 5")
        a(f"s_lshr_b32 s{sT1}, s2, 3")
        if TMAP:
            a(f"s_lshl_b32 s{sT2}, s2, 3")
            a(f"s_and_b32 s{sT2}, s{sT2}, 16")
            a(f"s_xor_b32 s{sT1}, s{sT1}, s{sT2}")
        a(f"s_or_b32 s{sBk}, s{sBk}, s{sT1}")
    if TMAP:
        a(f"s_mov_b32 s{sG}, s2")
    else:
        a(f"s_lshl_b32 s{sG}, s{sT0}, 1")
        a(f"s_add_u32 s{sG}, s{sG}, s{sSl}")
    a(f"s_mul_i32 s{sX0}, s{sBk}, {BN*256}")
    if TMAP:
        a(f"s_and_b32 s{sT2}, s2, 0x81")
        a(f"s_cmp_eq_u32 s{sT2}, 0x80")
    else:
        a(f"s_cmp_eq_u32 s{sSl}, 2")
    a(f"s_cselect_b32 s{sDl}, 1, 0")
    a("v_lshlrev_b32 v2, 4, v0")
    a("v_lshlrev_b32 v3, 5, v0")
    a(f"v_lshrrev_b32 v4, 4, v{vLane}")
    a(f"v_and_b32 v5, 15, v{vLane}")
    a("v_xor_b32 v6, v5, v4")
    a("v_lshlrev_b32 v6, 4, v6")
    a(f"v_lshl_add_u32 v{VX}, v4, 8, v6")
    a(f"v_xor_b32 v{VX+1}, 64, v{VX}")
    a(f"v_xor_b32 v{VX+2}, 0x80, v{VX}")
    a(f"v_xor_b32 v{VX+3}, 0xc0, v{VX}")
    a("v_lshrrev_b32 v6, 1, v5")
    a("v_xor_b32 v6, v6, v4")
    a("v_lshlrev_b32 v6, 5, v6")
    a("v_lshl_add_u32 v6, v4, 8, v6")
    a(f"v_and_b32 v7, 1, v{vLane}")
    a(f"v_lshl_add_u32 v{VW}, v7, 4, v6")
    a(f"v_xor_b32 v{VW+1}, 0x80, v{VW}")
    a(f"v_lshrrev_b32 v6, 2, v{vLane}")
    a("v_lshlrev_b32 v6, 8, v6")
    a(f"v_and_b32 v7, 3, v{vLane}")
    a(f"v_lshrrev_b32 v8, 4, v{vLane}")
    a("v_and_b32 v8, 2, v8")
    a("v_xor_b32 v7, v7, v8")
    a(f"v_lshl_add_u32 v{VW+2}, v7, 4, v6")
    if "icode" in OPTS:
        a.c("pull this kernel's code into the XCD's L2 (wave 15 of the first workgroups)")
        a(f"s_cmp_lg_u32 s{sW}, 15")
        a("s_cbranch_scc1 K1_NOIC")
        a("s_cmp_ge_u32 s2, 16")
        a("s_cbranch_scc1 K1_NOIC")
        a("s_getpc_b64 s[68:69]")
        a(f"v_lshlrev_b32 v60, 7, v{vLane}")
        a.lab("K1_ICB")
        a("global_load_dword v61, v60, s[68:69]")
        a("s_add_u32 s68, s68, 8192")
        a("s_addc_u32 s69, s69, 0")
        a("s_bfm_b64 exec, (K2_END-K1_ICB-8192)/128, 0")
        a("global_load_dword v62, v60, s[68:69]")
        a("s_mov_b64 exec, -1")
        a.lab("K1_NOIC")
    a("s_waitcnt lgkmcnt(0)")
    a.stamp(1)
    srd(a, SX, 4, N * 256)
    a("s_cmp_ge_u32 s2, 128" if TMAP else f"s_cmp_ge_u32 s{sSl}, 2")
    a("s_cbranch_scc1 K1_TB")

    def xdma(slot_sgpr, tag):
        a(f"s_lshl_b32 s{sT0}, s{slot_sgpr}, 12")
        a(f"s_mov_b32 m0, s{sT0}")
        a(f"s_sub_u32 s{sT1}, s{slot_sgpr}, s{sDl}")
        a(f"s_cselect_b32 s{sT1}, 24, s{sT1}")
        a(f"s_lshl_b32 s{sT1}, s{sT1}, 12")
        a(f"s_add_u32 s{sT1}, s{sT1}, s{sX0}")
        for pp in range(4):
            a(f"buffer_load_dwordx4 v{VX+pp}, s[{SX}:{SX+3}], s{sT1} offen offset:{pp*1024}{NT_X} lds")

    def waudma(piece_sgpr):
        a(f"s_lshl_b32 s{sT0}, s{piece_sgpr}, 10")
        a(f"s_add_u32 s{sT0}, s{sT0}, {K1_WAU}")
        a(f"s_mov_b32 m0, s{sT0}")
        a(f"s_and_b32 s{sT1}, s{piece_sgpr}, 7")
        a(f"s_lshl_b32 s{sT1}, s{sT1}, 12")
        a(f"s_lshl_b32 s{sT0}, s{sSl}, 6")
        a(f"s_add_u32 s{sT1}, s{sT1}, s{sT0}")
        a(f"s_cmp_lt_u32 s{piece_sgpr}, 8")
        a(f"s_cselect_b32 s{SWL}, s16, s12")
        a(f"s_cselect_b32 s{SWL+1}, s17, s13")
        a(f"s_mov_b32 s{SWL+2}, 32768")
        a(f"s_mov_b32 s{SWL+3}, 0x20000")
        a(f"buffer_load_dwordx4 v{VW+2}, s[{SWL}:{SWL+3}], s{sT1} offen lds")

    a(f"s_cmp_ge_u32 s{sG}, {NCH}")
    a("s_cbranch_scc1 K1_NOEDGE")
    a(f"s_cmp_ge_u32 s{sW}, 13")
    a("s_cbranch_scc1 K1_NOEDGE")
    srd(a, SD, 10, E * 4)
    srd(a, SS, 8, E * 4)
    srd(a, SE, 6, E * 8)
    a("v_cmp_gt_u32 vcc, 800, v0")
    a(f"s_mul_i32 s{sT0}, s{sG}, {CH*4}")
    a(f"s_mul_i32 s{sT1}, s{sG}, {CH*8}")
    a(f"s_mov_b64 s[{sEx}:{sEx+1}], vcc")
    a("s_mov_b64 exec, vcc")
    a(f"buffer_load_dwordx4 v[16:19], v2, s[{SD}:{SD+3}], s{sT0} offen{NT_E}")
    a(f"buffer_load_dwordx4 v[20:23], v2, s[{SS}:{SS+3}], s{sT0} offen{NT_E}")
    a(f"buffer_load_dwordx4 v[24:27], v3, s[{SE}:{SE+3}], s{sT1} offen{NT_E}")
    a(f"buffer_load_dwordx4 v[28:31], v3, s[{SE}:{SE+3}], s{sT1} offen offset:16{NT_E}")
    a("s_mov_b64 exec, -1")
    a.lab("K1_NOEDGE")
    srd(a, SWS, 20, WS_USED)
    a(f"v_lshlrev_b32 v6, 2, v{vLane}")
    a(f"v_add_u32 v6, {K1_CNT}, v6")
    a("v_mov_b32 v7, 0")
    a(f"v_mov_b32 v12, {K1_CNT+1024}")
    a(f"s_cmp_lg_u32 s{sW}, 0")
    a("s_cbranch_scc1 K1_P1")
    a("ds_write_b32 v6, v7")
    a("ds_write_b32 v6, v7 offset:256")
    a("ds_write_b32 v6, v7 offset:1024")
    a("s_waitcnt lgkmcnt(0)")
    a.lab("K1_P1")
    a("s_barrier")
    a(f"s_cmp_lt_u32 s{sW}, 13")
    a("s_cbranch_scc1 K1_PW")
    a.c("loader waves 13..15 : W_AU pieces and x tiles by LDS-DMA")
    a(f"s_sub_u32 s{sJ}, s{sW}, 13")
    a.lab("K1_LA1")
    waudma(sJ)
    a(f"s_add_u32 s{sJ}, s{sJ}, 3")
    a(f"s_cmp_lt_u32 s{sJ}, 16")
    a("s_cbranch_scc1 K1_LA1")
    a(f"s_sub_u32 s{sJ}, s{sW}, 13")
    H0 = [int(o[3:]) for o in OPTS if o.startswith("h0=")]
    if H0:
        a.c("edge loads first")
        a(f"s_cmp_ge_u32 s{sG}, {NCH}")
        a("s_cbranch_scc1 K1_H0D")
        a.lab("K1_H0")
        a(f"ds_read_b32 v13, v12 offset:{H0[0]}")
        a("s_waitcnt lgkmcnt(0)")
        a("v_cmp_gt_u32 vcc, 13, v13")
        a("s_cbranch_vccnz K1_H0")
        a.lab("K1_H0D")
    xdma(sJ, "A0")
    a(f"s_add_u32 s{sJ}, s{sJ}, 3")
    xdma(sJ, "A1")
    a(f"s_add_u32 s{sJ}, s{sJ}, 3")
    a("v_mov_b32 v7, 1")
    a("s_waitcnt vmcnt(8)")
    a("s_mov_b64 exec, 1")
    a("ds_add_u32 v12, v7 offset:12")
    a("s_mov_b64 exec, -1")
    HOLD = [int(o[5:]) for o in OPTS if o.startswith("hold=")]
    if HOLD:
        for h in range(HOLD[0] - 2):
            xdma(sJ, f"AH{h}")
            a(f"s_add_u32 s{sJ}, s{sJ}, 3")
        a.c("let the partition's record stores go out first")
        a(f"s_cmp_ge_u32 s{sG}, {NCH}")
        a("s_cbranch_scc1 K1_LA2")
        a.lab("K1_HOLD")
        a("ds_read_b32 v13, v12 offset:16")
        a("s_waitcnt lgkmcnt(0)")
        a("v_cmp_gt_u32 vcc, 13, v13")
        a("s_cbranch_vccnz K1_HOLD")
    a.lab("K1_LA2")
    xdma(sJ, "A")
    a(f"s_add_u32 s{sJ}, s{sJ}, 3")
    a(f"s_cmp_lt_u32 s{sJ}, 25")
    a("s_cbranch_scc1 K1_LA2")
    a.stamp(2)
    a("s_branch K1_AUA")
    a.lab("K1_PW")
    a(f"s_cmp_ge_u32 s{sG}, {NCH}")
    a("s_cbranch_scc1 K1_AUA")

    def sb(k, tag):
        a("s_waitcnt lgkmcnt(0)")
        a("s_mov_b64 exec, 1")
        a(f"ds_add_u32 v12, v7 offset:{4+4*k}")
        a("s_mov_b64 exec, -1")
        a.lab(f"K1_SB{tag}")
        a(f"ds_read_b32 v13, v12 offset:{4+4*k}")
        a("s_waitcnt lgkmcnt(0)")
        a("v_cmp_gt_u32 vcc, 13, v13")
        a(f"s_cbranch_vccnz K1_SB{tag}")
    a(f"s_mov_b32 s{sT0}, {MAGIC}")
    a(f"s_mov_b32 s{sT1}, {-BN & 0xffffffff}")
    a("v_mov_b32 v7, 1")
    a(f"s_mov_b64 exec, s[{sEx}:{sEx+1}]")
    a("s_waitcnt vmcnt(3)")
    a.stamp(3)
    for i in range(4):
        a(f"v_mul_u32_u24 v{32+i}, s{sT0}, v{16+i}")
    for i in range(4):
        a(f"v_lshrrev_b32 v{32+i}, 25, v{32+i}")
    for i in range(4):
        a(f"v_mad_i32_i24 v{16+i}, v{32+i}, s{sT1}, v{16+i}")
    for i in range(4):
        a(f"v_lshlrev_b32 v{32+i}, 2, v{32+i}")
    for i in range(4):
        a(f"v_add_u32 v{32+i}, {K1_CNT}, v{32+i}")
    for i in range(4):
        a(f"ds_add_rtn_u32 v{36+i}, v{32+i}, v7")
    for i in range(4):
        a(f"v_lshlrev_b32 v{16+i}, 2, v{16+i}")
    a("s_waitcnt vmcnt(2)")
    for i in range(4):
        a(f"v_lshl_or_b32 v{20+i}, v{20+i}, 16, v{16+i}")
    sb(0, "2")
    a.stamp(4)
    a("ds_read_b32 v8, v6")
    a("s_waitcnt lgkmcnt(0)")
    a("v_mov_b32 v9, v8")
    scan64(a, 9)
    a("v_sub_u32 v9, v9, v8")
    a("ds_write_b32 v6, v9 offset:512")
    a("v_lshl_or_b32 v8, v8, 16, v9")
    a(f"s_mov_b64 exec, s[{sEx}:{sEx+1}]")
    for i in range(4):
        a(f"ds_read_b32 v{32+i}, v{32+i} offset:512")
    a("s_waitcnt lgkmcnt(0)")
    for i in range(4):
        a(f"v_add_u32 v{32+i}, v{32+i}, v{36+i}")
    for i in range(4):
        a(f"v_lshlrev_b32 v{36+i}, 2, v{32+i}")
        a(f"v_lshlrev_b32 v{32+i}, 3, v{32+i}")
    for i in range(4):
        a(f"v_add_u32 v{36+i}, {K1_STK}, v{36+i}")
        a(f"v_add_u32 v{32+i}, {K1_STE}, v{32+i}")
    for i in range(4):
        a(f"ds_write_b32 v{36+i}, v{20+i}")
    a("s_waitcnt vmcnt(0)")
    for i in range(4):
        a(f"ds_write_b64 v{32+i}, v[{24+2*i}:{25+2*i}]")
    a("v_or3_b32 v16, v24, v25, v26")
    a("v_or3_b32 v17, v27, v28, v29")
    a("v_or3_b32 v16, v30, v31, v16")
    a("v_or_b32 v16, v16, v17")
    a("v_and_b32 v16, 0x40004000, v16")
    a("v_cmp_ne_u32 vcc, 0, v16")
    a(f"s_cmp_lg_u64 vcc, 0")
    a(f"s_cselect_b32 s{sUns}, 0x101, 1")
    sb(1, "3")
    a.stamp(5)
    a(f"s_mov_b64 exec, s[{sEx}:{sEx+1}]")
    a(f"v_add_u32 v6, {K1_STK}, v2")
    a("ds_read_b128 v[16:19], v6")
    a("ds_read_b128 v[20:23], v6 offset:12800")
    a("ds_read_b128 v[24:27], v6 offset:25600")
    a(f"s_mul_i32 s{sT0}, s{sG}, {CH*4}")
    a(f"s_add_u32 s{sT0}, s{sT0}, {KEY_OFF}")
    a(f"s_mul_i32 s{sT1}, s{sG}, {CH*8}")
    a(f"s_add_u32 s{sT1}, s{sT1}, {EAT_OFF}")
    a(f"s_add_u32 s{sT2}, s{sT1}, 12800")
    a("s_waitcnt lgkmcnt(2)")
    a(f"buffer_store_dwordx4 v[16:19], v2, s[{SWS}:{SWS+3}], s{sT0} offen{K1_ST}")
    a("s_waitcnt lgkmcnt(1)")
    a(f"buffer_store_dwordx4 v[20:23], v2, s[{SWS}:{SWS+3}], s{sT1} offen{K1_ST}")
    a("s_waitcnt lgkmcnt(0)")
    a(f"buffer_store_dwordx4 v[24:27], v2, s[{SWS}:{SWS+3}], s{sT2} offen{K1_ST}")
    a("s_mov_b64 exec, -1")
    a(f"s_cmp_lg_u32 s{sW}, 0")
    a("s_cbranch_scc1 K1_P2B")
    a(f"v_lshlrev_b32 v9, 2, v{vLane}")
    a(f"s_lshl_b32 s{sT0}, s{sG}, 8")
    a(f"s_add_u32 s{sT0}, s{sT0}, {DESC_OFF}")
    a(f"buffer_store_dword v8, v9, s[{SWS}:{SWS+3}], s{sT0} offen{K1_ST}")
    a.lab("K1_P2B")
    if HOLD:
        a("s_mov_b64 exec, 1")
        a("ds_add_u32 v12, v7 offset:16")
        a("s_mov_b64 exec, -1")
    a.c("publish the partition: the last of the 13 storing waves counts this workgroup into R")
    a(f"v_mov_b32 v15, s{sUns}")
    a("s_waitcnt vmcnt(0)")
    a("s_mov_b64 exec, 1")
    a("ds_add_rtn_u32 v14, v12, v15")
    a("s_waitcnt lgkmcnt(0)")
    a("v_add_u32 v14, v14, v15")
    a("v_and_b32 v15, 0xff, v14")
    a("v_cmp_eq_u32 vcc, 13, v15")
    a("s_cbranch_vccz K1_NOR2")
    a("v_lshrrev_b32 v14, 8, v14")
    a("v_lshl_or_b32 v14, v14, 16, 1")
    a("v_mov_b32 v15, v14")
    a(f"buffer_atomic_add v15, off, s[{SDB}:{SDB+3}], 0 sc0 sc1")
    a("s_waitcnt vmcnt(0)")
    a("v_add_u32 v15, v15, v14")
    a("v_and_b32 v14, 0xffff, v15")
    a(f"v_cmp_eq_u32 vcc, {NCH}, v14")
    a("s_cbranch_vccz K1_NOR2")
    a(f"buffer_store_dword v15, off, s[{SDB}:{SDB+3}], 0 offset:192 sc1")
    a.lab("K1_NOR2")
    a("s_mov_b64 exec, -1")
    a.stamp(6)
    a.lab("K1_AUA")
    a("ds_read_b32 v13, v12 offset:12")
    a("s_waitcnt lgkmcnt(0)")
    a("v_cmp_gt_u32 vcc, 3, v13")
    a("s_cbranch_vccnz K1_AUA")
    a("s_branch K1_AU")

    a.lab("K1_TB")
    a(f"s_add_u32 s{sT0}, s16, 32768")
    a(f"s_addc_u32 s{sT1}, s17, 0")
    a(f"s_cmp_lt_u32 s{sW}, 8")
    a(f"s_cselect_b32 s{SWH}, s{sT0}, s14")
    a(f"s_cselect_b32 s{SWH+1}, s{sT1}, s15")
    a(f"s_mov_b32 s{SWH+2}, 32768")
    a(f"s_mov_b32 s{SWH+3}, 0x20000")
    a(f"s_lshl_b32 s{sT0}, s{sW}, 12")
    a(f"s_add_u32 s{sT1}, s{sT0}, {K1_WP}")
    a(f"s_mov_b32 m0, s{sT1}")
    a(f"s_and_b32 s{sT0}, s{sT0}, 0x7fff")
    for pp in range(4):
        a(f"buffer_load_dwordx4 v{VW+(pp>>1)}, s[{SWH}:{SWH+3}], s{sT0} offen offset:{pp*1024} lds")
    srd(a, SWS, 20, WS_USED)

    def xup():
        a(f"s_cmp_ge_u32 s{sW}, 13")
        a("s_cbranch_scc1 K1_B0")
        a(f"s_lshl_b32 s{sJ}, s{sW}, 1")
        a(f"s_add_u32 s{sJ}, s{sJ}, 1")
        a(f"s_cmp_eq_u32 s{sW}, 12")
        a(f"s_cselect_b32 s{sJ}, 0, s{sJ}")
        xdma(sJ, "B")
        a.lab("K1_B0")
    if "wfirst" not in OPTS:
        xup()
    a(f"s_and_b32 s{sS}, s{sW}, 3")
    a(f"s_lshr_b32 s{sQ}, s{sW}, 2")
    a(f"v_lshrrev_b32 v2, 4, v{vLane}")
    a(f"v_and_b32 v3, 15, v{vLane}")
    a("v_lshrrev_b32 v48, 2, v3")
    a("v_and_b32 v49, 1, v2")
    a("v_lshl_or_b32 v49, v49, 2, v48")
    a(f"s_lshl_b32 s{sT0}, s{sS}, 1")
    a(f"v_xor_b32 v49, s{sT0}, v49")
    a("v_lshlrev_b32 v49, 5, v49")
    a("v_lshl_add_u32 v48, v2, 3, v48")
    a("v_lshl_add_u32 v48, v48, 8, v49")
    a(f"v_and_b32 v49, 3, v{vLane}")
    a("v_lshl_add_u32 v48, v49, 3, v48")
    a(f"v_add_u32 v48, {K1_WP}, v48")
    a("v_xor_b32 v49, 32, v48")
    a("v_and_b32 v10, 7, v3")
    a("v_xor_b32 v10, v10, v2")
    a("v_lshlrev_b32 v10, 4, v10")
    a("v_lshl_add_u32 v10, v3, 7, v10")
    a(f"s_lshl_b32 s{sT0}, s{sW}, 11")
    a(f"s_add_u32 s{sT0}, s{sT0}, {K1_SCR}")
    a(f"v_add_u32 v10, s{sT0}, v10")
    a("v_xor_b32 v0, 64, v10")
    a(f"v_lshlrev_b32 v2, 4, v{vLane}")
    a(f"v_add_u32 v2, s{sT0}, v2")
    a(f"v_lshrrev_b32 v3, 3, v{vLane}")
    a(f"v_and_b32 v28, 7, v{vLane}")
    a("v_xor_b32 v28, v28, v3")
    a("v_lshlrev_b32 v28, 4, v28")
    a("v_lshl_add_u32 v3, v3, 7, v28")
    a(f"s_mov_b32 s{sScale}, {hex(NL2E)}")
    if "wfirst" in OPTS:
        a("s_waitcnt vmcnt(0)")
        xup()
    else:
        a(f"s_cmp_ge_u32 s{sW}, 13")
        a("s_cbranch_scc1 K1_B1")
        a("s_waitcnt vmcnt(4)")
        a("s_branch K1_B2")
        a.lab("K1_B1")
        a("s_waitcnt vmcnt(0)")
        a.lab("K1_B2")
    a.stamp(2)
    a("s_barrier")
    WF = 64

    def wf(mat, ct, ks):
        return WF + ((mat * 2 + ct) * 4 + ks) * 4
    for ks in range(4):
        for mat in range(2):
            for ct in range(2):
                b = wf(mat, ct, ks)
                off = mat * 32768 + ks * 8192
                a(f"ds_read_b64_tr_b16 v[{b}:{b+1}], v{48+ct} offset:{off}")
                a(f"ds_read_b64_tr_b16 v[{b+2}:{b+3}], v{48+ct} offset:{off+1024}")
    a("s_waitcnt lgkmcnt(0)")
    a.stamp(3)
    a("s_barrier")
    waudma(sW)

    def xlate(tag):
        a(f"s_cmp_ge_u32 s{sW}, 12")
        a(f"s_cbranch_scc1 K1_B3{tag}")
        a(f"s_lshl_b32 s{sJ}, s{sW}, 1")
        a(f"s_add_u32 s{sJ}, s{sJ}, 2")
        xdma(sJ, "C")
        if tag:
            a("s_waitcnt vmcnt(4)")
            a("s_branch K1_B4")
        a.lab(f"K1_B3{tag}")
        if tag:
            a("s_waitcnt vmcnt(0)")
            a.lab("K1_B4")
    if "early" in OPTS:
        a("s_barrier")
        xlate("E")
    XF = [32, 48]

    def xconst():
        a(f"v_lshrrev_b32 v4, 4, v{vLane}")
        a(f"v_and_b32 v5, 15, v{vLane}")
        a("v_xor_b32 v4, v4, v5")
        a("v_lshlrev_b32 v4, 4, v4")
        a("v_lshl_add_u32 v5, v5, 8, v4")

    def xread(buf, slot_sgpr):
        a(f"s_lshl_b32 s{sT0}, s{slot_sgpr}, 12")
        a(f"v_add_u32 v6, s{sT0}, v5")
        a("v_xor_b32 v7, 64, v6")
        a("v_xor_b32 v8, 0x80, v6")
        a("v_xor_b32 v9, 0xc0, v6")
        for ks in range(4):
            a(f"ds_read_b128 v[{XF[buf]+4*ks}:{XF[buf]+4*ks+3}], v{6+ks}")

    def mfmas(buf, mid=None):
        for ks in range(4):
            for mat in range(2):
                for ct in range(2):
                    d = 16 + (mat * 2 + ct) * 4
                    b = wf(mat, ct, ks)
                    cin = "0" if ks == 0 else f"v[{d}:{d+3}]"
                    a(f"v_mfma_f32_16x16x32_bf16 v[{d}:{d+3}], v[{b}:{b+3}], v[{XF[buf]+4*ks}:{XF[buf]+4*ks+3}], {cin}")
            if ks == 0 and mid:
                mid()
    xconst()
    a(f"s_lshl_b32 s{sSlot}, s{sQ}, 1")
    a(f"s_add_u32 s{sSlot}, s{sSlot}, 1")
    a(f"s_mul_i32 s{sOut}, s{sS}, {PS}")
    a(f"s_lshr_b32 s{sT0}, s{sX0}, 1")
    a(f"s_add_u32 s{sOut}, s{sOut}, s{sT0}")
    a(f"s_sub_u32 s{sT0}, s{sSlot}, s{sDl}")
    a(f"s_lshl_b32 s{sT0}, s{sT0}, 11")
    a(f"s_add_u32 s{sOut}, s{sOut}, s{sT0}")
    a.stamp(4)
    a("v_mov_b32 v4, 0")
    if "early" not in OPTS:
        a("s_waitcnt vmcnt(0)")
    a.stamp(5)
    a("s_barrier")
    a.stamp(7)
    a.stampc(31)
    if "early" not in OPTS:
        xlate("")
    xread(0, sSlot)
    for i in range(4):
        buf = i & 1
        if i == 3:
            a.c("13th P tile (tile 24, slot 0): slice 2, set 0 only")
            a(f"s_cmp_lg_u32 s{sQ}, 0")
            a("s_cbranch_scc1 K1_PDONE")
            a(f"s_cmp_eq_u32 s{sDl}, 0")
            a("s_cbranch_scc1 K1_PDONE")
        if i < 2:
            a(f"s_add_u32 s{sSlot}, s{sSlot}, 8")
        elif i == 2:
            a(f"s_mov_b32 s{sSlot}, 0")
        a("s_waitcnt lgkmcnt(0)")
        mfmas(buf, (lambda: xread(buf ^ 1, sSlot)) if i < 3 else None)
        a("s_nop 7")
        for r in range(16, 32, 2):
            a(f"v_max3_f32 v4, abs(v{r}), abs(v{r+1}), v4")
        for ct in range(2):
            for j in range(4):
                a(f"v_fma_mixlo_f16 v{24+4*ct+j}, v{16+4*ct+j}, s{sScale}, 0")
        a("ds_write_b128 v10, v[24:27]")
        a("ds_write_b128 v0, v[28:31]")
        a("ds_read_b128 v[12:15], v2")
        a("ds_read_b128 v[16:19], v2 offset:1024")
        a("s_waitcnt lgkmcnt(1)")
        a(f"buffer_store_dwordx4 v[12:15], v3, s[{SWS}:{SWS+3}], s{sOut} offen{P_ST}")
        a("s_waitcnt lgkmcnt(0)")
        a(f"buffer_store_dwordx4 v[16:19], v3, s[{SWS}:{SWS+3}], s{sOut} offen offset:1024{P_ST}")
        a.stamp(8 + i)
        if i < 3:
            a(f"s_add_u32 s{sOut}, s{sOut}, 16384")
            a("s_nop 1")
    a.lab("K1_PDONE")
    a("v_cmp_le_f32 vcc, 2.0, v4")
    a("s_cbranch_vccz K1_PSAFE")
    a("v_mov_b32 v13, 0x10000")
    a("s_mov_b64 exec, 1")
    a(f"buffer_atomic_add v13, off, s[{SDB}:{SDB+3}], 0 offset:64 sc1")
    a("s_mov_b64 exec, -1")
    a.lab("K1_PSAFE")
    a.lab("K1_AU")
    xconst()
    a(f"v_lshrrev_b32 v2, 4, v{vLane}")
    a(f"v_and_b32 v3, 15, v{vLane}")
    a("v_lshrrev_b32 v48, 2, v3")
    a("v_lshl_add_u32 v48, v2, 3, v48")
    a("v_lshlrev_b32 v48, 6, v48")
    a(f"v_and_b32 v49, 3, v{vLane}")
    a("v_lshl_add_u32 v48, v49, 3, v48")
    a("v_and_b32 v49, 1, v2")
    a("v_lshl_add_u32 v48, v49, 5, v48")
    a(f"v_add_u32 v48, {K1_WAU}, v48")
    a("v_xor_b32 v49, 32, v48")
    a("s_waitcnt lgkmcnt(0)")
    for ks in range(4):
        for mat in range(2):
            for ct in range(2):
                b = wf(mat, ct, ks)
                off = mat * 8192 + ks * 2048
                a(f"ds_read_b64_tr_b16 v[{b}:{b+1}], v{48+ct} offset:{off}")
                a(f"ds_read_b64_tr_b16 v[{b+2}:{b+3}], v{48+ct} offset:{off+256}")
    a("v_and_b32 v10, 7, v3")
    a("v_xor_b32 v10, v10, v2")
    a("v_lshlrev_b32 v10, 4, v10")
    a("v_lshl_add_u32 v10, v3, 7, v10")
    a(f"v_add_u32 v10, {L_AUR}, v10")
    a(f"s_mov_b32 s{sSlot}, s{sW}")
    a.c("first chunk of this wave: key waves 12w (12 chunks), loader waves 32(w-11) (32 chunks)")
    a(f"s_mul_i32 s{sT2}, s{sW}, 12")
    a(f"s_lshl_b32 s{sT3}, s{sW}, 5")
    a(f"s_sub_u32 s{sT3}, s{sT3}, {32*11}")
    a(f"s_cmp_lt_u32 s{sW}, 11")
    a(f"s_cselect_b32 s{sT3}, s{sT2}, s{sT3}")
    a(f"s_cselect_b32 s{sT2}, 12, 32")
    a(f"s_bfm_b64 s[54:55], s{sT2}, 0")
    a(f"s_lshl_b32 s90, s{sT3}, 8")
    a(f"s_lshl_b32 s{sT1}, s{sBk}, 2")
    a(f"s_add_u32 s90, s90, s{sT1}")
    a(f"s_add_u32 s48, s20, {DESC_OFF}")
    a("s_addc_u32 s49, s21, 0")
    a(f"s_mov_b32 s50, {NCH*256}")
    a("s_mov_b32 s51, 0x20000")
    a.stamp(14)
    a("s_waitcnt vmcnt(0) lgkmcnt(0)")
    a.stamp(13)
    a("s_barrier")
    a.stamp(15)
    xread(0, sSlot)
    a(f"s_cmp_lg_u32 s{sW}, 15")
    a("s_cbranch_scc1 K1_NZ")
    a(f"v_lshlrev_b32 v14, 2, v{vLane}")
    a(f"v_add_u32 v14, {L_GW}, v14")
    a("v_mov_b32 v3, 0")
    a("ds_write_b32 v14, v3")
    a("s_cmp_lt_u32 s2, 128" if TMAP else f"s_cmp_lt_u32 s{sSl}, 2")
    a("s_cbranch_scc1 K1_NZ2")
    a.c("count this workgroup's P tiles in")
    a("v_mov_b32 v15, 1")
    a("v_mov_b32 v14, 1")
    a("s_mov_b64 exec, 1")
    a(f"buffer_atomic_add v14, off, s[{SDB}:{SDB+3}], 0 offset:64 sc0 sc1")
    a("s_mov_b64 exec, -1")
    a("s_branch K1_NZ2")
    a.lab("K1_NZ")
    a("s_mov_b64 exec, 1")
    a(f"buffer_load_dword v2, off, s[{SDB}:{SDB+3}], 0 offset:192 sc1")
    a("s_mov_b64 exec, -1")
    a(f"v_lshlrev_b32 v14, 8, v{vLane}")
    a.lab("K1_NZ2")
    a("v_mov_b32 v4, 0")
    a(f"s_mov_b32 s{sUns+1}, 0")
    a.stamp(16)
    for i in range(2):
        a(f"s_sub_u32 s{sT1}, s{sSlot}, s{sDl}")
        a(f"s_cselect_b32 s{sT1}, 24, s{sT1}")
        a(f"s_lshl_b32 s{sT1}, s{sT1}, 11")
        a(f"v_add_u32 v12, s{sT1}, v10")
        a("v_xor_b32 v13, 64, v12")
        if i == 0:
            a(f"s_add_u32 s{sSlot}, s{sSlot}, 16")
            a(f"s_min_u32 s{sJ}, s{sSlot}, 24")
        a("s_waitcnt lgkmcnt(0)")
        mfmas(i, (lambda: xread(1, sJ)) if i == 0 else None)
        a("s_nop 7")
        for r in range(16, 24, 2):
            a(f"v_max3_f32 v4, abs(v{r}), abs(v{r+1}), v4")
        for ct in range(2):
            for j in range(4):
                a(f"v_fma_mixlo_f16 v{24+4*ct+j}, v{16+4*ct+j}, 1.0, 0")
        a("ds_write_b128 v12, v[24:27]")
        a("ds_write_b128 v13, v[28:31]")
        if i == 0:
            a(f"s_cmp_eq_u32 s{sW}, 15")
            a("s_cbranch_scc1 K1_END")
            a.c("partition published? then fetch this wave's segment descriptors")
            a("s_mov_b64 exec, 1")
            a("s_waitcnt vmcnt(0)")
            a("v_cmp_ne_u32 vcc, 0, v2")
            a("s_cbranch_vccnz K1_ROK")
            poll(a, "R", 2, 192, None, SLP)
            a.lab("K1_ROK")
            a("s_mov_b64 exec, s[54:55]")
            a(f"buffer_load_dword v3, v14, s[48:51], s90 offen{LD}")
            a("s_mov_b64 exec, -1")
            a(f"v_readfirstlane_b32 s{sUns+1}, v2")
            a.stamp(17)
            a(f"s_cmp_ge_u32 s{sSlot}, 25")
            a(f"s_lshr_b32 s{sUns+1}, s{sUns+1}, 16")
            a(f"s_cmp_ge_u32 s{sSlot}, 25")
            a("s_cbranch_scc1 K1_END")
    a.lab("K1_END")
    a("v_cmp_le_f32 vcc, 2.0, v4")
    a("s_cmp_lg_u64 vcc, 0")
    a(f"s_cselect_b32 s{sUns+1}, 1, s{sUns+1}")
    a.stamp(12)
    a.stampc(32)
    a.stamp_flush(0, sW)
    a.c("wave 15 waits until every partition workgroup has counted into R")
    a(f"s_cmp_lg_u32 s{sW}, 15")
    a("s_cbranch_scc1 K1_RDONE")
    a("s_cmp_lt_u32 s2, 128" if TMAP else f"s_cmp_lt_u32 s{sSl}, 2")
    a("s_cbranch_scc1 K1_NG")
    a("s_mov_b64 exec, 1")
    a("s_waitcnt vmcnt(0)")
    a("v_add_u32 v14, v14, v15")
    a("v_and_b32 v15, 0xffff, v14")
    a("v_cmp_eq_u32 vcc, 0x80, v15")
    a("s_cbranch_vccz K1_NG")
    a(f"buffer_store_dword v14, off, s[{SDB}:{SDB+3}], 0 offset:128 sc1")
    a.lab("K1_NG")
    a("s_mov_b64 exec, -1")
    a.lab("K1_RDONE")
    a(f"s_lshl_b32 s{sT0}, s{sW}, 6")
    a(f"v_add_u32 v0, s{sT0}, v{vLane}")
    a("s_branch K2_ENTRY")
    a.lab("K1_END2")
    a("s_endpgm")


CAP = 8192
L_CNT = 0
L_ORD = 2048
L_DH = 4096
L_BST = 4352
L_SB = 4608
L_FLAG = 4864
L_GD = L_FLAG + 4
L_ELL = 5120
L_DUM = L_ELL + CAP * 4
L_EA = L_DUM + 512
NKW = 11
EA_TAIL = NKW * 12 * 64
EA_ZERO = EA_TAIL + NKW * 64
assert L_EA + EA_ZERO * 8 + 8 <= L_AUR
DUMMY = 0xFFFF0000 | EA_ZERO
DUMMY_NODE = 399 * 128
NBATCH = (BN + 15) // 16
NR = 13


def gen_k2(a):
    assert FUSED
    sW, sSl, sBk = 22, 23, 24
    sT0, sT1, sT2, sT3 = 25, 26, 27, 28
    sK = 29
    sSp, sOvf = 30, 31
    SWS, SP, SO, SG = 32, 36, 40, 44
    SDS = 48
    sSave = 54
    sM = 56
    sKK = 56
    sRet = 82
    SA = 84
    SF0, SF1, SF2 = 64, 44, 60
    sTM, sEarly, sOutOff, sK2, sK1 = 88, 90, 91, 92, 93
    sA, sCntS, sNxtA, sNxtCnt, sRem, sN2 = 48, 49, 50, 51, 52, 53
    vLane, vC8, vG8, vRec4, vCo, vS, vSrc, vEa, vT = 1, 2, 3, 4, 5, 6, 7, 8, 9
    NA, N2, EE = 10, 12, 14
    ACC, AC, D = 16, 24, 40
    PP = [56, 72, 88]
    R, WB, vStg = 104, 112, 122
    AD = R
    KEYR, RK, HA = 24, 37, 50
    ET, WR, AU2 = 70, 88, 96
    vDesc = 104
    vL4, vL16, vIdx, v64c = 65, 66, 67, 68
    T = 72
    a.vst = 120

    def auread(n):
        a(f"v_xor_b32 v{vT}, v{n}, v{vC8}")
        a(f"v_xor_b32 v{AD+2}, v{n+1}, v{vC8}")
        a(f"v_add_u32 v{vT}, {L_AUR}, v{vT}")
        a(f"v_add_u32 v{AD+2}, {L_AUR}, v{AD+2}")
        a(f"ds_read_b128 v[{ACC}:{ACC+3}], v{vT}")
        a(f"ds_read_b128 v[{ACC+4}:{ACC+7}], v{AD+2}")

    def sb_arrive(k):
        a("s_waitcnt lgkmcnt(0)")
        a("s_mov_b64 exec, 1")
        a(f"ds_add_u32 v{T+14}, v{T+15} offset:{4*k}")
        a("s_mov_b64 exec, -1")

    def sb_wait(k, n, tag):
        a.lab(f"K2_SBW{tag}")
        a(f"ds_read_b32 v{T+13}, v{T+14} offset:{4*k}")
        a("s_waitcnt lgkmcnt(0)")
        a(f"v_cmp_gt_u32 vcc, {n}, v{T+13}")
        a(f"s_cbranch_vccnz K2_SBW{tag}")

    def batchinfo():
        a(f"s_lshl_b32 s{sT0}, s{sK1}, 6")
        a(f"v_add_u32 v{T}, s{sT0}, v{vG8}")
        a(f"ds_read_b64 v[{NA}:{NA+1}], v{T} offset:{L_ORD}")
        a(f"s_min_u32 s{sT0}, s{sK2}, 25")
        a(f"s_lshl_b32 s{sT0}, s{sT0}, 6")
        a(f"v_add_u32 v{T}, s{sT0}, v{vG8}")
        a(f"ds_read_b64 v[{N2}:{N2+1}], v{T} offset:{L_ORD}")
        a(f"ds_read_b32 v{T+4}, v{vL4} offset:{L_BST}")
        a(f"ds_read_b32 v{T+8}, v123 offset:{L_FLAG}")
        a("s_waitcnt lgkmcnt(0)")
        a(f"v_min_u32 v{T+4}, 0x1ff, v{T+4}")
        a(f"v_lshlrev_b32 v{T+5}, 7, v{T+4}")
        a(f"v_mov_b32 v{T+6}, v{T+5}")
        scan64(a, T + 6)
        a(f"v_readfirstlane_b32 s{sOvf}, v{T+8}")
        a(f"v_sub_u32 v{T+6}, v{T+6}, v{T+5}")
        a(f"v_add_u32 v{T+6}, {L_ELL}, v{T+6}")
        a("s_nop 0")
        a(f"v_readlane_b32 s{sA}, v{T+6}, s{sK1}")
        a(f"v_readlane_b32 s{sRem}, v{T+4}, s{sK1}")
        a(f"v_readlane_b32 s{sNxtA}, v{T+6}, s{sK2}")
        a(f"v_readlane_b32 s{sN2}, v{T+4}, s{sK2}")
        a("s_nop 3")
        a(f"s_sub_u32 s{sRem}, s{sRem}, 1")
        a(f"s_mov_b32 s{sCntS}, s{sRem}")
        a(f"s_sub_u32 s{sNxtCnt}, s{sN2}, 1")
        a(f"s_cmp_eq_u32 s{sN2}, 0")
        a(f"s_cselect_b32 s{sNxtA}, {L_DUM}, s{sNxtA}")
        a(f"s_cselect_b32 s{sNxtCnt}, 100, s{sNxtCnt}")

    def wperm():
        a(f"s_mov_b32 s{sT0}, 0x05040100")
        a(f"s_mov_b32 s{sT1}, 0x07060302")
        for m in range(4):
            sel = sT0 if m % 2 == 0 else sT1
            h = m >> 1
            a(f"v_perm_b32 v{WB+2*m}, v{WR+2+h}, v{WR+h}, s{sel}")
            a(f"v_perm_b32 v{WB+2*m+1}, v{WR+6+h}, v{WR+4+h}, s{sel}")

    def wcloads():
        a(f"s_lshl_b32 s{sT1}, s{sSl}, 6")
        a(f"s_add_u32 s{sT1}, s{sT1}, 65536")
        for k in range(4):
            a(f"buffer_load_dwordx2 v[{WR+2*k}:{WR+1+2*k}], v{vCo}, s[{SG}:{SG+3}], s{sT1} offen offset:{k*256}")

    def unsafe_or():
        a(f"v_mov_b32 v{T+12}, s95")
        a("s_mov_b64 exec, 1")
        a(f"ds_or_b32 v{T+14}, v{T+12} offset:32")
        a("s_mov_b64 exec, -1")

    a.lab("K2_ENTRY")
    a.stamp(0)
    a.stampc(29)
    a(f"v_mov_b32 v{vDesc}, v3") if False else None
    srd(a, SWS, 20, WS_USED)
    a(f"v_lshlrev_b32 v{vL4}, 2, v{vLane}")
    a(f"v_lshlrev_b32 v{vL16}, 4, v{vLane}")
    a(f"v_mov_b32 v{T+14}, {L_GW}")
    a(f"v_mov_b32 v{T+15}, 1")
    a("v_mov_b32 v123, 0")

    def consts():
        srd(a, SG, 16, 260 * 256)
        a(f"s_mul_i32 s{sT0}, s{sSl}, {PS}")
        a(f"s_add_u32 s{SP}, s20, s{sT0}")
        a(f"s_addc_u32 s{SP+1}, s21, 0")
        a(f"s_mov_b32 s{SP+2}, {N*128}")
        a(f"s_mov_b32 s{SP+3}, 0x20000")
        srd(a, SO, 18, N * 256)
        a(f"s_mov_b32 s{sK}, {hex(NL2E)}")
        a(f"v_and_b32 v{vCo}, 7, v{vLane}")
        a(f"v_lshlrev_b32 v{vCo}, 3, v{vCo}")
        a(f"v_lshlrev_b32 v{vC8}, 1, v{vCo}")
        a(f"v_and_b32 v{vG8}, 56, v{vLane}")
        a(f"v_and_b32 v64, 2, v{vLane}")
        a(f"v_lshl_add_u32 v{vRec4}, v64, 1, v{vG8}")
        a(f"v_and_b32 v64, 1, v{vLane}")
        a(f"v_lshl_add_u32 v{vRec4}, v64, 6, v{vRec4}")
        LISTS = [[0, 10, 11, 12, 20, 23], [1, 2, 7, 16, 17, 21], [6, 8, 9, 15, 18, 22, 24], [3, 4, 5, 13, 14, 19]]
        if "oldasg" in OPTS:
            LISTS = [[q, 7-q, 8+q, 15-q, 16+q, 23-q] + ([24] if q == 3 else []) for q in range(4)]
        assert sorted(sum(LISTS, [])) == list(range(NBATCH))
        a(f"s_and_b32 s{sT0}, s{sW}, 3")
        for q in range(4):
            L = LISTS[q] + [31] * (8 - len(LISTS[q]))
            if "ord2" in OPTS:
                X = LISTS[q]
                L = [X[0], X[1], X[2], X[-1], X[3], X[4], X[5] if len(X) > 6 else 31, 31]
            if "ord1" not in OPTS and "ord2" not in OPTS:
                X = LISTS[q]
                L = [X[0], X[2], X[4], X[-1], X[1], X[3], X[5] if len(X) > 6 else 31, 31]
            c1 = sum(L[r] << (8 * r) for r in range(4))
            c2 = sum(L[4 + r] << (8 * r) for r in range(4))
            if q == 0:
                a(f"s_mov_b32 s{sK1}, {hex(c1)}")
                a(f"s_mov_b32 s{sK2}, {hex(c2)}")
            else:
                a(f"s_cmp_eq_u32 s{sT0}, {q}")
                a(f"s_cselect_b32 s{sK1}, {hex(c1)}, s{sK1}")
                a(f"s_cselect_b32 s{sK2}, {hex(c2)}, s{sK2}")
        a(f"s_and_b32 s{sT1}, s{sW}, 12")
        a(f"s_lshl_b32 s{sT1}, s{sT1}, 1")
        a(f"s_lshr_b32 s{sK1}, s{sK1}, s{sT1}")
        a(f"s_lshr_b32 s{sK2}, s{sK2}, s{sT1}")
        a(f"s_and_b32 s{sK1}, s{sK1}, 0xff")
        a(f"s_and_b32 s{sK2}, s{sK2}, 0xff")
        a(f"s_mul_i32 s{sOutOff}, s{sBk}, {BN*256}")
        a(f"s_lshl_b32 s{sT0}, s{sSl}, 6")
        a(f"s_add_u32 s{sOutOff}, s{sOutOff}, s{sT0}")
    a(f"s_cmp_ge_u32 s{sW}, {NKW}")
    a("s_cbranch_scc1 K2_LW")
    a(f"v_lshrrev_b32 v{T}, 4, v{vLane}")
    a(f"v_lshlrev_b32 v{T+1}, 2, v{T}")
    a(f"s_mov_b32 s{sT0}, {CH*4}")
    a(f"v_and_b32 v{T+2}, 15, v{vLane}")
    a(f"v_lshlrev_b32 v{T+3}, 2, v{T+2}")
    a(f"v_lshlrev_b32 v{T+2}, 4, v{T+2}")
    a(f"v_mad_u32_u24 v{T+2}, v{T}, s{sT0}, v{T+2}")
    a(f"s_mov_b32 s{sSp}, 0")
    a(f"s_mov_b32 s{sOvf}, 0")
    a(f"s_mov_b64 s[{sM+24}:{sM+25}], 0")
    a(f"s_mul_i32 s{sT2}, s{sT3}, {CH*4}")
    a(f"s_add_u32 s{sT2}, s{sT2}, {KEY_OFF}")
    a(f"s_mov_b32 s{sT0}, 0x40ffff")
    a("s_waitcnt vmcnt(0)")
    a.stamp(2)
    a(f"v_mov_b32 v{vDesc}, v3")
    for h in range(3):
        a(f"ds_bpermute_b32 v{T+4+h}, v{T+1}, v3 offset:{16*h}")
    a(f"v_cmp_lt_u32 vcc, s{sT0}, v3")
    a(f"s_and_b64 s[{sTM}:{sTM+1}], vcc, s[{sSave}:{sSave+1}]")
    a("s_waitcnt lgkmcnt(0)")
    for h in range(3):
        a(f"v_lshrrev_b32 v{T+7+h}, 16, v{T+4+h}")
        a(f"v_lshlrev_b32_sdwa v{T+4+h}, 2, v{T+4+h} dst_sel:DWORD dst_unused:UNUSED_PAD src0_sel:DWORD src1_sel:WORD_0")
        a(f"v_cmp_gt_u32 s[{sM+8*h}:{sM+8*h+1}], v{T+7+h}, v{T+3}")
        a(f"v_add_u32 v{T+4+h}, v{T+4+h}, v{T+2}")
        a(f"s_or_b64 exec, s[{sM+8*h}:{sM+8*h+1}], 1")
        a(f"buffer_load_dwordx4 v[{KEYR+4*h}:{KEYR+4*h+3}], v{T+4+h}, s[{SWS}:{SWS+3}], s{sT2} offen{LD}")
        a("s_mov_b64 exec, -1")
        if h < 2:
            a(f"s_add_u32 s{sT2}, s{sT2}, {4*CH*4}")
    a(f"s_cmp_lg_u64 s[{sTM}:{sTM+1}], 0")
    a("s_cbranch_scc1 K2_TAIL")
    a.lab("K2_TAILR")
    a(f"v_lshlrev_b32 v{T}, 4, v0")
    for i in range(4):
        a(f"v_mov_b32 v{20+i}, 0")
    a.stamp(3)
    a("s_barrier")
    a.stamp(1)
    a(f"s_cmp_ge_u32 s{sW}, 6")
    a("s_cbranch_scc1 K2_INIT_DONE")
    a(f"s_cmp_eq_u32 s{sW}, 5")
    a("s_cbranch_scc1 K2_INIT_5")
    a(f"s_lshr_b32 s{sT0}, s{sW}, 1")
    a(f"s_cmp_eq_u32 s{sT0}, 1")
    a("s_cbranch_scc0 K2_INIT_Z")
    for i in range(4):
        a(f"v_mov_b32 v{20+i}, {DUMMY_NODE}")
    a.lab("K2_INIT_Z")
    a(f"ds_write_b128 v{T}, v[20:23]")
    a("s_branch K2_INIT_A")
    a.lab("K2_INIT_5")
    a(f"v_mov_b32 v64, {L_EA + EA_ZERO*8}")
    a("ds_write_b64 v64, v[20:21]")
    a.lab("K2_INIT_A")
    sb_arrive(5)
    a.lab("K2_INIT_DONE")
    unsafe_or()
    for c in range(1, 4):
        a(f"v_add_u32 v{T+3}, 1, v{T+3}")
        for h in range(3):
            a(f"v_cmp_gt_u32 s[{sM+8*h+2*c}:{sM+8*h+2*c+1}], v{T+7+h}, v{T+3}")
    a(f"s_lshl_b32 s{sT0}, s{sT3}, 6")
    a(f"v_add_u32 v{vIdx}, s{sT0}, v{vL4}")
    a(f"v_mov_b32 v{v64c}, 64")
    consts()
    wcloads()
    sb_wait(5, 6, "B1")
    a.stamp(4)
    a(f"s_cmp_eq_u32 s{sOvf}, 0")
    a("s_cbranch_scc1 K2_NOOVF")
    a(f"ds_write_b32 v123, v{T+15} offset:{L_FLAG}")
    a.lab("K2_NOOVF")
    a("s_waitcnt vmcnt(4)")
    a.stamp(5)
    for i in range(NR):
        a(f"v_and_b32 v{HA+i}, 0xffff, v{KEYR+i}")
        a(f"s_mov_b64 exec, s[{sM+2*i}:{sM+2*i+1}]")
        a(f"ds_add_rtn_u32 v{RK+i}, v{HA+i}, v{v64c}")
        a("s_mov_b64 exec, -1")
    for i in range(NR):
        if i == NR - 1:
            a(f"s_lshl_b32 s{sT0}, s{sW}, 6")
            a(f"s_add_u32 s{sT0}, s{sT0}, {EA_TAIL}")
            a(f"v_add_u32 v{vIdx}, s{sT0}, v{vLane}")
        a(f"v_mov_b32_sdwa v{KEYR+i}, v{vIdx} dst_sel:WORD_0 dst_unused:UNUSED_PRESERVE src0_sel:DWORD")
        if i < NR - 2:
            a(f"v_add_u32 v{vIdx}, {253 if i % 4 == 3 else 1}, v{vIdx}")
    sb_arrive(0)
    a(f"s_cmp_ge_u32 s{sW}, 7")
    a("s_cbranch_scc1 K2_W5")
    a(f"v_cmp_gt_u32 vcc, {BN}, v0")
    a(f"v_lshlrev_b32 v{T}, 2, v0")
    a(f"v_and_b32 v{T+8}, 7, v0")
    a(f"v_lshlrev_b32 v{T+8}, 4, v{T+8}")
    a(f"v_lshl_add_u32 v{T+8}, v0, 7, v{T+8}")
    a(f"s_mov_b64 s[{sSave}:{sSave+1}], vcc")
    sb_wait(0, NKW, "2")
    a.stamp(6)
    a.c("node phase A")
    a(f"s_mov_b64 exec, s[{sSave}:{sSave+1}]")
    a(f"ds_read_b32 v{T+1}, v{T}")
    a("s_waitcnt lgkmcnt(0)")
    a(f"v_lshrrev_b32 v{T+1}, 6, v{T+1}")
    a(f"v_min_u32 v{T+2}, 63, v{T+1}")
    a(f"v_sub_u32 v{T+2}, 63, v{T+2}")
    a(f"v_lshlrev_b32 v{T+2}, 2, v{T+2}")
    a(f"ds_add_rtn_u32 v{T+3}, v{T+2}, v{T+15} offset:{L_DH}")
    a(f"v_add_u32 v{T+7}, 1, v{T+1}")
    a(f"v_lshrrev_b32 v{T+7}, 1, v{T+7}")
    a(f"v_max_u32 v{T+7}, 1, v{T+7}")
    sb_arrive(1)
    sb_wait(1, 7, "3")
    a.stamp(7)
    a.c("node phase B")
    a(f"ds_read_b32 v{T+5}, v{vL4} offset:{L_DH}")
    a("s_waitcnt lgkmcnt(0)")
    a(f"v_mov_b32 v{T+6}, v{T+5}")
    scan64(a, T + 6)
    a(f"v_sub_u32 v{T+6}, v{T+6}, v{T+5}")
    a("s_nop 0")
    a(f"ds_bpermute_b32 v{T+9}, v{T+2}, v{T+6}")
    a("s_waitcnt lgkmcnt(0)")
    a(f"s_mov_b64 exec, s[{sSave}:{sSave+1}]")
    a(f"v_add_u32 v{T+3}, v{T+3}, v{T+9}")
    a(f"v_lshlrev_b32 v{T+9}, 2, v{T+3}")
    a(f"ds_write_b32 v{T+9}, v{T+8} offset:{L_ORD}")
    a(f"v_lshrrev_b32 v{T+10}, 4, v{T+3}")
    a(f"v_lshlrev_b32 v{T+10}, 2, v{T+10}")
    a(f"ds_max_u32 v{T+10}, v{T+7} offset:{L_BST}")
    a(f"v_and_b32 v{T+9}, 60, v{T+9}")
    sb_arrive(2)
    sb_wait(2, 7, "4")
    a.stamp(8)
    a.c("node phase C")
    a(f"ds_read_b32 v{T+5}, v{vL4} offset:{L_BST}")
    a("s_waitcnt lgkmcnt(0)")
    a(f"v_min_u32 v{T+5}, 0x1ff, v{T+5}")
    a(f"v_lshlrev_b32 v{T+5}, 7, v{T+5}")
    a(f"v_mov_b32 v{T+6}, v{T+5}")
    scan64(a, T + 6)
    a("s_nop 0")
    a(f"v_readlane_b32 s{sT0}, v{T+6}, 63")
    a(f"v_sub_u32 v{T+6}, v{T+6}, v{T+5}")
    a(f"v_add_u32 v{T+6}, {L_ELL}, v{T+6}")
    a("s_nop 1")
    a(f"ds_bpermute_b32 v{T+10}, v{T+10}, v{T+6}")
    a(f"s_cmp_le_u32 s{sT0}, {CAP*4}")
    a("s_cbranch_scc1 K2_NC_OK")
    a(f"ds_write_b32 v123, v{T+15} offset:{L_FLAG}")
    a.lab("K2_NC_OK")
    a("s_waitcnt lgkmcnt(0)")
    a(f"s_mov_b64 exec, s[{sSave}:{sSave+1}]")
    a(f"v_add_u32 v{T+10}, v{T+10}, v{T+9}")
    a(f"ds_write_b32 v{T}, v{T+10}")
    sb_arrive(3)
    a.lab("K2_W5")
    sb_wait(3, 8, "5")
    a.stamp(9)
    a(f"ds_read_b32 v{T+8}, v123 offset:{L_FLAG}")
    for i in range(NR):
        a(f"s_mov_b64 exec, s[{sM+2*i}:{sM+2*i+1}]")
        a(f"ds_read_b32 v{HA+i}, v{HA+i}")
    a("s_mov_b64 exec, -1")
    a("s_waitcnt lgkmcnt(0)")
    a(f"v_cmp_ne_u32 vcc, 0, v{T+8}")
    a("s_cbranch_vccnz K2_NOSC")
    for i in range(NR):
        a(f"v_add_u32 v{HA+i}, v{HA+i}, v{RK+i}")
        a(f"s_mov_b64 exec, s[{sM+2*i}:{sM+2*i+1}]")
        a(f"ds_write_b32 v{HA+i}, v{KEYR+i}")
        a("s_mov_b64 exec, -1")
    a.lab("K2_NOSC")
    batchinfo()
    a(f"s_lshl_b32 s{sT2}, s{sW}, 9")
    a(f"s_add_u32 s{sT2}, s{sT2}, {L_EA + EA_TAIL*8}")
    a(f"v_lshl_add_u32 v63, v{vLane}, 3, s{sT2}")
    a(f"ds_write_b64 v63, v[{ET}:{ET+1}]")
    a.stamp(10)
    a("s_branch K2_FINB")
    a.lab("K2_LW")
    a(f"v_lshrrev_b32 v{T+4}, 5, v{vLane}")
    a(f"v_lshlrev_b32 v{T+5}, 2, v{T+4}")
    a(f"v_and_b32 v{T+6}, 31, v{vLane}")
    a(f"v_lshlrev_b32 v{T+7}, 1, v{T+6}")
    a(f"v_lshlrev_b32 v{T+6}, 4, v{T+6}")
    a(f"s_mov_b32 s{sT0}, {CH*8}")
    a(f"v_mad_u32_u24 v{T+6}, v{T+4}, s{sT0}, v{T+6}")
    a(f"s_lshl_b32 s{sT0}, s{sT3}, 9")
    a(f"v_add_u32 v{T+8}, s{sT0}, v{vL16}")
    a("s_waitcnt vmcnt(0)")
    a(f"v_mov_b32 v{vDesc}, v3")
    consts()
    wcloads()
    a(f"s_mul_i32 s{sT2}, s{sT3}, {CH*8}")
    a(f"s_add_u32 s{sT2}, s{sT2}, {EAT_OFF}")
    a.stamp(2)
    a(f"s_cmp_eq_u32 s{sW}, 15")
    a("s_cbranch_scc1 K2_SW")
    BP = 105
    for q in range(8):
        a(f"ds_bpermute_b32 v{BP+q}, v{T+5}, v{vDesc} offset:{8*q}")
    a("s_waitcnt lgkmcnt(0)")
    a("s_barrier")
    a.stamp(1)
    LWD = [16, 20, 24, 28, 32, 36, 40, 44, 48, 52, 56, 60, 96, 100, 6, 10]
    a(f"s_lshl_b32 s{sT0}, s{sT3}, 9")
    a(f"s_add_u32 s{sT0}, s{sT0}, {L_EA}")
    for q in range(16):
        b = BP + (q % 8)
        a(f"v_lshrrev_b32 v{T+9}, 16, v{b}")
        a(f"v_lshlrev_b32_sdwa v{T+10}, 3, v{b} dst_sel:DWORD dst_unused:UNUSED_PAD src0_sel:DWORD src1_sel:WORD_0")
        a(f"v_cmp_gt_u32 vcc, v{T+9}, v{T+7}")
        a(f"v_add_u32 v{T+10}, v{T+10}, v{T+6}")
        if q < 8:
            a(f"ds_bpermute_b32 v{b}, v{T+5}, v{vDesc} offset:{8*(q+8)}")
        a("s_or_b64 exec, vcc, 1")
        if "eadma" in OPTS:
            a(f"s_mov_b32 m0, s{sT0}")
            a(f"s_add_u32 s{sT0}, s{sT0}, 1024")
            a(f"buffer_load_dwordx4 v{T+10}, s[{SWS}:{SWS+3}], s{sT2} offen{LD} lds")
        else:
            a(f"buffer_load_dwordx4 v[{LWD[q]}:{LWD[q]+3}], v{T+10}, s[{SWS}:{SWS+3}], s{sT2} offen{LD}")
        a("s_mov_b64 exec, -1")
        if q < 15:
            a(f"s_add_u32 s{sT2}, s{sT2}, {2*CH*8}")
        if q == 7:
            a("s_waitcnt lgkmcnt(0)")
    a.stamp(5)
    unsafe_or()
    for q in range(16 if "eadma" not in OPTS else 0):
        a(f"s_waitcnt vmcnt({15-q})")
        if TCH and q == TCH[1]:
            sb_arrive(6)
        a(f"ds_write_b128 v{T+8}, v[{LWD[q]}:{LWD[q]+3}] offset:{L_EA + q*1024}")
    if TCH:
        pass
    a.stamp(10)
    a("s_branch K2_FINB")
    a.lab("K2_SW")
    a("s_waitcnt lgkmcnt(0)")
    for i in range(4):
        a(f"v_mov_b32 v{16+i}, {hex(DUMMY)}")
    a("s_barrier")
    a.stamp(1)
    for i in range(33):
        if i == 32:
            a("s_bfm_b64 exec, 32, 0")
        a(f"ds_write_b128 v{vL16}, v[16:19] offset:{L_ELL + i*1024}")
    sb_arrive(3)
    poll(a, "G", 53, 128, None, SLP)
    a(f"v_readfirstlane_b32 s{sT0}, v53")
    a("s_nop 3")
    a(f"s_lshr_b32 s{sT0}, s{sT0}, 16")
    a(f"s_or_b32 s95, s95, s{sT0}")
    unsafe_or()
    if TCH:
        a.c("warm this XCD's L2 with part of the P slice once most of the e_attr records have arrived")
        sb_wait(6, 4, "LI")
        a(f"s_lshr_b32 s{sT0}, s2, 3")
        a(f"s_mul_i32 s{sT0}, s{sT0}, {782*128}")
        a(f"v_lshlrev_b32 v52, 7, v{vLane}")
        for i in range(TCH[0]):
            a(f"buffer_load_dword v{24+i}, v52, s[{SP}:{SP+3}], s{sT0} offen{LD}")
            a(f"s_add_u32 s{sT0}, s{sT0}, 8192")
        a(f"s_waitcnt vmcnt({TCH[0]})")
        a("s_branch K2_FINC")
    a.stamp(10)
    a.lab("K2_FINB")
    a("s_mov_b64 exec, -1")
    a.c("Wc magnitude check (|w| < 2)")
    a("s_waitcnt vmcnt(0)")
    a.lab("K2_FINC")
    a(f"v_or3_b32 v{T}, v{WR}, v{WR+1}, v{WR+2}")
    a(f"v_or3_b32 v{T+1}, v{WR+3}, v{WR+4}, v{WR+5}")
    a(f"v_or3_b32 v{T}, v{WR+6}, v{WR+7}, v{T}")
    a(f"v_or_b32 v{T}, v{T}, v{T+1}")
    a(f"v_and_b32 v{T}, 0x40004000, v{T}")
    a(f"v_cmp_ne_u32 vcc, 0, v{T}")
    a("s_cbranch_vccz K2_WOK")
    a(f"ds_or_b32 v{T+14}, v{T+15} offset:32")
    a.lab("K2_WOK")
    wperm()
    a("s_waitcnt lgkmcnt(0)")
    a.stamp(12)
    a("s_barrier")
    a(f"s_cmp_lt_u32 s{sW}, {NKW}")
    a("s_cbranch_scc1 K2_HAVEBI")
    batchinfo()
    a.lab("K2_HAVEBI")
    a(f"s_cmp_lg_u32 s{sOvf}, 0")
    a("s_cbranch_scc1 K2_FALLBACK")
    a(f"s_mov_b32 s{sKK}, {hex(NL2E)}")
    a(f"s_mov_b32 s{sKK+1}, {hex(NL2E)}")
    a(f"ds_read_b32 v{D+2}, v{T+14} offset:32")
    auread(NA)
    a.stamp(13)
    a.stampc(30)

    sw_sites = []

    def advance(tag):
        a(f"s_add_u32 s{sA}, s{sA}, 128")
        a(f"s_sub_u32 s{sCntS}, s{sCntS}, 1")
        a(f"s_cbranch_scc1 K2_SW{tag}")
        a.lab(f"K2_SWR{tag}")
        sw_sites.append(tag)

    def gathers(P):
        for j in range(4):
            a(f"v_add_u32_dpp v{AD+j}, v{vSrc}, v{vC8} quad_perm:[{j},{j},{j},{j}] row_mask:0xf bank_mask:0xf")
        for j in range(4):
            a(f"buffer_load_dwordx4 v[{P+4*j}:{P+4*j+3}], v{AD+j}, s[{SP}:{SP+3}], 0 offen{G_LD}")

    def split(S):
        a(f"v_lshlrev_b32_sdwa v{vSrc}, 7, v{S} dst_sel:DWORD dst_unused:UNUSED_PAD src0_sel:DWORD src1_sel:WORD_1")
        a(f"v_lshlrev_b32_sdwa v{vEa}, 3, v{S} dst_sel:DWORD dst_unused:UNUSED_PAD src0_sel:DWORD src1_sel:WORD_0")

    def setup_ac():
        for m in range(4):
            a(f"v_cvt_f32_f16 v{AC+4*m}, v{ACC+m}")
            a(f"v_cvt_f32_f16 v{AC+4*m+2}, v{ACC+4+m}")
        for m in range(4):
            a(f"v_mov_b32 v{AC+4*m+1}, v{AC+4*m}")
            a(f"v_mov_b32 v{AC+4*m+3}, v{AC+4*m+2}")

    def compute(P):
        for m in range(4):
            for j in range(4):
                a(f"v_fma_mix_f32 v{D+4*m+j}, v{D+4*m+j}, s{sK}, v{P+4*j+m} op_sel_hi:[0,0,1]")
        for i in range(16):
            a(f"v_exp_f32 v{D+i}, v{D+i}")
        for i in range(8):
            a(f"v_pk_add_f32 v[{D+2*i}:{D+2*i+1}], v[{D+2*i}:{D+2*i+1}], 1.0 op_sel_hi:[1,0]")
        for j in range(4):
            r = R + 4 * (j & 1)
            for m in range(4):
                a(f"v_rcp_f32 v{r+m}, v{D+4*m+j}")
            acc = ACC + 4 * (j >> 1)
            a(f"v_pk_fma_f32 v[{acc}:{acc+1}], v[{P+4*j}:{P+4*j+1}], v[{r}:{r+1}], v[{acc}:{acc+1}]")
            a(f"v_pk_fma_f32 v[{acc+2}:{acc+3}], v[{P+4*j+2}:{P+4*j+3}], v[{r+2}:{r+3}], v[{acc+2}:{acc+3}]")

    def pk(op, d, *src, mod=""):
        a(f"v_pk_{op}_f32 v[{d}:{d+1}], " + ", ".join(x if isinstance(x, str) else f"v[{x}:{x+1}]" for x in src) + mod)

    def compute_fast(P):
        for j in range(4):
            for m in range(4):
                a(f"v_fma_mix_f32 v{D+4*m+j}, v{D+4*m+j}, s{sK}, v{P+4*j+m} op_sel_hi:[0,0,1]")

        def exps(j0):
            for m in range(4):
                a(f"v_exp_f32 v{R+m}, v{D+4*m+j0}")
            for m in range(4):
                a(f"v_exp_f32 v{R+4+m}, v{D+4*m+j0+1}")

        def mid(j0):
            H1, H2 = P + 4 * j0, P + 4 * j0 + 4
            N, Q = (D + j0, D + 4 + j0), (D + 8 + j0, D + 12 + j0)
            for h in range(2):
                pk("add", R + 2 * h, R + 2 * h, "1.0", mod=" op_sel_hi:[1,0]")
            for h in range(2):
                pk("fma", N[h], H2 + 2 * h, R + 2 * h, H1 + 2 * h)
            for h in range(2):
                pk("fma", Q[h], R + 2 * h, R + 4 + 2 * h, R + 2 * h)
            for h in range(2):
                pk("fma", N[h], H1 + 2 * h, R + 4 + 2 * h, N[h])

        def rcps(j0):
            for q in (D + 8 + j0, D + 9 + j0, D + 12 + j0, D + 13 + j0):
                a(f"v_rcp_f32 v{q}, v{q}")

        def fin(j0):
            acc = ACC + 2 * j0
            pk("fma", acc, D + j0, D + 8 + j0, acc)
            pk("fma", acc + 2, D + 4 + j0, D + 12 + j0, acc + 2)
        exps(0)
        mid(0)
        exps(2)
        rcps(0)
        mid(2)
        fin(0)
        rcps(2)
        a("s_nop 0")
        fin(2)

    DP2 = "dp3" not in OPTS
    QUAD = DP2 and "noquad" not in OPTS
    if DP2:
        a(f"v_add_u32 v{vT}, s{sA}, v{vRec4}")
        a(f"ds_read_b32 v{D}, v{vT}")
        advance("F0")
        a(f"v_add_u32 v{vT}, s{sA}, v{vRec4}")
        a(f"ds_read_b32 v{vS}, v{vT}")
        a("s_waitcnt lgkmcnt(1)")
        split(D)
        a("s_nop 0")
        a(f"ds_read_b64 v[{EE}:{EE+1}], v{vEa} offset:{L_EA}")
        gathers(PP[0])
        setup_ac()

        def loop(sfx, comp):
            a.lab(f"K2_LOOP{sfx}")
            for ph in range(2):
                a("s_waitcnt lgkmcnt(0)")
                for m in range(4):
                    a(f"v_mfma_f32_4x4x4_16b_bf16 v[{D+4*m}:{D+4*m+3}], v[{EE}:{EE+1}], v[{WB+2*m}:{WB+2*m+1}], v[{AC+4*m}:{AC+4*m+3}]")
                split(vS)
                advance(f"L{sfx}{ph}")
                a(f"ds_read_b64 v[{EE}:{EE+1}], v{vEa} offset:{L_EA}")
                gathers(PP[ph ^ 1])
                a(f"v_add_u32 v{vT}, s{sA}, v{vRec4}")
                a(f"ds_read_b32 v{vS}, v{vT}")
                a("s_waitcnt vmcnt(4)")
                comp(PP[ph])
                a(f"s_sub_u32 s{sRem}, s{sRem}, 1")
                if ph < 1:
                    a(f"s_cbranch_scc0 K2_C{sfx}{ph}")
                    a(f"s_call_b64 s[{sRet}:{sRet+1}], K2_EPI")
                    a.lab(f"K2_C{sfx}{ph}")
                else:
                    a(f"s_cbranch_scc0 K2_LOOP{sfx}")
                    a(f"s_call_b64 s[{sRet}:{sRet+1}], K2_EPI")
                    a(f"s_branch K2_LOOP{sfx}")
    else:
        a(f"v_add_u32 v{vT}, s{sA}, v{vRec4}")
        a(f"ds_read_b32 v{D}, v{vT}")
        advance("F0")
        a(f"v_add_u32 v{vT}, s{sA}, v{vRec4}")
        a(f"ds_read_b32 v{D+1}, v{vT}")
        advance("F1")
        a(f"v_add_u32 v{vT}, s{sA}, v{vRec4}")
        a(f"ds_read_b32 v{vS}, v{vT}")
        a("s_waitcnt lgkmcnt(2)")
        split(D)
        a("s_nop 0")
        a(f"ds_read_b64 v[{EE}:{EE+1}], v{vEa} offset:{L_EA}")
        gathers(PP[0])
        a("s_waitcnt lgkmcnt(2)")
        split(D + 1)
        a("s_nop 1")
        gathers(PP[1])
        setup_ac()
        def loop(sfx, comp):
            for o in OPTS:
                if o.startswith("al="):
                    a(f".p2align {o[3:]}")
                if o.startswith("pad="):
                    for _ in range(int(o[4:])):
                        a("s_nop 0")
            a.lab(f"K2_LOOP{sfx}")
            for ph in range(3):
                a("s_waitcnt lgkmcnt(0)")
                for m in range(4):
                    a(f"v_mfma_f32_4x4x4_16b_bf16 v[{D+4*m}:{D+4*m+3}], v[{EE}:{EE+1}], v[{WB+2*m}:{WB+2*m+1}], v[{AC+4*m}:{AC+4*m+3}]")
                a(f"ds_read_b64 v[{EE}:{EE+1}], v{vEa} offset:{L_EA}")
                split(vS)
                advance(f"L{sfx}{ph}")
                gathers(PP[(ph + 2) % 3])
                a(f"v_add_u32 v{vT}, s{sA}, v{vRec4}")
                a(f"ds_read_b32 v{vS}, v{vT}")
                a("s_waitcnt vmcnt(8)")
                comp(PP[ph])
                a(f"s_sub_u32 s{sRem}, s{sRem}, 1")
                if ph < 2:
                    a(f"s_cbranch_scc0 K2_C{sfx}{ph}")
                    a(f"s_call_b64 s[{sRet}:{sRet+1}], K2_EPI")
                    a.lab(f"K2_C{sfx}{ph}")
                else:
                    a(f"s_cbranch_scc0 K2_LOOP{sfx}")
                    a(f"s_call_b64 s[{sRet}:{sRet+1}], K2_EPI")
                    a(f"s_branch K2_LOOP{sfx}")
    X = PP[2]

    def quad(P, second):
        for j in range(4):
            for m in range(4):
                a(f"v_fma_mix_f32 v{D+4*m+j}, v{D+4*m+j}, s{sK}, v{P+4*j+m} op_sel_hi:[0,0,1]")

        def exps(j0):
            for m in range(4):
                a(f"v_exp_f32 v{R+m}, v{D+4*m+j0}")
            for m in range(4):
                a(f"v_exp_f32 v{R+4+m}, v{D+4*m+j0+1}")

        def regs(j0):
            n1, q1 = (X + 4 * j0, X + 4 * j0 + 2), (X + 4 * j0 + 4, X + 4 * j0 + 6)
            n2, q2 = (D + j0, D + 4 + j0), (D + 8 + j0, D + 12 + j0)
            return n1, q1, n2, q2

        def mid(j0):
            H1, H2 = P + 4 * j0, P + 4 * j0 + 4
            n1, q1, n2, q2 = regs(j0)
            N, Q = (n2, q2) if second else (n1, q1)
            for h in range(2):
                pk("add", R + 2 * h, R + 2 * h, "1.0", mod=" op_sel_hi:[1,0]")
            for h in range(2):
                pk("fma", N[h], H2 + 2 * h, R + 2 * h, H1 + 2 * h)
            for h in range(2):
                pk("fma", Q[h], R + 2 * h, R + 4 + 2 * h, R + 2 * h)
            for h in range(2):
                pk("fma", N[h], H1 + 2 * h, R + 4 + 2 * h, N[h])

        def comb(j0):
            n1, q1, n2, q2 = regs(j0)
            for h in range(2):
                pk("mul", n1[h], n1[h], q2[h])
            for h in range(2):
                pk("mul", q2[h], q2[h], q1[h])
            for h in range(2):
                pk("fma", n1[h], n2[h], q1[h], n1[h])

        def rcps(j0):
            for q in (D + 8 + j0, D + 9 + j0, D + 12 + j0, D + 13 + j0):
                a(f"v_rcp_f32 v{q}, v{q}")

        def fin(j0):
            n1, q1, n2, q2 = regs(j0)
            acc = ACC + 2 * j0
            pk("fma", acc, n1[0], q2[0], acc)
            pk("fma", acc + 2, n1[1], q2[1], acc + 2)
        exps(0)
        mid(0)
        if second:
            comb(0)
        exps(2)
        if second:
            rcps(0)
        mid(2)
        if second:
            comb(2)
            fin(0)
            rcps(2)
            a("s_nop 0")
            fin(2)

    def qloop(name, other, ph0):
        a.lab(name)
        for k in range(2):
            ph = ph0 ^ k
            a("s_waitcnt lgkmcnt(0)")
            for m in range(4):
                a(f"v_mfma_f32_4x4x4_16b_bf16 v[{D+4*m}:{D+4*m+3}], v[{EE}:{EE+1}], v[{WB+2*m}:{WB+2*m+1}], v[{AC+4*m}:{AC+4*m+3}]")
            split(vS)
            advance(f"{name}{k}")
            a(f"ds_read_b64 v[{EE}:{EE+1}], v{vEa} offset:{L_EA}")
            gathers(PP[ph ^ 1])
            a(f"v_add_u32 v{vT}, s{sA}, v{vRec4}")
            a(f"ds_read_b32 v{vS}, v{vT}")
            a("s_waitcnt vmcnt(4)")
            quad(PP[ph], k == 1)
            a(f"s_sub_u32 s{sRem}, s{sRem}, 1")
            if k == 0:
                a(f"s_cbranch_scc0 {name}_C")
                a(f"s_call_b64 s[{sRet}:{sRet+1}], K2_EPIQ")
                a(f"s_branch {other}")
                a.lab(f"{name}_C")
            else:
                a(f"s_cbranch_scc0 {name}")
                a(f"s_call_b64 s[{sRet}:{sRet+1}], K2_EPI")
                a(f"s_branch {name}")
    a(f"v_cmp_ne_u32 vcc, 0, v{D+2}")
    if "safeonly" in OPTS:
        a("s_branch K2_LOOPS")
    a("s_cbranch_vccnz K2_LOOPS")
    if QUAD:
        qloop("K2_QX", "K2_QY", 0)
        qloop("K2_QY", "K2_QX", 1)
    else:
        loop("F", compute_fast)
    loop("S", compute)

    def epilogue(acc, tmp, nregs):
        for i in range(0, nregs, 2):
            a(f"v_pk_mul_f32 v[{tmp+i}:{tmp+i+1}], v[{acc+i}:{acc+i+1}], s[{sKK}:{sKK+1}]")
        for i in range(nregs):
            a(f"v_exp_f32 v{tmp+i}, v{tmp+i}")
        a("s_nop 0")
        for i in range(0, nregs, 2):
            a(f"v_pk_add_f32 v[{tmp+i}:{tmp+i+1}], v[{tmp+i}:{tmp+i+1}], 1.0 op_sel_hi:[1,0]")
        for i in range(nregs):
            a(f"v_rcp_f32 v{tmp+i}, v{tmp+i}")
        a("s_nop 0")
        for i in range(0, nregs, 2):
            a(f"v_pk_mul_f32 v[{tmp+i}:{tmp+i+1}], v[{tmp+i}:{tmp+i+1}], v[{acc+i}:{acc+i+1}]")
        for i in range(0, nregs, 2):
            a(f"v_cvt_pk_bf16_f32 v{tmp+i//2}, v{tmp+i}, v{tmp+i+1}")

    if QUAD:
        a.lab("K2_EPIQ")
        for j0 in (0, 2):
            for r in range(4):
                a(f"v_rcp_f32 v{X+4*j0+4+r}, v{X+4*j0+4+r}")
        for j0 in (0, 2):
            pk("fma", ACC + 2 * j0, X + 4 * j0, X + 4 * j0 + 4, ACC + 2 * j0)
            if j0 == 2:
                pass
            pk("fma", ACC + 2 * j0 + 2, X + 4 * j0 + 2, X + 4 * j0 + 6, ACC + 2 * j0 + 2)
    a.lab("K2_EPI")
    epilogue(ACC, D, 8)
    auread(N2)
    a(f"v_lshrrev_b32 v{AD}, 7, v{NA}")
    a(f"v_lshrrev_b32 v{AD+1}, 7, v{NA+1}")
    a(f"v_lshl_add_u32 v{AD}, v{AD}, 8, v{vCo}")
    a(f"v_lshl_add_u32 v{AD+1}, v{AD+1}, 8, v{vCo}")
    a(f"v_cmp_gt_u32 vcc, {BN*128}, v{NA}")
    a("s_mov_b64 exec, vcc")
    a(f"buffer_store_dwordx2 v[{D}:{D+1}], v{AD}, s[{SO}:{SO+3}], s{sOutOff} offen{K2_ST}")
    a("s_mov_b64 exec, -1")
    a(f"v_cmp_gt_u32 vcc, {BN*128}, v{NA+1}")
    a("s_mov_b64 exec, vcc")
    a(f"buffer_store_dwordx2 v[{D+2}:{D+3}], v{AD+1}, s[{SO}:{SO+3}], s{sOutOff} offen{K2_ST}")
    a("s_mov_b64 exec, -1")
    a(f"s_cmp_eq_u32 s{sN2}, 0")
    a("s_cbranch_scc1 K2_FIN")
    a.stamp(14)
    a(f"s_sub_u32 s{sRem}, s{sN2}, 1")
    a(f"s_mov_b32 s{sN2}, 0")
    a(f"v_mov_b32 v{NA}, v{N2}")
    a(f"v_mov_b32 v{NA+1}, v{N2+1}")
    a("s_waitcnt lgkmcnt(0)")
    setup_ac()
    a(f"s_setpc_b64 s[{sRet}:{sRet+1}]")
    a.lab("K2_FIN")
    a.stamp(15)
    a.stampc(31)
    a.stamp_flush(1, sW)
    a("s_endpgm")

    for tag in sw_sites:
        a.lab(f"K2_SW{tag}")
        a(f"s_mov_b32 s{sA}, s{sNxtA}")
        a(f"s_mov_b32 s{sCntS}, s{sNxtCnt}")
        a(f"s_mov_b32 s{sNxtA}, {L_DUM}")
        a(f"s_mov_b32 s{sNxtCnt}, 100")
        a(f"s_branch K2_SWR{tag}")

    a.lab("K2_TAIL")
    a(f"v_lshlrev_b32 v64, 3, v{vLane}")
    a.lab("K2_TAIL_LOOP")
    a(f"s_ff1_i32_b64 s{sT0}, s[{sTM}:{sTM+1}]")
    a(f"s_bitset0_b64 s[{sTM}:{sTM+1}], s{sT0}")
    a(f"v_readlane_b32 s{sT1}, v{vDesc}, s{sT0}")
    a(f"s_add_u32 s{sT0}, s{sT0}, s{sT3}")
    a(f"s_mul_i32 s{sT0}, s{sT0}, {CH}")
    a(f"s_and_b32 s{sT2}, s{sT1}, 0xffff")
    a(f"s_add_u32 s{sT0}, s{sT0}, s{sT2}")
    a(f"s_add_u32 s{sT0}, s{sT0}, 64")
    a(f"s_sub_u32 s{sT0}, s{sT0}, s{sSp}")
    a(f"s_lshr_b32 s{sT1}, s{sT1}, 16")
    a(f"s_sub_u32 s{sT1}, s{sT1}, 64")
    a(f"s_add_u32 s{sT2}, s{sSp}, s{sT1}")
    a(f"s_cmp_gt_u32 s{sT2}, 63")
    a("s_cbranch_scc1 K2_TAILF")
    a(f"s_bfm_b64 s[{sSave}:{sSave+1}], s{sT1}, s{sSp}")
    a(f"s_or_b64 s[{sM+24}:{sM+25}], s[{sM+24}:{sM+25}], s[{sSave}:{sSave+1}]")
    a(f"s_mov_b32 s{sSp}, s{sT2}")
    a(f"s_lshl_b32 s{sT1}, s{sT0}, 2")
    a(f"s_add_u32 s{sT1}, s{sT1}, {KEY_OFF}")
    a(f"s_lshl_b32 s{sT2}, s{sT0}, 3")
    a(f"s_add_u32 s{sT2}, s{sT2}, {EAT_OFF}")
    a(f"s_mov_b64 exec, s[{sSave}:{sSave+1}]")
    a(f"buffer_load_dword v{KEYR+12}, v{vL4}, s[{SWS}:{SWS+3}], s{sT1} offen{LD}")
    a(f"buffer_load_dwordx2 v[{ET}:{ET+1}], v64, s[{SWS}:{SWS+3}], s{sT2} offen{LD}")
    a("s_mov_b64 exec, -1")
    a(f"s_cmp_lg_u64 s[{sTM}:{sTM+1}], 0")
    a("s_cbranch_scc1 K2_TAIL_LOOP")
    a("s_branch K2_TAILR")
    a.lab("K2_TAILF")
    a(f"s_mov_b32 s{sOvf}, 1")
    a("s_branch K2_TAILR")

    L_AGG = L_EA
    a.lab("K2_FALLBACK")
    a("s_waitcnt vmcnt(0) lgkmcnt(0)")
    a(f"s_mov_b32 s{sKK}, {hex(NL2E)}")
    a(f"s_mov_b32 s{sKK+1}, {hex(NL2E)}")
    a("s_barrier")
    a("v_lshlrev_b32 v51, 4, v0")
    a(f"v_add_u32 v51, {L_AGG}, v51")
    for i in range(4):
        a(f"v_mov_b32 v{56+i}, 0")
    for i in range(4):
        a(f"ds_write_b128 v51, v[56:59] offset:{i*16384}")
    a("s_waitcnt lgkmcnt(0)")
    a("s_barrier")
    srd(a, SF0, 10, E * 4)
    srd(a, SF1, 8, E * 4)
    srd(a, SF2, 6, E * 8)
    a(f"s_mul_i32 s{sT3}, s{sBk}, {BN}")
    a(f"s_mul_i32 s{sT2}, s{sBk}, {BN*128}")
    a(f"s_lshl_b32 s{sT0}, s{sW}, 5")
    a(f"v_lshrrev_b32 v51, 1, v{vG8}")
    a.lab("K2_FB_LOOP")
    a(f"s_lshl_b32 s{sT1}, s{sT0}, 1")
    a(f"buffer_load_dword v52, v51, s[{SF0}:{SF0+3}], s{sT0} offen")
    a(f"buffer_load_dword v53, v51, s[{SF1}:{SF1+3}], s{sT0} offen")
    a(f"buffer_load_dwordx2 v[54:55], v{vG8}, s[{SF2}:{SF2+3}], s{sT1} offen")
    a("s_waitcnt vmcnt(0)")
    a(f"v_subrev_u32 v52, s{sT3}, v52")
    a(f"v_cmp_gt_u32 vcc, {BN}, v52")
    a("s_mov_b64 exec, vcc")
    a("s_cbranch_execz K2_FB_NEXT")
    a(f"v_lshl_add_u32 v53, v53, 7, v{vC8}")
    a("v_and_b32 v56, 7, v52")
    a("v_lshlrev_b32 v56, 4, v56")
    a(f"v_lshl_add_u32 v52, v52, 7, v{vC8}")
    a("v_xor_b32 v56, v56, v52")
    a(f"v_add_u32 v56, {L_AUR}, v56")
    a(f"buffer_load_dwordx4 v[16:19], v53, s[{SP}:{SP+3}], 0 offen{LD}")
    a("ds_read_b128 v[20:23], v56")
    a(f"v_add_u32 v52, {L_AGG}, v52")
    a("s_waitcnt vmcnt(0) lgkmcnt(0)")
    for m in range(4):
        a(f"v_cvt_f32_f16 v{20+m}, v{20+m}")
    for m in range(4):
        a(f"v_dot2_f32_bf16 v{20+m}, v54, v{WB+2*m}, v{20+m}")
    for m in range(4):
        a(f"v_dot2_f32_bf16 v{20+m}, v55, v{WB+2*m+1}, v{20+m}")
    a("s_nop 3")
    for m in range(4):
        a(f"v_fma_mix_f32 v{20+m}, v{20+m}, s{sK}, v{16+m} op_sel_hi:[0,0,1]")
    for m in range(4):
        a(f"v_exp_f32 v{20+m}, v{20+m}")
    a("s_nop 0")
    for m in range(4):
        a(f"v_add_f32 v{20+m}, 1.0, v{20+m}")
    for m in range(4):
        a(f"v_rcp_f32 v{20+m}, v{20+m}")
    a("s_nop 0")
    for m in range(4):
        a(f"v_mul_f32 v{20+m}, v{20+m}, v{16+m}")
    for m in range(4):
        a(f"ds_add_f32 v52, v{20+m} offset:{4*m}")
    a.lab("K2_FB_NEXT")
    a("s_mov_b64 exec, -1")
    a(f"s_add_u32 s{sT0}, s{sT0}, 512")
    a(f"s_cmp_lt_u32 s{sT0}, {E*4}")
    a("s_cbranch_scc1 K2_FB_LOOP")
    a("s_waitcnt lgkmcnt(0)")
    a("s_barrier")
    a(f"s_lshl_b32 s{sT0}, s{sW}, 10")
    a(f"v_lshlrev_b32 v51, 4, v{vG8}")
    a.lab("K2_FB_OUT")
    a(f"v_add_u32 v52, s{sT0}, v51")
    a(f"v_add_u32 v53, v52, v{vC8}")
    a(f"v_lshlrev_b32 v56, 1, v{vG8}")
    a("v_xor_b32 v56, v56, v53")
    a(f"v_min_u32 v56, {399*128+112}, v56")
    a(f"v_add_u32 v56, {L_AUR}, v56")
    a("ds_read_b128 v[16:19], v56")
    a(f"v_add_u32 v53, {L_AGG}, v53")
    a("ds_read_b128 v[20:23], v53")
    a("s_waitcnt vmcnt(0) lgkmcnt(0)")
    for m in range(4):
        a(f"v_add_f32 v{16+m}, v{16+m}, v{20+m}")
    epilogue(16, 24, 4)
    a(f"v_lshl_add_u32 v53, v52, 1, v{vCo}")
    a(f"v_cmp_gt_u32 vcc, {BN*128}, v52")
    a("s_mov_b64 exec, vcc")
    a(f"buffer_store_dwordx2 v[24:25], v53, s[{SO}:{SO+3}], s{sOutOff} offen{K2_ST}")
    a("s_mov_b64 exec, -1")
    a(f"s_add_u32 s{sT0}, s{sT0}, 16384")
    a(f"s_cmp_lt_u32 s{sT0}, {BN*128}")
    a("s_cbranch_scc1 K2_FB_OUT")
    a.lab("K2_END")
    a("s_endpgm")


def kd(name, vgpr, sgpr, extra=""):
    acc = (vgpr + 3) // 4 * 4
    return f""".amdhsa_kernel {name}
  .amdhsa_next_free_vgpr {vgpr}
  .amdhsa_next_free_sgpr {sgpr}
  .amdhsa_accum_offset {acc}
  .amdhsa_group_segment_fixed_size 0
  .amdhsa_kernarg_size 80
  .amdhsa_user_sgpr_count 2
  .amdhsa_user_sgpr_kernarg_segment_ptr 1
  .amdhsa_system_sgpr_workgroup_id_x 1
{extra}.end_amdhsa_kernel
"""


def main():
    out = HEADER
    if FUSED:
        out += f"; @launch grid=(256,1,1) block=(1024,1,1) lds={K1_LDS}\n"
    else:
        out += f"; @launch kernel=k1_kernel grid=(256,1,1) block=(1024,1,1) lds={K1_LDS}\n"
        out += f"; @launch kernel=k2_kernel grid=(256,1,1) block=(1024,1,1) lds={K2_LDS}\n"
    out += '.amdgcn_target "amdgcn-amd-amdhsa--gfx950"\n.text\n'
    for name, g in ((KNAME if FUSED else "k1_kernel", gen_k1), ("k2_kernel", gen_k2)):
        a = A()
        g(a)
        if not (FUSED and g is gen_k2):
            out += f".globl {name}\n.p2align 8\n.type {name},@function\n"
        out += "\n".join(a.l) + "\n"
    out += '.section .rodata,"a"\n.p2align 6\n'
    out += kd(KNAME if FUSED else "k1_kernel", 128, 102, "  .amdhsa_fp16_overflow 1\n")
    if not FUSED:
        out += ".p2align 6\n"
        out += kd("k2_kernel", 128, 102)
    path = sys.argv[1] if len(sys.argv) > 1 else "gather_scatter__edge_featured_mpnn_egc__graph.s"
    open(path, "w").write(out)


if __name__ == "__main__":
    main()
```

```python
import sys

N = 25000
E = 400000
NB = 64
BN = 391
CH = 3200
NCH = 125
PS = 25040 * 128
P_OFF = 0
AU_OFF = 0x1000000
KEY_OFF = 0x2000000
EAT_OFF = 0x2200000
DESC_OFF = 0x2800000
GCNT_OFF = 0x2810000
WS_USED = 0x2900000
NL2E = 0xBFB8AA3B
MAGIC = 85817

OPTS = set(sys.argv[2:])
STAMPS = "stamps" in OPTS
STAMP_OFF = 0x3000000
K1_ST = ""
K2_ST = " nt"
NT_E = "" if "noent" in OPTS else " nt"
NT_X = " nt" if "xnt" in OPTS else ""
FUSED = "split" not in OPTS
K1_ST = " sc1"
P_ST = " sc1 nt" if "pnt" in OPTS else (" sc0 sc1" if "p01" in OPTS else " sc1")
G_LD = "" if "gplain" in OPTS else " sc1"
LD = " sc1" if FUSED else ""
KNAME = "gather_scatter__edge_featured_mpnn_egc__graph_kernel"
SDB = 96
TCH = [tuple(int(x) for x in o[4:].split(",")) for o in OPTS if o.startswith("tch=")]
TCH = TCH[0] if TCH else None
TMAP = "notmap" not in OPTS
SLP = 1 if "slp1" in OPTS else 4
for o in OPTS:
    if o.startswith("k1st="):
        K1_ST = " " + o[5:].replace("+", " ")
    if o.startswith("k2st="):
        K2_ST = " " + o[5:].replace("+", " ")

HEADER = """; Kernarg layout for this problem (80 bytes, ptrs only, base s[0:1]):
"""


class A:
    def __init__(self):
        self.l = []
        self.vst = None

    def __call__(self, s):
        for x in s.strip().split("\n"):
            self.l.append("    " + x.strip())

    def lab(self, s):
        self.l.append(s + ":")

    def c(self, s):
        self.l.append("    ; " + s)

    def stamp(self, idx):
        if not STAMPS:
            return
        self("s_memrealtime s[100:101]")
        self("s_waitcnt lgkmcnt(0)")
        self(f"v_writelane_b32 v{self.vst}, s100, {idx}")

    def stampc(self, idx):
        if not STAMPS:
            return
        self("s_memtime s[100:101]")
        self("s_waitcnt lgkmcnt(0)")
        self(f"v_writelane_b32 v{self.vst}, s100, {idx}")

    def stamp_flush(self, kidx, sw):
        if not STAMPS:
            return
        self("s_mov_b64 exec, -1")
        self(f"s_add_u32 s12, s20, {STAMP_OFF + kidx*0x100000}")
        self("s_addc_u32 s13, s21, 0")
        self("s_mov_b32 s14, 0x100000")
        self("s_mov_b32 s15, 0x20000")
        self("s_lshl_b32 s100, s2, 12")
        self(f"v_mbcnt_lo_u32_b32 v{self.vst+1}, -1, 0")
        self(f"v_mbcnt_hi_u32_b32 v{self.vst+1}, -1, v{self.vst+1}")
        self(f"v_lshlrev_b32 v{self.vst+1}, 2, v{self.vst+1}")
        self(f"s_lshl_b32 s101, s{sw}, 8")
        self("s_add_u32 s100, s100, s101")
        self(f"buffer_store_dword v{self.vst}, v{self.vst+1}, s[12:15], s100 offen")


def srd(a, d, base, size, off=0):
    if off:
        a(f"s_add_u32 s{d}, s{base}, {off}")
        a(f"s_addc_u32 s{d+1}, s{base+1}, 0")
    else:
        a(f"s_mov_b32 s{d}, s{base}")
        a(f"s_mov_b32 s{d+1}, s{base+1}")
    a(f"s_mov_b32 s{d+2}, {size}")
    a(f"s_mov_b32 s{d+3}, 0x20000")


def scan64(a, v):
    for sh in (1, 2, 4, 8):
        a("s_nop 1")
        a(f"v_add_u32_dpp v{v}, v{v}, v{v} row_shr:{sh} row_mask:0xf bank_mask:0xf bound_ctrl:0")
    a("s_nop 1")
    a(f"v_add_u32_dpp v{v}, v{v}, v{v} row_bcast:15 row_mask:0xa bank_mask:0xf")
    a("s_nop 1")
    a(f"v_add_u32_dpp v{v}, v{v}, v{v} row_bcast:31 row_mask:0xc bank_mask:0xf")


K1_WP = 98304
K1_WAU = 102400
K1_CNT = 118784
K1_STK = K1_CNT + 2048
K1_STE = K1_STK + 12800
K1_SCR = 131072
L_AUR = 112640
L_GW = 103936
K1_LDS = 163840
assert K1_STE + 25600 <= K1_LDS


def poll(a, tag, vP, off, val=None, slp=2):
    a("s_mov_b32 s101, 0x40000")
    a("s_mov_b64 exec, 1")
    a.lab(f"POLL{tag}")
    a(f"buffer_load_dword v{vP}, off, s[{SDB}:{SDB+3}], 0 offset:{off} sc1")
    a("s_waitcnt vmcnt(0)")
    a(f"v_cmp_ne_u32 vcc, 0, v{vP}" if val is None else f"v_cmp_eq_u32 vcc, {val}, v{vP}")
    a("s_sub_u32 s101, s101, 1")
    a(f"s_cbranch_scc1 POLLD{tag}")
    a(f"s_cbranch_vccnz POLLD{tag}")
    a(f"s_sleep {slp}")
    a(f"s_branch POLL{tag}")
    a.lab(f"POLLD{tag}")
    a("s_mov_b64 exec, -1")


def gen_k1(a):
    sW, sSl, sBk, sT0, sT1, sT2, sT3 = 22, 23, 24, 25, 26, 27, 28
    sG = 29
    sEx = 30
    SD, SS, SE, SWS, SX, SWL, SWH = 32, 36, 40, 44, 48, 52, 56
    sScale, sOut, sS, sQ, sX0, sDl, sJ, sSlot = 60, 61, 62, 63, 64, 65, 66, 67
    sUns = 94
    vLane = 1
    VX = 40
    VW = 44
    a.lab(KNAME)
    a.vst = 11
    a("s_cmp_ge_u32 s2, 256")
    a("s_cbranch_scc1 K1_END2")
    a.stamp(0)
    a.stampc(30)
    a("s_load_dwordx16 s[4:19], s[0:1], 0")
    a("s_load_dwordx2 s[20:21], s[0:1], 72")
    a(f"s_load_dwordx2 s[{SDB}:{SDB+1}], s[0:1], 64")
    a("v_lshrrev_b32 v2, 6, v0")
    a(f"v_and_b32 v{vLane}, 63, v0")
    a(f"v_readfirstlane_b32 s{sW}, v2")
    a(f"s_mov_b32 s{SDB+2}, 256")
    a(f"s_mov_b32 s{SDB+3}, 0x20000")
    a(f"s_and_b32 s{sSl}, s2, 3")
    a(f"s_lshr_b32 s{sT0}, s2, 2")
    if "oldmap" in OPTS:
        a(f"s_mov_b32 s{sBk}, s{sT0}")
    else:
        a.c("bucket = 32*((wg>>2)&1) + (wg>>3): workgroups that share an L2 take neighbouring buckets")
        a(f"s_and_b32 s{sBk}, s{sT0}, 1")
        a(f"s_lshl_b32 s{sBk}, s{sBk}, 5")
        a(f"s_lshr_b32 s{sT1}, s2, 3")
        if TMAP:
            a(f"s_lshl_b32 s{sT2}, s2, 3")
            a(f"s_and_b32 s{sT2}, s{sT2}, 16")
            a(f"s_xor_b32 s{sT1}, s{sT1}, s{sT2}")
        a(f"s_or_b32 s{sBk}, s{sBk}, s{sT1}")
    if TMAP:
        a(f"s_mov_b32 s{sG}, s2")
    else:
        a(f"s_lshl_b32 s{sG}, s{sT0}, 1")
        a(f"s_add_u32 s{sG}, s{sG}, s{sSl}")
    a(f"s_mul_i32 s{sX0}, s{sBk}, {BN*256}")
    if TMAP:
        a(f"s_and_b32 s{sT2}, s2, 0x81")
        a(f"s_cmp_eq_u32 s{sT2}, 0x80")
    else:
        a(f"s_cmp_eq_u32 s{sSl}, 2")
    a(f"s_cselect_b32 s{sDl}, 1, 0")
    a("v_lshlrev_b32 v2, 4, v0")
    a("v_lshlrev_b32 v3, 5, v0")
    a(f"v_lshrrev_b32 v4, 4, v{vLane}")
    a(f"v_and_b32 v5, 15, v{vLane}")
    a("v_xor_b32 v6, v5, v4")
    a("v_lshlrev_b32 v6, 4, v6")
    a(f"v_lshl_add_u32 v{VX}, v4, 8, v6")
    a(f"v_xor_b32 v{VX+1}, 64, v{VX}")
    a(f"v_xor_b32 v{VX+2}, 0x80, v{VX}")
    a(f"v_xor_b32 v{VX+3}, 0xc0, v{VX}")
    a("v_lshrrev_b32 v6, 1, v5")
    a("v_xor_b32 v6, v6, v4")
    a("v_lshlrev_b32 v6, 5, v6")
    a("v_lshl_add_u32 v6, v4, 8, v6")
    a(f"v_and_b32 v7, 1, v{vLane}")
    a(f"v_lshl_add_u32 v{VW}, v7, 4, v6")
    a(f"v_xor_b32 v{VW+1}, 0x80, v{VW}")
    a(f"v_lshrrev_b32 v6, 2, v{vLane}")
    a("v_lshlrev_b32 v6, 8, v6")
    a(f"v_and_b32 v7, 3, v{vLane}")
    a(f"v_lshrrev_b32 v8, 4, v{vLane}")
    a("v_and_b32 v8, 2, v8")
    a("v_xor_b32 v7, v7, v8")
    a(f"v_lshl_add_u32 v{VW+2}, v7, 4, v6")
    if "icode" in OPTS:
        a.c("pull this kernel's code into the XCD's L2 (wave 15 of the first workgroups)")
        a(f"s_cmp_lg_u32 s{sW}, 15")
        a("s_cbranch_scc1 K1_NOIC")
        a("s_cmp_ge_u32 s2, 16")
        a("s_cbranch_scc1 K1_NOIC")
        a("s_getpc_b64 s[68:69]")
        a(f"v_lshlrev_b32 v60, 7, v{vLane}")
        a.lab("K1_ICB")
        a("global_load_dword v61, v60, s[68:69]")
        a("s_add_u32 s68, s68, 8192")
        a("s_addc_u32 s69, s69, 0")
        a("s_bfm_b64 exec, (K2_END-K1_ICB-8192)/128, 0")
        a("global_load_dword v62, v60, s[68:69]")
        a("s_mov_b64 exec, -1")
        a.lab("K1_NOIC")
    a("s_waitcnt lgkmcnt(0)")
    a.stamp(1)
    srd(a, SX, 4, N * 256)
    a("s_cmp_ge_u32 s2, 128" if TMAP else f"s_cmp_ge_u32 s{sSl}, 2")
    a("s_cbranch_scc1 K1_TB")

    def xdma(slot_sgpr, tag):
        a(f"s_lshl_b32 s{sT0}, s{slot_sgpr}, 12")
        a(f"s_mov_b32 m0, s{sT0}")
        a(f"s_sub_u32 s{sT1}, s{slot_sgpr}, s{sDl}")
        a(f"s_cselect_b32 s{sT1}, 24, s{sT1}")
        a(f"s_lshl_b32 s{sT1}, s{sT1}, 12")
        a(f"s_add_u32 s{sT1}, s{sT1}, s{sX0}")
        for pp in range(4):
            a(f"buffer_load_dwordx4 v{VX+pp}, s[{SX}:{SX+3}], s{sT1} offen offset:{pp*1024}{NT_X} lds")

    def waudma(piece_sgpr):
        a(f"s_lshl_b32 s{sT0}, s{piece_sgpr}, 10")
        a(f"s_add_u32 s{sT0}, s{sT0}, {K1_WAU}")
        a(f"s_mov_b32 m0, s{sT0}")
        a(f"s_and_b32 s{sT1}, s{piece_sgpr}, 7")
        a(f"s_lshl_b32 s{sT1}, s{sT1}, 12")
        a(f"s_lshl_b32 s{sT0}, s{sSl}, 6")
        a(f"s_add_u32 s{sT1}, s{sT1}, s{sT0}")
        a(f"s_cmp_lt_u32 s{piece_sgpr}, 8")
        a(f"s_cselect_b32 s{SWL}, s16, s12")
        a(f"s_cselect_b32 s{SWL+1}, s17, s13")
        a(f"s_mov_b32 s{SWL+2}, 32768")
        a(f"s_mov_b32 s{SWL+3}, 0x20000")
        a(f"buffer_load_dwordx4 v{VW+2}, s[{SWL}:{SWL+3}], s{sT1} offen lds")

    a(f"s_cmp_ge_u32 s{sG}, {NCH}")
    a("s_cbranch_scc1 K1_NOEDGE")
    a(f"s_cmp_ge_u32 s{sW}, 13")
    a("s_cbranch_scc1 K1_NOEDGE")
    srd(a, SD, 10, E * 4)
    srd(a, SS, 8, E * 4)
    srd(a, SE, 6, E * 8)
    a("v_cmp_gt_u32 vcc, 800, v0")
    a(f"s_mul_i32 s{sT0}, s{sG}, {CH*4}")
    a(f"s_mul_i32 s{sT1}, s{sG}, {CH*8}")
    a(f"s_mov_b64 s[{sEx}:{sEx+1}], vcc")
    a("s_mov_b64 exec, vcc")
    a(f"buffer_load_dwordx4 v[16:19], v2, s[{SD}:{SD+3}], s{sT0} offen{NT_E}")
    a(f"buffer_load_dwordx4 v[20:23], v2, s[{SS}:{SS+3}], s{sT0} offen{NT_E}")
    a(f"buffer_load_dwordx4 v[24:27], v3, s[{SE}:{SE+3}], s{sT1} offen{NT_E}")
    a(f"buffer_load_dwordx4 v[28:31], v3, s[{SE}:{SE+3}], s{sT1} offen offset:16{NT_E}")
    a("s_mov_b64 exec, -1")
    a.lab("K1_NOEDGE")
    srd(a, SWS, 20, WS_USED)
    a(f"v_lshlrev_b32 v6, 2, v{vLane}")
    a(f"v_add_u32 v6, {K1_CNT}, v6")
    a("v_mov_b32 v7, 0")
    a(f"v_mov_b32 v12, {K1_CNT+1024}")
    a(f"s_cmp_lg_u32 s{sW}, 0")
    a("s_cbranch_scc1 K1_P1")
    a("ds_write_b32 v6, v7")
    a("ds_write_b32 v6, v7 offset:256")
    a("ds_write_b32 v6, v7 offset:1024")
    a("s_waitcnt lgkmcnt(0)")
    a.lab("K1_P1")
    a("s_barrier")
    a(f"s_cmp_lt_u32 s{sW}, 13")
    a("s_cbranch_scc1 K1_PW")
    a.c("loader waves 13..15 : W_AU pieces and x tiles by LDS-DMA")
    a(f"s_sub_u32 s{sJ}, s{sW}, 13")
    a.lab("K1_LA1")
    waudma(sJ)
    a(f"s_add_u32 s{sJ}, s{sJ}, 3")
    a(f"s_cmp_lt_u32 s{sJ}, 16")
    a("s_cbranch_scc1 K1_LA1")
    a(f"s_sub_u32 s{sJ}, s{sW}, 13")
    H0 = [int(o[3:]) for o in OPTS if o.startswith("h0=")]
    if H0:
        a.c("edge loads first")
        a(f"s_cmp_ge_u32 s{sG}, {NCH}")
        a("s_cbranch_scc1 K1_H0D")
        a.lab("K1_H0")
        a(f"ds_read_b32 v13, v12 offset:{H0[0]}")
        a("s_waitcnt lgkmcnt(0)")
        a("v_cmp_gt_u32 vcc, 13, v13")
        a("s_cbranch_vccnz K1_H0")
        a.lab("K1_H0D")
    xdma(sJ, "A0")
    a(f"s_add_u32 s{sJ}, s{sJ}, 3")
    xdma(sJ, "A1")
    a(f"s_add_u32 s{sJ}, s{sJ}, 3")
    a("v_mov_b32 v7, 1")
    a("s_waitcnt vmcnt(8)")
    a("s_mov_b64 exec, 1")
    a("ds_add_u32 v12, v7 offset:12")
    a("s_mov_b64 exec, -1")
    HOLD = [int(o[5:]) for o in OPTS if o.startswith("hold=")]
    if HOLD:
        for h in range(HOLD[0] - 2):
            xdma(sJ, f"AH{h}")
            a(f"s_add_u32 s{sJ}, s{sJ}, 3")
        a.c("let the partition's record stores go out first")
        a(f"s_cmp_ge_u32 s{sG}, {NCH}")
        a("s_cbranch_scc1 K1_LA2")
        a.lab("K1_HOLD")
        a("ds_read_b32 v13, v12 offset:16")
        a("s_waitcnt lgkmcnt(0)")
        a("v_cmp_gt_u32 vcc, 13, v13")
        a("s_cbranch_vccnz K1_HOLD")
    a.lab("K1_LA2")
    xdma(sJ, "A")
    a(f"s_add_u32 s{sJ}, s{sJ}, 3")
    a(f"s_cmp_lt_u32 s{sJ}, 25")
    a("s_cbranch_scc1 K1_LA2")
    a.stamp(2)
    a("s_branch K1_AUA")
    a.lab("K1_PW")
    a(f"s_cmp_ge_u32 s{sG}, {NCH}")
    a("s_cbranch_scc1 K1_AUA")

    def sb(k, tag):
        a("s_waitcnt lgkmcnt(0)")
        a("s_mov_b64 exec, 1")
        a(f"ds_add_u32 v12, v7 offset:{4+4*k}")
        a("s_mov_b64 exec, -1")
        a.lab(f"K1_SB{tag}")
        a(f"ds_read_b32 v13, v12 offset:{4+4*k}")
        a("s_waitcnt lgkmcnt(0)")
        a("v_cmp_gt_u32 vcc, 13, v13")
        a(f"s_cbranch_vccnz K1_SB{tag}")
    a(f"s_mov_b32 s{sT0}, {MAGIC}")
    a(f"s_mov_b32 s{sT1}, {-BN & 0xffffffff}")
    a("v_mov_b32 v7, 1")
    a(f"s_mov_b64 exec, s[{sEx}:{sEx+1}]")
    a("s_waitcnt vmcnt(3)")
    a.stamp(3)
    for i in range(4):
        a(f"v_mul_u32_u24 v{32+i}, s{sT0}, v{16+i}")
    for i in range(4):
        a(f"v_lshrrev_b32 v{32+i}, 25, v{32+i}")
    for i in range(4):
        a(f"v_mad_i32_i24 v{16+i}, v{32+i}, s{sT1}, v{16+i}")
    for i in range(4):
        a(f"v_lshlrev_b32 v{32+i}, 2, v{32+i}")
    for i in range(4):
        a(f"v_add_u32 v{32+i}, {K1_CNT}, v{32+i}")
    for i in range(4):
        a(f"ds_add_rtn_u32 v{36+i}, v{32+i}, v7")
    for i in range(4):
        a(f"v_lshlrev_b32 v{16+i}, 2, v{16+i}")
    a("s_waitcnt vmcnt(2)")
    for i in range(4):
        a(f"v_lshl_or_b32 v{20+i}, v{20+i}, 16, v{16+i}")
    sb(0, "2")
    a.stamp(4)
    a("ds_read_b32 v8, v6")
    a("s_waitcnt lgkmcnt(0)")
    a("v_mov_b32 v9, v8")
    scan64(a, 9)
    a("v_sub_u32 v9, v9, v8")
    a("ds_write_b32 v6, v9 offset:512")
    a("v_lshl_or_b32 v8, v8, 16, v9")
    a(f"s_mov_b64 exec, s[{sEx}:{sEx+1}]")
    for i in range(4):
        a(f"ds_read_b32 v{32+i}, v{32+i} offset:512")
    a("s_waitcnt lgkmcnt(0)")
    for i in range(4):
        a(f"v_add_u32 v{32+i}, v{32+i}, v{36+i}")
    for i in range(4):
        a(f"v_lshlrev_b32 v{36+i}, 2, v{32+i}")
        a(f"v_lshlrev_b32 v{32+i}, 3, v{32+i}")
    for i in range(4):
        a(f"v_add_u32 v{36+i}, {K1_STK}, v{36+i}")
        a(f"v_add_u32 v{32+i}, {K1_STE}, v{32+i}")
    for i in range(4):
        a(f"ds_write_b32 v{36+i}, v{20+i}")
    a("s_waitcnt vmcnt(0)")
    for i in range(4):
        a(f"ds_write_b64 v{32+i}, v[{24+2*i}:{25+2*i}]")
    a("v_or3_b32 v16, v24, v25, v26")
    a("v_or3_b32 v17, v27, v28, v29")
    a("v_or3_b32 v16, v30, v31, v16")
    a("v_or_b32 v16, v16, v17")
    a("v_and_b32 v16, 0x40004000, v16")
    a("v_cmp_ne_u32 vcc, 0, v16")
    a(f"s_cmp_lg_u64 vcc, 0")
    a(f"s_cselect_b32 s{sUns}, 0x101, 1")
    sb(1, "3")
    a.stamp(5)
    a(f"s_mov_b64 exec, s[{sEx}:{sEx+1}]")
    a(f"v_add_u32 v6, {K1_STK}, v2")
    a("ds_read_b128 v[16:19], v6")
    a("ds_read_b128 v[20:23], v6 offset:12800")
    a("ds_read_b128 v[24:27], v6 offset:25600")
    a(f"s_mul_i32 s{sT0}, s{sG}, {CH*4}")
    a(f"s_add_u32 s{sT0}, s{sT0}, {KEY_OFF}")
    a(f"s_mul_i32 s{sT1}, s{sG}, {CH*8}")
    a(f"s_add_u32 s{sT1}, s{sT1}, {EAT_OFF}")
    a(f"s_add_u32 s{sT2}, s{sT1}, 12800")
    a("s_waitcnt lgkmcnt(2)")
    a(f"buffer_store_dwordx4 v[16:19], v2, s[{SWS}:{SWS+3}], s{sT0} offen{K1_ST}")
    a("s_waitcnt lgkmcnt(1)")
    a(f"buffer_store_dwordx4 v[20:23], v2, s[{SWS}:{SWS+3}], s{sT1} offen{K1_ST}")
    a("s_waitcnt lgkmcnt(0)")
    a(f"buffer_store_dwordx4 v[24:27], v2, s[{SWS}:{SWS+3}], s{sT2} offen{K1_ST}")
    a("s_mov_b64 exec, -1")
    a(f"s_cmp_lg_u32 s{sW}, 0")
    a("s_cbranch_scc1 K1_P2B")
    a(f"v_lshlrev_b32 v9, 2, v{vLane}")
    a(f"s_lshl_b32 s{sT0}, s{sG}, 8")
    a(f"s_add_u32 s{sT0}, s{sT0}, {DESC_OFF}")
    a(f"buffer_store_dword v8, v9, s[{SWS}:{SWS+3}], s{sT0} offen{K1_ST}")
    a.lab("K1_P2B")
    if HOLD:
        a("s_mov_b64 exec, 1")
        a("ds_add_u32 v12, v7 offset:16")
        a("s_mov_b64 exec, -1")
    a.c("publish the partition: the last of the 13 storing waves counts this workgroup into R")
    a(f"v_mov_b32 v15, s{sUns}")
    a("s_waitcnt vmcnt(0)")
    a("s_mov_b64 exec, 1")
    a("ds_add_rtn_u32 v14, v12, v15")
    a("s_waitcnt lgkmcnt(0)")
    a("v_add_u32 v14, v14, v15")
    a("v_and_b32 v15, 0xff, v14")
    a("v_cmp_eq_u32 vcc, 13, v15")
    a("s_cbranch_vccz K1_NOR2")
    a("v_lshrrev_b32 v14, 8, v14")
    a("v_lshl_or_b32 v14, v14, 16, 1")
    a("v_mov_b32 v15, v14")
    a(f"buffer_atomic_add v15, off, s[{SDB}:{SDB+3}], 0 sc0 sc1")
    a("s_waitcnt vmcnt(0)")
    a("v_add_u32 v15, v15, v14")
    a("v_and_b32 v14, 0xffff, v15")
    a(f"v_cmp_eq_u32 vcc, {NCH}, v14")
    a("s_cbranch_vccz K1_NOR2")
    a(f"buffer_store_dword v15, off, s[{SDB}:{SDB+3}], 0 offset:192 sc1")
    a.lab("K1_NOR2")
    a("s_mov_b64 exec, -1")
    a.stamp(6)
    a.lab("K1_AUA")
    a("ds_read_b32 v13, v12 offset:12")
    a("s_waitcnt lgkmcnt(0)")
    a("v_cmp_gt_u32 vcc, 3, v13")
    a("s_cbranch_vccnz K1_AUA")
    a("s_branch K1_AU")

    a.lab("K1_TB")
    a(f"s_add_u32 s{sT0}, s16, 32768")
    a(f"s_addc_u32 s{sT1}, s17, 0")
    a(f"s_cmp_lt_u32 s{sW}, 8")
    a(f"s_cselect_b32 s{SWH}, s{sT0}, s14")
    a(f"s_cselect_b32 s{SWH+1}, s{sT1}, s15")
    a(f"s_mov_b32 s{SWH+2}, 32768")
    a(f"s_mov_b32 s{SWH+3}, 0x20000")
    a(f"s_lshl_b32 s{sT0}, s{sW}, 12")
    a(f"s_add_u32 s{sT1}, s{sT0}, {K1_WP}")
    a(f"s_mov_b32 m0, s{sT1}")
    a(f"s_and_b32 s{sT0}, s{sT0}, 0x7fff")
    for pp in range(4):
        a(f"buffer_load_dwordx4 v{VW+(pp>>1)}, s[{SWH}:{SWH+3}], s{sT0} offen offset:{pp*1024} lds")
    srd(a, SWS, 20, WS_USED)

    def xup():
        a(f"s_cmp_ge_u32 s{sW}, 13")
        a("s_cbranch_scc1 K1_B0")
        a(f"s_lshl_b32 s{sJ}, s{sW}, 1")
        a(f"s_add_u32 s{sJ}, s{sJ}, 1")
        a(f"s_cmp_eq_u32 s{sW}, 12")
        a(f"s_cselect_b32 s{sJ}, 0, s{sJ}")
        xdma(sJ, "B")
        a.lab("K1_B0")
    if "wfirst" not in OPTS:
        xup()
    a(f"s_and_b32 s{sS}, s{sW}, 3")
    a(f"s_lshr_b32 s{sQ}, s{sW}, 2")
    a(f"v_lshrrev_b32 v2, 4, v{vLane}")
    a(f"v_and_b32 v3, 15, v{vLane}")
    a("v_lshrrev_b32 v48, 2, v3")
    a("v_and_b32 v49, 1, v2")
    a("v_lshl_or_b32 v49, v49, 2, v48")
    a(f"s_lshl_b32 s{sT0}, s{sS}, 1")
    a(f"v_xor_b32 v49, s{sT0}, v49")
    a("v_lshlrev_b32 v49, 5, v49")
    a("v_lshl_add_u32 v48, v2, 3, v48")
    a("v_lshl_add_u32 v48, v48, 8, v49")
    a(f"v_and_b32 v49, 3, v{vLane}")
    a("v_lshl_add_u32 v48, v49, 3, v48")
    a(f"v_add_u32 v48, {K1_WP}, v48")
    a("v_xor_b32 v49, 32, v48")
    a("v_and_b32 v10, 7, v3")
    a("v_xor_b32 v10, v10, v2")
    a("v_lshlrev_b32 v10, 4, v10")
    a("v_lshl_add_u32 v10, v3, 7, v10")
    a(f"s_lshl_b32 s{sT0}, s{sW}, 11")
    a(f"s_add_u32 s{sT0}, s{sT0}, {K1_SCR}")
    a(f"v_add_u32 v10, s{sT0}, v10")
    a("v_xor_b32 v0, 64, v10")
    a(f"v_lshlrev_b32 v2, 4, v{vLane}")
    a(f"v_add_u32 v2, s{sT0}, v2")
    a(f"v_lshrrev_b32 v3, 3, v{vLane}")
    a(f"v_and_b32 v28, 7, v{vLane}")
    a("v_xor_b32 v28, v28, v3")
    a("v_lshlrev_b32 v28, 4, v28")
    a("v_lshl_add_u32 v3, v3, 7, v28")
    a(f"s_mov_b32 s{sScale}, {hex(NL2E)}")
    if "wfirst" in OPTS:
        a("s_waitcnt vmcnt(0)")
        xup()
    else:
        a(f"s_cmp_ge_u32 s{sW}, 13")
        a("s_cbranch_scc1 K1_B1")
        a("s_waitcnt vmcnt(4)")
        a("s_branch K1_B2")
        a.lab("K1_B1")
        a("s_waitcnt vmcnt(0)")
        a.lab("K1_B2")
    a.stamp(2)
    a("s_barrier")
    WF = 64

    def wf(mat, ct, ks):
        return WF + ((mat * 2 + ct) * 4 + ks) * 4
    for ks in range(4):
        for mat in range(2):
            for ct in range(2):
                b = wf(mat, ct, ks)
                off = mat * 32768 + ks * 8192
                a(f"ds_read_b64_tr_b16 v[{b}:{b+1}], v{48+ct} offset:{off}")
                a(f"ds_read_b64_tr_b16 v[{b+2}:{b+3}], v{48+ct} offset:{off+1024}")
    a("s_waitcnt lgkmcnt(0)")
    a.stamp(3)
    a("s_barrier")
    waudma(sW)

    def xlate(tag):
        a(f"s_cmp_ge_u32 s{sW}, 12")
        a(f"s_cbranch_scc1 K1_B3{tag}")
        a(f"s_lshl_b32 s{sJ}, s{sW}, 1")
        a(f"s_add_u32 s{sJ}, s{sJ}, 2")
        xdma(sJ, "C")
        if tag:
            a("s_waitcnt vmcnt(4)")
            a("s_branch K1_B4")
        a.lab(f"K1_B3{tag}")
        if tag:
            a("s_waitcnt vmcnt(0)")
            a.lab("K1_B4")
    if "early" in OPTS:
        a("s_barrier")
        xlate("E")
    XF = [32, 48]

    def xconst():
        a(f"v_lshrrev_b32 v4, 4, v{vLane}")
        a(f"v_and_b32 v5, 15, v{vLane}")
        a("v_xor_b32 v4, v4, v5")
        a("v_lshlrev_b32 v4, 4, v4")
        a("v_lshl_add_u32 v5, v5, 8, v4")

    def xread(buf, slot_sgpr):
        a(f"s_lshl_b32 s{sT0}, s{slot_sgpr}, 12")
        a(f"v_add_u32 v6, s{sT0}, v5")
        a("v_xor_b32 v7, 64, v6")
        a("v_xor_b32 v8, 0x80, v6")
        a("v_xor_b32 v9, 0xc0, v6")
        for ks in range(4):
            a(f"ds_read_b128 v[{XF[buf]+4*ks}:{XF[buf]+4*ks+3}], v{6+ks}")

    def mfmas(buf, mid=None):
        for ks in range(4):
            for mat in range(2):
                for ct in range(2):
                    d = 16 + (mat * 2 + ct) * 4
                    b = wf(mat, ct, ks)
                    cin = "0" if ks == 0 else f"v[{d}:{d+3}]"
                    a(f"v_mfma_f32_16x16x32_bf16 v[{d}:{d+3}], v[{b}:{b+3}], v[{XF[buf]+4*ks}:{XF[buf]+4*ks+3}], {cin}")
            if ks == 0 and mid:
                mid()
    xconst()
    a(f"s_lshl_b32 s{sSlot}, s{sQ}, 1")
    a(f"s_add_u32 s{sSlot}, s{sSlot}, 1")
    a(f"s_mul_i32 s{sOut}, s{sS}, {PS}")
    a(f"s_lshr_b32 s{sT0}, s{sX0}, 1")
    a(f"s_add_u32 s{sOut}, s{sOut}, s{sT0}")
    a(f"s_sub_u32 s{sT0}, s{sSlot}, s{sDl}")
    a(f"s_lshl_b32 s{sT0}, s{sT0}, 11")
    a(f"s_add_u32 s{sOut}, s{sOut}, s{sT0}")
    a.stamp(4)
    a("v_mov_b32 v4, 0")
    if "early" not in OPTS:
        a("s_waitcnt vmcnt(0)")
    a.stamp(5)
    a("s_barrier")
    a.stamp(7)
    a.stampc(31)
    if "early" not in OPTS:
        xlate("")
    xread(0, sSlot)
    for i in range(4):
        buf = i & 1
        if i == 3:
            a.c("13th P tile (tile 24, slot 0): slice 2, set 0 only")
            a(f"s_cmp_lg_u32 s{sQ}, 0")
            a("s_cbranch_scc1 K1_PDONE")
            a(f"s_cmp_eq_u32 s{sDl}, 0")
            a("s_cbranch_scc1 K1_PDONE")
        if i < 2:
            a(f"s_add_u32 s{sSlot}, s{sSlot}, 8")
        elif i == 2:
            a(f"s_mov_b32 s{sSlot}, 0")
        a("s_waitcnt lgkmcnt(0)")
        mfmas(buf, (lambda: xread(buf ^ 1, sSlot)) if i < 3 else None)
        a("s_nop 7")
        for r in range(16, 32, 2):
            a(f"v_max3_f32 v4, abs(v{r}), abs(v{r+1}), v4")
        for ct in range(2):
            for j in range(4):
                a(f"v_fma_mixlo_f16 v{24+4*ct+j}, v{16+4*ct+j}, s{sScale}, 0")
        a("ds_write_b128 v10, v[24:27]")
        a("ds_write_b128 v0, v[28:31]")
        a("ds_read_b128 v[12:15], v2")
        a("ds_read_b128 v[16:19], v2 offset:1024")
        a("s_waitcnt lgkmcnt(1)")
        a(f"buffer_store_dwordx4 v[12:15], v3, s[{SWS}:{SWS+3}], s{sOut} offen{P_ST}")
        a("s_waitcnt lgkmcnt(0)")
        a(f"buffer_store_dwordx4 v[16:19], v3, s[{SWS}:{SWS+3}], s{sOut} offen offset:1024{P_ST}")
        a.stamp(8 + i)
        if i < 3:
            a(f"s_add_u32 s{sOut}, s{sOut}, 16384")
            a("s_nop 1")
    a.lab("K1_PDONE")
    a("v_cmp_le_f32 vcc, 2.0, v4")
    a("s_cbranch_vccz K1_PSAFE")
    a("v_mov_b32 v13, 0x10000")
    a("s_mov_b64 exec, 1")
    a(f"buffer_atomic_add v13, off, s[{SDB}:{SDB+3}], 0 offset:64 sc1")
    a("s_mov_b64 exec, -1")
    a.lab("K1_PSAFE")
    a.lab("K1_AU")
    xconst()
    a(f"v_lshrrev_b32 v2, 4, v{vLane}")
    a(f"v_and_b32 v3, 15, v{vLane}")
    a("v_lshrrev_b32 v48, 2, v3")
    a("v_lshl_add_u32 v48, v2, 3, v48")
    a("v_lshlrev_b32 v48, 6, v48")
    a(f"v_and_b32 v49, 3, v{vLane}")
    a("v_lshl_add_u32 v48, v49, 3, v48")
    a("v_and_b32 v49, 1, v2")
    a("v_lshl_add_u32 v48, v49, 5, v48")
    a(f"v_add_u32 v48, {K1_WAU}, v48")
    a("v_xor_b32 v49, 32, v48")
    a("s_waitcnt lgkmcnt(0)")
    for ks in range(4):
        for mat in range(2):
            for ct in range(2):
                b = wf(mat, ct, ks)
                off = mat * 8192 + ks * 2048
                a(f"ds_read_b64_tr_b16 v[{b}:{b+1}], v{48+ct} offset:{off}")
                a(f"ds_read_b64_tr_b16 v[{b+2}:{b+3}], v{48+ct} offset:{off+256}")
    a("v_and_b32 v10, 7, v3")
    a("v_xor_b32 v10, v10, v2")
    a("v_lshlrev_b32 v10, 4, v10")
    a("v_lshl_add_u32 v10, v3, 7, v10")
    a(f"v_add_u32 v10, {L_AUR}, v10")
    a(f"s_mov_b32 s{sSlot}, s{sW}")
    a.c("first chunk of this wave: key waves 12w (12 chunks), loader waves 32(w-11) (32 chunks)")
    a(f"s_mul_i32 s{sT2}, s{sW}, 12")
    a(f"s_lshl_b32 s{sT3}, s{sW}, 5")
    a(f"s_sub_u32 s{sT3}, s{sT3}, {32*11}")
    a(f"s_cmp_lt_u32 s{sW}, 11")
    a(f"s_cselect_b32 s{sT3}, s{sT2}, s{sT3}")
    a(f"s_cselect_b32 s{sT2}, 12, 32")
    a(f"s_bfm_b64 s[54:55], s{sT2}, 0")
    a(f"s_lshl_b32 s90, s{sT3}, 8")
    a(f"s_lshl_b32 s{sT1}, s{sBk}, 2")
    a(f"s_add_u32 s90, s90, s{sT1}")
    a(f"s_add_u32 s48, s20, {DESC_OFF}")
    a("s_addc_u32 s49, s21, 0")
    a(f"s_mov_b32 s50, {NCH*256}")
    a("s_mov_b32 s51, 0x20000")
    a.stamp(14)
    a("s_waitcnt vmcnt(0) lgkmcnt(0)")
    a.stamp(13)
    a("s_barrier")
    a.stamp(15)
    xread(0, sSlot)
    a(f"s_cmp_lg_u32 s{sW}, 15")
    a("s_cbranch_scc1 K1_NZ")
    a(f"v_lshlrev_b32 v14, 2, v{vLane}")
    a(f"v_add_u32 v14, {L_GW}, v14")
    a("v_mov_b32 v3, 0")
    a("ds_write_b32 v14, v3")
    a("s_cmp_lt_u32 s2, 128" if TMAP else f"s_cmp_lt_u32 s{sSl}, 2")
    a("s_cbranch_scc1 K1_NZ2")
    a.c("count this workgroup's P tiles in")
    a("v_mov_b32 v15, 1")
    a("v_mov_b32 v14, 1")
    a("s_mov_b64 exec, 1")
    a(f"buffer_atomic_add v14, off, s[{SDB}:{SDB+3}], 0 offset:64 sc0 sc1")
    a("s_mov_b64 exec, -1")
    a("s_branch K1_NZ2")
    a.lab("K1_NZ")
    a("s_mov_b64 exec, 1")
    a(f"buffer_load_dword v2, off, s[{SDB}:{SDB+3}], 0 offset:192 sc1")
    a("s_mov_b64 exec, -1")
    a(f"v_lshlrev_b32 v14, 8, v{vLane}")
    a.lab("K1_NZ2")
    a("v_mov_b32 v4, 0")
    a(f"s_mov_b32 s{sUns+1}, 0")
    a.stamp(16)
    for i in range(2):
        a(f"s_sub_u32 s{sT1}, s{sSlot}, s{sDl}")
        a(f"s_cselect_b32 s{sT1}, 24, s{sT1}")
        a(f"s_lshl_b32 s{sT1}, s{sT1}, 11")
        a(f"v_add_u32 v12, s{sT1}, v10")
        a("v_xor_b32 v13, 64, v12")
        if i == 0:
            a(f"s_add_u32 s{sSlot}, s{sSlot}, 16")
            a(f"s_min_u32 s{sJ}, s{sSlot}, 24")
        a("s_waitcnt lgkmcnt(0)")
        mfmas(i, (lambda: xread(1, sJ)) if i == 0 else None)
        a("s_nop 7")
        for r in range(16, 24, 2):
            a(f"v_max3_f32 v4, abs(v{r}), abs(v{r+1}), v4")
        for ct in range(2):
            for j in range(4):
                a(f"v_fma_mixlo_f16 v{24+4*ct+j}, v{16+4*ct+j}, 1.0, 0")
        a("ds_write_b128 v12, v[24:27]")
        a("ds_write_b128 v13, v[28:31]")
        if i == 0:
            a(f"s_cmp_eq_u32 s{sW}, 15")
            a("s_cbranch_scc1 K1_END")
            a.c("partition published? then fetch this wave's segment descriptors")
            a("s_mov_b64 exec, 1")
            a("s_waitcnt vmcnt(0)")
            a("v_cmp_ne_u32 vcc, 0, v2")
            a("s_cbranch_vccnz K1_ROK")
            poll(a, "R", 2, 192, None, SLP)
            a.lab("K1_ROK")
            a("s_mov_b64 exec, s[54:55]")
            a(f"buffer_load_dword v3, v14, s[48:51], s90 offen{LD}")
            a("s_mov_b64 exec, -1")
            a(f"v_readfirstlane_b32 s{sUns+1}, v2")
            a.stamp(17)
            a(f"s_cmp_ge_u32 s{sSlot}, 25")
            a(f"s_lshr_b32 s{sUns+1}, s{sUns+1}, 16")
            a(f"s_cmp_ge_u32 s{sSlot}, 25")
            a("s_cbranch_scc1 K1_END")
    a.lab("K1_END")
    a("v_cmp_le_f32 vcc, 2.0, v4")
    a("s_cmp_lg_u64 vcc, 0")
    a(f"s_cselect_b32 s{sUns+1}, 1, s{sUns+1}")
    a.stamp(12)
    a.stampc(32)
    a.stamp_flush(0, sW)
    a.c("wave 15 waits until every partition workgroup has counted into R")
    a(f"s_cmp_lg_u32 s{sW}, 15")
    a("s_cbranch_scc1 K1_RDONE")
    a("s_cmp_lt_u32 s2, 128" if TMAP else f"s_cmp_lt_u32 s{sSl}, 2")
    a("s_cbranch_scc1 K1_NG")
    a("s_mov_b64 exec, 1")
    a("s_waitcnt vmcnt(0)")
    a("v_add_u32 v14, v14, v15")
    a("v_and_b32 v15, 0xffff, v14")
    a("v_cmp_eq_u32 vcc, 0x80, v15")
    a("s_cbranch_vccz K1_NG")
    a(f"buffer_store_dword v14, off, s[{SDB}:{SDB+3}], 0 offset:128 sc1")
    a.lab("K1_NG")
    a("s_mov_b64 exec, -1")
    a.lab("K1_RDONE")
    a(f"s_lshl_b32 s{sT0}, s{sW}, 6")
    a(f"v_add_u32 v0, s{sT0}, v{vLane}")
    a("s_branch K2_ENTRY")
    a.lab("K1_END2")
    a("s_endpgm")


CAP = 8192
L_CNT = 0
L_ORD = 2048
L_DH = 4096
L_BST = 4352
L_SB = 4608
L_FLAG = 4864
L_GD = L_FLAG + 4
L_ELL = 5120
L_DUM = L_ELL + CAP * 4
L_EA = L_DUM + 512
NKW = 11
EA_TAIL = NKW * 12 * 64
EA_ZERO = EA_TAIL + NKW * 64
assert L_EA + EA_ZERO * 8 + 8 <= L_AUR
DUMMY = 0xFFFF0000 | EA_ZERO
DUMMY_NODE = 399 * 128
NBATCH = (BN + 15) // 16
NR = 13


def gen_k2(a):
    assert FUSED
    sW, sSl, sBk = 22, 23, 24
    sT0, sT1, sT2, sT3 = 25, 26, 27, 28
    sK = 29
    sSp, sOvf = 30, 31
    SWS, SP, SO, SG = 32, 36, 40, 44
    SDS = 48
    sSave = 54
    sM = 56
    sKK = 56
    sRet = 82
    SA = 84
    SF0, SF1, SF2 = 64, 44, 60
    sTM, sEarly, sOutOff, sK2, sK1 = 88, 90, 91, 92, 93
    sA, sCntS, sNxtA, sNxtCnt, sRem, sN2 = 48, 49, 50, 51, 52, 53
    vLane, vC8, vG8, vRec4, vCo, vS, vSrc, vEa, vT = 1, 2, 3, 4, 5, 6, 7, 8, 9
    NA, N2, EE = 10, 12, 14
    ACC, AC, D = 16, 24, 40
    PP = [56, 72, 88]
    R, WB, vStg = 104, 112, 122
    AD = R
    KEYR, RK, HA = 24, 37, 50
    ET, WR, AU2 = 70, 88, 96
    vDesc = 104
    vL4, vL16, vIdx, v64c = 65, 66, 67, 68
    T = 72
    a.vst = 120

    def auread(n):
        a(f"v_xor_b32 v{vT}, v{n}, v{vC8}")
        a(f"v_xor_b32 v{AD+2}, v{n+1}, v{vC8}")
        a(f"v_add_u32 v{vT}, {L_AUR}, v{vT}")
        a(f"v_add_u32 v{AD+2}, {L_AUR}, v{AD+2}")
        a(f"ds_read_b128 v[{ACC}:{ACC+3}], v{vT}")
        a(f"ds_read_b128 v[{ACC+4}:{ACC+7}], v{AD+2}")

    def sb_arrive(k):
        a("s_waitcnt lgkmcnt(0)")
        a("s_mov_b64 exec, 1")
        a(f"ds_add_u32 v{T+14}, v{T+15} offset:{4*k}")
        a("s_mov_b64 exec, -1")

    def sb_wait(k, n, tag):
        a.lab(f"K2_SBW{tag}")
        a(f"ds_read_b32 v{T+13}, v{T+14} offset:{4*k}")
        a("s_waitcnt lgkmcnt(0)")
        a(f"v_cmp_gt_u32 vcc, {n}, v{T+13}")
        a(f"s_cbranch_vccnz K2_SBW{tag}")

    def batchinfo():
        a(f"s_lshl_b32 s{sT0}, s{sK1}, 6")
        a(f"v_add_u32 v{T}, s{sT0}, v{vG8}")
        a(f"ds_read_b64 v[{NA}:{NA+1}], v{T} offset:{L_ORD}")
        a(f"s_min_u32 s{sT0}, s{sK2}, 25")
        a(f"s_lshl_b32 s{sT0}, s{sT0}, 6")
        a(f"v_add_u32 v{T}, s{sT0}, v{vG8}")
        a(f"ds_read_b64 v[{N2}:{N2+1}], v{T} offset:{L_ORD}")
        a(f"ds_read_b32 v{T+4}, v{vL4} offset:{L_BST}")
        a(f"ds_read_b32 v{T+8}, v123 offset:{L_FLAG}")
        a("s_waitcnt lgkmcnt(0)")
        a(f"v_min_u32 v{T+4}, 0x1ff, v{T+4}")
        a(f"v_lshlrev_b32 v{T+5}, 7, v{T+4}")
        a(f"v_mov_b32 v{T+6}, v{T+5}")
        scan64(a, T + 6)
        a(f"v_readfirstlane_b32 s{sOvf}, v{T+8}")
        a(f"v_sub_u32 v{T+6}, v{T+6}, v{T+5}")
        a(f"v_add_u32 v{T+6}, {L_ELL}, v{T+6}")
        a("s_nop 0")
        a(f"v_readlane_b32 s{sA}, v{T+6}, s{sK1}")
        a(f"v_readlane_b32 s{sRem}, v{T+4}, s{sK1}")
        a(f"v_readlane_b32 s{sNxtA}, v{T+6}, s{sK2}")
        a(f"v_readlane_b32 s{sN2}, v{T+4}, s{sK2}")
        a("s_nop 3")
        a(f"s_sub_u32 s{sRem}, s{sRem}, 1")
        a(f"s_mov_b32 s{sCntS}, s{sRem}")
        a(f"s_sub_u32 s{sNxtCnt}, s{sN2}, 1")
        a(f"s_cmp_eq_u32 s{sN2}, 0")
        a(f"s_cselect_b32 s{sNxtA}, {L_DUM}, s{sNxtA}")
        a(f"s_cselect_b32 s{sNxtCnt}, 100, s{sNxtCnt}")

    def wperm():
        a(f"s_mov_b32 s{sT0}, 0x05040100")
        a(f"s_mov_b32 s{sT1}, 0x07060302")
        for m in range(4):
            sel = sT0 if m % 2 == 0 else sT1
            h = m >> 1
            a(f"v_perm_b32 v{WB+2*m}, v{WR+2+h}, v{WR+h}, s{sel}")
            a(f"v_perm_b32 v{WB+2*m+1}, v{WR+6+h}, v{WR+4+h}, s{sel}")

    def wcloads():
        a(f"s_lshl_b32 s{sT1}, s{sSl}, 6")
        a(f"s_add_u32 s{sT1}, s{sT1}, 65536")
        for k in range(4):
            a(f"buffer_load_dwordx2 v[{WR+2*k}:{WR+1+2*k}], v{vCo}, s[{SG}:{SG+3}], s{sT1} offen offset:{k*256}")

    def unsafe_or():
        a(f"v_mov_b32 v{T+12}, s95")
        a("s_mov_b64 exec, 1")
        a(f"ds_or_b32 v{T+14}, v{T+12} offset:32")
        a("s_mov_b64 exec, -1")

    a.lab("K2_ENTRY")
    a.stamp(0)
    a.stampc(29)
    a(f"v_mov_b32 v{vDesc}, v3") if False else None
    srd(a, SWS, 20, WS_USED)
    a(f"v_lshlrev_b32 v{vL4}, 2, v{vLane}")
    a(f"v_lshlrev_b32 v{vL16}, 4, v{vLane}")
    a(f"v_mov_b32 v{T+14}, {L_GW}")
    a(f"v_mov_b32 v{T+15}, 1")
    a("v_mov_b32 v123, 0")

    def consts():
        srd(a, SG, 16, 260 * 256)
        a(f"s_mul_i32 s{sT0}, s{sSl}, {PS}")
        a(f"s_add_u32 s{SP}, s20, s{sT0}")
        a(f"s_addc_u32 s{SP+1}, s21, 0")
        a(f"s_mov_b32 s{SP+2}, {N*128}")
        a(f"s_mov_b32 s{SP+3}, 0x20000")
        srd(a, SO, 18, N * 256)
        a(f"s_mov_b32 s{sK}, {hex(NL2E)}")
        a(f"v_and_b32 v{vCo}, 7, v{vLane}")
        a(f"v_lshlrev_b32 v{vCo}, 3, v{vCo}")
        a(f"v_lshlrev_b32 v{vC8}, 1, v{vCo}")
        a(f"v_and_b32 v{vG8}, 56, v{vLane}")
        a(f"v_and_b32 v64, 2, v{vLane}")
        a(f"v_lshl_add_u32 v{vRec4}, v64, 1, v{vG8}")
        a(f"v_and_b32 v64, 1, v{vLane}")
        a(f"v_lshl_add_u32 v{vRec4}, v64, 6, v{vRec4}")
        LISTS = [[0, 10, 11, 12, 20, 23], [1, 2, 7, 16, 17, 21], [6, 8, 9, 15, 18, 22, 24], [3, 4, 5, 13, 14, 19]]
        if "oldasg" in OPTS:
            LISTS = [[q, 7-q, 8+q, 15-q, 16+q, 23-q] + ([24] if q == 3 else []) for q in range(4)]
        assert sorted(sum(LISTS, [])) == list(range(NBATCH))
        a(f"s_and_b32 s{sT0}, s{sW}, 3")
        for q in range(4):
            L = LISTS[q] + [31] * (8 - len(LISTS[q]))
            if "ord2" in OPTS:
                X = LISTS[q]
                L = [X[0], X[1], X[2], X[-1], X[3], X[4], X[5] if len(X) > 6 else 31, 31]
            if "ord1" not in OPTS and "ord2" not in OPTS:
                X = LISTS[q]
                L = [X[0], X[2], X[4], X[-1], X[1], X[3], X[5] if len(X) > 6 else 31, 31]
            c1 = sum(L[r] << (8 * r) for r in range(4))
            c2 = sum(L[4 + r] << (8 * r) for r in range(4))
            if q == 0:
                a(f"s_mov_b32 s{sK1}, {hex(c1)}")
                a(f"s_mov_b32 s{sK2}, {hex(c2)}")
            else:
                a(f"s_cmp_eq_u32 s{sT0}, {q}")
                a(f"s_cselect_b32 s{sK1}, {hex(c1)}, s{sK1}")
                a(f"s_cselect_b32 s{sK2}, {hex(c2)}, s{sK2}")
        a(f"s_and_b32 s{sT1}, s{sW}, 12")
        a(f"s_lshl_b32 s{sT1}, s{sT1}, 1")
        a(f"s_lshr_b32 s{sK1}, s{sK1}, s{sT1}")
        a(f"s_lshr_b32 s{sK2}, s{sK2}, s{sT1}")
        a(f"s_and_b32 s{sK1}, s{sK1}, 0xff")
        a(f"s_and_b32 s{sK2}, s{sK2}, 0xff")
        a(f"s_mul_i32 s{sOutOff}, s{sBk}, {BN*256}")
        a(f"s_lshl_b32 s{sT0}, s{sSl}, 6")
        a(f"s_add_u32 s{sOutOff}, s{sOutOff}, s{sT0}")
    a(f"s_cmp_ge_u32 s{sW}, {NKW}")
    a("s_cbranch_scc1 K2_LW")
    a(f"v_lshrrev_b32 v{T}, 4, v{vLane}")
    a(f"v_lshlrev_b32 v{T+1}, 2, v{T}")
    a(f"s_mov_b32 s{sT0}, {CH*4}")
    a(f"v_and_b32 v{T+2}, 15, v{vLane}")
    a(f"v_lshlrev_b32 v{T+3}, 2, v{T+2}")
    a(f"v_lshlrev_b32 v{T+2}, 4, v{T+2}")
    a(f"v_mad_u32_u24 v{T+2}, v{T}, s{sT0}, v{T+2}")
    a(f"s_mov_b32 s{sSp}, 0")
    a(f"s_mov_b32 s{sOvf}, 0")
    a(f"s_mov_b64 s[{sM+24}:{sM+25}], 0")
    a(f"s_mul_i32 s{sT2}, s{sT3}, {CH*4}")
    a(f"s_add_u32 s{sT2}, s{sT2}, {KEY_OFF}")
    a(f"s_mov_b32 s{sT0}, 0x40ffff")
    a("s_waitcnt vmcnt(0)")
    a.stamp(2)
    a(f"v_mov_b32 v{vDesc}, v3")
    for h in range(3):
        a(f"ds_bpermute_b32 v{T+4+h}, v{T+1}, v3 offset:{16*h}")
    a(f"v_cmp_lt_u32 vcc, s{sT0}, v3")
    a(f"s_and_b64 s[{sTM}:{sTM+1}], vcc, s[{sSave}:{sSave+1}]")
    a("s_waitcnt lgkmcnt(0)")
    for h in range(3):
        a(f"v_lshrrev_b32 v{T+7+h}, 16, v{T+4+h}")
        a(f"v_lshlrev_b32_sdwa v{T+4+h}, 2, v{T+4+h} dst_sel:DWORD dst_unused:UNUSED_PAD src0_sel:DWORD src1_sel:WORD_0")
        a(f"v_cmp_gt_u32 s[{sM+8*h}:{sM+8*h+1}], v{T+7+h}, v{T+3}")
        a(f"v_add_u32 v{T+4+h}, v{T+4+h}, v{T+2}")
        a(f"s_or_b64 exec, s[{sM+8*h}:{sM+8*h+1}], 1")
        a(f"buffer_load_dwordx4 v[{KEYR+4*h}:{KEYR+4*h+3}], v{T+4+h}, s[{SWS}:{SWS+3}], s{sT2} offen{LD}")
        a("s_mov_b64 exec, -1")
        if h < 2:
            a(f"s_add_u32 s{sT2}, s{sT2}, {4*CH*4}")
    a(f"s_cmp_lg_u64 s[{sTM}:{sTM+1}], 0")
    a("s_cbranch_scc1 K2_TAIL")
    a.lab("K2_TAILR")
    a(f"v_lshlrev_b32 v{T}, 4, v0")
    for i in range(4):
        a(f"v_mov_b32 v{20+i}, 0")
    a.stamp(3)
    a("s_barrier")
    a.stamp(1)
    a(f"s_cmp_ge_u32 s{sW}, 6")
    a("s_cbranch_scc1 K2_INIT_DONE")
    a(f"s_cmp_eq_u32 s{sW}, 5")
    a("s_cbranch_scc1 K2_INIT_5")
    a(f"s_lshr_b32 s{sT0}, s{sW}, 1")
    a(f"s_cmp_eq_u32 s{sT0}, 1")
    a("s_cbranch_scc0 K2_INIT_Z")
    for i in range(4):
        a(f"v_mov_b32 v{20+i}, {DUMMY_NODE}")
    a.lab("K2_INIT_Z")
    a(f"ds_write_b128 v{T}, v[20:23]")
    a("s_branch K2_INIT_A")
    a.lab("K2_INIT_5")
    a(f"v_mov_b32 v64, {L_EA + EA_ZERO*8}")
    a("ds_write_b64 v64, v[20:21]")
    a.lab("K2_INIT_A")
    sb_arrive(5)
    a.lab("K2_INIT_DONE")
    unsafe_or()
    for c in range(1, 4):
        a(f"v_add_u32 v{T+3}, 1, v{T+3}")
        for h in range(3):
            a(f"v_cmp_gt_u32 s[{sM+8*h+2*c}:{sM+8*h+2*c+1}], v{T+7+h}, v{T+3}")
    a(f"s_lshl_b32 s{sT0}, s{sT3}, 6")
    a(f"v_add_u32 v{vIdx}, s{sT0}, v{vL4}")
    a(f"v_mov_b32 v{v64c}, 64")
    consts()
    wcloads()
    sb_wait(5, 6, "B1")
    a.stamp(4)
    a(f"s_cmp_eq_u32 s{sOvf}, 0")
    a("s_cbranch_scc1 K2_NOOVF")
    a(f"ds_write_b32 v123, v{T+15} offset:{L_FLAG}")
    a.lab("K2_NOOVF")
    a("s_waitcnt vmcnt(4)")
    a.stamp(5)
    for i in range(NR):
        a(f"v_and_b32 v{HA+i}, 0xffff, v{KEYR+i}")
        a(f"s_mov_b64 exec, s[{sM+2*i}:{sM+2*i+1}]")
        a(f"ds_add_rtn_u32 v{RK+i}, v{HA+i}, v{v64c}")
        a("s_mov_b64 exec, -1")
    for i in range(NR):
        if i == NR - 1:
            a(f"s_lshl_b32 s{sT0}, s{sW}, 6")
            a(f"s_add_u32 s{sT0}, s{sT0}, {EA_TAIL}")
            a(f"v_add_u32 v{vIdx}, s{sT0}, v{vLane}")
        a(f"v_mov_b32_sdwa v{KEYR+i}, v{vIdx} dst_sel:WORD_0 dst_unused:UNUSED_PRESERVE src0_sel:DWORD")
        if i < NR - 2:
            a(f"v_add_u32 v{vIdx}, {253 if i % 4 == 3 else 1}, v{vIdx}")
    sb_arrive(0)
    a(f"s_cmp_ge_u32 s{sW}, 7")
    a("s_cbranch_scc1 K2_W5")
    a(f"v_cmp_gt_u32 vcc, {BN}, v0")
    a(f"v_lshlrev_b32 v{T}, 2, v0")
    a(f"v_and_b32 v{T+8}, 7, v0")
    a(f"v_lshlrev_b32 v{T+8}, 4, v{T+8}")
    a(f"v_lshl_add_u32 v{T+8}, v0, 7, v{T+8}")
    a(f"s_mov_b64 s[{sSave}:{sSave+1}], vcc")
    sb_wait(0, NKW, "2")
    a.stamp(6)
    a.c("node phase A")
    a(f"s_mov_b64 exec, s[{sSave}:{sSave+1}]")
    a(f"ds_read_b32 v{T+1}, v{T}")
    a("s_waitcnt lgkmcnt(0)")
    a(f"v_lshrrev_b32 v{T+1}, 6, v{T+1}")
    a(f"v_min_u32 v{T+2}, 63, v{T+1}")
    a(f"v_sub_u32 v{T+2}, 63, v{T+2}")
    a(f"v_lshlrev_b32 v{T+2}, 2, v{T+2}")
    a(f"ds_add_rtn_u32 v{T+3}, v{T+2}, v{T+15} offset:{L_DH}")
    a(f"v_add_u32 v{T+7}, 1, v{T+1}")
    a(f"v_lshrrev_b32 v{T+7}, 1, v{T+7}")
    a(f"v_max_u32 v{T+7}, 1, v{T+7}")
    sb_arrive(1)
    sb_wait(1, 7, "3")
    a.stamp(7)
    a.c("node phase B")
    a(f"ds_read_b32 v{T+5}, v{vL4} offset:{L_DH}")
    a("s_waitcnt lgkmcnt(0)")
    a(f"v_mov_b32 v{T+6}, v{T+5}")
    scan64(a, T + 6)
    a(f"v_sub_u32 v{T+6}, v{T+6}, v{T+5}")
    a("s_nop 0")
    a(f"ds_bpermute_b32 v{T+9}, v{T+2}, v{T+6}")
    a("s_waitcnt lgkmcnt(0)")
    a(f"s_mov_b64 exec, s[{sSave}:{sSave+1}]")
    a(f"v_add_u32 v{T+3}, v{T+3}, v{T+9}")
    a(f"v_lshlrev_b32 v{T+9}, 2, v{T+3}")
    a(f"ds_write_b32 v{T+9}, v{T+8} offset:{L_ORD}")
    a(f"v_lshrrev_b32 v{T+10}, 4, v{T+3}")
    a(f"v_lshlrev_b32 v{T+10}, 2, v{T+10}")
    a(f"ds_max_u32 v{T+10}, v{T+7} offset:{L_BST}")
    a(f"v_and_b32 v{T+9}, 60, v{T+9}")
    sb_arrive(2)
    sb_wait(2, 7, "4")
    a.stamp(8)
    a.c("node phase C")
    a(f"ds_read_b32 v{T+5}, v{vL4} offset:{L_BST}")
    a("s_waitcnt lgkmcnt(0)")
    a(f"v_min_u32 v{T+5}, 0x1ff, v{T+5}")
    a(f"v_lshlrev_b32 v{T+5}, 7, v{T+5}")
    a(f"v_mov_b32 v{T+6}, v{T+5}")
    scan64(a, T + 6)
    a("s_nop 0")
    a(f"v_readlane_b32 s{sT0}, v{T+6}, 63")
    a(f"v_sub_u32 v{T+6}, v{T+6}, v{T+5}")
    a(f"v_add_u32 v{T+6}, {L_ELL}, v{T+6}")
    a("s_nop 1")
    a(f"ds_bpermute_b32 v{T+10}, v{T+10}, v{T+6}")
    a(f"s_cmp_le_u32 s{sT0}, {CAP*4}")
    a("s_cbranch_scc1 K2_NC_OK")
    a(f"ds_write_b32 v123, v{T+15} offset:{L_FLAG}")
    a.lab("K2_NC_OK")
    a("s_waitcnt lgkmcnt(0)")
    a(f"s_mov_b64 exec, s[{sSave}:{sSave+1}]")
    a(f"v_add_u32 v{T+10}, v{T+10}, v{T+9}")
    a(f"ds_write_b32 v{T}, v{T+10}")
    sb_arrive(3)
    a.lab("K2_W5")
    sb_wait(3, 8, "5")
    a.stamp(9)
    a(f"ds_read_b32 v{T+8}, v123 offset:{L_FLAG}")
    for i in range(NR):
        a(f"s_mov_b64 exec, s[{sM+2*i}:{sM+2*i+1}]")
        a(f"ds_read_b32 v{HA+i}, v{HA+i}")
    a("s_mov_b64 exec, -1")
    a("s_waitcnt lgkmcnt(0)")
    a(f"v_cmp_ne_u32 vcc, 0, v{T+8}")
    a("s_cbranch_vccnz K2_NOSC")
    for i in range(NR):
        a(f"v_add_u32 v{HA+i}, v{HA+i}, v{RK+i}")
        a(f"s_mov_b64 exec, s[{sM+2*i}:{sM+2*i+1}]")
        a(f"ds_write_b32 v{HA+i}, v{KEYR+i}")
        a("s_mov_b64 exec, -1")
    a.lab("K2_NOSC")
    batchinfo()
    a(f"s_lshl_b32 s{sT2}, s{sW}, 9")
    a(f"s_add_u32 s{sT2}, s{sT2}, {L_EA + EA_TAIL*8}")
    a(f"v_lshl_add_u32 v63, v{vLane}, 3, s{sT2}")
    a(f"ds_write_b64 v63, v[{ET}:{ET+1}]")
    a.stamp(10)
    a("s_branch K2_FINB")
    a.lab("K2_LW")
    a(f"v_lshrrev_b32 v{T+4}, 5, v{vLane}")
    a(f"v_lshlrev_b32 v{T+5}, 2, v{T+4}")
    a(f"v_and_b32 v{T+6}, 31, v{vLane}")
    a(f"v_lshlrev_b32 v{T+7}, 1, v{T+6}")
    a(f"v_lshlrev_b32 v{T+6}, 4, v{T+6}")
    a(f"s_mov_b32 s{sT0}, {CH*8}")
    a(f"v_mad_u32_u24 v{T+6}, v{T+4}, s{sT0}, v{T+6}")
    a(f"s_lshl_b32 s{sT0}, s{sT3}, 9")
    a(f"v_add_u32 v{T+8}, s{sT0}, v{vL16}")
    a("s_waitcnt vmcnt(0)")
    a(f"v_mov_b32 v{vDesc}, v3")
    consts()
    wcloads()
    a(f"s_mul_i32 s{sT2}, s{sT3}, {CH*8}")
    a(f"s_add_u32 s{sT2}, s{sT2}, {EAT_OFF}")
    a.stamp(2)
    a(f"s_cmp_eq_u32 s{sW}, 15")
    a("s_cbranch_scc1 K2_SW")
    BP = 105
    for q in range(8):
        a(f"ds_bpermute_b32 v{BP+q}, v{T+5}, v{vDesc} offset:{8*q}")
    a("s_waitcnt lgkmcnt(0)")
    a("s_barrier")
    a.stamp(1)
    LWD = [16, 20, 24, 28, 32, 36, 40, 44, 48, 52, 56, 60, 96, 100, 6, 10]
    a(f"s_lshl_b32 s{sT0}, s{sT3}, 9")
    a(f"s_add_u32 s{sT0}, s{sT0}, {L_EA}")
    for q in range(16):
        b = BP + (q % 8)
        a(f"v_lshrrev_b32 v{T+9}, 16, v{b}")
        a(f"v_lshlrev_b32_sdwa v{T+10}, 3, v{b} dst_sel:DWORD dst_unused:UNUSED_PAD src0_sel:DWORD src1_sel:WORD_0")
        a(f"v_cmp_gt_u32 vcc, v{T+9}, v{T+7}")
        a(f"v_add_u32 v{T+10}, v{T+10}, v{T+6}")
        if q < 8:
            a(f"ds_bpermute_b32 v{b}, v{T+5}, v{vDesc} offset:{8*(q+8)}")
        a("s_or_b64 exec, vcc, 1")
        if "eadma" in OPTS:
            a(f"s_mov_b32 m0, s{sT0}")
            a(f"s_add_u32 s{sT0}, s{sT0}, 1024")
            a(f"buffer_load_dwordx4 v{T+10}, s[{SWS}:{SWS+3}], s{sT2} offen{LD} lds")
        else:
            a(f"buffer_load_dwordx4 v[{LWD[q]}:{LWD[q]+3}], v{T+10}, s[{SWS}:{SWS+3}], s{sT2} offen{LD}")
        a("s_mov_b64 exec, -1")
        if q < 15:
            a(f"s_add_u32 s{sT2}, s{sT2}, {2*CH*8}")
        if q == 7:
            a("s_waitcnt lgkmcnt(0)")
    a.stamp(5)
    unsafe_or()
    for q in range(16 if "eadma" not in OPTS else 0):
        a(f"s_waitcnt vmcnt({15-q})")
        if TCH and q == TCH[1]:
            sb_arrive(6)
        a(f"ds_write_b128 v{T+8}, v[{LWD[q]}:{LWD[q]+3}] offset:{L_EA + q*1024}")
    if TCH:
        pass
    a.stamp(10)
    a("s_branch K2_FINB")
    a.lab("K2_SW")
    a("s_waitcnt lgkmcnt(0)")
    for i in range(4):
        a(f"v_mov_b32 v{16+i}, {hex(DUMMY)}")
    a("s_barrier")
    a.stamp(1)
    for i in range(33):
        if i == 32:
            a("s_bfm_b64 exec, 32, 0")
        a(f"ds_write_b128 v{vL16}, v[16:19] offset:{L_ELL + i*1024}")
    sb_arrive(3)
    poll(a, "G", 53, 128, None, SLP)
    a(f"v_readfirstlane_b32 s{sT0}, v53")
    a("s_nop 3")
    a(f"s_lshr_b32 s{sT0}, s{sT0}, 16")
    a(f"s_or_b32 s95, s95, s{sT0}")
    unsafe_or()
    if TCH:
        a.c("warm this XCD's L2 with part of the P slice once most of the e_attr records have arrived")
        sb_wait(6, 4, "LI")
        a(f"s_lshr_b32 s{sT0}, s2, 3")
        a(f"s_mul_i32 s{sT0}, s{sT0}, {782*128}")
        a(f"v_lshlrev_b32 v52, 7, v{vLane}")
        for i in range(TCH[0]):
            a(f"buffer_load_dword v{24+i}, v52, s[{SP}:{SP+3}], s{sT0} offen{LD}")
            a(f"s_add_u32 s{sT0}, s{sT0}, 8192")
        a(f"s_waitcnt vmcnt({TCH[0]})")
        a("s_branch K2_FINC")
    a.stamp(10)
    a.lab("K2_FINB")
    a("s_mov_b64 exec, -1")
    a.c("Wc magnitude check (|w| < 2)")
    a("s_waitcnt vmcnt(0)")
    a.lab("K2_FINC")
    a(f"v_or3_b32 v{T}, v{WR}, v{WR+1}, v{WR+2}")
    a(f"v_or3_b32 v{T+1}, v{WR+3}, v{WR+4}, v{WR+5}")
    a(f"v_or3_b32 v{T}, v{WR+6}, v{WR+7}, v{T}")
    a(f"v_or_b32 v{T}, v{T}, v{T+1}")
    a(f"v_and_b32 v{T}, 0x40004000, v{T}")
    a(f"v_cmp_ne_u32 vcc, 0, v{T}")
    a("s_cbranch_vccz K2_WOK")
    a(f"ds_or_b32 v{T+14}, v{T+15} offset:32")
    a.lab("K2_WOK")
    wperm()
    a("s_waitcnt lgkmcnt(0)")
    a.stamp(12)
    a("s_barrier")
    a(f"s_cmp_lt_u32 s{sW}, {NKW}")
    a("s_cbranch_scc1 K2_HAVEBI")
    batchinfo()
    a.lab("K2_HAVEBI")
    a(f"s_cmp_lg_u32 s{sOvf}, 0")
    a("s_cbranch_scc1 K2_FALLBACK")
    a(f"s_mov_b32 s{sKK}, {hex(NL2E)}")
    a(f"s_mov_b32 s{sKK+1}, {hex(NL2E)}")
    a(f"ds_read_b32 v{D+2}, v{T+14} offset:32")
    auread(NA)
    a.stamp(13)
    a.stampc(30)

    sw_sites = []

    def advance(tag):
        a(f"s_add_u32 s{sA}, s{sA}, 128")
        a(f"s_sub_u32 s{sCntS}, s{sCntS}, 1")
        a(f"s_cbranch_scc1 K2_SW{tag}")
        a.lab(f"K2_SWR{tag}")
        sw_sites.append(tag)

    def gathers(P):
        for j in range(4):
            a(f"v_add_u32_dpp v{AD+j}, v{vSrc}, v{vC8} quad_perm:[{j},{j},{j},{j}] row_mask:0xf bank_mask:0xf")
        for j in range(4):
            a(f"buffer_load_dwordx4 v[{P+4*j}:{P+4*j+3}], v{AD+j}, s[{SP}:{SP+3}], 0 offen{G_LD}")

    def split(S):
        a(f"v_lshlrev_b32_sdwa v{vSrc}, 7, v{S} dst_sel:DWORD dst_unused:UNUSED_PAD src0_sel:DWORD src1_sel:WORD_1")
        a(f"v_lshlrev_b32_sdwa v{vEa}, 3, v{S} dst_sel:DWORD dst_unused:UNUSED_PAD src0_sel:DWORD src1_sel:WORD_0")

    def setup_ac():
        for m in range(4):
            a(f"v_cvt_f32_f16 v{AC+4*m}, v{ACC+m}")
            a(f"v_cvt_f32_f16 v{AC+4*m+2}, v{ACC+4+m}")
        for m in range(4):
            a(f"v_mov_b32 v{AC+4*m+1}, v{AC+4*m}")
            a(f"v_mov_b32 v{AC+4*m+3}, v{AC+4*m+2}")

    def compute(P):
        for m in range(4):
            for j in range(4):
                a(f"v_fma_mix_f32 v{D+4*m+j}, v{D+4*m+j}, s{sK}, v{P+4*j+m} op_sel_hi:[0,0,1]")
        for i in range(16):
            a(f"v_exp_f32 v{D+i}, v{D+i}")
        for i in range(8):
            a(f"v_pk_add_f32 v[{D+2*i}:{D+2*i+1}], v[{D+2*i}:{D+2*i+1}], 1.0 op_sel_hi:[1,0]")
        for j in range(4):
            r = R + 4 * (j & 1)
            for m in range(4):
                a(f"v_rcp_f32 v{r+m}, v{D+4*m+j}")
            acc = ACC + 4 * (j >> 1)
            a(f"v_pk_fma_f32 v[{acc}:{acc+1}], v[{P+4*j}:{P+4*j+1}], v[{r}:{r+1}], v[{acc}:{acc+1}]")
            a(f"v_pk_fma_f32 v[{acc+2}:{acc+3}], v[{P+4*j+2}:{P+4*j+3}], v[{r+2}:{r+3}], v[{acc+2}:{acc+3}]")

    def pk(op, d, *src, mod=""):
        a(f"v_pk_{op}_f32 v[{d}:{d+1}], " + ", ".join(x if isinstance(x, str) else f"v[{x}:{x+1}]" for x in src) + mod)

    def compute_fast(P):
        for j in range(4):
            for m in range(4):
                a(f"v_fma_mix_f32 v{D+4*m+j}, v{D+4*m+j}, s{sK}, v{P+4*j+m} op_sel_hi:[0,0,1]")

        def exps(j0):
            for m in range(4):
                a(f"v_exp_f32 v{R+m}, v{D+4*m+j0}")
            for m in range(4):
                a(f"v_exp_f32 v{R+4+m}, v{D+4*m+j0+1}")

        def mid(j0):
            H1, H2 = P + 4 * j0, P + 4 * j0 + 4
            N, Q = (D + j0, D + 4 + j0), (D + 8 + j0, D + 12 + j0)
            for h in range(2):
                pk("add", R + 2 * h, R + 2 * h, "1.0", mod=" op_sel_hi:[1,0]")
            for h in range(2):
                pk("fma", N[h], H2 + 2 * h, R + 2 * h, H1 + 2 * h)
            for h in range(2):
                pk("fma", Q[h], R + 2 * h, R + 4 + 2 * h, R + 2 * h)
            for h in range(2):
                pk("fma", N[h], H1 + 2 * h, R + 4 + 2 * h, N[h])

        def rcps(j0):
            for q in (D + 8 + j0, D + 9 + j0, D + 12 + j0, D + 13 + j0):
                a(f"v_rcp_f32 v{q}, v{q}")

        def fin(j0):
            acc = ACC + 2 * j0
            pk("fma", acc, D + j0, D + 8 + j0, acc)
            pk("fma", acc + 2, D + 4 + j0, D + 12 + j0, acc + 2)
        exps(0)
        mid(0)
        exps(2)
        rcps(0)
        mid(2)
        fin(0)
        rcps(2)
        a("s_nop 0")
        fin(2)

    DP2 = "dp3" not in OPTS
    QUAD = DP2 and "noquad" not in OPTS
    if DP2:
        a(f"v_add_u32 v{vT}, s{sA}, v{vRec4}")
        a(f"ds_read_b32 v{D}, v{vT}")
        advance("F0")
        a(f"v_add_u32 v{vT}, s{sA}, v{vRec4}")
        a(f"ds_read_b32 v{vS}, v{vT}")
        a("s_waitcnt lgkmcnt(1)")
        split(D)
        a("s_nop 0")
        a(f"ds_read_b64 v[{EE}:{EE+1}], v{vEa} offset:{L_EA}")
        gathers(PP[0])
        setup_ac()

        def loop(sfx, comp):
            a.lab(f"K2_LOOP{sfx}")
            for ph in range(2):
                a("s_waitcnt lgkmcnt(0)")
                for m in range(4):
                    a(f"v_mfma_f32_4x4x4_16b_bf16 v[{D+4*m}:{D+4*m+3}], v[{EE}:{EE+1}], v[{WB+2*m}:{WB+2*m+1}], v[{AC+4*m}:{AC+4*m+3}]")
                split(vS)
                advance(f"L{sfx}{ph}")
                a(f"ds_read_b64 v[{EE}:{EE+1}], v{vEa} offset:{L_EA}")
                gathers(PP[ph ^ 1])
                a(f"v_add_u32 v{vT}, s{sA}, v{vRec4}")
                a(f"ds_read_b32 v{vS}, v{vT}")
                a("s_waitcnt vmcnt(4)")
                comp(PP[ph])
                a(f"s_sub_u32 s{sRem}, s{sRem}, 1")
                if ph < 1:
                    a(f"s_cbranch_scc0 K2_C{sfx}{ph}")
                    a(f"s_call_b64 s[{sRet}:{sRet+1}], K2_EPI")
                    a.lab(f"K2_C{sfx}{ph}")
                else:
                    a(f"s_cbranch_scc0 K2_LOOP{sfx}")
                    a(f"s_call_b64 s[{sRet}:{sRet+1}], K2_EPI")
                    a(f"s_branch K2_LOOP{sfx}")
    else:
        a(f"v_add_u32 v{vT}, s{sA}, v{vRec4}")
        a(f"ds_read_b32 v{D}, v{vT}")
        advance("F0")
        a(f"v_add_u32 v{vT}, s{sA}, v{vRec4}")
        a(f"ds_read_b32 v{D+1}, v{vT}")
        advance("F1")
        a(f"v_add_u32 v{vT}, s{sA}, v{vRec4}")
        a(f"ds_read_b32 v{vS}, v{vT}")
        a("s_waitcnt lgkmcnt(2)")
        split(D)
        a("s_nop 0")
        a(f"ds_read_b64 v[{EE}:{EE+1}], v{vEa} offset:{L_EA}")
        gathers(PP[0])
        a("s_waitcnt lgkmcnt(2)")
        split(D + 1)
        a("s_nop 1")
        gathers(PP[1])
        setup_ac()
        def loop(sfx, comp):
            for o in OPTS:
                if o.startswith("al="):
                    a(f".p2align {o[3:]}")
                if o.startswith("pad="):
                    for _ in range(int(o[4:])):
                        a("s_nop 0")
            a.lab(f"K2_LOOP{sfx}")
            for ph in range(3):
                a("s_waitcnt lgkmcnt(0)")
                for m in range(4):
                    a(f"v_mfma_f32_4x4x4_16b_bf16 v[{D+4*m}:{D+4*m+3}], v[{EE}:{EE+1}], v[{WB+2*m}:{WB+2*m+1}], v[{AC+4*m}:{AC+4*m+3}]")
                a(f"ds_read_b64 v[{EE}:{EE+1}], v{vEa} offset:{L_EA}")
                split(vS)
                advance(f"L{sfx}{ph}")
                gathers(PP[(ph + 2) % 3])
                a(f"v_add_u32 v{vT}, s{sA}, v{vRec4}")
                a(f"ds_read_b32 v{vS}, v{vT}")
                a("s_waitcnt vmcnt(8)")
                comp(PP[ph])
                a(f"s_sub_u32 s{sRem}, s{sRem}, 1")
                if ph < 2:
                    a(f"s_cbranch_scc0 K2_C{sfx}{ph}")
                    a(f"s_call_b64 s[{sRet}:{sRet+1}], K2_EPI")
                    a.lab(f"K2_C{sfx}{ph}")
                else:
                    a(f"s_cbranch_scc0 K2_LOOP{sfx}")
                    a(f"s_call_b64 s[{sRet}:{sRet+1}], K2_EPI")
                    a(f"s_branch K2_LOOP{sfx}")
    X = PP[2]

    def quad(P, second):
        for j in range(4):
            for m in range(4):
                a(f"v_fma_mix_f32 v{D+4*m+j}, v{D+4*m+j}, s{sK}, v{P+4*j+m} op_sel_hi:[0,0,1]")

        def exps(j0):
            for m in range(4):
                a(f"v_exp_f32 v{R+m}, v{D+4*m+j0}")
            for m in range(4):
                a(f"v_exp_f32 v{R+4+m}, v{D+4*m+j0+1}")

        def regs(j0):
            n1, q1 = (X + 4 * j0, X + 4 * j0 + 2), (X + 4 * j0 + 4, X + 4 * j0 + 6)
            n2, q2 = (D + j0, D + 4 + j0), (D + 8 + j0, D + 12 + j0)
            return n1, q1, n2, q2

        def mid(j0):
            H1, H2 = P + 4 * j0, P + 4 * j0 + 4
            n1, q1, n2, q2 = regs(j0)
            N, Q = (n2, q2) if second else (n1, q1)
            for h in range(2):
                pk("add", R + 2 * h, R + 2 * h, "1.0", mod=" op_sel_hi:[1,0]")
            for h in range(2):
                pk("fma", N[h], H2 + 2 * h, R + 2 * h, H1 + 2 * h)
            for h in range(2):
                pk("fma", Q[h], R + 2 * h, R + 4 + 2 * h, R + 2 * h)
            for h in range(2):
                pk("fma", N[h], H1 + 2 * h, R + 4 + 2 * h, N[h])

        def comb(j0):
            n1, q1, n2, q2 = regs(j0)
            for h in range(2):
                pk("mul", n1[h], n1[h], q2[h])
            for h in range(2):
                pk("mul", q2[h], q2[h], q1[h])
            for h in range(2):
                pk("fma", n1[h], n2[h], q1[h], n1[h])

        def rcps(j0):
            for q in (D + 8 + j0, D + 9 + j0, D + 12 + j0, D + 13 + j0):
                a(f"v_rcp_f32 v{q}, v{q}")

        def fin(j0):
            n1, q1, n2, q2 = regs(j0)
            acc = ACC + 2 * j0
            pk("fma", acc, n1[0], q2[0], acc)
            pk("fma", acc + 2, n1[1], q2[1], acc + 2)
        def rec(j0):
            n1, q1, n2, q2 = regs(j0)
            for e in range(2):
                H, Tt = P + 4 * (j0 + e), R + 4 * e
                for h in range(2):
                    pk("fma", n1[h], n1[h], Tt + 2 * h, n1[h])
                for h in range(2):
                    pk("fma", n1[h], H + 2 * h, q1[h], n1[h])
                for h in range(2):
                    pk("fma", q1[h], q1[h], Tt + 2 * h, q1[h])

        def rcpq(j0):
            for r in range(4):
                a(f"v_rcp_f32 v{X+4*j0+4+r}, v{X+4*j0+4+r}")

        def finq(j0):
            n1, q1, n2, q2 = regs(j0)
            acc = ACC + 2 * j0
            pk("fma", acc, n1[0], q1[0], acc)
            pk("fma", acc + 2, n1[1], q1[1], acc + 2)
        if second and "tree" not in OPTS:
            exps(0)
            rec(0)
            exps(2)
            rcpq(0)
            rec(2)
            finq(0)
            rcpq(2)
            a("s_nop 0")
            finq(2)
            return
        exps(0)
        mid(0)
        if second:
            comb(0)
        exps(2)
        if second:
            rcps(0)
        mid(2)
        if second:
            comb(2)
            fin(0)
            rcps(2)
            a("s_nop 0")
            fin(2)

    def qloop(name, other, ph0):
        a.lab(name)
        for k in range(2):
            ph = ph0 ^ k
            a("s_waitcnt lgkmcnt(0)")
            for m in range(4):
                a(f"v_mfma_f32_4x4x4_16b_bf16 v[{D+4*m}:{D+4*m+3}], v[{EE}:{EE+1}], v[{WB+2*m}:{WB+2*m+1}], v[{AC+4*m}:{AC+4*m+3}]")
            split(vS)
            advance(f"{name}{k}")
            a(f"ds_read_b64 v[{EE}:{EE+1}], v{vEa} offset:{L_EA}")
            gathers(PP[ph ^ 1])
            a(f"v_add_u32 v{vT}, s{sA}, v{vRec4}")
            a(f"ds_read_b32 v{vS}, v{vT}")
            a("s_waitcnt vmcnt(4)")
            quad(PP[ph], k == 1)
            a(f"s_sub_u32 s{sRem}, s{sRem}, 1")
            if k == 0:
                a(f"s_cbranch_scc0 {name}_C")
                a(f"s_call_b64 s[{sRet}:{sRet+1}], K2_EPIQ")
                a(f"s_branch {other}")
                a.lab(f"{name}_C")
            else:
                a(f"s_cbranch_scc0 {name}")
                a(f"s_call_b64 s[{sRet}:{sRet+1}], K2_EPI")
                a(f"s_branch {name}")
    a(f"v_cmp_ne_u32 vcc, 0, v{D+2}")
    if "safeonly" in OPTS:
        a("s_branch K2_LOOPS")
    a("s_cbranch_vccnz K2_LOOPS")
    if QUAD:
        qloop("K2_QX", "K2_QY", 0)
        qloop("K2_QY", "K2_QX", 1)
    else:
        loop("F", compute_fast)
    loop("S", compute)

    def epilogue(acc, tmp, nregs):
        for i in range(0, nregs, 2):
            a(f"v_pk_mul_f32 v[{tmp+i}:{tmp+i+1}], v[{acc+i}:{acc+i+1}], s[{sKK}:{sKK+1}]")
        for i in range(nregs):
            a(f"v_exp_f32 v{tmp+i}, v{tmp+i}")
        a("s_nop 0")
        for i in range(0, nregs, 2):
            a(f"v_pk_add_f32 v[{tmp+i}:{tmp+i+1}], v[{tmp+i}:{tmp+i+1}], 1.0 op_sel_hi:[1,0]")
        for i in range(nregs):
            a(f"v_rcp_f32 v{tmp+i}, v{tmp+i}")
        a("s_nop 0")
        for i in range(0, nregs, 2):
            a(f"v_pk_mul_f32 v[{tmp+i}:{tmp+i+1}], v[{tmp+i}:{tmp+i+1}], v[{acc+i}:{acc+i+1}]")
        for i in range(0, nregs, 2):
            a(f"v_cvt_pk_bf16_f32 v{tmp+i//2}, v{tmp+i}, v{tmp+i+1}")

    if QUAD:
        a.lab("K2_EPIQ")
        for j0 in (0, 2):
            for r in range(4):
                a(f"v_rcp_f32 v{X+4*j0+4+r}, v{X+4*j0+4+r}")
        for j0 in (0, 2):
            pk("fma", ACC + 2 * j0, X + 4 * j0, X + 4 * j0 + 4, ACC + 2 * j0)
            if j0 == 2:
                pass
            pk("fma", ACC + 2 * j0 + 2, X + 4 * j0 + 2, X + 4 * j0 + 6, ACC + 2 * j0 + 2)
    a.lab("K2_EPI")
    epilogue(ACC, D, 8)
    auread(N2)
    a(f"v_lshrrev_b32 v{AD}, 7, v{NA}")
    a(f"v_lshrrev_b32 v{AD+1}, 7, v{NA+1}")
    a(f"v_lshl_add_u32 v{AD}, v{AD}, 8, v{vCo}")
    a(f"v_lshl_add_u32 v{AD+1}, v{AD+1}, 8, v{vCo}")
    a(f"v_cmp_gt_u32 vcc, {BN*128}, v{NA}")
    a("s_mov_b64 exec, vcc")
    a(f"buffer_store_dwordx2 v[{D}:{D+1}], v{AD}, s[{SO}:{SO+3}], s{sOutOff} offen{K2_ST}")
    a("s_mov_b64 exec, -1")
    a(f"v_cmp_gt_u32 vcc, {BN*128}, v{NA+1}")
    a("s_mov_b64 exec, vcc")
    a(f"buffer_store_dwordx2 v[{D+2}:{D+3}], v{AD+1}, s[{SO}:{SO+3}], s{sOutOff} offen{K2_ST}")
    a("s_mov_b64 exec, -1")
    a(f"s_cmp_eq_u32 s{sN2}, 0")
    a("s_cbranch_scc1 K2_FIN")
    a.stamp(14)
    a(f"s_sub_u32 s{sRem}, s{sN2}, 1")
    a(f"s_mov_b32 s{sN2}, 0")
    a(f"v_mov_b32 v{NA}, v{N2}")
    a(f"v_mov_b32 v{NA+1}, v{N2+1}")
    a("s_waitcnt lgkmcnt(0)")
    setup_ac()
    a(f"s_setpc_b64 s[{sRet}:{sRet+1}]")
    a.lab("K2_FIN")
    a.stamp(15)
    a.stampc(31)
    a.stamp_flush(1, sW)
    a("s_endpgm")

    for tag in sw_sites:
        a.lab(f"K2_SW{tag}")
        a(f"s_mov_b32 s{sA}, s{sNxtA}")
        a(f"s_mov_b32 s{sCntS}, s{sNxtCnt}")
        a(f"s_mov_b32 s{sNxtA}, {L_DUM}")
        a(f"s_mov_b32 s{sNxtCnt}, 100")
        a(f"s_branch K2_SWR{tag}")

    a.lab("K2_TAIL")
    a(f"v_lshlrev_b32 v64, 3, v{vLane}")
    a.lab("K2_TAIL_LOOP")
    a(f"s_ff1_i32_b64 s{sT0}, s[{sTM}:{sTM+1}]")
    a(f"s_bitset0_b64 s[{sTM}:{sTM+1}], s{sT0}")
    a(f"v_readlane_b32 s{sT1}, v{vDesc}, s{sT0}")
    a(f"s_add_u32 s{sT0}, s{sT0}, s{sT3}")
    a(f"s_mul_i32 s{sT0}, s{sT0}, {CH}")
    a(f"s_and_b32 s{sT2}, s{sT1}, 0xffff")
    a(f"s_add_u32 s{sT0}, s{sT0}, s{sT2}")
    a(f"s_add_u32 s{sT0}, s{sT0}, 64")
    a(f"s_sub_u32 s{sT0}, s{sT0}, s{sSp}")
    a(f"s_lshr_b32 s{sT1}, s{sT1}, 16")
    a(f"s_sub_u32 s{sT1}, s{sT1}, 64")
    a(f"s_add_u32 s{sT2}, s{sSp}, s{sT1}")
    a(f"s_cmp_gt_u32 s{sT2}, 63")
    a("s_cbranch_scc1 K2_TAILF")
    a(f"s_bfm_b64 s[{sSave}:{sSave+1}], s{sT1}, s{sSp}")
    a(f"s_or_b64 s[{sM+24}:{sM+25}], s[{sM+24}:{sM+25}], s[{sSave}:{sSave+1}]")
    a(f"s_mov_b32 s{sSp}, s{sT2}")
    a(f"s_lshl_b32 s{sT1}, s{sT0}, 2")
    a(f"s_add_u32 s{sT1}, s{sT1}, {KEY_OFF}")
    a(f"s_lshl_b32 s{sT2}, s{sT0}, 3")
    a(f"s_add_u32 s{sT2}, s{sT2}, {EAT_OFF}")
    a(f"s_mov_b64 exec, s[{sSave}:{sSave+1}]")
    a(f"buffer_load_dword v{KEYR+12}, v{vL4}, s[{SWS}:{SWS+3}], s{sT1} offen{LD}")
    a(f"buffer_load_dwordx2 v[{ET}:{ET+1}], v64, s[{SWS}:{SWS+3}], s{sT2} offen{LD}")
    a("s_mov_b64 exec, -1")
    a(f"s_cmp_lg_u64 s[{sTM}:{sTM+1}], 0")
    a("s_cbranch_scc1 K2_TAIL_LOOP")
    a("s_branch K2_TAILR")
    a.lab("K2_TAILF")
    a(f"s_mov_b32 s{sOvf}, 1")
    a("s_branch K2_TAILR")

    L_AGG = L_EA
    a.lab("K2_FALLBACK")
    a("s_waitcnt vmcnt(0) lgkmcnt(0)")
    a(f"s_mov_b32 s{sKK}, {hex(NL2E)}")
    a(f"s_mov_b32 s{sKK+1}, {hex(NL2E)}")
    a("s_barrier")
    a("v_lshlrev_b32 v51, 4, v0")
    a(f"v_add_u32 v51, {L_AGG}, v51")
    for i in range(4):
        a(f"v_mov_b32 v{56+i}, 0")
    for i in range(4):
        a(f"ds_write_b128 v51, v[56:59] offset:{i*16384}")
    a("s_waitcnt lgkmcnt(0)")
    a("s_barrier")
    srd(a, SF0, 10, E * 4)
    srd(a, SF1, 8, E * 4)
    srd(a, SF2, 6, E * 8)
    a(f"s_mul_i32 s{sT3}, s{sBk}, {BN}")
    a(f"s_mul_i32 s{sT2}, s{sBk}, {BN*128}")
    a(f"s_lshl_b32 s{sT0}, s{sW}, 5")
    a(f"v_lshrrev_b32 v51, 1, v{vG8}")
    a.lab("K2_FB_LOOP")
    a(f"s_lshl_b32 s{sT1}, s{sT0}, 1")
    a(f"buffer_load_dword v52, v51, s[{SF0}:{SF0+3}], s{sT0} offen")
    a(f"buffer_load_dword v53, v51, s[{SF1}:{SF1+3}], s{sT0} offen")
    a(f"buffer_load_dwordx2 v[54:55], v{vG8}, s[{SF2}:{SF2+3}], s{sT1} offen")
    a("s_waitcnt vmcnt(0)")
    a(f"v_subrev_u32 v52, s{sT3}, v52")
    a(f"v_cmp_gt_u32 vcc, {BN}, v52")
    a("s_mov_b64 exec, vcc")
    a("s_cbranch_execz K2_FB_NEXT")
    a(f"v_lshl_add_u32 v53, v53, 7, v{vC8}")
    a("v_and_b32 v56, 7, v52")
    a("v_lshlrev_b32 v56, 4, v56")
    a(f"v_lshl_add_u32 v52, v52, 7, v{vC8}")
    a("v_xor_b32 v56, v56, v52")
    a(f"v_add_u32 v56, {L_AUR}, v56")
    a(f"buffer_load_dwordx4 v[16:19], v53, s[{SP}:{SP+3}], 0 offen{LD}")
    a("ds_read_b128 v[20:23], v56")
    a(f"v_add_u32 v52, {L_AGG}, v52")
    a("s_waitcnt vmcnt(0) lgkmcnt(0)")
    for m in range(4):
        a(f"v_cvt_f32_f16 v{20+m}, v{20+m}")
    for m in range(4):
        a(f"v_dot2_f32_bf16 v{20+m}, v54, v{WB+2*m}, v{20+m}")
    for m in range(4):
        a(f"v_dot2_f32_bf16 v{20+m}, v55, v{WB+2*m+1}, v{20+m}")
    a("s_nop 3")
    for m in range(4):
        a(f"v_fma_mix_f32 v{20+m}, v{20+m}, s{sK}, v{16+m} op_sel_hi:[0,0,1]")
    for m in range(4):
        a(f"v_exp_f32 v{20+m}, v{20+m}")
    a("s_nop 0")
    for m in range(4):
        a(f"v_add_f32 v{20+m}, 1.0, v{20+m}")
    for m in range(4):
        a(f"v_rcp_f32 v{20+m}, v{20+m}")
    a("s_nop 0")
    for m in range(4):
        a(f"v_mul_f32 v{20+m}, v{20+m}, v{16+m}")
    for m in range(4):
        a(f"ds_add_f32 v52, v{20+m} offset:{4*m}")
    a.lab("K2_FB_NEXT")
    a("s_mov_b64 exec, -1")
    a(f"s_add_u32 s{sT0}, s{sT0}, 512")
    a(f"s_cmp_lt_u32 s{sT0}, {E*4}")
    a("s_cbranch_scc1 K2_FB_LOOP")
    a("s_waitcnt lgkmcnt(0)")
    a("s_barrier")
    a(f"s_lshl_b32 s{sT0}, s{sW}, 10")
    a(f"v_lshlrev_b32 v51, 4, v{vG8}")
    a.lab("K2_FB_OUT")
    a(f"v_add_u32 v52, s{sT0}, v51")
    a(f"v_add_u32 v53, v52, v{vC8}")
    a(f"v_lshlrev_b32 v56, 1, v{vG8}")
    a("v_xor_b32 v56, v56, v53")
    a(f"v_min_u32 v56, {399*128+112}, v56")
    a(f"v_add_u32 v56, {L_AUR}, v56")
    a("ds_read_b128 v[16:19], v56")
    a(f"v_add_u32 v53, {L_AGG}, v53")
    a("ds_read_b128 v[20:23], v53")
    a("s_waitcnt vmcnt(0) lgkmcnt(0)")
    for m in range(4):
        a(f"v_add_f32 v{16+m}, v{16+m}, v{20+m}")
    epilogue(16, 24, 4)
    a(f"v_lshl_add_u32 v53, v52, 1, v{vCo}")
    a(f"v_cmp_gt_u32 vcc, {BN*128}, v52")
    a("s_mov_b64 exec, vcc")
    a(f"buffer_store_dwordx2 v[24:25], v53, s[{SO}:{SO+3}], s{sOutOff} offen{K2_ST}")
    a("s_mov_b64 exec, -1")
    a(f"s_add_u32 s{sT0}, s{sT0}, 16384")
    a(f"s_cmp_lt_u32 s{sT0}, {BN*128}")
    a("s_cbranch_scc1 K2_FB_OUT")
    a.lab("K2_END")
    a("s_endpgm")


def kd(name, vgpr, sgpr, extra=""):
    acc = (vgpr + 3) // 4 * 4
    return f""".amdhsa_kernel {name}
  .amdhsa_next_free_vgpr {vgpr}
  .amdhsa_next_free_sgpr {sgpr}
  .amdhsa_accum_offset {acc}
  .amdhsa_group_segment_fixed_size 0
  .amdhsa_kernarg_size 80
  .amdhsa_user_sgpr_count 2
  .amdhsa_user_sgpr_kernarg_segment_ptr 1
  .amdhsa_system_sgpr_workgroup_id_x 1
{extra}.end_amdhsa_kernel
"""


def main():
    out = HEADER
    if FUSED:
        out += f"; @launch grid=(256,1,1) block=(1024,1,1) lds={K1_LDS}\n"
    else:
        out += f"; @launch kernel=k1_kernel grid=(256,1,1) block=(1024,1,1) lds={K1_LDS}\n"
        out += f"; @launch kernel=k2_kernel grid=(256,1,1) block=(1024,1,1) lds={K2_LDS}\n"
    out += '.amdgcn_target "amdgcn-amd-amdhsa--gfx950"\n.text\n'
    for name, g in ((KNAME if FUSED else "k1_kernel", gen_k1), ("k2_kernel", gen_k2)):
        a = A()
        g(a)
        if not (FUSED and g is gen_k2):
            out += f".globl {name}\n.p2align 8\n.type {name},@function\n"
        out += "\n".join(a.l) + "\n"
    out += '.section .rodata,"a"\n.p2align 6\n'
    out += kd(KNAME if FUSED else "k1_kernel", 128, 102, "  .amdhsa_fp16_overflow 1\n")
    if not FUSED:
        out += ".p2align 6\n"
        out += kd("k2_kernel", 128, 102)
    path = sys.argv[1] if len(sys.argv) > 1 else "gather_scatter__edge_featured_mpnn_egc__graph.s"
    open(path, "w").write(out)


if __name__ == "__main__":
    main()
```

```python
import sys

N = 25000
E = 400000
NB = 64
BN = 391
CH = 3200
NCH = 125
PS = 25040 * 128
P_OFF = 0
AU_OFF = 0x1000000
KEY_OFF = 0x2000000
EAT_OFF = 0x2200000
DESC_OFF = 0x2800000
GCNT_OFF = 0x2810000
WS_USED = 0x2900000
NL2E = 0xBFB8AA3B
MAGIC = 85817

OPTS = set(sys.argv[2:])
STAMPS = "stamps" in OPTS
STAMP_OFF = 0x3000000
K1_ST = ""
K2_ST = " nt"
NT_E = "" if "noent" in OPTS else " nt"
NT_X = " nt" if "xnt" in OPTS else ""
FUSED = "split" not in OPTS
K1_ST = " sc1"
P_ST = " sc1 nt" if "pnt" in OPTS else (" sc0 sc1" if "p01" in OPTS else " sc1")
G_LD = "" if "gplain" in OPTS else " sc1"
LD = " sc1" if FUSED else ""
KNAME = "gather_scatter__edge_featured_mpnn_egc__graph_kernel"
SDB = 96
TCH = [tuple(int(x) for x in o[4:].split(",")) for o in OPTS if o.startswith("tch=")]
TCH = TCH[0] if TCH else None
TMAP = "notmap" not in OPTS
SLP = 1 if "slp1" in OPTS else 4
for o in OPTS:
    if o.startswith("k1st="):
        K1_ST = " " + o[5:].replace("+", " ")
    if o.startswith("k2st="):
        K2_ST = " " + o[5:].replace("+", " ")

HEADER = """; Kernarg layout for this problem (80 bytes, ptrs only, base s[0:1]):
"""


class A:
    def __init__(self):
        self.l = []
        self.vst = None

    def __call__(self, s):
        for x in s.strip().split("\n"):
            self.l.append("    " + x.strip())

    def lab(self, s):
        self.l.append(s + ":")

    def c(self, s):
        self.l.append("    ; " + s)

    def stamp(self, idx):
        if not STAMPS:
            return
        self("s_memrealtime s[100:101]")
        self("s_waitcnt lgkmcnt(0)")
        self(f"v_writelane_b32 v{self.vst}, s100, {idx}")

    def stampc(self, idx):
        if not STAMPS:
            return
        self("s_memtime s[100:101]")
        self("s_waitcnt lgkmcnt(0)")
        self(f"v_writelane_b32 v{self.vst}, s100, {idx}")

    def stamp_flush(self, kidx, sw):
        if not STAMPS:
            return
        self("s_mov_b64 exec, -1")
        self(f"s_add_u32 s12, s20, {STAMP_OFF + kidx*0x100000}")
        self("s_addc_u32 s13, s21, 0")
        self("s_mov_b32 s14, 0x100000")
        self("s_mov_b32 s15, 0x20000")
        self("s_lshl_b32 s100, s2, 12")
        self(f"v_mbcnt_lo_u32_b32 v{self.vst+1}, -1, 0")
        self(f"v_mbcnt_hi_u32_b32 v{self.vst+1}, -1, v{self.vst+1}")
        self(f"v_lshlrev_b32 v{self.vst+1}, 2, v{self.vst+1}")
        self(f"s_lshl_b32 s101, s{sw}, 8")
        self("s_add_u32 s100, s100, s101")
        self(f"buffer_store_dword v{self.vst}, v{self.vst+1}, s[12:15], s100 offen")


def srd(a, d, base, size, off=0):
    if off:
        a(f"s_add_u32 s{d}, s{base}, {off}")
        a(f"s_addc_u32 s{d+1}, s{base+1}, 0")
    else:
        a(f"s_mov_b32 s{d}, s{base}")
        a(f"s_mov_b32 s{d+1}, s{base+1}")
    a(f"s_mov_b32 s{d+2}, {size}")
    a(f"s_mov_b32 s{d+3}, 0x20000")


def scan64(a, v):
    for sh in (1, 2, 4, 8):
        a("s_nop 1")
        a(f"v_add_u32_dpp v{v}, v{v}, v{v} row_shr:{sh} row_mask:0xf bank_mask:0xf bound_ctrl:0")
    a("s_nop 1")
    a(f"v_add_u32_dpp v{v}, v{v}, v{v} row_bcast:15 row_mask:0xa bank_mask:0xf")
    a("s_nop 1")
    a(f"v_add_u32_dpp v{v}, v{v}, v{v} row_bcast:31 row_mask:0xc bank_mask:0xf")


K1_WP = 98304
K1_WAU = 102400
K1_CNT = 118784
K1_STK = K1_CNT + 2048
K1_STE = K1_STK + 12800
K1_SCR = 131072
L_AUR = 112640
L_GW = 103936
K1_LDS = 163840
assert K1_STE + 25600 <= K1_LDS


def poll(a, tag, vP, off, val=None, slp=2):
    a("s_mov_b32 s101, 0x40000")
    a("s_mov_b64 exec, 1")
    a.lab(f"POLL{tag}")
    a(f"buffer_load_dword v{vP}, off, s[{SDB}:{SDB+3}], 0 offset:{off} sc1")
    a("s_waitcnt vmcnt(0)")
    a(f"v_cmp_ne_u32 vcc, 0, v{vP}" if val is None else f"v_cmp_eq_u32 vcc, {val}, v{vP}")
    a("s_sub_u32 s101, s101, 1")
    a(f"s_cbranch_scc1 POLLD{tag}")
    a(f"s_cbranch_vccnz POLLD{tag}")
    a(f"s_sleep {slp}")
    a(f"s_branch POLL{tag}")
    a.lab(f"POLLD{tag}")
    a("s_mov_b64 exec, -1")


def gen_k1(a):
    sW, sSl, sBk, sT0, sT1, sT2, sT3 = 22, 23, 24, 25, 26, 27, 28
    sG = 29
    sEx = 30
    SD, SS, SE, SWS, SX, SWL, SWH = 32, 36, 40, 44, 48, 52, 56
    sScale, sOut, sS, sQ, sX0, sDl, sJ, sSlot = 60, 61, 62, 63, 64, 65, 66, 67
    sUns = 94
    vLane = 1
    VX = 40
    VW = 44
    a.lab(KNAME)
    a.vst = 11
    a("s_cmp_ge_u32 s2, 256")
    a("s_cbranch_scc1 K1_END2")
    a.stamp(0)
    a.stampc(30)
    a("s_load_dwordx16 s[4:19], s[0:1], 0")
    a("s_load_dwordx2 s[20:21], s[0:1], 72")
    a(f"s_load_dwordx2 s[{SDB}:{SDB+1}], s[0:1], 64")
    a("v_lshrrev_b32 v2, 6, v0")
    a(f"v_and_b32 v{vLane}, 63, v0")
    a(f"v_readfirstlane_b32 s{sW}, v2")
    a(f"s_mov_b32 s{SDB+2}, 256")
    a(f"s_mov_b32 s{SDB+3}, 0x20000")
    a(f"s_and_b32 s{sSl}, s2, 3")
    a(f"s_lshr_b32 s{sT0}, s2, 2")
    if "oldmap" in OPTS:
        a(f"s_mov_b32 s{sBk}, s{sT0}")
    else:
        a.c("bucket = 32*((wg>>2)&1) + (wg>>3): workgroups that share an L2 take neighbouring buckets")
        a(f"s_and_b32 s{sBk}, s{sT0}, 1")
        a(f"s_lshl_b32 s{sBk}, s{sBk}, 5")
        a(f"s_lshr_b32 s{sT1}, s2, 3")
        if TMAP:
            a(f"s_lshl_b32 s{sT2}, s2, 3")
            a(f"s_and_b32 s{sT2}, s{sT2}, 16")
            a(f"s_xor_b32 s{sT1}, s{sT1}, s{sT2}")
        a(f"s_or_b32 s{sBk}, s{sBk}, s{sT1}")
    if TMAP:
        a(f"s_mov_b32 s{sG}, s2")
    else:
        a(f"s_lshl_b32 s{sG}, s{sT0}, 1")
        a(f"s_add_u32 s{sG}, s{sG}, s{sSl}")
    a(f"s_mul_i32 s{sX0}, s{sBk}, {BN*256}")
    if TMAP:
        a(f"s_and_b32 s{sT2}, s2, 0x81")
        a(f"s_cmp_eq_u32 s{sT2}, 0x80")
    else:
        a(f"s_cmp_eq_u32 s{sSl}, 2")
    a(f"s_cselect_b32 s{sDl}, 1, 0")
    a("v_lshlrev_b32 v2, 4, v0")
    a("v_lshlrev_b32 v3, 5, v0")
    a(f"v_lshrrev_b32 v4, 4, v{vLane}")
    a(f"v_and_b32 v5, 15, v{vLane}")
    a("v_xor_b32 v6, v5, v4")
    a("v_lshlrev_b32 v6, 4, v6")
    a(f"v_lshl_add_u32 v{VX}, v4, 8, v6")
    a(f"v_xor_b32 v{VX+1}, 64, v{VX}")
    a(f"v_xor_b32 v{VX+2}, 0x80, v{VX}")
    a(f"v_xor_b32 v{VX+3}, 0xc0, v{VX}")
    a("v_lshrrev_b32 v6, 1, v5")
    a("v_xor_b32 v6, v6, v4")
    a("v_lshlrev_b32 v6, 5, v6")
    a("v_lshl_add_u32 v6, v4, 8, v6")
    a(f"v_and_b32 v7, 1, v{vLane}")
    a(f"v_lshl_add_u32 v{VW}, v7, 4, v6")
    a(f"v_xor_b32 v{VW+1}, 0x80, v{VW}")
    a(f"v_lshrrev_b32 v6, 2, v{vLane}")
    a("v_lshlrev_b32 v6, 8, v6")
    a(f"v_and_b32 v7, 3, v{vLane}")
    a(f"v_lshrrev_b32 v8, 4, v{vLane}")
    a("v_and_b32 v8, 2, v8")
    a("v_xor_b32 v7, v7, v8")
    a(f"v_lshl_add_u32 v{VW+2}, v7, 4, v6")
    if "icode" in OPTS:
        a.c("pull this kernel's code into the XCD's L2 (wave 15 of the first workgroups)")
        a(f"s_cmp_lg_u32 s{sW}, 15")
        a("s_cbranch_scc1 K1_NOIC")
        a("s_cmp_ge_u32 s2, 16")
        a("s_cbranch_scc1 K1_NOIC")
        a("s_getpc_b64 s[68:69]")
        a(f"v_lshlrev_b32 v60, 7, v{vLane}")
        a.lab("K1_ICB")
        a("global_load_dword v61, v60, s[68:69]")
        a("s_add_u32 s68, s68, 8192")
        a("s_addc_u32 s69, s69, 0")
        a("s_bfm_b64 exec, (K2_END-K1_ICB-8192)/128, 0")
        a("global_load_dword v62, v60, s[68:69]")
        a("s_mov_b64 exec, -1")
        a.lab("K1_NOIC")
    if "span" in OPTS:
        a("s_memrealtime s[100:101]")
    a("s_waitcnt lgkmcnt(0)")
    if "span" in OPTS:
        a("s_not_b32 s100, s100")
        a("v_mov_b32 v60, s100")
        a("s_mov_b64 exec, 1")
        a(f"buffer_atomic_umax v60, off, s[{SDB}:{SDB+3}], 0 offset:4 sc1")
        a("s_mov_b64 exec, -1")
    a.stamp(1)
    srd(a, SX, 4, N * 256)
    a("s_cmp_ge_u32 s2, 128" if TMAP else f"s_cmp_ge_u32 s{sSl}, 2")
    a("s_cbranch_scc1 K1_TB")

    def xdma(slot_sgpr, tag):
        a(f"s_lshl_b32 s{sT0}, s{slot_sgpr}, 12")
        a(f"s_mov_b32 m0, s{sT0}")
        a(f"s_sub_u32 s{sT1}, s{slot_sgpr}, s{sDl}")
        a(f"s_cselect_b32 s{sT1}, 24, s{sT1}")
        a(f"s_lshl_b32 s{sT1}, s{sT1}, 12")
        a(f"s_add_u32 s{sT1}, s{sT1}, s{sX0}")
        for pp in range(4):
            a(f"buffer_load_dwordx4 v{VX+pp}, s[{SX}:{SX+3}], s{sT1} offen offset:{pp*1024}{NT_X} lds")

    def waudma(piece_sgpr):
        a(f"s_lshl_b32 s{sT0}, s{piece_sgpr}, 10")
        a(f"s_add_u32 s{sT0}, s{sT0}, {K1_WAU}")
        a(f"s_mov_b32 m0, s{sT0}")
        a(f"s_and_b32 s{sT1}, s{piece_sgpr}, 7")
        a(f"s_lshl_b32 s{sT1}, s{sT1}, 12")
        a(f"s_lshl_b32 s{sT0}, s{sSl}, 6")
        a(f"s_add_u32 s{sT1}, s{sT1}, s{sT0}")
        a(f"s_cmp_lt_u32 s{piece_sgpr}, 8")
        a(f"s_cselect_b32 s{SWL}, s16, s12")
        a(f"s_cselect_b32 s{SWL+1}, s17, s13")
        a(f"s_mov_b32 s{SWL+2}, 32768")
        a(f"s_mov_b32 s{SWL+3}, 0x20000")
        a(f"buffer_load_dwordx4 v{VW+2}, s[{SWL}:{SWL+3}], s{sT1} offen lds")

    a(f"s_cmp_ge_u32 s{sG}, {NCH}")
    a("s_cbranch_scc1 K1_NOEDGE")
    a(f"s_cmp_ge_u32 s{sW}, 13")
    a("s_cbranch_scc1 K1_NOEDGE")
    srd(a, SD, 10, E * 4)
    srd(a, SS, 8, E * 4)
    srd(a, SE, 6, E * 8)
    a("v_cmp_gt_u32 vcc, 800, v0")
    a(f"s_mul_i32 s{sT0}, s{sG}, {CH*4}")
    a(f"s_mul_i32 s{sT1}, s{sG}, {CH*8}")
    a(f"s_mov_b64 s[{sEx}:{sEx+1}], vcc")
    a("s_mov_b64 exec, vcc")
    a(f"buffer_load_dwordx4 v[16:19], v2, s[{SD}:{SD+3}], s{sT0} offen{NT_E}")
    a(f"buffer_load_dwordx4 v[20:23], v2, s[{SS}:{SS+3}], s{sT0} offen{NT_E}")
    a(f"buffer_load_dwordx4 v[24:27], v3, s[{SE}:{SE+3}], s{sT1} offen{NT_E}")
    a(f"buffer_load_dwordx4 v[28:31], v3, s[{SE}:{SE+3}], s{sT1} offen offset:16{NT_E}")
    a("s_mov_b64 exec, -1")
    a.lab("K1_NOEDGE")
    srd(a, SWS, 20, WS_USED)
    a(f"v_lshlrev_b32 v6, 2, v{vLane}")
    a(f"v_add_u32 v6, {K1_CNT}, v6")
    a("v_mov_b32 v7, 0")
    a(f"v_mov_b32 v12, {K1_CNT+1024}")
    a(f"s_cmp_lg_u32 s{sW}, 0")
    a("s_cbranch_scc1 K1_P1")
    a("ds_write_b32 v6, v7")
    a("ds_write_b32 v6, v7 offset:256")
    a("ds_write_b32 v6, v7 offset:1024")
    a("s_waitcnt lgkmcnt(0)")
    a.lab("K1_P1")
    a("s_barrier")
    a(f"s_cmp_lt_u32 s{sW}, 13")
    a("s_cbranch_scc1 K1_PW")
    a.c("loader waves 13..15 : W_AU pieces and x tiles by LDS-DMA")
    a(f"s_sub_u32 s{sJ}, s{sW}, 13")
    a.lab("K1_LA1")
    waudma(sJ)
    a(f"s_add_u32 s{sJ}, s{sJ}, 3")
    a(f"s_cmp_lt_u32 s{sJ}, 16")
    a("s_cbranch_scc1 K1_LA1")
    a(f"s_sub_u32 s{sJ}, s{sW}, 13")
    H0 = [int(o[3:]) for o in OPTS if o.startswith("h0=")]
    if H0:
        a.c("edge loads first")
        a(f"s_cmp_ge_u32 s{sG}, {NCH}")
        a("s_cbranch_scc1 K1_H0D")
        a.lab("K1_H0")
        a(f"ds_read_b32 v13, v12 offset:{H0[0]}")
        a("s_waitcnt lgkmcnt(0)")
        a("v_cmp_gt_u32 vcc, 13, v13")
        a("s_cbranch_vccnz K1_H0")
        a.lab("K1_H0D")
    xdma(sJ, "A0")
    a(f"s_add_u32 s{sJ}, s{sJ}, 3")
    xdma(sJ, "A1")
    a(f"s_add_u32 s{sJ}, s{sJ}, 3")
    a("v_mov_b32 v7, 1")
    a("s_waitcnt vmcnt(8)")
    a("s_mov_b64 exec, 1")
    a("ds_add_u32 v12, v7 offset:12")
    a("s_mov_b64 exec, -1")
    HOLD = [int(o[5:]) for o in OPTS if o.startswith("hold=")]
    if HOLD:
        for h in range(HOLD[0] - 2):
            xdma(sJ, f"AH{h}")
            a(f"s_add_u32 s{sJ}, s{sJ}, 3")
        a.c("let the partition's record stores go out first")
        a(f"s_cmp_ge_u32 s{sG}, {NCH}")
        a("s_cbranch_scc1 K1_LA2")
        a.lab("K1_HOLD")
        a("ds_read_b32 v13, v12 offset:16")
        a("s_waitcnt lgkmcnt(0)")
        a("v_cmp_gt_u32 vcc, 13, v13")
        a("s_cbranch_vccnz K1_HOLD")
    a.lab("K1_LA2")
    xdma(sJ, "A")
    a(f"s_add_u32 s{sJ}, s{sJ}, 3")
    a(f"s_cmp_lt_u32 s{sJ}, 25")
    a("s_cbranch_scc1 K1_LA2")
    a.stamp(2)
    a("s_branch K1_AUA")
    a.lab("K1_PW")
    a(f"s_cmp_ge_u32 s{sG}, {NCH}")
    a("s_cbranch_scc1 K1_AUA")

    def sb(k, tag):
        a("s_waitcnt lgkmcnt(0)")
        a("s_mov_b64 exec, 1")
        a(f"ds_add_u32 v12, v7 offset:{4+4*k}")
        a("s_mov_b64 exec, -1")
        a.lab(f"K1_SB{tag}")
        a(f"ds_read_b32 v13, v12 offset:{4+4*k}")
        a("s_waitcnt lgkmcnt(0)")
        a("v_cmp_gt_u32 vcc, 13, v13")
        a(f"s_cbranch_vccnz K1_SB{tag}")
    a(f"s_mov_b32 s{sT0}, {MAGIC}")
    a(f"s_mov_b32 s{sT1}, {-BN & 0xffffffff}")
    a("v_mov_b32 v7, 1")
    a(f"s_mov_b64 exec, s[{sEx}:{sEx+1}]")
    a("s_waitcnt vmcnt(3)")
    a.stamp(3)
    for i in range(4):
        a(f"v_mul_u32_u24 v{32+i}, s{sT0}, v{16+i}")
    for i in range(4):
        a(f"v_lshrrev_b32 v{32+i}, 25, v{32+i}")
    for i in range(4):
        a(f"v_mad_i32_i24 v{16+i}, v{32+i}, s{sT1}, v{16+i}")
    for i in range(4):
        a(f"v_lshlrev_b32 v{32+i}, 2, v{32+i}")
    for i in range(4):
        a(f"v_add_u32 v{32+i}, {K1_CNT}, v{32+i}")
    for i in range(4):
        a(f"ds_add_rtn_u32 v{36+i}, v{32+i}, v7")
    for i in range(4):
        a(f"v_lshlrev_b32 v{16+i}, 2, v{16+i}")
    a("s_waitcnt vmcnt(2)")
    for i in range(4):
        a(f"v_lshl_or_b32 v{20+i}, v{20+i}, 16, v{16+i}")
    sb(0, "2")
    a.stamp(4)
    a("ds_read_b32 v8, v6")
    a("s_waitcnt lgkmcnt(0)")
    a("v_mov_b32 v9, v8")
    scan64(a, 9)
    a("v_sub_u32 v9, v9, v8")
    a("ds_write_b32 v6, v9 offset:512")
    a("v_lshl_or_b32 v8, v8, 16, v9")
    a(f"s_mov_b64 exec, s[{sEx}:{sEx+1}]")
    for i in range(4):
        a(f"ds_read_b32 v{32+i}, v{32+i} offset:512")
    a("s_waitcnt lgkmcnt(0)")
    for i in range(4):
        a(f"v_add_u32 v{32+i}, v{32+i}, v{36+i}")
    for i in range(4):
        a(f"v_lshlrev_b32 v{36+i}, 2, v{32+i}")
        a(f"v_lshlrev_b32 v{32+i}, 3, v{32+i}")
    for i in range(4):
        a(f"v_add_u32 v{36+i}, {K1_STK}, v{36+i}")
        a(f"v_add_u32 v{32+i}, {K1_STE}, v{32+i}")
    for i in range(4):
        a(f"ds_write_b32 v{36+i}, v{20+i}")
    a("s_waitcnt vmcnt(0)")
    for i in range(4):
        a(f"ds_write_b64 v{32+i}, v[{24+2*i}:{25+2*i}]")
    a("v_or3_b32 v16, v24, v25, v26")
    a("v_or3_b32 v17, v27, v28, v29")
    a("v_or3_b32 v16, v30, v31, v16")
    a("v_or_b32 v16, v16, v17")
    a("v_and_b32 v16, 0x40004000, v16")
    a("v_cmp_ne_u32 vcc, 0, v16")
    a(f"s_cmp_lg_u64 vcc, 0")
    a(f"s_cselect_b32 s{sUns}, 0x101, 1")
    sb(1, "3")
    a.stamp(5)
    a(f"s_mov_b64 exec, s[{sEx}:{sEx+1}]")
    a(f"v_add_u32 v6, {K1_STK}, v2")
    a("ds_read_b128 v[16:19], v6")
    a("ds_read_b128 v[20:23], v6 offset:12800")
    a("ds_read_b128 v[24:27], v6 offset:25600")
    a(f"s_mul_i32 s{sT0}, s{sG}, {CH*4}")
    a(f"s_add_u32 s{sT0}, s{sT0}, {KEY_OFF}")
    a(f"s_mul_i32 s{sT1}, s{sG}, {CH*8}")
    a(f"s_add_u32 s{sT1}, s{sT1}, {EAT_OFF}")
    a(f"s_add_u32 s{sT2}, s{sT1}, 12800")
    a("s_waitcnt lgkmcnt(2)")
    a(f"buffer_store_dwordx4 v[16:19], v2, s[{SWS}:{SWS+3}], s{sT0} offen{K1_ST}")
    a("s_waitcnt lgkmcnt(1)")
    a(f"buffer_store_dwordx4 v[20:23], v2, s[{SWS}:{SWS+3}], s{sT1} offen{K1_ST}")
    a("s_waitcnt lgkmcnt(0)")
    a(f"buffer_store_dwordx4 v[24:27], v2, s[{SWS}:{SWS+3}], s{sT2} offen{K1_ST}")
    a("s_mov_b64 exec, -1")
    a(f"s_cmp_lg_u32 s{sW}, 0")
    a("s_cbranch_scc1 K1_P2B")
    a(f"v_lshlrev_b32 v9, 2, v{vLane}")
    a(f"s_lshl_b32 s{sT0}, s{sG}, 8")
    a(f"s_add_u32 s{sT0}, s{sT0}, {DESC_OFF}")
    a(f"buffer_store_dword v8, v9, s[{SWS}:{SWS+3}], s{sT0} offen{K1_ST}")
    a.lab("K1_P2B")
    if HOLD:
        a("s_mov_b64 exec, 1")
        a("ds_add_u32 v12, v7 offset:16")
        a("s_mov_b64 exec, -1")
    a.c("publish the partition: the last of the 13 storing waves counts this workgroup into R")
    a(f"v_mov_b32 v15, s{sUns}")
    a("s_waitcnt vmcnt(0)")
    a("s_mov_b64 exec, 1")
    a("ds_add_rtn_u32 v14, v12, v15")
    a("s_waitcnt lgkmcnt(0)")
    a("v_add_u32 v14, v14, v15")
    a("v_and_b32 v15, 0xff, v14")
    a("v_cmp_eq_u32 vcc, 13, v15")
    a("s_cbranch_vccz K1_NOR2")
    a("v_lshrrev_b32 v14, 8, v14")
    a("v_lshl_or_b32 v14, v14, 16, 1")
    a("v_mov_b32 v15, v14")
    a(f"buffer_atomic_add v15, off, s[{SDB}:{SDB+3}], 0 sc0 sc1")
    a("s_waitcnt vmcnt(0)")
    a("v_add_u32 v15, v15, v14")
    a("v_and_b32 v14, 0xffff, v15")
    a(f"v_cmp_eq_u32 vcc, {NCH}, v14")
    a("s_cbranch_vccz K1_NOR2")
    a(f"buffer_store_dword v15, off, s[{SDB}:{SDB+3}], 0 offset:192 sc1")
    a.lab("K1_NOR2")
    a("s_mov_b64 exec, -1")
    a.stamp(6)
    a.lab("K1_AUA")
    a("ds_read_b32 v13, v12 offset:12")
    a("s_waitcnt lgkmcnt(0)")
    a("v_cmp_gt_u32 vcc, 3, v13")
    a("s_cbranch_vccnz K1_AUA")
    a("s_branch K1_AU")

    a.lab("K1_TB")
    a(f"s_add_u32 s{sT0}, s16, 32768")
    a(f"s_addc_u32 s{sT1}, s17, 0")
    a(f"s_cmp_lt_u32 s{sW}, 8")
    a(f"s_cselect_b32 s{SWH}, s{sT0}, s14")
    a(f"s_cselect_b32 s{SWH+1}, s{sT1}, s15")
    a(f"s_mov_b32 s{SWH+2}, 32768")
    a(f"s_mov_b32 s{SWH+3}, 0x20000")
    a(f"s_lshl_b32 s{sT0}, s{sW}, 12")
    a(f"s_add_u32 s{sT1}, s{sT0}, {K1_WP}")
    a(f"s_mov_b32 m0, s{sT1}")
    a(f"s_and_b32 s{sT0}, s{sT0}, 0x7fff")
    for pp in range(4):
        a(f"buffer_load_dwordx4 v{VW+(pp>>1)}, s[{SWH}:{SWH+3}], s{sT0} offen offset:{pp*1024} lds")
    srd(a, SWS, 20, WS_USED)

    def xup():
        a(f"s_cmp_ge_u32 s{sW}, 13")
        a("s_cbranch_scc1 K1_B0")
        a(f"s_lshl_b32 s{sJ}, s{sW}, 1")
        a(f"s_add_u32 s{sJ}, s{sJ}, 1")
        a(f"s_cmp_eq_u32 s{sW}, 12")
        a(f"s_cselect_b32 s{sJ}, 0, s{sJ}")
        xdma(sJ, "B")
        a.lab("K1_B0")
    if "wfirst" not in OPTS:
        xup()
    a(f"s_and_b32 s{sS}, s{sW}, 3")
    a(f"s_lshr_b32 s{sQ}, s{sW}, 2")
    a(f"v_lshrrev_b32 v2, 4, v{vLane}")
    a(f"v_and_b32 v3, 15, v{vLane}")
    a("v_lshrrev_b32 v48, 2, v3")
    a("v_and_b32 v49, 1, v2")
    a("v_lshl_or_b32 v49, v49, 2, v48")
    a(f"s_lshl_b32 s{sT0}, s{sS}, 1")
    a(f"v_xor_b32 v49, s{sT0}, v49")
    a("v_lshlrev_b32 v49, 5, v49")
    a("v_lshl_add_u32 v48, v2, 3, v48")
    a("v_lshl_add_u32 v48, v48, 8, v49")
    a(f"v_and_b32 v49, 3, v{vLane}")
    a("v_lshl_add_u32 v48, v49, 3, v48")
    a(f"v_add_u32 v48, {K1_WP}, v48")
    a("v_xor_b32 v49, 32, v48")
    a("v_and_b32 v10, 7, v3")
    a("v_xor_b32 v10, v10, v2")
    a("v_lshlrev_b32 v10, 4, v10")
    a("v_lshl_add_u32 v10, v3, 7, v10")
    a(f"s_lshl_b32 s{sT0}, s{sW}, 11")
    a(f"s_add_u32 s{sT0}, s{sT0}, {K1_SCR}")
    a(f"v_add_u32 v10, s{sT0}, v10")
    a("v_xor_b32 v0, 64, v10")
    a(f"v_lshlrev_b32 v2, 4, v{vLane}")
    a(f"v_add_u32 v2, s{sT0}, v2")
    a(f"v_lshrrev_b32 v3, 3, v{vLane}")
    a(f"v_and_b32 v28, 7, v{vLane}")
    a("v_xor_b32 v28, v28, v3")
    a("v_lshlrev_b32 v28, 4, v28")
    a("v_lshl_add_u32 v3, v3, 7, v28")
    a(f"s_mov_b32 s{sScale}, {hex(NL2E)}")
    if "wfirst" in OPTS:
        a("s_waitcnt vmcnt(0)")
        xup()
    else:
        a(f"s_cmp_ge_u32 s{sW}, 13")
        a("s_cbranch_scc1 K1_B1")
        a("s_waitcnt vmcnt(4)")
        a("s_branch K1_B2")
        a.lab("K1_B1")
        a("s_waitcnt vmcnt(0)")
        a.lab("K1_B2")
    a.stamp(2)
    a("s_barrier")
    WF = 64

    def wf(mat, ct, ks):
        return WF + ((mat * 2 + ct) * 4 + ks) * 4
    for ks in range(4):
        for mat in range(2):
            for ct in range(2):
                b = wf(mat, ct, ks)
                off = mat * 32768 + ks * 8192
                a(f"ds_read_b64_tr_b16 v[{b}:{b+1}], v{48+ct} offset:{off}")
                a(f"ds_read_b64_tr_b16 v[{b+2}:{b+3}], v{48+ct} offset:{off+1024}")
    a("s_waitcnt lgkmcnt(0)")
    a.stamp(3)
    a("s_barrier")
    waudma(sW)

    def xlate(tag):
        a(f"s_cmp_ge_u32 s{sW}, 12")
        a(f"s_cbranch_scc1 K1_B3{tag}")
        a(f"s_lshl_b32 s{sJ}, s{sW}, 1")
        a(f"s_add_u32 s{sJ}, s{sJ}, 2")
        xdma(sJ, "C")
        if tag:
            a("s_waitcnt vmcnt(4)")
            a("s_branch K1_B4")
        a.lab(f"K1_B3{tag}")
        if tag:
            a("s_waitcnt vmcnt(0)")
            a.lab("K1_B4")
    if "early" in OPTS:
        a("s_barrier")
        xlate("E")
    XF = [32, 48]

    def xconst():
        a(f"v_lshrrev_b32 v4, 4, v{vLane}")
        a(f"v_and_b32 v5, 15, v{vLane}")
        a("v_xor_b32 v4, v4, v5")
        a("v_lshlrev_b32 v4, 4, v4")
        a("v_lshl_add_u32 v5, v5, 8, v4")

    def xread(buf, slot_sgpr):
        a(f"s_lshl_b32 s{sT0}, s{slot_sgpr}, 12")
        a(f"v_add_u32 v6, s{sT0}, v5")
        a("v_xor_b32 v7, 64, v6")
        a("v_xor_b32 v8, 0x80, v6")
        a("v_xor_b32 v9, 0xc0, v6")
        for ks in range(4):
            a(f"ds_read_b128 v[{XF[buf]+4*ks}:{XF[buf]+4*ks+3}], v{6+ks}")

    def mfmas(buf, mid=None):
        for ks in range(4):
            for mat in range(2):
                for ct in range(2):
                    d = 16 + (mat * 2 + ct) * 4
                    b = wf(mat, ct, ks)
                    cin = "0" if ks == 0 else f"v[{d}:{d+3}]"
                    a(f"v_mfma_f32_16x16x32_bf16 v[{d}:{d+3}], v[{b}:{b+3}], v[{XF[buf]+4*ks}:{XF[buf]+4*ks+3}], {cin}")
            if ks == 0 and mid:
                mid()
    xconst()
    a(f"s_lshl_b32 s{sSlot}, s{sQ}, 1")
    a(f"s_add_u32 s{sSlot}, s{sSlot}, 1")
    a(f"s_mul_i32 s{sOut}, s{sS}, {PS}")
    a(f"s_lshr_b32 s{sT0}, s{sX0}, 1")
    a(f"s_add_u32 s{sOut}, s{sOut}, s{sT0}")
    a(f"s_sub_u32 s{sT0}, s{sSlot}, s{sDl}")
    a(f"s_lshl_b32 s{sT0}, s{sT0}, 11")
    a(f"s_add_u32 s{sOut}, s{sOut}, s{sT0}")
    a.stamp(4)
    a("v_mov_b32 v4, 0")
    if "early" not in OPTS:
        a("s_waitcnt vmcnt(0)")
    a.stamp(5)
    a("s_barrier")
    a.stamp(7)
    a.stampc(31)
    if "early" not in OPTS:
        xlate("")
    xread(0, sSlot)
    for i in range(4):
        buf = i & 1
        if i == 3:
            a.c("13th P tile (tile 24, slot 0): slice 2, set 0 only")
            a(f"s_cmp_lg_u32 s{sQ}, 0")
            a("s_cbranch_scc1 K1_PDONE")
            a(f"s_cmp_eq_u32 s{sDl}, 0")
            a("s_cbranch_scc1 K1_PDONE")
        if i < 2:
            a(f"s_add_u32 s{sSlot}, s{sSlot}, 8")
        elif i == 2:
            a(f"s_mov_b32 s{sSlot}, 0")
        a("s_waitcnt lgkmcnt(0)")
        mfmas(buf, (lambda: xread(buf ^ 1, sSlot)) if i < 3 else None)
        a("s_nop 7")
        for r in range(16, 32, 2):
            a(f"v_max3_f32 v4, abs(v{r}), abs(v{r+1}), v4")
        for ct in range(2):
            for j in range(4):
                a(f"v_fma_mixlo_f16 v{24+4*ct+j}, v{16+4*ct+j}, s{sScale}, 0")
        a("ds_write_b128 v10, v[24:27]")
        a("ds_write_b128 v0, v[28:31]")
        a("ds_read_b128 v[12:15], v2")
        a("ds_read_b128 v[16:19], v2 offset:1024")
        a("s_waitcnt lgkmcnt(1)")
        a(f"buffer_store_dwordx4 v[12:15], v3, s[{SWS}:{SWS+3}], s{sOut} offen{P_ST}")
        a("s_waitcnt lgkmcnt(0)")
        a(f"buffer_store_dwordx4 v[16:19], v3, s[{SWS}:{SWS+3}], s{sOut} offen offset:1024{P_ST}")
        a.stamp(8 + i)
        if i < 3:
            a(f"s_add_u32 s{sOut}, s{sOut}, 16384")
            a("s_nop 1")
    a.lab("K1_PDONE")
    a("v_cmp_le_f32 vcc, 2.0, v4")
    a("s_cbranch_vccz K1_PSAFE")
    a("v_mov_b32 v13, 0x10000")
    a("s_mov_b64 exec, 1")
    a(f"buffer_atomic_add v13, off, s[{SDB}:{SDB+3}], 0 offset:64 sc1")
    a("s_mov_b64 exec, -1")
    a.lab("K1_PSAFE")
    a.lab("K1_AU")
    xconst()
    a(f"v_lshrrev_b32 v2, 4, v{vLane}")
    a(f"v_and_b32 v3, 15, v{vLane}")
    a("v_lshrrev_b32 v48, 2, v3")
    a("v_lshl_add_u32 v48, v2, 3, v48")
    a("v_lshlrev_b32 v48, 6, v48")
    a(f"v_and_b32 v49, 3, v{vLane}")
    a("v_lshl_add_u32 v48, v49, 3, v48")
    a("v_and_b32 v49, 1, v2")
    a("v_lshl_add_u32 v48, v49, 5, v48")
    a(f"v_add_u32 v48, {K1_WAU}, v48")
    a("v_xor_b32 v49, 32, v48")
    a("s_waitcnt lgkmcnt(0)")
    for ks in range(4):
        for mat in range(2):
            for ct in range(2):
                b = wf(mat, ct, ks)
                off = mat * 8192 + ks * 2048
                a(f"ds_read_b64_tr_b16 v[{b}:{b+1}], v{48+ct} offset:{off}")
                a(f"ds_read_b64_tr_b16 v[{b+2}:{b+3}], v{48+ct} offset:{off+256}")
    a("v_and_b32 v10, 7, v3")
    a("v_xor_b32 v10, v10, v2")
    a("v_lshlrev_b32 v10, 4, v10")
    a("v_lshl_add_u32 v10, v3, 7, v10")
    a(f"v_add_u32 v10, {L_AUR}, v10")
    a(f"s_mov_b32 s{sSlot}, s{sW}")
    a.c("first chunk of this wave: key waves 12w (12 chunks), loader waves 32(w-11) (32 chunks)")
    a(f"s_mul_i32 s{sT2}, s{sW}, 12")
    a(f"s_lshl_b32 s{sT3}, s{sW}, 5")
    a(f"s_sub_u32 s{sT3}, s{sT3}, {32*11}")
    a(f"s_cmp_lt_u32 s{sW}, 11")
    a(f"s_cselect_b32 s{sT3}, s{sT2}, s{sT3}")
    a(f"s_cselect_b32 s{sT2}, 12, 32")
    a(f"s_bfm_b64 s[54:55], s{sT2}, 0")
    a(f"s_lshl_b32 s90, s{sT3}, 8")
    a(f"s_lshl_b32 s{sT1}, s{sBk}, 2")
    a(f"s_add_u32 s90, s90, s{sT1}")
    a(f"s_add_u32 s48, s20, {DESC_OFF}")
    a("s_addc_u32 s49, s21, 0")
    a(f"s_mov_b32 s50, {NCH*256}")
    a("s_mov_b32 s51, 0x20000")
    a.stamp(14)
    a("s_waitcnt vmcnt(0) lgkmcnt(0)")
    a.stamp(13)
    a("s_barrier")
    a.stamp(15)
    xread(0, sSlot)
    a(f"s_cmp_lg_u32 s{sW}, 15")
    a("s_cbranch_scc1 K1_NZ")
    a(f"v_lshlrev_b32 v14, 2, v{vLane}")
    a(f"v_add_u32 v14, {L_GW}, v14")
    a("v_mov_b32 v3, 0")
    a("ds_write_b32 v14, v3")
    a("s_cmp_lt_u32 s2, 128" if TMAP else f"s_cmp_lt_u32 s{sSl}, 2")
    a("s_cbranch_scc1 K1_NZ2")
    a.c("count this workgroup's P tiles in")
    a("v_mov_b32 v15, 1")
    a("v_mov_b32 v14, 1")
    a("s_mov_b64 exec, 1")
    a(f"buffer_atomic_add v14, off, s[{SDB}:{SDB+3}], 0 offset:64 sc0 sc1")
    a("s_mov_b64 exec, -1")
    a("s_branch K1_NZ2")
    a.lab("K1_NZ")
    a("s_mov_b64 exec, 1")
    a(f"buffer_load_dword v2, off, s[{SDB}:{SDB+3}], 0 offset:192 sc1")
    a("s_mov_b64 exec, -1")
    a(f"v_lshlrev_b32 v14, 8, v{vLane}")
    a.lab("K1_NZ2")
    a("v_mov_b32 v4, 0")
    a(f"s_mov_b32 s{sUns+1}, 0")
    a.stamp(16)
    for i in range(2):
        a(f"s_sub_u32 s{sT1}, s{sSlot}, s{sDl}")
        a(f"s_cselect_b32 s{sT1}, 24, s{sT1}")
        a(f"s_lshl_b32 s{sT1}, s{sT1}, 11")
        a(f"v_add_u32 v12, s{sT1}, v10")
        a("v_xor_b32 v13, 64, v12")
        if i == 0:
            a(f"s_add_u32 s{sSlot}, s{sSlot}, 16")
            a(f"s_min_u32 s{sJ}, s{sSlot}, 24")
        a("s_waitcnt lgkmcnt(0)")
        mfmas(i, (lambda: xread(1, sJ)) if i == 0 else None)
        a("s_nop 7")
        for r in range(16, 24, 2):
            a(f"v_max3_f32 v4, abs(v{r}), abs(v{r+1}), v4")
        for ct in range(2):
            for j in range(4):
                a(f"v_fma_mixlo_f16 v{24+4*ct+j}, v{16+4*ct+j}, 1.0, 0")
        a("ds_write_b128 v12, v[24:27]")
        a("ds_write_b128 v13, v[28:31]")
        if i == 0:
            a(f"s_cmp_eq_u32 s{sW}, 15")
            a("s_cbranch_scc1 K1_END")
            a.c("partition published? then fetch this wave's segment descriptors")
            a("s_mov_b64 exec, 1")
            a("s_waitcnt vmcnt(0)")
            a("v_cmp_ne_u32 vcc, 0, v2")
            a("s_cbranch_vccnz K1_ROK")
            poll(a, "R", 2, 192, None, SLP)
            a.lab("K1_ROK")
            a("s_mov_b64 exec, s[54:55]")
            a(f"buffer_load_dword v3, v14, s[48:51], s90 offen{LD}")
            a("s_mov_b64 exec, -1")
            a(f"v_readfirstlane_b32 s{sUns+1}, v2")
            a.stamp(17)
            a(f"s_cmp_ge_u32 s{sSlot}, 25")
            a(f"s_lshr_b32 s{sUns+1}, s{sUns+1}, 16")
            a(f"s_cmp_ge_u32 s{sSlot}, 25")
            a("s_cbranch_scc1 K1_END")
    a.lab("K1_END")
    a("v_cmp_le_f32 vcc, 2.0, v4")
    a("s_cmp_lg_u64 vcc, 0")
    a(f"s_cselect_b32 s{sUns+1}, 1, s{sUns+1}")
    a.stamp(12)
    a.stampc(32)
    a.stamp_flush(0, sW)
    a.c("wave 15 waits until every partition workgroup has counted into R")
    a(f"s_cmp_lg_u32 s{sW}, 15")
    a("s_cbranch_scc1 K1_RDONE")
    a("s_cmp_lt_u32 s2, 128" if TMAP else f"s_cmp_lt_u32 s{sSl}, 2")
    a("s_cbranch_scc1 K1_NG")
    a("s_mov_b64 exec, 1")
    a("s_waitcnt vmcnt(0)")
    a("v_add_u32 v14, v14, v15")
    a("v_and_b32 v15, 0xffff, v14")
    a("v_cmp_eq_u32 vcc, 0x80, v15")
    a("s_cbranch_vccz K1_NG")
    a(f"buffer_store_dword v14, off, s[{SDB}:{SDB+3}], 0 offset:128 sc1")
    a.lab("K1_NG")
    a("s_mov_b64 exec, -1")
    a.lab("K1_RDONE")
    a(f"s_lshl_b32 s{sT0}, s{sW}, 6")
    a(f"v_add_u32 v0, s{sT0}, v{vLane}")
    a("s_branch K2_ENTRY")
    a.lab("K1_END2")
    a("s_endpgm")


CAP = 8192
L_CNT = 0
L_ORD = 2048
L_DH = 4096
L_BST = 4352
L_SB = 4608
L_FLAG = 4864
L_GD = L_FLAG + 4
L_ELL = 5120
L_DUM = L_ELL + CAP * 4
L_EA = L_DUM + 512
NKW = 11
EA_TAIL = NKW * 12 * 64
EA_ZERO = EA_TAIL + NKW * 64
assert L_EA + EA_ZERO * 8 + 8 <= L_AUR
DUMMY = 0xFFFF0000 | EA_ZERO
DUMMY_NODE = 399 * 128
NBATCH = (BN + 15) // 16
NR = 13


def gen_k2(a):
    assert FUSED
    sW, sSl, sBk = 22, 23, 24
    sT0, sT1, sT2, sT3 = 25, 26, 27, 28
    sK = 29
    sSp, sOvf = 30, 31
    SWS, SP, SO, SG = 32, 36, 40, 44
    SDS = 48
    sSave = 54
    sM = 56
    sKK = 56
    sRet = 82
    SA = 84
    SF0, SF1, SF2 = 64, 44, 60
    sTM, sEarly, sOutOff, sK2, sK1 = 88, 90, 91, 92, 93
    sA, sCntS, sNxtA, sNxtCnt, sRem, sN2 = 48, 49, 50, 51, 52, 53
    vLane, vC8, vG8, vRec4, vCo, vS, vSrc, vEa, vT = 1, 2, 3, 4, 5, 6, 7, 8, 9
    NA, N2, EE = 10, 12, 14
    ACC, AC, D = 16, 24, 40
    PP = [56, 72, 88]
    R, WB, vStg = 104, 112, 122
    AD = R
    KEYR, RK, HA = 24, 37, 50
    ET, WR, AU2 = 70, 88, 96
    vDesc = 104
    vL4, vL16, vIdx, v64c = 65, 66, 67, 68
    T = 72
    a.vst = 120

    def auread(n):
        a(f"v_xor_b32 v{vT}, v{n}, v{vC8}")
        a(f"v_xor_b32 v{AD+2}, v{n+1}, v{vC8}")
        a(f"v_add_u32 v{vT}, {L_AUR}, v{vT}")
        a(f"v_add_u32 v{AD+2}, {L_AUR}, v{AD+2}")
        a(f"ds_read_b128 v[{ACC}:{ACC+3}], v{vT}")
        a(f"ds_read_b128 v[{ACC+4}:{ACC+7}], v{AD+2}")

    def sb_arrive(k):
        a("s_waitcnt lgkmcnt(0)")
        a("s_mov_b64 exec, 1")
        a(f"ds_add_u32 v{T+14}, v{T+15} offset:{4*k}")
        a("s_mov_b64 exec, -1")

    def sb_wait(k, n, tag):
        a.lab(f"K2_SBW{tag}")
        a(f"ds_read_b32 v{T+13}, v{T+14} offset:{4*k}")
        a("s_waitcnt lgkmcnt(0)")
        a(f"v_cmp_gt_u32 vcc, {n}, v{T+13}")
        a(f"s_cbranch_vccnz K2_SBW{tag}")

    def batchinfo():
        a(f"s_lshl_b32 s{sT0}, s{sK1}, 6")
        a(f"v_add_u32 v{T}, s{sT0}, v{vG8}")
        a(f"ds_read_b64 v[{NA}:{NA+1}], v{T} offset:{L_ORD}")
        a(f"s_min_u32 s{sT0}, s{sK2}, 25")
        a(f"s_lshl_b32 s{sT0}, s{sT0}, 6")
        a(f"v_add_u32 v{T}, s{sT0}, v{vG8}")
        a(f"ds_read_b64 v[{N2}:{N2+1}], v{T} offset:{L_ORD}")
        a(f"ds_read_b32 v{T+4}, v{vL4} offset:{L_BST}")
        a(f"ds_read_b32 v{T+8}, v123 offset:{L_FLAG}")
        a("s_waitcnt lgkmcnt(0)")
        a(f"v_min_u32 v{T+4}, 0x1ff, v{T+4}")
        a(f"v_lshlrev_b32 v{T+5}, 7, v{T+4}")
        a(f"v_mov_b32 v{T+6}, v{T+5}")
        scan64(a, T + 6)
        a(f"v_readfirstlane_b32 s{sOvf}, v{T+8}")
        a(f"v_sub_u32 v{T+6}, v{T+6}, v{T+5}")
        a(f"v_add_u32 v{T+6}, {L_ELL}, v{T+6}")
        a("s_nop 0")
        a(f"v_readlane_b32 s{sA}, v{T+6}, s{sK1}")
        a(f"v_readlane_b32 s{sRem}, v{T+4}, s{sK1}")
        a(f"v_readlane_b32 s{sNxtA}, v{T+6}, s{sK2}")
        a(f"v_readlane_b32 s{sN2}, v{T+4}, s{sK2}")
        a("s_nop 3")
        a(f"s_sub_u32 s{sRem}, s{sRem}, 1")
        a(f"s_mov_b32 s{sCntS}, s{sRem}")
        a(f"s_sub_u32 s{sNxtCnt}, s{sN2}, 1")
        a(f"s_cmp_eq_u32 s{sN2}, 0")
        a(f"s_cselect_b32 s{sNxtA}, {L_DUM}, s{sNxtA}")
        a(f"s_cselect_b32 s{sNxtCnt}, 100, s{sNxtCnt}")

    def wperm():
        a(f"s_mov_b32 s{sT0}, 0x05040100")
        a(f"s_mov_b32 s{sT1}, 0x07060302")
        for m in range(4):
            sel = sT0 if m % 2 == 0 else sT1
            h = m >> 1
            a(f"v_perm_b32 v{WB+2*m}, v{WR+2+h}, v{WR+h}, s{sel}")
            a(f"v_perm_b32 v{WB+2*m+1}, v{WR+6+h}, v{WR+4+h}, s{sel}")

    def wcloads():
        a(f"s_lshl_b32 s{sT1}, s{sSl}, 6")
        a(f"s_add_u32 s{sT1}, s{sT1}, 65536")
        for k in range(4):
            a(f"buffer_load_dwordx2 v[{WR+2*k}:{WR+1+2*k}], v{vCo}, s[{SG}:{SG+3}], s{sT1} offen offset:{k*256}")

    def unsafe_or():
        a(f"v_mov_b32 v{T+12}, s95")
        a("s_mov_b64 exec, 1")
        a(f"ds_or_b32 v{T+14}, v{T+12} offset:32")
        a("s_mov_b64 exec, -1")

    a.lab("K2_ENTRY")
    a.stamp(0)
    a.stampc(29)
    a(f"v_mov_b32 v{vDesc}, v3") if False else None
    srd(a, SWS, 20, WS_USED)
    a(f"v_lshlrev_b32 v{vL4}, 2, v{vLane}")
    a(f"v_lshlrev_b32 v{vL16}, 4, v{vLane}")
    a(f"v_mov_b32 v{T+14}, {L_GW}")
    a(f"v_mov_b32 v{T+15}, 1")
    a("v_mov_b32 v123, 0")

    def consts():
        srd(a, SG, 16, 260 * 256)
        a(f"s_mul_i32 s{sT0}, s{sSl}, {PS}")
        a(f"s_add_u32 s{SP}, s20, s{sT0}")
        a(f"s_addc_u32 s{SP+1}, s21, 0")
        a(f"s_mov_b32 s{SP+2}, {N*128}")
        a(f"s_mov_b32 s{SP+3}, 0x20000")
        srd(a, SO, 18, N * 256)
        a(f"s_mov_b32 s{sK}, {hex(NL2E)}")
        a(f"v_and_b32 v{vCo}, 7, v{vLane}")
        a(f"v_lshlrev_b32 v{vCo}, 3, v{vCo}")
        a(f"v_lshlrev_b32 v{vC8}, 1, v{vCo}")
        a(f"v_and_b32 v{vG8}, 56, v{vLane}")
        a(f"v_and_b32 v64, 2, v{vLane}")
        a(f"v_lshl_add_u32 v{vRec4}, v64, 1, v{vG8}")
        a(f"v_and_b32 v64, 1, v{vLane}")
        a(f"v_lshl_add_u32 v{vRec4}, v64, 6, v{vRec4}")
        LISTS = [[0, 10, 11, 12, 20, 23], [1, 2, 7, 16, 17, 21], [6, 8, 9, 15, 18, 22, 24], [3, 4, 5, 13, 14, 19]]
        if "oldasg" in OPTS:
            LISTS = [[q, 7-q, 8+q, 15-q, 16+q, 23-q] + ([24] if q == 3 else []) for q in range(4)]
        assert sorted(sum(LISTS, [])) == list(range(NBATCH))
        a(f"s_and_b32 s{sT0}, s{sW}, 3")
        for q in range(4):
            L = LISTS[q] + [31] * (8 - len(LISTS[q]))
            if "ord2" in OPTS:
                X = LISTS[q]
                L = [X[0], X[1], X[2], X[-1], X[3], X[4], X[5] if len(X) > 6 else 31, 31]
            if "ord1" not in OPTS and "ord2" not in OPTS:
                X = LISTS[q]
                L = [X[0], X[2], X[4], X[-1], X[1], X[3], X[5] if len(X) > 6 else 31, 31]
            c1 = sum(L[r] << (8 * r) for r in range(4))
            c2 = sum(L[4 + r] << (8 * r) for r in range(4))
            if q == 0:
                a(f"s_mov_b32 s{sK1}, {hex(c1)}")
                a(f"s_mov_b32 s{sK2}, {hex(c2)}")
            else:
                a(f"s_cmp_eq_u32 s{sT0}, {q}")
                a(f"s_cselect_b32 s{sK1}, {hex(c1)}, s{sK1}")
                a(f"s_cselect_b32 s{sK2}, {hex(c2)}, s{sK2}")
        a(f"s_and_b32 s{sT1}, s{sW}, 12")
        a(f"s_lshl_b32 s{sT1}, s{sT1}, 1")
        a(f"s_lshr_b32 s{sK1}, s{sK1}, s{sT1}")
        a(f"s_lshr_b32 s{sK2}, s{sK2}, s{sT1}")
        a(f"s_and_b32 s{sK1}, s{sK1}, 0xff")
        a(f"s_and_b32 s{sK2}, s{sK2}, 0xff")
        a(f"s_mul_i32 s{sOutOff}, s{sBk}, {BN*256}")
        a(f"s_lshl_b32 s{sT0}, s{sSl}, 6")
        a(f"s_add_u32 s{sOutOff}, s{sOutOff}, s{sT0}")
    a(f"s_cmp_ge_u32 s{sW}, {NKW}")
    a("s_cbranch_scc1 K2_LW")
    a(f"v_lshrrev_b32 v{T}, 4, v{vLane}")
    a(f"v_lshlrev_b32 v{T+1}, 2, v{T}")
    a(f"s_mov_b32 s{sT0}, {CH*4}")
    a(f"v_and_b32 v{T+2}, 15, v{vLane}")
    a(f"v_lshlrev_b32 v{T+3}, 2, v{T+2}")
    a(f"v_lshlrev_b32 v{T+2}, 4, v{T+2}")
    a(f"v_mad_u32_u24 v{T+2}, v{T}, s{sT0}, v{T+2}")
    a(f"s_mov_b32 s{sSp}, 0")
    a(f"s_mov_b32 s{sOvf}, 0")
    a(f"s_mov_b64 s[{sM+24}:{sM+25}], 0")
    a(f"s_mul_i32 s{sT2}, s{sT3}, {CH*4}")
    a(f"s_add_u32 s{sT2}, s{sT2}, {KEY_OFF}")
    a(f"s_mov_b32 s{sT0}, 0x40ffff")
    a("s_waitcnt vmcnt(0)")
    a.stamp(2)
    a(f"v_mov_b32 v{vDesc}, v3")
    for h in range(3):
        a(f"ds_bpermute_b32 v{T+4+h}, v{T+1}, v3 offset:{16*h}")
    a(f"v_cmp_lt_u32 vcc, s{sT0}, v3")
    a(f"s_and_b64 s[{sTM}:{sTM+1}], vcc, s[{sSave}:{sSave+1}]")
    a("s_waitcnt lgkmcnt(0)")
    for h in range(3):
        a(f"v_lshrrev_b32 v{T+7+h}, 16, v{T+4+h}")
        a(f"v_lshlrev_b32_sdwa v{T+4+h}, 2, v{T+4+h} dst_sel:DWORD dst_unused:UNUSED_PAD src0_sel:DWORD src1_sel:WORD_0")
        a(f"v_cmp_gt_u32 s[{sM+8*h}:{sM+8*h+1}], v{T+7+h}, v{T+3}")
        a(f"v_add_u32 v{T+4+h}, v{T+4+h}, v{T+2}")
        a(f"s_or_b64 exec, s[{sM+8*h}:{sM+8*h+1}], 1")
        a(f"buffer_load_dwordx4 v[{KEYR+4*h}:{KEYR+4*h+3}], v{T+4+h}, s[{SWS}:{SWS+3}], s{sT2} offen{LD}")
        a("s_mov_b64 exec, -1")
        if h < 2:
            a(f"s_add_u32 s{sT2}, s{sT2}, {4*CH*4}")
    a(f"s_cmp_lg_u64 s[{sTM}:{sTM+1}], 0")
    a("s_cbranch_scc1 K2_TAIL")
    a.lab("K2_TAILR")
    a(f"v_lshlrev_b32 v{T}, 4, v0")
    for i in range(4):
        a(f"v_mov_b32 v{20+i}, 0")
    a.stamp(3)
    a("s_barrier")
    a.stamp(1)
    a(f"s_cmp_ge_u32 s{sW}, 6")
    a("s_cbranch_scc1 K2_INIT_DONE")
    a(f"s_cmp_eq_u32 s{sW}, 5")
    a("s_cbranch_scc1 K2_INIT_5")
    a(f"s_lshr_b32 s{sT0}, s{sW}, 1")
    a(f"s_cmp_eq_u32 s{sT0}, 1")
    a("s_cbranch_scc0 K2_INIT_Z")
    for i in range(4):
        a(f"v_mov_b32 v{20+i}, {DUMMY_NODE}")
    a.lab("K2_INIT_Z")
    a(f"ds_write_b128 v{T}, v[20:23]")
    a("s_branch K2_INIT_A")
    a.lab("K2_INIT_5")
    a(f"v_mov_b32 v64, {L_EA + EA_ZERO*8}")
    a("ds_write_b64 v64, v[20:21]")
    a.lab("K2_INIT_A")
    sb_arrive(5)
    a.lab("K2_INIT_DONE")
    unsafe_or()
    for c in range(1, 4):
        a(f"v_add_u32 v{T+3}, 1, v{T+3}")
        for h in range(3):
            a(f"v_cmp_gt_u32 s[{sM+8*h+2*c}:{sM+8*h+2*c+1}], v{T+7+h}, v{T+3}")
    a(f"s_lshl_b32 s{sT0}, s{sT3}, 6")
    a(f"v_add_u32 v{vIdx}, s{sT0}, v{vL4}")
    a(f"v_mov_b32 v{v64c}, 64")
    consts()
    wcloads()
    sb_wait(5, 6, "B1")
    a.stamp(4)
    a(f"s_cmp_eq_u32 s{sOvf}, 0")
    a("s_cbranch_scc1 K2_NOOVF")
    a(f"ds_write_b32 v123, v{T+15} offset:{L_FLAG}")
    a.lab("K2_NOOVF")
    a("s_waitcnt vmcnt(4)")
    a.stamp(5)
    for i in range(NR):
        a(f"v_and_b32 v{HA+i}, 0xffff, v{KEYR+i}")
        a(f"s_mov_b64 exec, s[{sM+2*i}:{sM+2*i+1}]")
        a(f"ds_add_rtn_u32 v{RK+i}, v{HA+i}, v{v64c}")
        a("s_mov_b64 exec, -1")
    for i in range(NR):
        if i == NR - 1:
            a(f"s_lshl_b32 s{sT0}, s{sW}, 6")
            a(f"s_add_u32 s{sT0}, s{sT0}, {EA_TAIL}")
            a(f"v_add_u32 v{vIdx}, s{sT0}, v{vLane}")
        a(f"v_mov_b32_sdwa v{KEYR+i}, v{vIdx} dst_sel:WORD_0 dst_unused:UNUSED_PRESERVE src0_sel:DWORD")
        if i < NR - 2:
            a(f"v_add_u32 v{vIdx}, {253 if i % 4 == 3 else 1}, v{vIdx}")
    sb_arrive(0)
    a(f"s_cmp_ge_u32 s{sW}, 7")
    a("s_cbranch_scc1 K2_W5")
    a(f"v_cmp_gt_u32 vcc, {BN}, v0")
    a(f"v_lshlrev_b32 v{T}, 2, v0")
    a(f"v_and_b32 v{T+8}, 7, v0")
    a(f"v_lshlrev_b32 v{T+8}, 4, v{T+8}")
    a(f"v_lshl_add_u32 v{T+8}, v0, 7, v{T+8}")
    a(f"s_mov_b64 s[{sSave}:{sSave+1}], vcc")
    sb_wait(0, NKW, "2")
    a.stamp(6)
    a.c("node phase A")
    a(f"s_mov_b64 exec, s[{sSave}:{sSave+1}]")
    a(f"ds_read_b32 v{T+1}, v{T}")
    a("s_waitcnt lgkmcnt(0)")
    a(f"v_lshrrev_b32 v{T+1}, 6, v{T+1}")
    a(f"v_min_u32 v{T+2}, 63, v{T+1}")
    a(f"v_sub_u32 v{T+2}, 63, v{T+2}")
    a(f"v_lshlrev_b32 v{T+2}, 2, v{T+2}")
    a(f"ds_add_rtn_u32 v{T+3}, v{T+2}, v{T+15} offset:{L_DH}")
    a(f"v_add_u32 v{T+7}, 1, v{T+1}")
    a(f"v_lshrrev_b32 v{T+7}, 1, v{T+7}")
    a(f"v_max_u32 v{T+7}, 1, v{T+7}")
    sb_arrive(1)
    sb_wait(1, 7, "3")
    a.stamp(7)
    a.c("node phase B")
    a(f"ds_read_b32 v{T+5}, v{vL4} offset:{L_DH}")
    a("s_waitcnt lgkmcnt(0)")
    a(f"v_mov_b32 v{T+6}, v{T+5}")
    scan64(a, T + 6)
    a(f"v_sub_u32 v{T+6}, v{T+6}, v{T+5}")
    a("s_nop 0")
    a(f"ds_bpermute_b32 v{T+9}, v{T+2}, v{T+6}")
    a("s_waitcnt lgkmcnt(0)")
    a(f"s_mov_b64 exec, s[{sSave}:{sSave+1}]")
    a(f"v_add_u32 v{T+3}, v{T+3}, v{T+9}")
    a(f"v_lshlrev_b32 v{T+9}, 2, v{T+3}")
    a(f"ds_write_b32 v{T+9}, v{T+8} offset:{L_ORD}")
    a(f"v_lshrrev_b32 v{T+10}, 4, v{T+3}")
    a(f"v_lshlrev_b32 v{T+10}, 2, v{T+10}")
    a(f"ds_max_u32 v{T+10}, v{T+7} offset:{L_BST}")
    a(f"v_and_b32 v{T+9}, 60, v{T+9}")
    sb_arrive(2)
    sb_wait(2, 7, "4")
    a.stamp(8)
    a.c("node phase C")
    a(f"ds_read_b32 v{T+5}, v{vL4} offset:{L_BST}")
    a("s_waitcnt lgkmcnt(0)")
    a(f"v_min_u32 v{T+5}, 0x1ff, v{T+5}")
    a(f"v_lshlrev_b32 v{T+5}, 7, v{T+5}")
    a(f"v_mov_b32 v{T+6}, v{T+5}")
    scan64(a, T + 6)
    a("s_nop 0")
    a(f"v_readlane_b32 s{sT0}, v{T+6}, 63")
    a(f"v_sub_u32 v{T+6}, v{T+6}, v{T+5}")
    a(f"v_add_u32 v{T+6}, {L_ELL}, v{T+6}")
    a("s_nop 1")
    a(f"ds_bpermute_b32 v{T+10}, v{T+10}, v{T+6}")
    a(f"s_cmp_le_u32 s{sT0}, {CAP*4}")
    a("s_cbranch_scc1 K2_NC_OK")
    a(f"ds_write_b32 v123, v{T+15} offset:{L_FLAG}")
    a.lab("K2_NC_OK")
    a("s_waitcnt lgkmcnt(0)")
    a(f"s_mov_b64 exec, s[{sSave}:{sSave+1}]")
    a(f"v_add_u32 v{T+10}, v{T+10}, v{T+9}")
    a(f"ds_write_b32 v{T}, v{T+10}")
    sb_arrive(3)
    a.lab("K2_W5")
    sb_wait(3, 8, "5")
    a.stamp(9)
    a(f"ds_read_b32 v{T+8}, v123 offset:{L_FLAG}")
    for i in range(NR):
        a(f"s_mov_b64 exec, s[{sM+2*i}:{sM+2*i+1}]")
        a(f"ds_read_b32 v{HA+i}, v{HA+i}")
    a("s_mov_b64 exec, -1")
    a("s_waitcnt lgkmcnt(0)")
    a(f"v_cmp_ne_u32 vcc, 0, v{T+8}")
    a("s_cbranch_vccnz K2_NOSC")
    for i in range(NR):
        a(f"v_add_u32 v{HA+i}, v{HA+i}, v{RK+i}")
        a(f"s_mov_b64 exec, s[{sM+2*i}:{sM+2*i+1}]")
        a(f"ds_write_b32 v{HA+i}, v{KEYR+i}")
        a("s_mov_b64 exec, -1")
    a.lab("K2_NOSC")
    batchinfo()
    a(f"s_lshl_b32 s{sT2}, s{sW}, 9")
    a(f"s_add_u32 s{sT2}, s{sT2}, {L_EA + EA_TAIL*8}")
    a(f"v_lshl_add_u32 v63, v{vLane}, 3, s{sT2}")
    a(f"ds_write_b64 v63, v[{ET}:{ET+1}]")
    a.stamp(10)
    a("s_branch K2_FINB")
    a.lab("K2_LW")
    a(f"v_lshrrev_b32 v{T+4}, 5, v{vLane}")
    a(f"v_lshlrev_b32 v{T+5}, 2, v{T+4}")
    a(f"v_and_b32 v{T+6}, 31, v{vLane}")
    a(f"v_lshlrev_b32 v{T+7}, 1, v{T+6}")
    a(f"v_lshlrev_b32 v{T+6}, 4, v{T+6}")
    a(f"s_mov_b32 s{sT0}, {CH*8}")
    a(f"v_mad_u32_u24 v{T+6}, v{T+4}, s{sT0}, v{T+6}")
    a(f"s_lshl_b32 s{sT0}, s{sT3}, 9")
    a(f"v_add_u32 v{T+8}, s{sT0}, v{vL16}")
    a("s_waitcnt vmcnt(0)")
    a(f"v_mov_b32 v{vDesc}, v3")
    consts()
    wcloads()
    a(f"s_mul_i32 s{sT2}, s{sT3}, {CH*8}")
    a(f"s_add_u32 s{sT2}, s{sT2}, {EAT_OFF}")
    a.stamp(2)
    a(f"s_cmp_eq_u32 s{sW}, 15")
    a("s_cbranch_scc1 K2_SW")
    BP = 105
    for q in range(8):
        a(f"ds_bpermute_b32 v{BP+q}, v{T+5}, v{vDesc} offset:{8*q}")
    a("s_waitcnt lgkmcnt(0)")
    a("s_barrier")
    a.stamp(1)
    LWD = [16, 20, 24, 28, 32, 36, 40, 44, 48, 52, 56, 60, 96, 100, 6, 10]
    a(f"s_lshl_b32 s{sT0}, s{sT3}, 9")
    a(f"s_add_u32 s{sT0}, s{sT0}, {L_EA}")
    for q in range(16):
        b = BP + (q % 8)
        a(f"v_lshrrev_b32 v{T+9}, 16, v{b}")
        a(f"v_lshlrev_b32_sdwa v{T+10}, 3, v{b} dst_sel:DWORD dst_unused:UNUSED_PAD src0_sel:DWORD src1_sel:WORD_0")
        a(f"v_cmp_gt_u32 vcc, v{T+9}, v{T+7}")
        a(f"v_add_u32 v{T+10}, v{T+10}, v{T+6}")
        if q < 8:
            a(f"ds_bpermute_b32 v{b}, v{T+5}, v{vDesc} offset:{8*(q+8)}")
        a("s_or_b64 exec, vcc, 1")
        if "eadma" in OPTS:
            a(f"s_mov_b32 m0, s{sT0}")
            a(f"s_add_u32 s{sT0}, s{sT0}, 1024")
            a(f"buffer_load_dwordx4 v{T+10}, s[{SWS}:{SWS+3}], s{sT2} offen{LD} lds")
        else:
            a(f"buffer_load_dwordx4 v[{LWD[q]}:{LWD[q]+3}], v{T+10}, s[{SWS}:{SWS+3}], s{sT2} offen{LD}")
        a("s_mov_b64 exec, -1")
        if q < 15:
            a(f"s_add_u32 s{sT2}, s{sT2}, {2*CH*8}")
        if q == 7:
            a("s_waitcnt lgkmcnt(0)")
    a.stamp(5)
    unsafe_or()
    for q in range(16 if "eadma" not in OPTS else 0):
        a(f"s_waitcnt vmcnt({15-q})")
        if TCH and q == TCH[1]:
            sb_arrive(6)
        a(f"ds_write_b128 v{T+8}, v[{LWD[q]}:{LWD[q]+3}] offset:{L_EA + q*1024}")
    if TCH:
        pass
    a.stamp(10)
    a("s_branch K2_FINB")
    a.lab("K2_SW")
    a("s_waitcnt lgkmcnt(0)")
    for i in range(4):
        a(f"v_mov_b32 v{16+i}, {hex(DUMMY)}")
    a("s_barrier")
    a.stamp(1)
    for i in range(33):
        if i == 32:
            a("s_bfm_b64 exec, 32, 0")
        a(f"ds_write_b128 v{vL16}, v[16:19] offset:{L_ELL + i*1024}")
    sb_arrive(3)
    poll(a, "G", 53, 128, None, SLP)
    a(f"v_readfirstlane_b32 s{sT0}, v53")
    a("s_nop 3")
    a(f"s_lshr_b32 s{sT0}, s{sT0}, 16")
    a(f"s_or_b32 s95, s95, s{sT0}")
    unsafe_or()
    if TCH:
        a.c("warm this XCD's L2 with part of the P slice once most of the e_attr records have arrived")
        sb_wait(6, 4, "LI")
        a(f"s_lshr_b32 s{sT0}, s2, 3")
        a(f"s_mul_i32 s{sT0}, s{sT0}, {782*128}")
        a(f"v_lshlrev_b32 v52, 7, v{vLane}")
        for i in range(TCH[0]):
            a(f"buffer_load_dword v{24+i}, v52, s[{SP}:{SP+3}], s{sT0} offen{LD}")
            a(f"s_add_u32 s{sT0}, s{sT0}, 8192")
        a(f"s_waitcnt vmcnt({TCH[0]})")
        a("s_branch K2_FINC")
    a.stamp(10)
    a.lab("K2_FINB")
    a("s_mov_b64 exec, -1")
    a.c("Wc magnitude check (|w| < 2)")
    a("s_waitcnt vmcnt(0)")
    a.lab("K2_FINC")
    a(f"v_or3_b32 v{T}, v{WR}, v{WR+1}, v{WR+2}")
    a(f"v_or3_b32 v{T+1}, v{WR+3}, v{WR+4}, v{WR+5}")
    a(f"v_or3_b32 v{T}, v{WR+6}, v{WR+7}, v{T}")
    a(f"v_or_b32 v{T}, v{T}, v{T+1}")
    a(f"v_and_b32 v{T}, 0x40004000, v{T}")
    a(f"v_cmp_ne_u32 vcc, 0, v{T}")
    a("s_cbranch_vccz K2_WOK")
    a(f"ds_or_b32 v{T+14}, v{T+15} offset:32")
    a.lab("K2_WOK")
    wperm()
    a("s_waitcnt lgkmcnt(0)")
    a.stamp(12)
    a("s_barrier")
    a(f"s_cmp_lt_u32 s{sW}, {NKW}")
    a("s_cbranch_scc1 K2_HAVEBI")
    batchinfo()
    a.lab("K2_HAVEBI")
    a(f"s_cmp_lg_u32 s{sOvf}, 0")
    a("s_cbranch_scc1 K2_FALLBACK")
    a(f"s_mov_b32 s{sKK}, {hex(NL2E)}")
    a(f"s_mov_b32 s{sKK+1}, {hex(NL2E)}")
    a(f"ds_read_b32 v{D+2}, v{T+14} offset:32")
    auread(NA)
    if "span" in OPTS:
        a("s_memrealtime s[100:101]")
        a("s_waitcnt lgkmcnt(0)")
        a("v_mov_b32 v60, s100")
        a("s_mov_b64 exec, 1")
        a(f"buffer_atomic_umax v60, off, s[{SDB}:{SDB+3}], 0 offset:12 sc1")
        a("s_mov_b64 exec, -1")
    a.stamp(13)
    a.stampc(30)

    sw_sites = []

    def advance(tag):
        a(f"s_add_u32 s{sA}, s{sA}, 128")
        a(f"s_sub_u32 s{sCntS}, s{sCntS}, 1")
        a(f"s_cbranch_scc1 K2_SW{tag}")
        a.lab(f"K2_SWR{tag}")
        sw_sites.append(tag)

    def gathers(P):
        for j in range(4):
            a(f"v_add_u32_dpp v{AD+j}, v{vSrc}, v{vC8} quad_perm:[{j},{j},{j},{j}] row_mask:0xf bank_mask:0xf")
        for j in range(4):
            a(f"buffer_load_dwordx4 v[{P+4*j}:{P+4*j+3}], v{AD+j}, s[{SP}:{SP+3}], 0 offen{G_LD}")

    def split(S):
        a(f"v_lshlrev_b32_sdwa v{vSrc}, 7, v{S} dst_sel:DWORD dst_unused:UNUSED_PAD src0_sel:DWORD src1_sel:WORD_1")
        a(f"v_lshlrev_b32_sdwa v{vEa}, 3, v{S} dst_sel:DWORD dst_unused:UNUSED_PAD src0_sel:DWORD src1_sel:WORD_0")

    def setup_ac():
        for m in range(4):
            a(f"v_cvt_f32_f16 v{AC+4*m}, v{ACC+m}")
            a(f"v_cvt_f32_f16 v{AC+4*m+2}, v{ACC+4+m}")
        for m in range(4):
            a(f"v_mov_b32 v{AC+4*m+1}, v{AC+4*m}")
            a(f"v_mov_b32 v{AC+4*m+3}, v{AC+4*m+2}")

    def compute(P):
        for m in range(4):
            for j in range(4):
                a(f"v_fma_mix_f32 v{D+4*m+j}, v{D+4*m+j}, s{sK}, v{P+4*j+m} op_sel_hi:[0,0,1]")
        for i in range(16):
            a(f"v_exp_f32 v{D+i}, v{D+i}")
        for i in range(8):
            a(f"v_pk_add_f32 v[{D+2*i}:{D+2*i+1}], v[{D+2*i}:{D+2*i+1}], 1.0 op_sel_hi:[1,0]")
        for j in range(4):
            r = R + 4 * (j & 1)
            for m in range(4):
                a(f"v_rcp_f32 v{r+m}, v{D+4*m+j}")
            acc = ACC + 4 * (j >> 1)
            a(f"v_pk_fma_f32 v[{acc}:{acc+1}], v[{P+4*j}:{P+4*j+1}], v[{r}:{r+1}], v[{acc}:{acc+1}]")
            a(f"v_pk_fma_f32 v[{acc+2}:{acc+3}], v[{P+4*j+2}:{P+4*j+3}], v[{r+2}:{r+3}], v[{acc+2}:{acc+3}]")

    def pk(op, d, *src, mod=""):
        a(f"v_pk_{op}_f32 v[{d}:{d+1}], " + ", ".join(x if isinstance(x, str) else f"v[{x}:{x+1}]" for x in src) + mod)

    def compute_fast(P):
        for j in range(4):
            for m in range(4):
                a(f"v_fma_mix_f32 v{D+4*m+j}, v{D+4*m+j}, s{sK}, v{P+4*j+m} op_sel_hi:[0,0,1]")

        def exps(j0):
            for m in range(4):
                a(f"v_exp_f32 v{R+m}, v{D+4*m+j0}")
            for m in range(4):
                a(f"v_exp_f32 v{R+4+m}, v{D+4*m+j0+1}")

        def mid(j0):
            H1, H2 = P + 4 * j0, P + 4 * j0 + 4
            N, Q = (D + j0, D + 4 + j0), (D + 8 + j0, D + 12 + j0)
            for h in range(2):
                pk("add", R + 2 * h, R + 2 * h, "1.0", mod=" op_sel_hi:[1,0]")
            for h in range(2):
                pk("fma", N[h], H2 + 2 * h, R + 2 * h, H1 + 2 * h)
            for h in range(2):
                pk("fma", Q[h], R + 2 * h, R + 4 + 2 * h, R + 2 * h)
            for h in range(2):
                pk("fma", N[h], H1 + 2 * h, R + 4 + 2 * h, N[h])

        def rcps(j0):
            for q in (D + 8 + j0, D + 9 + j0, D + 12 + j0, D + 13 + j0):
                a(f"v_rcp_f32 v{q}, v{q}")

        def fin(j0):
            acc = ACC + 2 * j0
            pk("fma", acc, D + j0, D + 8 + j0, acc)
            pk("fma", acc + 2, D + 4 + j0, D + 12 + j0, acc + 2)
        exps(0)
        mid(0)
        exps(2)
        rcps(0)
        mid(2)
        fin(0)
        rcps(2)
        a("s_nop 0")
        fin(2)

    DP2 = "dp3" not in OPTS
    QUAD = DP2 and "noquad" not in OPTS
    if DP2:
        a(f"v_add_u32 v{vT}, s{sA}, v{vRec4}")
        a(f"ds_read_b32 v{D}, v{vT}")
        advance("F0")
        a(f"v_add_u32 v{vT}, s{sA}, v{vRec4}")
        a(f"ds_read_b32 v{vS}, v{vT}")
        a("s_waitcnt lgkmcnt(1)")
        split(D)
        a("s_nop 0")
        a(f"ds_read_b64 v[{EE}:{EE+1}], v{vEa} offset:{L_EA}")
        gathers(PP[0])
        setup_ac()

        def loop(sfx, comp):
            a.lab(f"K2_LOOP{sfx}")
            for ph in range(2):
                a("s_waitcnt lgkmcnt(0)")
                for m in range(4):
                    a(f"v_mfma_f32_4x4x4_16b_bf16 v[{D+4*m}:{D+4*m+3}], v[{EE}:{EE+1}], v[{WB+2*m}:{WB+2*m+1}], v[{AC+4*m}:{AC+4*m+3}]")
                split(vS)
                advance(f"L{sfx}{ph}")
                a(f"ds_read_b64 v[{EE}:{EE+1}], v{vEa} offset:{L_EA}")
                gathers(PP[ph ^ 1])
                a(f"v_add_u32 v{vT}, s{sA}, v{vRec4}")
                a(f"ds_read_b32 v{vS}, v{vT}")
                a("s_waitcnt vmcnt(4)")
                comp(PP[ph])
                a(f"s_sub_u32 s{sRem}, s{sRem}, 1")
                if ph < 1:
                    a(f"s_cbranch_scc0 K2_C{sfx}{ph}")
                    a(f"s_call_b64 s[{sRet}:{sRet+1}], K2_EPI")
                    a.lab(f"K2_C{sfx}{ph}")
                else:
                    a(f"s_cbranch_scc0 K2_LOOP{sfx}")
                    a(f"s_call_b64 s[{sRet}:{sRet+1}], K2_EPI")
                    a(f"s_branch K2_LOOP{sfx}")
    else:
        a(f"v_add_u32 v{vT}, s{sA}, v{vRec4}")
        a(f"ds_read_b32 v{D}, v{vT}")
        advance("F0")
        a(f"v_add_u32 v{vT}, s{sA}, v{vRec4}")
        a(f"ds_read_b32 v{D+1}, v{vT}")
        advance("F1")
        a(f"v_add_u32 v{vT}, s{sA}, v{vRec4}")
        a(f"ds_read_b32 v{vS}, v{vT}")
        a("s_waitcnt lgkmcnt(2)")
        split(D)
        a("s_nop 0")
        a(f"ds_read_b64 v[{EE}:{EE+1}], v{vEa} offset:{L_EA}")
        gathers(PP[0])
        a("s_waitcnt lgkmcnt(2)")
        split(D + 1)
        a("s_nop 1")
        gathers(PP[1])
        setup_ac()
        def loop(sfx, comp):
            for o in OPTS:
                if o.startswith("al="):
                    a(f".p2align {o[3:]}")
                if o.startswith("pad="):
                    for _ in range(int(o[4:])):
                        a("s_nop 0")
            a.lab(f"K2_LOOP{sfx}")
            for ph in range(3):
                a("s_waitcnt lgkmcnt(0)")
                for m in range(4):
                    a(f"v_mfma_f32_4x4x4_16b_bf16 v[{D+4*m}:{D+4*m+3}], v[{EE}:{EE+1}], v[{WB+2*m}:{WB+2*m+1}], v[{AC+4*m}:{AC+4*m+3}]")
                a(f"ds_read_b64 v[{EE}:{EE+1}], v{vEa} offset:{L_EA}")
                split(vS)
                advance(f"L{sfx}{ph}")
                gathers(PP[(ph + 2) % 3])
                a(f"v_add_u32 v{vT}, s{sA}, v{vRec4}")
                a(f"ds_read_b32 v{vS}, v{vT}")
                a("s_waitcnt vmcnt(8)")
                comp(PP[ph])
                a(f"s_sub_u32 s{sRem}, s{sRem}, 1")
                if ph < 2:
                    a(f"s_cbranch_scc0 K2_C{sfx}{ph}")
                    a(f"s_call_b64 s[{sRet}:{sRet+1}], K2_EPI")
                    a.lab(f"K2_C{sfx}{ph}")
                else:
                    a(f"s_cbranch_scc0 K2_LOOP{sfx}")
                    a(f"s_call_b64 s[{sRet}:{sRet+1}], K2_EPI")
                    a(f"s_branch K2_LOOP{sfx}")
    X = PP[2]

    def quad(P, second):
        for j in range(4):
            for m in range(4):
                a(f"v_fma_mix_f32 v{D+4*m+j}, v{D+4*m+j}, s{sK}, v{P+4*j+m} op_sel_hi:[0,0,1]")

        def exps(j0):
            for m in range(4):
                a(f"v_exp_f32 v{R+m}, v{D+4*m+j0}")
            for m in range(4):
                a(f"v_exp_f32 v{R+4+m}, v{D+4*m+j0+1}")

        def regs(j0):
            n1, q1 = (X + 4 * j0, X + 4 * j0 + 2), (X + 4 * j0 + 4, X + 4 * j0 + 6)
            n2, q2 = (D + j0, D + 4 + j0), (D + 8 + j0, D + 12 + j0)
            return n1, q1, n2, q2

        def mid(j0):
            H1, H2 = P + 4 * j0, P + 4 * j0 + 4
            n1, q1, n2, q2 = regs(j0)
            N, Q = (n2, q2) if second else (n1, q1)
            for h in range(2):
                pk("add", R + 2 * h, R + 2 * h, "1.0", mod=" op_sel_hi:[1,0]")
            for h in range(2):
                pk("fma", N[h], H2 + 2 * h, R + 2 * h, H1 + 2 * h)
            for h in range(2):
                pk("fma", Q[h], R + 2 * h, R + 4 + 2 * h, R + 2 * h)
            for h in range(2):
                pk("fma", N[h], H1 + 2 * h, R + 4 + 2 * h, N[h])

        def comb(j0):
            n1, q1, n2, q2 = regs(j0)
            for h in range(2):
                pk("mul", n1[h], n1[h], q2[h])
            for h in range(2):
                pk("mul", q2[h], q2[h], q1[h])
            for h in range(2):
                pk("fma", n1[h], n2[h], q1[h], n1[h])

        def rcps(j0):
            for q in (D + 8 + j0, D + 9 + j0, D + 12 + j0, D + 13 + j0):
                a(f"v_rcp_f32 v{q}, v{q}")

        def fin(j0):
            n1, q1, n2, q2 = regs(j0)
            acc = ACC + 2 * j0
            pk("fma", acc, n1[0], q2[0], acc)
            pk("fma", acc + 2, n1[1], q2[1], acc + 2)
        def rec(j0):
            n1, q1, n2, q2 = regs(j0)
            for e in range(2):
                H, Tt = P + 4 * (j0 + e), R + 4 * e
                for h in range(2):
                    pk("fma", n1[h], n1[h], Tt + 2 * h, n1[h])
                for h in range(2):
                    pk("fma", n1[h], H + 2 * h, q1[h], n1[h])
                for h in range(2):
                    pk("fma", q1[h], q1[h], Tt + 2 * h, q1[h])

        def rcpq(j0):
            for r in range(4):
                a(f"v_rcp_f32 v{X+4*j0+4+r}, v{X+4*j0+4+r}")

        def finq(j0):
            n1, q1, n2, q2 = regs(j0)
            acc = ACC + 2 * j0
            pk("fma", acc, n1[0], q1[0], acc)
            pk("fma", acc + 2, n1[1], q1[1], acc + 2)
        if second and "tree" not in OPTS:
            exps(0)
            rec(0)
            exps(2)
            rcpq(0)
            rec(2)
            finq(0)
            rcpq(2)
            a("s_nop 0")
            finq(2)
            return
        exps(0)
        mid(0)
        if second:
            comb(0)
        exps(2)
        if second:
            rcps(0)
        mid(2)
        if second:
            comb(2)
            fin(0)
            rcps(2)
            a("s_nop 0")
            fin(2)

    def qloop(name, other, ph0):
        a.lab(name)
        for k in range(2):
            ph = ph0 ^ k
            a("s_waitcnt lgkmcnt(0)")
            for m in range(4):
                a(f"v_mfma_f32_4x4x4_16b_bf16 v[{D+4*m}:{D+4*m+3}], v[{EE}:{EE+1}], v[{WB+2*m}:{WB+2*m+1}], v[{AC+4*m}:{AC+4*m+3}]")
            split(vS)
            advance(f"{name}{k}")
            a(f"ds_read_b64 v[{EE}:{EE+1}], v{vEa} offset:{L_EA}")
            gathers(PP[ph ^ 1])
            a(f"v_add_u32 v{vT}, s{sA}, v{vRec4}")
            a(f"ds_read_b32 v{vS}, v{vT}")
            a("s_waitcnt vmcnt(4)")
            quad(PP[ph], k == 1)
            a(f"s_sub_u32 s{sRem}, s{sRem}, 1")
            if k == 0:
                a(f"s_cbranch_scc0 {name}_C")
                a(f"s_call_b64 s[{sRet}:{sRet+1}], K2_EPIQ")
                a(f"s_branch {other}")
                a.lab(f"{name}_C")
            else:
                a(f"s_cbranch_scc0 {name}")
                a(f"s_call_b64 s[{sRet}:{sRet+1}], K2_EPI")
                a(f"s_branch {name}")
    a(f"v_cmp_ne_u32 vcc, 0, v{D+2}")
    if "safeonly" in OPTS:
        a("s_branch K2_LOOPS")
    a("s_cbranch_vccnz K2_LOOPS")
    if QUAD:
        qloop("K2_QX", "K2_QY", 0)
        qloop("K2_QY", "K2_QX", 1)
    else:
        loop("F", compute_fast)
    loop("S", compute)

    def epilogue(acc, tmp, nregs):
        for i in range(0, nregs, 2):
            a(f"v_pk_mul_f32 v[{tmp+i}:{tmp+i+1}], v[{acc+i}:{acc+i+1}], s[{sKK}:{sKK+1}]")
        for i in range(nregs):
            a(f"v_exp_f32 v{tmp+i}, v{tmp+i}")
        a("s_nop 0")
        for i in range(0, nregs, 2):
            a(f"v_pk_add_f32 v[{tmp+i}:{tmp+i+1}], v[{tmp+i}:{tmp+i+1}], 1.0 op_sel_hi:[1,0]")
        for i in range(nregs):
            a(f"v_rcp_f32 v{tmp+i}, v{tmp+i}")
        a("s_nop 0")
        for i in range(0, nregs, 2):
            a(f"v_pk_mul_f32 v[{tmp+i}:{tmp+i+1}], v[{tmp+i}:{tmp+i+1}], v[{acc+i}:{acc+i+1}]")
        for i in range(0, nregs, 2):
            a(f"v_cvt_pk_bf16_f32 v{tmp+i//2}, v{tmp+i}, v{tmp+i+1}")

    if QUAD:
        a.lab("K2_EPIQ")
        for j0 in (0, 2):
            for r in range(4):
                a(f"v_rcp_f32 v{X+4*j0+4+r}, v{X+4*j0+4+r}")
        for j0 in (0, 2):
            pk("fma", ACC + 2 * j0, X + 4 * j0, X + 4 * j0 + 4, ACC + 2 * j0)
            if j0 == 2:
                pass
            pk("fma", ACC + 2 * j0 + 2, X + 4 * j0 + 2, X + 4 * j0 + 6, ACC + 2 * j0 + 2)
    a.lab("K2_EPI")
    epilogue(ACC, D, 8)
    auread(N2)
    a(f"v_lshrrev_b32 v{AD}, 7, v{NA}")
    a(f"v_lshrrev_b32 v{AD+1}, 7, v{NA+1}")
    a(f"v_lshl_add_u32 v{AD}, v{AD}, 8, v{vCo}")
    a(f"v_lshl_add_u32 v{AD+1}, v{AD+1}, 8, v{vCo}")
    a(f"v_cmp_gt_u32 vcc, {BN*128}, v{NA}")
    a("s_mov_b64 exec, vcc")
    a(f"buffer_store_dwordx2 v[{D}:{D+1}], v{AD}, s[{SO}:{SO+3}], s{sOutOff} offen{K2_ST}")
    a("s_mov_b64 exec, -1")
    a(f"v_cmp_gt_u32 vcc, {BN*128}, v{NA+1}")
    a("s_mov_b64 exec, vcc")
    a(f"buffer_store_dwordx2 v[{D+2}:{D+3}], v{AD+1}, s[{SO}:{SO+3}], s{sOutOff} offen{K2_ST}")
    a("s_mov_b64 exec, -1")
    a(f"s_cmp_eq_u32 s{sN2}, 0")
    a("s_cbranch_scc1 K2_FIN")
    a.stamp(14)
    a(f"s_sub_u32 s{sRem}, s{sN2}, 1")
    a(f"s_mov_b32 s{sN2}, 0")
    a(f"v_mov_b32 v{NA}, v{N2}")
    a(f"v_mov_b32 v{NA+1}, v{N2+1}")
    a("s_waitcnt lgkmcnt(0)")
    setup_ac()
    a(f"s_setpc_b64 s[{sRet}:{sRet+1}]")
    a.lab("K2_FIN")
    if "span" in OPTS:
        a("s_memrealtime s[100:101]")
        a("s_waitcnt lgkmcnt(0)")
        a("v_mov_b32 v60, s100")
        a("s_mov_b64 exec, 1")
        a(f"buffer_atomic_umax v60, off, s[{SDB}:{SDB+3}], 0 offset:8 sc1")
    a.stamp(15)
    a.stampc(31)
    a.stamp_flush(1, sW)
    a("s_endpgm")

    for tag in sw_sites:
        a.lab(f"K2_SW{tag}")
        a(f"s_mov_b32 s{sA}, s{sNxtA}")
        a(f"s_mov_b32 s{sCntS}, s{sNxtCnt}")
        a(f"s_mov_b32 s{sNxtA}, {L_DUM}")
        a(f"s_mov_b32 s{sNxtCnt}, 100")
        a(f"s_branch K2_SWR{tag}")

    a.lab("K2_TAIL")
    a(f"v_lshlrev_b32 v64, 3, v{vLane}")
    a.lab("K2_TAIL_LOOP")
    a(f"s_ff1_i32_b64 s{sT0}, s[{sTM}:{sTM+1}]")
    a(f"s_bitset0_b64 s[{sTM}:{sTM+1}], s{sT0}")
    a(f"v_readlane_b32 s{sT1}, v{vDesc}, s{sT0}")
    a(f"s_add_u32 s{sT0}, s{sT0}, s{sT3}")
    a(f"s_mul_i32 s{sT0}, s{sT0}, {CH}")
    a(f"s_and_b32 s{sT2}, s{sT1}, 0xffff")
    a(f"s_add_u32 s{sT0}, s{sT0}, s{sT2}")
    a(f"s_add_u32 s{sT0}, s{sT0}, 64")
    a(f"s_sub_u32 s{sT0}, s{sT0}, s{sSp}")
    a(f"s_lshr_b32 s{sT1}, s{sT1}, 16")
    a(f"s_sub_u32 s{sT1}, s{sT1}, 64")
    a(f"s_add_u32 s{sT2}, s{sSp}, s{sT1}")
    a(f"s_cmp_gt_u32 s{sT2}, 63")
    a("s_cbranch_scc1 K2_TAILF")
    a(f"s_bfm_b64 s[{sSave}:{sSave+1}], s{sT1}, s{sSp}")
    a(f"s_or_b64 s[{sM+24}:{sM+25}], s[{sM+24}:{sM+25}], s[{sSave}:{sSave+1}]")
    a(f"s_mov_b32 s{sSp}, s{sT2}")
    a(f"s_lshl_b32 s{sT1}, s{sT0}, 2")
    a(f"s_add_u32 s{sT1}, s{sT1}, {KEY_OFF}")
    a(f"s_lshl_b32 s{sT2}, s{sT0}, 3")
    a(f"s_add_u32 s{sT2}, s{sT2}, {EAT_OFF}")
    a(f"s_mov_b64 exec, s[{sSave}:{sSave+1}]")
    a(f"buffer_load_dword v{KEYR+12}, v{vL4}, s[{SWS}:{SWS+3}], s{sT1} offen{LD}")
    a(f"buffer_load_dwordx2 v[{ET}:{ET+1}], v64, s[{SWS}:{SWS+3}], s{sT2} offen{LD}")
    a("s_mov_b64 exec, -1")
    a(f"s_cmp_lg_u64 s[{sTM}:{sTM+1}], 0")
    a("s_cbranch_scc1 K2_TAIL_LOOP")
    a("s_branch K2_TAILR")
    a.lab("K2_TAILF")
    a(f"s_mov_b32 s{sOvf}, 1")
    a("s_branch K2_TAILR")

    L_AGG = L_EA
    a.lab("K2_FALLBACK")
    a("s_waitcnt vmcnt(0) lgkmcnt(0)")
    a(f"s_mov_b32 s{sKK}, {hex(NL2E)}")
    a(f"s_mov_b32 s{sKK+1}, {hex(NL2E)}")
    a("s_barrier")
    a("v_lshlrev_b32 v51, 4, v0")
    a(f"v_add_u32 v51, {L_AGG}, v51")
    for i in range(4):
        a(f"v_mov_b32 v{56+i}, 0")
    for i in range(4):
        a(f"ds_write_b128 v51, v[56:59] offset:{i*16384}")
    a("s_waitcnt lgkmcnt(0)")
    a("s_barrier")
    srd(a, SF0, 10, E * 4)
    srd(a, SF1, 8, E * 4)
    srd(a, SF2, 6, E * 8)
    a(f"s_mul_i32 s{sT3}, s{sBk}, {BN}")
    a(f"s_mul_i32 s{sT2}, s{sBk}, {BN*128}")
    a(f"s_lshl_b32 s{sT0}, s{sW}, 5")
    a(f"v_lshrrev_b32 v51, 1, v{vG8}")
    a.lab("K2_FB_LOOP")
    a(f"s_lshl_b32 s{sT1}, s{sT0}, 1")
    a(f"buffer_load_dword v52, v51, s[{SF0}:{SF0+3}], s{sT0} offen")
    a(f"buffer_load_dword v53, v51, s[{SF1}:{SF1+3}], s{sT0} offen")
    a(f"buffer_load_dwordx2 v[54:55], v{vG8}, s[{SF2}:{SF2+3}], s{sT1} offen")
    a("s_waitcnt vmcnt(0)")
    a(f"v_subrev_u32 v52, s{sT3}, v52")
    a(f"v_cmp_gt_u32 vcc, {BN}, v52")
    a("s_mov_b64 exec, vcc")
    a("s_cbranch_execz K2_FB_NEXT")
    a(f"v_lshl_add_u32 v53, v53, 7, v{vC8}")
    a("v_and_b32 v56, 7, v52")
    a("v_lshlrev_b32 v56, 4, v56")
    a(f"v_lshl_add_u32 v52, v52, 7, v{vC8}")
    a("v_xor_b32 v56, v56, v52")
    a(f"v_add_u32 v56, {L_AUR}, v56")
    a(f"buffer_load_dwordx4 v[16:19], v53, s[{SP}:{SP+3}], 0 offen{LD}")
    a("ds_read_b128 v[20:23], v56")
    a(f"v_add_u32 v52, {L_AGG}, v52")
    a("s_waitcnt vmcnt(0) lgkmcnt(0)")
    for m in range(4):
        a(f"v_cvt_f32_f16 v{20+m}, v{20+m}")
    for m in range(4):
        a(f"v_dot2_f32_bf16 v{20+m}, v54, v{WB+2*m}, v{20+m}")
    for m in range(4):
        a(f"v_dot2_f32_bf16 v{20+m}, v55, v{WB+2*m+1}, v{20+m}")
    a("s_nop 3")
    for m in range(4):
        a(f"v_fma_mix_f32 v{20+m}, v{20+m}, s{sK}, v{16+m} op_sel_hi:[0,0,1]")
    for m in range(4):
        a(f"v_exp_f32 v{20+m}, v{20+m}")
    a("s_nop 0")
    for m in range(4):
        a(f"v_add_f32 v{20+m}, 1.0, v{20+m}")
    for m in range(4):
        a(f"v_rcp_f32 v{20+m}, v{20+m}")
    a("s_nop 0")
    for m in range(4):
        a(f"v_mul_f32 v{20+m}, v{20+m}, v{16+m}")
    for m in range(4):
        a(f"ds_add_f32 v52, v{20+m} offset:{4*m}")
    a.lab("K2_FB_NEXT")
    a("s_mov_b64 exec, -1")
    a(f"s_add_u32 s{sT0}, s{sT0}, 512")
    a(f"s_cmp_lt_u32 s{sT0}, {E*4}")
    a("s_cbranch_scc1 K2_FB_LOOP")
    a("s_waitcnt lgkmcnt(0)")
    a("s_barrier")
    a(f"s_lshl_b32 s{sT0}, s{sW}, 10")
    a(f"v_lshlrev_b32 v51, 4, v{vG8}")
    a.lab("K2_FB_OUT")
    a(f"v_add_u32 v52, s{sT0}, v51")
    a(f"v_add_u32 v53, v52, v{vC8}")
    a(f"v_lshlrev_b32 v56, 1, v{vG8}")
    a("v_xor_b32 v56, v56, v53")
    a(f"v_min_u32 v56, {399*128+112}, v56")
    a(f"v_add_u32 v56, {L_AUR}, v56")
    a("ds_read_b128 v[16:19], v56")
    a(f"v_add_u32 v53, {L_AGG}, v53")
    a("ds_read_b128 v[20:23], v53")
    a("s_waitcnt vmcnt(0) lgkmcnt(0)")
    for m in range(4):
        a(f"v_add_f32 v{16+m}, v{16+m}, v{20+m}")
    epilogue(16, 24, 4)
    a(f"v_lshl_add_u32 v53, v52, 1, v{vCo}")
    a(f"v_cmp_gt_u32 vcc, {BN*128}, v52")
    a("s_mov_b64 exec, vcc")
    a(f"buffer_store_dwordx2 v[24:25], v53, s[{SO}:{SO+3}], s{sOutOff} offen{K2_ST}")
    a("s_mov_b64 exec, -1")
    a(f"s_add_u32 s{sT0}, s{sT0}, 16384")
    a(f"s_cmp_lt_u32 s{sT0}, {BN*128}")
    a("s_cbranch_scc1 K2_FB_OUT")
    a.lab("K2_END")
    a("s_endpgm")


def kd(name, vgpr, sgpr, extra=""):
    acc = (vgpr + 3) // 4 * 4
    return f""".amdhsa_kernel {name}
  .amdhsa_next_free_vgpr {vgpr}
  .amdhsa_next_free_sgpr {sgpr}
  .amdhsa_accum_offset {acc}
  .amdhsa_group_segment_fixed_size 0
  .amdhsa_kernarg_size 80
  .amdhsa_user_sgpr_count 2
  .amdhsa_user_sgpr_kernarg_segment_ptr 1
  .amdhsa_system_sgpr_workgroup_id_x 1
{extra}.end_amdhsa_kernel
"""


def main():
    out = HEADER
    if FUSED:
        out += f"; @launch grid=(256,1,1) block=(1024,1,1) lds={K1_LDS}\n"
    else:
        out += f"; @launch kernel=k1_kernel grid=(256,1,1) block=(1024,1,1) lds={K1_LDS}\n"
        out += f"; @launch kernel=k2_kernel grid=(256,1,1) block=(1024,1,1) lds={K2_LDS}\n"
    out += '.amdgcn_target "amdgcn-amd-amdhsa--gfx950"\n.text\n'
    for name, g in ((KNAME if FUSED else "k1_kernel", gen_k1), ("k2_kernel", gen_k2)):
        a = A()
        g(a)
        if not (FUSED and g is gen_k2):
            out += f".globl {name}\n.p2align 8\n.type {name},@function\n"
        out += "\n".join(a.l) + "\n"
    out += '.section .rodata,"a"\n.p2align 6\n'
    out += kd(KNAME if FUSED else "k1_kernel", 128, 102, "  .amdhsa_fp16_overflow 1\n")
    if not FUSED:
        out += ".p2align 6\n"
        out += kd("k2_kernel", 128, 102)
    path = sys.argv[1] if len(sys.argv) > 1 else "gather_scatter__edge_featured_mpnn_egc__graph.s"
    open(path, "w").write(out)


if __name__ == "__main__":
    main()
```

```python
import sys

N = 25000
E = 400000
NB = 64
BN = 391
CH = 3200
NCH = 125
PS = 25040 * 128
P_OFF = 0
AU_OFF = 0x1000000
KEY_OFF = 0x2000000
EAT_OFF = 0x2200000
DESC_OFF = 0x2800000
GCNT_OFF = 0x2810000
WS_USED = 0x2900000
NL2E = 0xBFB8AA3B
MAGIC = 85817

OPTS = set(sys.argv[2:])
STAMPS = "stamps" in OPTS
STAMP_OFF = 0x3000000
K1_ST = ""
K2_ST = " nt"
NT_E = "" if "noent" in OPTS else " nt"
NT_X = " nt" if "xnt" in OPTS else ""
FUSED = "split" not in OPTS
K1_ST = " sc1"
P_ST = " sc1 nt" if "pnt" in OPTS else (" sc0 sc1" if "p01" in OPTS else " sc1")
G_LD = "" if "gplain" in OPTS else " sc1"
LD = " sc1" if FUSED else ""
KNAME = "gather_scatter__edge_featured_mpnn_egc__graph_kernel"
SDB = 96
TCH = [tuple(int(x) for x in o[4:].split(",")) for o in OPTS if o.startswith("tch=")]
TCH = TCH[0] if TCH else None
TMAP = "notmap" not in OPTS
SLP = 1 if "slp1" in OPTS else 4
for o in OPTS:
    if o.startswith("k1st="):
        K1_ST = " " + o[5:].replace("+", " ")
    if o.startswith("k2st="):
        K2_ST = " " + o[5:].replace("+", " ")

HEADER = """; Kernarg layout for this problem (80 bytes, ptrs only, base s[0:1]):
"""


class A:
    def __init__(self):
        self.l = []
        self.vst = None

    def __call__(self, s):
        for x in s.strip().split("\n"):
            self.l.append("    " + x.strip())

    def lab(self, s):
        self.l.append(s + ":")

    def c(self, s):
        self.l.append("    ; " + s)

    def stamp(self, idx):
        if not STAMPS:
            return
        self("s_memrealtime s[100:101]")
        self("s_waitcnt lgkmcnt(0)")
        self(f"v_writelane_b32 v{self.vst}, s100, {idx}")

    def stampc(self, idx):
        if not STAMPS:
            return
        self("s_memtime s[100:101]")
        self("s_waitcnt lgkmcnt(0)")
        self(f"v_writelane_b32 v{self.vst}, s100, {idx}")

    def stamp_flush(self, kidx, sw):
        if not STAMPS:
            return
        self("s_mov_b64 exec, -1")
        self(f"s_add_u32 s12, s20, {STAMP_OFF + kidx*0x100000}")
        self("s_addc_u32 s13, s21, 0")
        self("s_mov_b32 s14, 0x100000")
        self("s_mov_b32 s15, 0x20000")
        self("s_lshl_b32 s100, s2, 12")
        self(f"v_mbcnt_lo_u32_b32 v{self.vst+1}, -1, 0")
        self(f"v_mbcnt_hi_u32_b32 v{self.vst+1}, -1, v{self.vst+1}")
        self(f"v_lshlrev_b32 v{self.vst+1}, 2, v{self.vst+1}")
        self(f"s_lshl_b32 s101, s{sw}, 8")
        self("s_add_u32 s100, s100, s101")
        self(f"buffer_store_dword v{self.vst}, v{self.vst+1}, s[12:15], s100 offen")


def srd(a, d, base, size, off=0):
    if off:
        a(f"s_add_u32 s{d}, s{base}, {off}")
        a(f"s_addc_u32 s{d+1}, s{base+1}, 0")
    else:
        a(f"s_mov_b32 s{d}, s{base}")
        a(f"s_mov_b32 s{d+1}, s{base+1}")
    a(f"s_mov_b32 s{d+2}, {size}")
    a(f"s_mov_b32 s{d+3}, 0x20000")


def scan64(a, v):
    for sh in (1, 2, 4, 8):
        a("s_nop 1")
        a(f"v_add_u32_dpp v{v}, v{v}, v{v} row_shr:{sh} row_mask:0xf bank_mask:0xf bound_ctrl:0")
    a("s_nop 1")
    a(f"v_add_u32_dpp v{v}, v{v}, v{v} row_bcast:15 row_mask:0xa bank_mask:0xf")
    a("s_nop 1")
    a(f"v_add_u32_dpp v{v}, v{v}, v{v} row_bcast:31 row_mask:0xc bank_mask:0xf")


K1_WP = 98304
K1_WAU = 102400
K1_CNT = 118784
K1_STK = K1_CNT + 2048
K1_STE = K1_STK + 12800
K1_SCR = 131072
L_AUR = 112640
L_GW = 103936
K1_LDS = 163840
assert K1_STE + 25600 <= K1_LDS


def poll(a, tag, vP, off, val=None, slp=2):
    a("s_mov_b32 s101, 0x40000")
    a("s_mov_b64 exec, 1")
    a.lab(f"POLL{tag}")
    a(f"buffer_load_dword v{vP}, off, s[{SDB}:{SDB+3}], 0 offset:{off} sc1")
    a("s_waitcnt vmcnt(0)")
    a(f"v_cmp_ne_u32 vcc, 0, v{vP}" if val is None else f"v_cmp_eq_u32 vcc, {val}, v{vP}")
    a("s_sub_u32 s101, s101, 1")
    a(f"s_cbranch_scc1 POLLD{tag}")
    a(f"s_cbranch_vccnz POLLD{tag}")
    a(f"s_sleep {slp}")
    a(f"s_branch POLL{tag}")
    a.lab(f"POLLD{tag}")
    a("s_mov_b64 exec, -1")


def gen_k1(a):
    sW, sSl, sBk, sT0, sT1, sT2, sT3 = 22, 23, 24, 25, 26, 27, 28
    sG = 29
    sEx = 30
    SD, SS, SE, SWS, SX, SWL, SWH = 32, 36, 40, 44, 48, 52, 56
    sScale, sOut, sS, sQ, sX0, sDl, sJ, sSlot = 60, 61, 62, 63, 64, 65, 66, 67
    sUns = 94
    vLane = 1
    VX = 40
    VW = 44
    a.lab(KNAME)
    a.vst = 11
    a("s_cmp_ge_u32 s2, 256")
    a("s_cbranch_scc1 K1_END2")
    a.stamp(0)
    a.stampc(30)
    a("s_load_dwordx16 s[4:19], s[0:1], 0")
    a("s_load_dwordx2 s[20:21], s[0:1], 72")
    a(f"s_load_dwordx2 s[{SDB}:{SDB+1}], s[0:1], 64")
    a("v_lshrrev_b32 v2, 6, v0")
    a(f"v_and_b32 v{vLane}, 63, v0")
    a(f"v_readfirstlane_b32 s{sW}, v2")
    a(f"s_mov_b32 s{SDB+2}, 256")
    a(f"s_mov_b32 s{SDB+3}, 0x20000")
    a(f"s_and_b32 s{sSl}, s2, 3")
    a(f"s_lshr_b32 s{sT0}, s2, 2")
    if "oldmap" in OPTS:
        a(f"s_mov_b32 s{sBk}, s{sT0}")
    else:
        a.c("bucket = 32*((wg>>2)&1) + (wg>>3): workgroups that share an L2 take neighbouring buckets")
        a(f"s_and_b32 s{sBk}, s{sT0}, 1")
        a(f"s_lshl_b32 s{sBk}, s{sBk}, 5")
        a(f"s_lshr_b32 s{sT1}, s2, 3")
        if TMAP:
            a(f"s_lshl_b32 s{sT2}, s2, 3")
            a(f"s_and_b32 s{sT2}, s{sT2}, 16")
            a(f"s_xor_b32 s{sT1}, s{sT1}, s{sT2}")
        a(f"s_or_b32 s{sBk}, s{sBk}, s{sT1}")
    if TMAP:
        a(f"s_mov_b32 s{sG}, s2")
    else:
        a(f"s_lshl_b32 s{sG}, s{sT0}, 1")
        a(f"s_add_u32 s{sG}, s{sG}, s{sSl}")
    a(f"s_mul_i32 s{sX0}, s{sBk}, {BN*256}")
    if TMAP:
        a(f"s_and_b32 s{sT2}, s2, 0x81")
        a(f"s_cmp_eq_u32 s{sT2}, 0x80")
    else:
        a(f"s_cmp_eq_u32 s{sSl}, 2")
    a(f"s_cselect_b32 s{sDl}, 1, 0")
    a("v_lshlrev_b32 v2, 4, v0")
    a("v_lshlrev_b32 v3, 5, v0")
    a(f"v_lshrrev_b32 v4, 4, v{vLane}")
    a(f"v_and_b32 v5, 15, v{vLane}")
    a("v_xor_b32 v6, v5, v4")
    a("v_lshlrev_b32 v6, 4, v6")
    a(f"v_lshl_add_u32 v{VX}, v4, 8, v6")
    a(f"v_xor_b32 v{VX+1}, 64, v{VX}")
    a(f"v_xor_b32 v{VX+2}, 0x80, v{VX}")
    a(f"v_xor_b32 v{VX+3}, 0xc0, v{VX}")
    a("v_lshrrev_b32 v6, 1, v5")
    a("v_xor_b32 v6, v6, v4")
    a("v_lshlrev_b32 v6, 5, v6")
    a("v_lshl_add_u32 v6, v4, 8, v6")
    a(f"v_and_b32 v7, 1, v{vLane}")
    a(f"v_lshl_add_u32 v{VW}, v7, 4, v6")
    a(f"v_xor_b32 v{VW+1}, 0x80, v{VW}")
    a(f"v_lshrrev_b32 v6, 2, v{vLane}")
    a("v_lshlrev_b32 v6, 8, v6")
    a(f"v_and_b32 v7, 3, v{vLane}")
    a(f"v_lshrrev_b32 v8, 4, v{vLane}")
    a("v_and_b32 v8, 2, v8")
    a("v_xor_b32 v7, v7, v8")
    a(f"v_lshl_add_u32 v{VW+2}, v7, 4, v6")
    if "icode" in OPTS:
        a.c("pull this kernel's code into the XCD's L2 (wave 15 of the first workgroups)")
        a(f"s_cmp_lg_u32 s{sW}, 15")
        a("s_cbranch_scc1 K1_NOIC")
        a("s_cmp_ge_u32 s2, 16")
        a("s_cbranch_scc1 K1_NOIC")
        a("s_getpc_b64 s[68:69]")
        a(f"v_lshlrev_b32 v60, 7, v{vLane}")
        a.lab("K1_ICB")
        a("global_load_dword v61, v60, s[68:69]")
        a("s_add_u32 s68, s68, 8192")
        a("s_addc_u32 s69, s69, 0")
        a("s_bfm_b64 exec, (K2_END-K1_ICB-8192)/128, 0")
        a("global_load_dword v62, v60, s[68:69]")
        a("s_mov_b64 exec, -1")
        a.lab("K1_NOIC")
    a("s_waitcnt lgkmcnt(0)")
    if "span" in OPTS:
        a("s_and_b32 s101, s2, 0x7f")
        a("s_cmp_lg_u32 s101, 5")
        a("s_cbranch_scc1 SPANA")
        a(f"s_cmp_lg_u32 s22, 0")
        a("s_cbranch_scc1 SPANA")
        a("s_memrealtime s[100:101]")
        a("s_waitcnt lgkmcnt(0)")
        a("v_mov_b32 v60, s100")
        a("s_lshr_b32 s101, s2, 7")
        a("s_lshl_b32 s101, s101, 4")
        a("s_mov_b64 exec, 1")
        a(f"buffer_store_dword v60, off, s[{SDB}:{SDB+3}], s101 offset:4 sc1")
        a("s_mov_b64 exec, -1")
        a.lab("SPANA")
    a.stamp(1)
    srd(a, SX, 4, N * 256)
    a("s_cmp_ge_u32 s2, 128" if TMAP else f"s_cmp_ge_u32 s{sSl}, 2")
    a("s_cbranch_scc1 K1_TB")

    def xdma(slot_sgpr, tag):
        a(f"s_lshl_b32 s{sT0}, s{slot_sgpr}, 12")
        a(f"s_mov_b32 m0, s{sT0}")
        a(f"s_sub_u32 s{sT1}, s{slot_sgpr}, s{sDl}")
        a(f"s_cselect_b32 s{sT1}, 24, s{sT1}")
        a(f"s_lshl_b32 s{sT1}, s{sT1}, 12")
        a(f"s_add_u32 s{sT1}, s{sT1}, s{sX0}")
        for pp in range(4):
            a(f"buffer_load_dwordx4 v{VX+pp}, s[{SX}:{SX+3}], s{sT1} offen offset:{pp*1024}{NT_X} lds")

    def waudma(piece_sgpr):
        a(f"s_lshl_b32 s{sT0}, s{piece_sgpr}, 10")
        a(f"s_add_u32 s{sT0}, s{sT0}, {K1_WAU}")
        a(f"s_mov_b32 m0, s{sT0}")
        a(f"s_and_b32 s{sT1}, s{piece_sgpr}, 7")
        a(f"s_lshl_b32 s{sT1}, s{sT1}, 12")
        a(f"s_lshl_b32 s{sT0}, s{sSl}, 6")
        a(f"s_add_u32 s{sT1}, s{sT1}, s{sT0}")
        a(f"s_cmp_lt_u32 s{piece_sgpr}, 8")
        a(f"s_cselect_b32 s{SWL}, s16, s12")
        a(f"s_cselect_b32 s{SWL+1}, s17, s13")
        a(f"s_mov_b32 s{SWL+2}, 32768")
        a(f"s_mov_b32 s{SWL+3}, 0x20000")
        a(f"buffer_load_dwordx4 v{VW+2}, s[{SWL}:{SWL+3}], s{sT1} offen lds")

    a(f"s_cmp_ge_u32 s{sG}, {NCH}")
    a("s_cbranch_scc1 K1_NOEDGE")
    a(f"s_cmp_ge_u32 s{sW}, 13")
    a("s_cbranch_scc1 K1_NOEDGE")
    srd(a, SD, 10, E * 4)
    srd(a, SS, 8, E * 4)
    srd(a, SE, 6, E * 8)
    a("v_cmp_gt_u32 vcc, 800, v0")
    a(f"s_mul_i32 s{sT0}, s{sG}, {CH*4}")
    a(f"s_mul_i32 s{sT1}, s{sG}, {CH*8}")
    a(f"s_mov_b64 s[{sEx}:{sEx+1}], vcc")
    a("s_mov_b64 exec, vcc")
    a(f"buffer_load_dwordx4 v[16:19], v2, s[{SD}:{SD+3}], s{sT0} offen{NT_E}")
    a(f"buffer_load_dwordx4 v[20:23], v2, s[{SS}:{SS+3}], s{sT0} offen{NT_E}")
    a(f"buffer_load_dwordx4 v[24:27], v3, s[{SE}:{SE+3}], s{sT1} offen{NT_E}")
    a(f"buffer_load_dwordx4 v[28:31], v3, s[{SE}:{SE+3}], s{sT1} offen offset:16{NT_E}")
    a("s_mov_b64 exec, -1")
    a.lab("K1_NOEDGE")
    srd(a, SWS, 20, WS_USED)
    a(f"v_lshlrev_b32 v6, 2, v{vLane}")
    a(f"v_add_u32 v6, {K1_CNT}, v6")
    a("v_mov_b32 v7, 0")
    a(f"v_mov_b32 v12, {K1_CNT+1024}")
    a(f"s_cmp_lg_u32 s{sW}, 0")
    a("s_cbranch_scc1 K1_P1")
    a("ds_write_b32 v6, v7")
    a("ds_write_b32 v6, v7 offset:256")
    a("ds_write_b32 v6, v7 offset:1024")
    a("s_waitcnt lgkmcnt(0)")
    a.lab("K1_P1")
    a("s_barrier")
    a(f"s_cmp_lt_u32 s{sW}, 13")
    a("s_cbranch_scc1 K1_PW")
    a.c("loader waves 13..15 : W_AU pieces and x tiles by LDS-DMA")
    a(f"s_sub_u32 s{sJ}, s{sW}, 13")
    a.lab("K1_LA1")
    waudma(sJ)
    a(f"s_add_u32 s{sJ}, s{sJ}, 3")
    a(f"s_cmp_lt_u32 s{sJ}, 16")
    a("s_cbranch_scc1 K1_LA1")
    a(f"s_sub_u32 s{sJ}, s{sW}, 13")
    H0 = [int(o[3:]) for o in OPTS if o.startswith("h0=")]
    if H0:
        a.c("edge loads first")
        a(f"s_cmp_ge_u32 s{sG}, {NCH}")
        a("s_cbranch_scc1 K1_H0D")
        a.lab("K1_H0")
        a(f"ds_read_b32 v13, v12 offset:{H0[0]}")
        a("s_waitcnt lgkmcnt(0)")
        a("v_cmp_gt_u32 vcc, 13, v13")
        a("s_cbranch_vccnz K1_H0")
        a.lab("K1_H0D")
    xdma(sJ, "A0")
    a(f"s_add_u32 s{sJ}, s{sJ}, 3")
    xdma(sJ, "A1")
    a(f"s_add_u32 s{sJ}, s{sJ}, 3")
    a("v_mov_b32 v7, 1")
    a("s_waitcnt vmcnt(8)")
    a("s_mov_b64 exec, 1")
    a("ds_add_u32 v12, v7 offset:12")
    a("s_mov_b64 exec, -1")
    HOLD = [int(o[5:]) for o in OPTS if o.startswith("hold=")]
    if HOLD:
        for h in range(HOLD[0] - 2):
            xdma(sJ, f"AH{h}")
            a(f"s_add_u32 s{sJ}, s{sJ}, 3")
        a.c("let the partition's record stores go out first")
        a(f"s_cmp_ge_u32 s{sG}, {NCH}")
        a("s_cbranch_scc1 K1_LA2")
        a.lab("K1_HOLD")
        a("ds_read_b32 v13, v12 offset:16")
        a("s_waitcnt lgkmcnt(0)")
        a("v_cmp_gt_u32 vcc, 13, v13")
        a("s_cbranch_vccnz K1_HOLD")
    a.lab("K1_LA2")
    xdma(sJ, "A")
    a(f"s_add_u32 s{sJ}, s{sJ}, 3")
    a(f"s_cmp_lt_u32 s{sJ}, 25")
    a("s_cbranch_scc1 K1_LA2")
    a.stamp(2)
    a("s_branch K1_AUA")
    a.lab("K1_PW")
    a(f"s_cmp_ge_u32 s{sG}, {NCH}")
    a("s_cbranch_scc1 K1_AUA")

    def sb(k, tag):
        a("s_waitcnt lgkmcnt(0)")
        a("s_mov_b64 exec, 1")
        a(f"ds_add_u32 v12, v7 offset:{4+4*k}")
        a("s_mov_b64 exec, -1")
        a.lab(f"K1_SB{tag}")
        a(f"ds_read_b32 v13, v12 offset:{4+4*k}")
        a("s_waitcnt lgkmcnt(0)")
        a("v_cmp_gt_u32 vcc, 13, v13")
        a(f"s_cbranch_vccnz K1_SB{tag}")
    a(f"s_mov_b32 s{sT0}, {MAGIC}")
    a(f"s_mov_b32 s{sT1}, {-BN & 0xffffffff}")
    a("v_mov_b32 v7, 1")
    a(f"s_mov_b64 exec, s[{sEx}:{sEx+1}]")
    a("s_waitcnt vmcnt(3)")
    a.stamp(3)
    for i in range(4):
        a(f"v_mul_u32_u24 v{32+i}, s{sT0}, v{16+i}")
    for i in range(4):
        a(f"v_lshrrev_b32 v{32+i}, 25, v{32+i}")
    for i in range(4):
        a(f"v_mad_i32_i24 v{16+i}, v{32+i}, s{sT1}, v{16+i}")
    for i in range(4):
        a(f"v_lshlrev_b32 v{32+i}, 2, v{32+i}")
    for i in range(4):
        a(f"v_add_u32 v{32+i}, {K1_CNT}, v{32+i}")
    for i in range(4):
        a(f"ds_add_rtn_u32 v{36+i}, v{32+i}, v7")
    for i in range(4):
        a(f"v_lshlrev_b32 v{16+i}, 2, v{16+i}")
    a("s_waitcnt vmcnt(2)")
    for i in range(4):
        a(f"v_lshl_or_b32 v{20+i}, v{20+i}, 16, v{16+i}")
    sb(0, "2")
    a.stamp(4)
    a("ds_read_b32 v8, v6")
    a("s_waitcnt lgkmcnt(0)")
    a("v_mov_b32 v9, v8")
    scan64(a, 9)
    a("v_sub_u32 v9, v9, v8")
    a("ds_write_b32 v6, v9 offset:512")
    a("v_lshl_or_b32 v8, v8, 16, v9")
    a(f"s_mov_b64 exec, s[{sEx}:{sEx+1}]")
    for i in range(4):
        a(f"ds_read_b32 v{32+i}, v{32+i} offset:512")
    a("s_waitcnt lgkmcnt(0)")
    for i in range(4):
        a(f"v_add_u32 v{32+i}, v{32+i}, v{36+i}")
    for i in range(4):
        a(f"v_lshlrev_b32 v{36+i}, 2, v{32+i}")
        a(f"v_lshlrev_b32 v{32+i}, 3, v{32+i}")
    for i in range(4):
        a(f"v_add_u32 v{36+i}, {K1_STK}, v{36+i}")
        a(f"v_add_u32 v{32+i}, {K1_STE}, v{32+i}")
    for i in range(4):
        a(f"ds_write_b32 v{36+i}, v{20+i}")
    a("s_waitcnt vmcnt(0)")
    for i in range(4):
        a(f"ds_write_b64 v{32+i}, v[{24+2*i}:{25+2*i}]")
    a("v_or3_b32 v16, v24, v25, v26")
    a("v_or3_b32 v17, v27, v28, v29")
    a("v_or3_b32 v16, v30, v31, v16")
    a("v_or_b32 v16, v16, v17")
    a("v_and_b32 v16, 0x40004000, v16")
    a("v_cmp_ne_u32 vcc, 0, v16")
    a(f"s_cmp_lg_u64 vcc, 0")
    a(f"s_cselect_b32 s{sUns}, 0x101, 1")
    sb(1, "3")
    a.stamp(5)
    a(f"s_mov_b64 exec, s[{sEx}:{sEx+1}]")
    a(f"v_add_u32 v6, {K1_STK}, v2")
    a("ds_read_b128 v[16:19], v6")
    a("ds_read_b128 v[20:23], v6 offset:12800")
    a("ds_read_b128 v[24:27], v6 offset:25600")
    a(f"s_mul_i32 s{sT0}, s{sG}, {CH*4}")
    a(f"s_add_u32 s{sT0}, s{sT0}, {KEY_OFF}")
    a(f"s_mul_i32 s{sT1}, s{sG}, {CH*8}")
    a(f"s_add_u32 s{sT1}, s{sT1}, {EAT_OFF}")
    a(f"s_add_u32 s{sT2}, s{sT1}, 12800")
    a("s_waitcnt lgkmcnt(2)")
    a(f"buffer_store_dwordx4 v[16:19], v2, s[{SWS}:{SWS+3}], s{sT0} offen{K1_ST}")
    a("s_waitcnt lgkmcnt(1)")
    a(f"buffer_store_dwordx4 v[20:23], v2, s[{SWS}:{SWS+3}], s{sT1} offen{K1_ST}")
    a("s_waitcnt lgkmcnt(0)")
    a(f"buffer_store_dwordx4 v[24:27], v2, s[{SWS}:{SWS+3}], s{sT2} offen{K1_ST}")
    a("s_mov_b64 exec, -1")
    a(f"s_cmp_lg_u32 s{sW}, 0")
    a("s_cbranch_scc1 K1_P2B")
    a(f"v_lshlrev_b32 v9, 2, v{vLane}")
    a(f"s_lshl_b32 s{sT0}, s{sG}, 8")
    a(f"s_add_u32 s{sT0}, s{sT0}, {DESC_OFF}")
    a(f"buffer_store_dword v8, v9, s[{SWS}:{SWS+3}], s{sT0} offen{K1_ST}")
    a.lab("K1_P2B")
    if HOLD:
        a("s_mov_b64 exec, 1")
        a("ds_add_u32 v12, v7 offset:16")
        a("s_mov_b64 exec, -1")
    a.c("publish the partition: the last of the 13 storing waves counts this workgroup into R")
    a(f"v_mov_b32 v15, s{sUns}")
    a("s_waitcnt vmcnt(0)")
    a("s_mov_b64 exec, 1")
    a("ds_add_rtn_u32 v14, v12, v15")
    a("s_waitcnt lgkmcnt(0)")
    a("v_add_u32 v14, v14, v15")
    a("v_and_b32 v15, 0xff, v14")
    a("v_cmp_eq_u32 vcc, 13, v15")
    a("s_cbranch_vccz K1_NOR2")
    a("v_lshrrev_b32 v14, 8, v14")
    a("v_lshl_or_b32 v14, v14, 16, 1")
    a("v_mov_b32 v15, v14")
    a(f"buffer_atomic_add v15, off, s[{SDB}:{SDB+3}], 0 sc0 sc1")
    a("s_waitcnt vmcnt(0)")
    a("v_add_u32 v15, v15, v14")
    a("v_and_b32 v14, 0xffff, v15")
    a(f"v_cmp_eq_u32 vcc, {NCH}, v14")
    a("s_cbranch_vccz K1_NOR2")
    a(f"buffer_store_dword v15, off, s[{SDB}:{SDB+3}], 0 offset:192 sc1")
    a.lab("K1_NOR2")
    a("s_mov_b64 exec, -1")
    a.stamp(6)
    a.lab("K1_AUA")
    a("ds_read_b32 v13, v12 offset:12")
    a("s_waitcnt lgkmcnt(0)")
    a("v_cmp_gt_u32 vcc, 3, v13")
    a("s_cbranch_vccnz K1_AUA")
    a("s_branch K1_AU")

    a.lab("K1_TB")
    a(f"s_add_u32 s{sT0}, s16, 32768")
    a(f"s_addc_u32 s{sT1}, s17, 0")
    a(f"s_cmp_lt_u32 s{sW}, 8")
    a(f"s_cselect_b32 s{SWH}, s{sT0}, s14")
    a(f"s_cselect_b32 s{SWH+1}, s{sT1}, s15")
    a(f"s_mov_b32 s{SWH+2}, 32768")
    a(f"s_mov_b32 s{SWH+3}, 0x20000")
    a(f"s_lshl_b32 s{sT0}, s{sW}, 12")
    a(f"s_add_u32 s{sT1}, s{sT0}, {K1_WP}")
    a(f"s_mov_b32 m0, s{sT1}")
    a(f"s_and_b32 s{sT0}, s{sT0}, 0x7fff")
    for pp in range(4):
        a(f"buffer_load_dwordx4 v{VW+(pp>>1)}, s[{SWH}:{SWH+3}], s{sT0} offen offset:{pp*1024} lds")
    srd(a, SWS, 20, WS_USED)

    def xup():
        a(f"s_cmp_ge_u32 s{sW}, 13")
        a("s_cbranch_scc1 K1_B0")
        a(f"s_lshl_b32 s{sJ}, s{sW}, 1")
        a(f"s_add_u32 s{sJ}, s{sJ}, 1")
        a(f"s_cmp_eq_u32 s{sW}, 12")
        a(f"s_cselect_b32 s{sJ}, 0, s{sJ}")
        xdma(sJ, "B")
        a.lab("K1_B0")
    if "wfirst" not in OPTS:
        xup()
    a(f"s_and_b32 s{sS}, s{sW}, 3")
    a(f"s_lshr_b32 s{sQ}, s{sW}, 2")
    a(f"v_lshrrev_b32 v2, 4, v{vLane}")
    a(f"v_and_b32 v3, 15, v{vLane}")
    a("v_lshrrev_b32 v48, 2, v3")
    a("v_and_b32 v49, 1, v2")
    a("v_lshl_or_b32 v49, v49, 2, v48")
    a(f"s_lshl_b32 s{sT0}, s{sS}, 1")
    a(f"v_xor_b32 v49, s{sT0}, v49")
    a("v_lshlrev_b32 v49, 5, v49")
    a("v_lshl_add_u32 v48, v2, 3, v48")
    a("v_lshl_add_u32 v48, v48, 8, v49")
    a(f"v_and_b32 v49, 3, v{vLane}")
    a("v_lshl_add_u32 v48, v49, 3, v48")
    a(f"v_add_u32 v48, {K1_WP}, v48")
    a("v_xor_b32 v49, 32, v48")
    a("v_and_b32 v10, 7, v3")
    a("v_xor_b32 v10, v10, v2")
    a("v_lshlrev_b32 v10, 4, v10")
    a("v_lshl_add_u32 v10, v3, 7, v10")
    a(f"s_lshl_b32 s{sT0}, s{sW}, 11")
    a(f"s_add_u32 s{sT0}, s{sT0}, {K1_SCR}")
    a(f"v_add_u32 v10, s{sT0}, v10")
    a("v_xor_b32 v0, 64, v10")
    a(f"v_lshlrev_b32 v2, 4, v{vLane}")
    a(f"v_add_u32 v2, s{sT0}, v2")
    a(f"v_lshrrev_b32 v3, 3, v{vLane}")
    a(f"v_and_b32 v28, 7, v{vLane}")
    a("v_xor_b32 v28, v28, v3")
    a("v_lshlrev_b32 v28, 4, v28")
    a("v_lshl_add_u32 v3, v3, 7, v28")
    a(f"s_mov_b32 s{sScale}, {hex(NL2E)}")
    if "wfirst" in OPTS:
        a("s_waitcnt vmcnt(0)")
        xup()
    else:
        a(f"s_cmp_ge_u32 s{sW}, 13")
        a("s_cbranch_scc1 K1_B1")
        a("s_waitcnt vmcnt(4)")
        a("s_branch K1_B2")
        a.lab("K1_B1")
        a("s_waitcnt vmcnt(0)")
        a.lab("K1_B2")
    a.stamp(2)
    a("s_barrier")
    WF = 64

    def wf(mat, ct, ks):
        return WF + ((mat * 2 + ct) * 4 + ks) * 4
    for ks in range(4):
        for mat in range(2):
            for ct in range(2):
                b = wf(mat, ct, ks)
                off = mat * 32768 + ks * 8192
                a(f"ds_read_b64_tr_b16 v[{b}:{b+1}], v{48+ct} offset:{off}")
                a(f"ds_read_b64_tr_b16 v[{b+2}:{b+3}], v{48+ct} offset:{off+1024}")
    a("s_waitcnt lgkmcnt(0)")
    a.stamp(3)
    a("s_barrier")
    waudma(sW)

    def xlate(tag):
        a(f"s_cmp_ge_u32 s{sW}, 12")
        a(f"s_cbranch_scc1 K1_B3{tag}")
        a(f"s_lshl_b32 s{sJ}, s{sW}, 1")
        a(f"s_add_u32 s{sJ}, s{sJ}, 2")
        xdma(sJ, "C")
        if tag:
            a("s_waitcnt vmcnt(4)")
            a("s_branch K1_B4")
        a.lab(f"K1_B3{tag}")
        if tag:
            a("s_waitcnt vmcnt(0)")
            a.lab("K1_B4")
    if "early" in OPTS:
        a("s_barrier")
        xlate("E")
    XF = [32, 48]

    def xconst():
        a(f"v_lshrrev_b32 v4, 4, v{vLane}")
        a(f"v_and_b32 v5, 15, v{vLane}")
        a("v_xor_b32 v4, v4, v5")
        a("v_lshlrev_b32 v4, 4, v4")
        a("v_lshl_add_u32 v5, v5, 8, v4")

    def xread(buf, slot_sgpr):
        a(f"s_lshl_b32 s{sT0}, s{slot_sgpr}, 12")
        a(f"v_add_u32 v6, s{sT0}, v5")
        a("v_xor_b32 v7, 64, v6")
        a("v_xor_b32 v8, 0x80, v6")
        a("v_xor_b32 v9, 0xc0, v6")
        for ks in range(4):
            a(f"ds_read_b128 v[{XF[buf]+4*ks}:{XF[buf]+4*ks+3}], v{6+ks}")

    def mfmas(buf, mid=None):
        for ks in range(4):
            for mat in range(2):
                for ct in range(2):
                    d = 16 + (mat * 2 + ct) * 4
                    b = wf(mat, ct, ks)
                    cin = "0" if ks == 0 else f"v[{d}:{d+3}]"
                    a(f"v_mfma_f32_16x16x32_bf16 v[{d}:{d+3}], v[{b}:{b+3}], v[{XF[buf]+4*ks}:{XF[buf]+4*ks+3}], {cin}")
            if ks == 0 and mid:
                mid()
    xconst()
    a(f"s_lshl_b32 s{sSlot}, s{sQ}, 1")
    a(f"s_add_u32 s{sSlot}, s{sSlot}, 1")
    a(f"s_mul_i32 s{sOut}, s{sS}, {PS}")
    a(f"s_lshr_b32 s{sT0}, s{sX0}, 1")
    a(f"s_add_u32 s{sOut}, s{sOut}, s{sT0}")
    a(f"s_sub_u32 s{sT0}, s{sSlot}, s{sDl}")
    a(f"s_lshl_b32 s{sT0}, s{sT0}, 11")
    a(f"s_add_u32 s{sOut}, s{sOut}, s{sT0}")
    a.stamp(4)
    a("v_mov_b32 v4, 0")
    if "early" not in OPTS:
        a("s_waitcnt vmcnt(0)")
    a.stamp(5)
    a("s_barrier")
    a.stamp(7)
    a.stampc(31)
    if "early" not in OPTS:
        xlate("")
    xread(0, sSlot)
    for i in range(4):
        buf = i & 1
        if i == 3:
            a.c("13th P tile (tile 24, slot 0): slice 2, set 0 only")
            a(f"s_cmp_lg_u32 s{sQ}, 0")
            a("s_cbranch_scc1 K1_PDONE")
            a(f"s_cmp_eq_u32 s{sDl}, 0")
            a("s_cbranch_scc1 K1_PDONE")
        if i < 2:
            a(f"s_add_u32 s{sSlot}, s{sSlot}, 8")
        elif i == 2:
            a(f"s_mov_b32 s{sSlot}, 0")
        a("s_waitcnt lgkmcnt(0)")
        mfmas(buf, (lambda: xread(buf ^ 1, sSlot)) if i < 3 else None)
        a("s_nop 7")
        for r in range(16, 32, 2):
            a(f"v_max3_f32 v4, abs(v{r}), abs(v{r+1}), v4")
        for ct in range(2):
            for j in range(4):
                a(f"v_fma_mixlo_f16 v{24+4*ct+j}, v{16+4*ct+j}, s{sScale}, 0")
        a("ds_write_b128 v10, v[24:27]")
        a("ds_write_b128 v0, v[28:31]")
        a("ds_read_b128 v[12:15], v2")
        a("ds_read_b128 v[16:19], v2 offset:1024")
        a("s_waitcnt lgkmcnt(1)")
        a(f"buffer_store_dwordx4 v[12:15], v3, s[{SWS}:{SWS+3}], s{sOut} offen{P_ST}")
        a("s_waitcnt lgkmcnt(0)")
        a(f"buffer_store_dwordx4 v[16:19], v3, s[{SWS}:{SWS+3}], s{sOut} offen offset:1024{P_ST}")
        a.stamp(8 + i)
        if i < 3:
            a(f"s_add_u32 s{sOut}, s{sOut}, 16384")
            a("s_nop 1")
    a.lab("K1_PDONE")
    a("v_cmp_le_f32 vcc, 2.0, v4")
    a("s_cbranch_vccz K1_PSAFE")
    a("v_mov_b32 v13, 0x10000")
    a("s_mov_b64 exec, 1")
    a(f"buffer_atomic_add v13, off, s[{SDB}:{SDB+3}], 0 offset:64 sc1")
    a("s_mov_b64 exec, -1")
    a.lab("K1_PSAFE")
    a.lab("K1_AU")
    xconst()
    a(f"v_lshrrev_b32 v2, 4, v{vLane}")
    a(f"v_and_b32 v3, 15, v{vLane}")
    a("v_lshrrev_b32 v48, 2, v3")
    a("v_lshl_add_u32 v48, v2, 3, v48")
    a("v_lshlrev_b32 v48, 6, v48")
    a(f"v_and_b32 v49, 3, v{vLane}")
    a("v_lshl_add_u32 v48, v49, 3, v48")
    a("v_and_b32 v49, 1, v2")
    a("v_lshl_add_u32 v48, v49, 5, v48")
    a(f"v_add_u32 v48, {K1_WAU}, v48")
    a("v_xor_b32 v49, 32, v48")
    a("s_waitcnt lgkmcnt(0)")
    for ks in range(4):
        for mat in range(2):
            for ct in range(2):
                b = wf(mat, ct, ks)
                off = mat * 8192 + ks * 2048
                a(f"ds_read_b64_tr_b16 v[{b}:{b+1}], v{48+ct} offset:{off}")
                a(f"ds_read_b64_tr_b16 v[{b+2}:{b+3}], v{48+ct} offset:{off+256}")
    a("v_and_b32 v10, 7, v3")
    a("v_xor_b32 v10, v10, v2")
    a("v_lshlrev_b32 v10, 4, v10")
    a("v_lshl_add_u32 v10, v3, 7, v10")
    a(f"v_add_u32 v10, {L_AUR}, v10")
    a(f"s_mov_b32 s{sSlot}, s{sW}")
    a.c("first chunk of this wave: key waves 12w (12 chunks), loader waves 32(w-11) (32 chunks)")
    a(f"s_mul_i32 s{sT2}, s{sW}, 12")
    a(f"s_lshl_b32 s{sT3}, s{sW}, 5")
    a(f"s_sub_u32 s{sT3}, s{sT3}, {32*11}")
    a(f"s_cmp_lt_u32 s{sW}, 11")
    a(f"s_cselect_b32 s{sT3}, s{sT2}, s{sT3}")
    a(f"s_cselect_b32 s{sT2}, 12, 32")
    a(f"s_bfm_b64 s[54:55], s{sT2}, 0")
    a(f"s_lshl_b32 s90, s{sT3}, 8")
    a(f"s_lshl_b32 s{sT1}, s{sBk}, 2")
    a(f"s_add_u32 s90, s90, s{sT1}")
    a(f"s_add_u32 s48, s20, {DESC_OFF}")
    a("s_addc_u32 s49, s21, 0")
    a(f"s_mov_b32 s50, {NCH*256}")
    a("s_mov_b32 s51, 0x20000")
    a.stamp(14)
    a("s_waitcnt vmcnt(0) lgkmcnt(0)")
    a.stamp(13)
    a("s_barrier")
    a.stamp(15)
    xread(0, sSlot)
    a(f"s_cmp_lg_u32 s{sW}, 15")
    a("s_cbranch_scc1 K1_NZ")
    a(f"v_lshlrev_b32 v14, 2, v{vLane}")
    a(f"v_add_u32 v14, {L_GW}, v14")
    a("v_mov_b32 v3, 0")
    a("ds_write_b32 v14, v3")
    a("s_cmp_lt_u32 s2, 128" if TMAP else f"s_cmp_lt_u32 s{sSl}, 2")
    a("s_cbranch_scc1 K1_NZ2")
    a.c("count this workgroup's P tiles in")
    a("v_mov_b32 v15, 1")
    a("v_mov_b32 v14, 1")
    a("s_mov_b64 exec, 1")
    a(f"buffer_atomic_add v14, off, s[{SDB}:{SDB+3}], 0 offset:64 sc0 sc1")
    a("s_mov_b64 exec, -1")
    a("s_branch K1_NZ2")
    a.lab("K1_NZ")
    a("s_mov_b64 exec, 1")
    a(f"buffer_load_dword v2, off, s[{SDB}:{SDB+3}], 0 offset:192 sc1")
    a("s_mov_b64 exec, -1")
    a(f"v_lshlrev_b32 v14, 8, v{vLane}")
    a.lab("K1_NZ2")
    a("v_mov_b32 v4, 0")
    a(f"s_mov_b32 s{sUns+1}, 0")
    a.stamp(16)
    for i in range(2):
        a(f"s_sub_u32 s{sT1}, s{sSlot}, s{sDl}")
        a(f"s_cselect_b32 s{sT1}, 24, s{sT1}")
        a(f"s_lshl_b32 s{sT1}, s{sT1}, 11")
        a(f"v_add_u32 v12, s{sT1}, v10")
        a("v_xor_b32 v13, 64, v12")
        if i == 0:
            a(f"s_add_u32 s{sSlot}, s{sSlot}, 16")
            a(f"s_min_u32 s{sJ}, s{sSlot}, 24")
        a("s_waitcnt lgkmcnt(0)")
        mfmas(i, (lambda: xread(1, sJ)) if i == 0 else None)
        a("s_nop 7")
        for r in range(16, 24, 2):
            a(f"v_max3_f32 v4, abs(v{r}), abs(v{r+1}), v4")
        for ct in range(2):
            for j in range(4):
                a(f"v_fma_mixlo_f16 v{24+4*ct+j}, v{16+4*ct+j}, 1.0, 0")
        a("ds_write_b128 v12, v[24:27]")
        a("ds_write_b128 v13, v[28:31]")
        if i == 0:
            a(f"s_cmp_eq_u32 s{sW}, 15")
            a("s_cbranch_scc1 K1_END")
            a.c("partition published? then fetch this wave's segment descriptors")
            a("s_mov_b64 exec, 1")
            a("s_waitcnt vmcnt(0)")
            a("v_cmp_ne_u32 vcc, 0, v2")
            a("s_cbranch_vccnz K1_ROK")
            poll(a, "R", 2, 192, None, SLP)
            a.lab("K1_ROK")
            a("s_mov_b64 exec, s[54:55]")
            a(f"buffer_load_dword v3, v14, s[48:51], s90 offen{LD}")
            a("s_mov_b64 exec, -1")
            a(f"v_readfirstlane_b32 s{sUns+1}, v2")
            a.stamp(17)
            a(f"s_cmp_ge_u32 s{sSlot}, 25")
            a(f"s_lshr_b32 s{sUns+1}, s{sUns+1}, 16")
            a(f"s_cmp_ge_u32 s{sSlot}, 25")
            a("s_cbranch_scc1 K1_END")
    a.lab("K1_END")
    a("v_cmp_le_f32 vcc, 2.0, v4")
    a("s_cmp_lg_u64 vcc, 0")
    a(f"s_cselect_b32 s{sUns+1}, 1, s{sUns+1}")
    a.stamp(12)
    a.stampc(32)
    a.stamp_flush(0, sW)
    a.c("wave 15 waits until every partition workgroup has counted into R")
    a(f"s_cmp_lg_u32 s{sW}, 15")
    a("s_cbranch_scc1 K1_RDONE")
    a("s_cmp_lt_u32 s2, 128" if TMAP else f"s_cmp_lt_u32 s{sSl}, 2")
    a("s_cbranch_scc1 K1_NG")
    a("s_mov_b64 exec, 1")
    a("s_waitcnt vmcnt(0)")
    a("v_add_u32 v14, v14, v15")
    a("v_and_b32 v15, 0xffff, v14")
    a("v_cmp_eq_u32 vcc, 0x80, v15")
    a("s_cbranch_vccz K1_NG")
    a(f"buffer_store_dword v14, off, s[{SDB}:{SDB+3}], 0 offset:128 sc1")
    a.lab("K1_NG")
    a("s_mov_b64 exec, -1")
    a.lab("K1_RDONE")
    a(f"s_lshl_b32 s{sT0}, s{sW}, 6")
    a(f"v_add_u32 v0, s{sT0}, v{vLane}")
    a("s_branch K2_ENTRY")
    a.lab("K1_END2")
    a("s_endpgm")


CAP = 8192
L_CNT = 0
L_ORD = 2048
L_DH = 4096
L_BST = 4352
L_SB = 4608
L_FLAG = 4864
L_GD = L_FLAG + 4
L_ELL = 5120
L_DUM = L_ELL + CAP * 4
L_EA = L_DUM + 512
NKW = 11
EA_TAIL = NKW * 12 * 64
EA_ZERO = EA_TAIL + NKW * 64
assert L_EA + EA_ZERO * 8 + 8 <= L_AUR
DUMMY = 0xFFFF0000 | EA_ZERO
DUMMY_NODE = 399 * 128
NBATCH = (BN + 15) // 16
NR = 13


def gen_k2(a):
    assert FUSED
    sW, sSl, sBk = 22, 23, 24
    sT0, sT1, sT2, sT3 = 25, 26, 27, 28
    sK = 29
    sSp, sOvf = 30, 31
    SWS, SP, SO, SG = 32, 36, 40, 44
    SDS = 48
    sSave = 54
    sM = 56
    sKK = 56
    sRet = 82
    SA = 84
    SF0, SF1, SF2 = 64, 44, 60
    sTM, sEarly, sOutOff, sK2, sK1 = 88, 90, 91, 92, 93
    sA, sCntS, sNxtA, sNxtCnt, sRem, sN2 = 48, 49, 50, 51, 52, 53
    vLane, vC8, vG8, vRec4, vCo, vS, vSrc, vEa, vT = 1, 2, 3, 4, 5, 6, 7, 8, 9
    NA, N2, EE = 10, 12, 14
    ACC, AC, D = 16, 24, 40
    PP = [56, 72, 88]
    R, WB, vStg = 104, 112, 122
    AD = R
    KEYR, RK, HA = 24, 37, 50
    ET, WR, AU2 = 70, 88, 96
    vDesc = 104
    vL4, vL16, vIdx, v64c = 65, 66, 67, 68
    T = 72
    a.vst = 120

    def auread(n):
        a(f"v_xor_b32 v{vT}, v{n}, v{vC8}")
        a(f"v_xor_b32 v{AD+2}, v{n+1}, v{vC8}")
        a(f"v_add_u32 v{vT}, {L_AUR}, v{vT}")
        a(f"v_add_u32 v{AD+2}, {L_AUR}, v{AD+2}")
        a(f"ds_read_b128 v[{ACC}:{ACC+3}], v{vT}")
        a(f"ds_read_b128 v[{ACC+4}:{ACC+7}], v{AD+2}")

    def sb_arrive(k):
        a("s_waitcnt lgkmcnt(0)")
        a("s_mov_b64 exec, 1")
        a(f"ds_add_u32 v{T+14}, v{T+15} offset:{4*k}")
        a("s_mov_b64 exec, -1")

    def sb_wait(k, n, tag):
        a.lab(f"K2_SBW{tag}")
        a(f"ds_read_b32 v{T+13}, v{T+14} offset:{4*k}")
        a("s_waitcnt lgkmcnt(0)")
        a(f"v_cmp_gt_u32 vcc, {n}, v{T+13}")
        a(f"s_cbranch_vccnz K2_SBW{tag}")

    def batchinfo():
        a(f"s_lshl_b32 s{sT0}, s{sK1}, 6")
        a(f"v_add_u32 v{T}, s{sT0}, v{vG8}")
        a(f"ds_read_b64 v[{NA}:{NA+1}], v{T} offset:{L_ORD}")
        a(f"s_min_u32 s{sT0}, s{sK2}, 25")
        a(f"s_lshl_b32 s{sT0}, s{sT0}, 6")
        a(f"v_add_u32 v{T}, s{sT0}, v{vG8}")
        a(f"ds_read_b64 v[{N2}:{N2+1}], v{T} offset:{L_ORD}")
        a(f"ds_read_b32 v{T+4}, v{vL4} offset:{L_BST}")
        a(f"ds_read_b32 v{T+8}, v123 offset:{L_FLAG}")
        a("s_waitcnt lgkmcnt(0)")
        a(f"v_min_u32 v{T+4}, 0x1ff, v{T+4}")
        a(f"v_lshlrev_b32 v{T+5}, 7, v{T+4}")
        a(f"v_mov_b32 v{T+6}, v{T+5}")
        scan64(a, T + 6)
        a(f"v_readfirstlane_b32 s{sOvf}, v{T+8}")
        a(f"v_sub_u32 v{T+6}, v{T+6}, v{T+5}")
        a(f"v_add_u32 v{T+6}, {L_ELL}, v{T+6}")
        a("s_nop 0")
        a(f"v_readlane_b32 s{sA}, v{T+6}, s{sK1}")
        a(f"v_readlane_b32 s{sRem}, v{T+4}, s{sK1}")
        a(f"v_readlane_b32 s{sNxtA}, v{T+6}, s{sK2}")
        a(f"v_readlane_b32 s{sN2}, v{T+4}, s{sK2}")
        a("s_nop 3")
        a(f"s_sub_u32 s{sRem}, s{sRem}, 1")
        a(f"s_mov_b32 s{sCntS}, s{sRem}")
        a(f"s_sub_u32 s{sNxtCnt}, s{sN2}, 1")
        a(f"s_cmp_eq_u32 s{sN2}, 0")
        a(f"s_cselect_b32 s{sNxtA}, {L_DUM}, s{sNxtA}")
        a(f"s_cselect_b32 s{sNxtCnt}, 100, s{sNxtCnt}")

    def wperm():
        a(f"s_mov_b32 s{sT0}, 0x05040100")
        a(f"s_mov_b32 s{sT1}, 0x07060302")
        for m in range(4):
            sel = sT0 if m % 2 == 0 else sT1
            h = m >> 1
            a(f"v_perm_b32 v{WB+2*m}, v{WR+2+h}, v{WR+h}, s{sel}")
            a(f"v_perm_b32 v{WB+2*m+1}, v{WR+6+h}, v{WR+4+h}, s{sel}")

    def wcloads():
        a(f"s_lshl_b32 s{sT1}, s{sSl}, 6")
        a(f"s_add_u32 s{sT1}, s{sT1}, 65536")
        for k in range(4):
            a(f"buffer_load_dwordx2 v[{WR+2*k}:{WR+1+2*k}], v{vCo}, s[{SG}:{SG+3}], s{sT1} offen offset:{k*256}")

    def unsafe_or():
        a(f"v_mov_b32 v{T+12}, s95")
        a("s_mov_b64 exec, 1")
        a(f"ds_or_b32 v{T+14}, v{T+12} offset:32")
        a("s_mov_b64 exec, -1")

    a.lab("K2_ENTRY")
    a.stamp(0)
    a.stampc(29)
    a(f"v_mov_b32 v{vDesc}, v3") if False else None
    srd(a, SWS, 20, WS_USED)
    a(f"v_lshlrev_b32 v{vL4}, 2, v{vLane}")
    a(f"v_lshlrev_b32 v{vL16}, 4, v{vLane}")
    a(f"v_mov_b32 v{T+14}, {L_GW}")
    a(f"v_mov_b32 v{T+15}, 1")
    a("v_mov_b32 v123, 0")

    def consts():
        srd(a, SG, 16, 260 * 256)
        a(f"s_mul_i32 s{sT0}, s{sSl}, {PS}")
        a(f"s_add_u32 s{SP}, s20, s{sT0}")
        a(f"s_addc_u32 s{SP+1}, s21, 0")
        a(f"s_mov_b32 s{SP+2}, {N*128}")
        a(f"s_mov_b32 s{SP+3}, 0x20000")
        srd(a, SO, 18, N * 256)
        a(f"s_mov_b32 s{sK}, {hex(NL2E)}")
        a(f"v_and_b32 v{vCo}, 7, v{vLane}")
        a(f"v_lshlrev_b32 v{vCo}, 3, v{vCo}")
        a(f"v_lshlrev_b32 v{vC8}, 1, v{vCo}")
        a(f"v_and_b32 v{vG8}, 56, v{vLane}")
        a(f"v_and_b32 v64, 2, v{vLane}")
        a(f"v_lshl_add_u32 v{vRec4}, v64, 1, v{vG8}")
        a(f"v_and_b32 v64, 1, v{vLane}")
        a(f"v_lshl_add_u32 v{vRec4}, v64, 6, v{vRec4}")
        LISTS = [[0, 10, 11, 12, 20, 23], [1, 2, 7, 16, 17, 21], [6, 8, 9, 15, 18, 22, 24], [3, 4, 5, 13, 14, 19]]
        if "oldasg" in OPTS:
            LISTS = [[q, 7-q, 8+q, 15-q, 16+q, 23-q] + ([24] if q == 3 else []) for q in range(4)]
        assert sorted(sum(LISTS, [])) == list(range(NBATCH))
        a(f"s_and_b32 s{sT0}, s{sW}, 3")
        for q in range(4):
            L = LISTS[q] + [31] * (8 - len(LISTS[q]))
            if "ord2" in OPTS:
                X = LISTS[q]
                L = [X[0], X[1], X[2], X[-1], X[3], X[4], X[5] if len(X) > 6 else 31, 31]
            if "ord1" not in OPTS and "ord2" not in OPTS:
                X = LISTS[q]
                L = [X[0], X[2], X[4], X[-1], X[1], X[3], X[5] if len(X) > 6 else 31, 31]
            c1 = sum(L[r] << (8 * r) for r in range(4))
            c2 = sum(L[4 + r] << (8 * r) for r in range(4))
            if q == 0:
                a(f"s_mov_b32 s{sK1}, {hex(c1)}")
                a(f"s_mov_b32 s{sK2}, {hex(c2)}")
            else:
                a(f"s_cmp_eq_u32 s{sT0}, {q}")
                a(f"s_cselect_b32 s{sK1}, {hex(c1)}, s{sK1}")
                a(f"s_cselect_b32 s{sK2}, {hex(c2)}, s{sK2}")
        a(f"s_and_b32 s{sT1}, s{sW}, 12")
        a(f"s_lshl_b32 s{sT1}, s{sT1}, 1")
        a(f"s_lshr_b32 s{sK1}, s{sK1}, s{sT1}")
        a(f"s_lshr_b32 s{sK2}, s{sK2}, s{sT1}")
        a(f"s_and_b32 s{sK1}, s{sK1}, 0xff")
        a(f"s_and_b32 s{sK2}, s{sK2}, 0xff")
        a(f"s_mul_i32 s{sOutOff}, s{sBk}, {BN*256}")
        a(f"s_lshl_b32 s{sT0}, s{sSl}, 6")
        a(f"s_add_u32 s{sOutOff}, s{sOutOff}, s{sT0}")
    a(f"s_cmp_ge_u32 s{sW}, {NKW}")
    a("s_cbranch_scc1 K2_LW")
    a(f"v_lshrrev_b32 v{T}, 4, v{vLane}")
    a(f"v_lshlrev_b32 v{T+1}, 2, v{T}")
    a(f"s_mov_b32 s{sT0}, {CH*4}")
    a(f"v_and_b32 v{T+2}, 15, v{vLane}")
    a(f"v_lshlrev_b32 v{T+3}, 2, v{T+2}")
    a(f"v_lshlrev_b32 v{T+2}, 4, v{T+2}")
    a(f"v_mad_u32_u24 v{T+2}, v{T}, s{sT0}, v{T+2}")
    a(f"s_mov_b32 s{sSp}, 0")
    a(f"s_mov_b32 s{sOvf}, 0")
    a(f"s_mov_b64 s[{sM+24}:{sM+25}], 0")
    a(f"s_mul_i32 s{sT2}, s{sT3}, {CH*4}")
    a(f"s_add_u32 s{sT2}, s{sT2}, {KEY_OFF}")
    a(f"s_mov_b32 s{sT0}, 0x40ffff")
    a("s_waitcnt vmcnt(0)")
    a.stamp(2)
    a(f"v_mov_b32 v{vDesc}, v3")
    for h in range(3):
        a(f"ds_bpermute_b32 v{T+4+h}, v{T+1}, v3 offset:{16*h}")
    a(f"v_cmp_lt_u32 vcc, s{sT0}, v3")
    a(f"s_and_b64 s[{sTM}:{sTM+1}], vcc, s[{sSave}:{sSave+1}]")
    a("s_waitcnt lgkmcnt(0)")
    for h in range(3):
        a(f"v_lshrrev_b32 v{T+7+h}, 16, v{T+4+h}")
        a(f"v_lshlrev_b32_sdwa v{T+4+h}, 2, v{T+4+h} dst_sel:DWORD dst_unused:UNUSED_PAD src0_sel:DWORD src1_sel:WORD_0")
        a(f"v_cmp_gt_u32 s[{sM+8*h}:{sM+8*h+1}], v{T+7+h}, v{T+3}")
        a(f"v_add_u32 v{T+4+h}, v{T+4+h}, v{T+2}")
        a(f"s_or_b64 exec, s[{sM+8*h}:{sM+8*h+1}], 1")
        a(f"buffer_load_dwordx4 v[{KEYR+4*h}:{KEYR+4*h+3}], v{T+4+h}, s[{SWS}:{SWS+3}], s{sT2} offen{LD}")
        a("s_mov_b64 exec, -1")
        if h < 2:
            a(f"s_add_u32 s{sT2}, s{sT2}, {4*CH*4}")
    a(f"s_cmp_lg_u64 s[{sTM}:{sTM+1}], 0")
    a("s_cbranch_scc1 K2_TAIL")
    a.lab("K2_TAILR")
    a(f"v_lshlrev_b32 v{T}, 4, v0")
    for i in range(4):
        a(f"v_mov_b32 v{20+i}, 0")
    a.stamp(3)
    a("s_barrier")
    a.stamp(1)
    a(f"s_cmp_ge_u32 s{sW}, 6")
    a("s_cbranch_scc1 K2_INIT_DONE")
    a(f"s_cmp_eq_u32 s{sW}, 5")
    a("s_cbranch_scc1 K2_INIT_5")
    a(f"s_lshr_b32 s{sT0}, s{sW}, 1")
    a(f"s_cmp_eq_u32 s{sT0}, 1")
    a("s_cbranch_scc0 K2_INIT_Z")
    for i in range(4):
        a(f"v_mov_b32 v{20+i}, {DUMMY_NODE}")
    a.lab("K2_INIT_Z")
    a(f"ds_write_b128 v{T}, v[20:23]")
    a("s_branch K2_INIT_A")
    a.lab("K2_INIT_5")
    a(f"v_mov_b32 v64, {L_EA + EA_ZERO*8}")
    a("ds_write_b64 v64, v[20:21]")
    a.lab("K2_INIT_A")
    sb_arrive(5)
    a.lab("K2_INIT_DONE")
    unsafe_or()
    for c in range(1, 4):
        a(f"v_add_u32 v{T+3}, 1, v{T+3}")
        for h in range(3):
            a(f"v_cmp_gt_u32 s[{sM+8*h+2*c}:{sM+8*h+2*c+1}], v{T+7+h}, v{T+3}")
    a(f"s_lshl_b32 s{sT0}, s{sT3}, 6")
    a(f"v_add_u32 v{vIdx}, s{sT0}, v{vL4}")
    a(f"v_mov_b32 v{v64c}, 64")
    consts()
    wcloads()
    sb_wait(5, 6, "B1")
    a.stamp(4)
    a(f"s_cmp_eq_u32 s{sOvf}, 0")
    a("s_cbranch_scc1 K2_NOOVF")
    a(f"ds_write_b32 v123, v{T+15} offset:{L_FLAG}")
    a.lab("K2_NOOVF")
    a("s_waitcnt vmcnt(4)")
    a.stamp(5)
    for i in range(NR):
        a(f"v_and_b32 v{HA+i}, 0xffff, v{KEYR+i}")
        a(f"s_mov_b64 exec, s[{sM+2*i}:{sM+2*i+1}]")
        a(f"ds_add_rtn_u32 v{RK+i}, v{HA+i}, v{v64c}")
        a("s_mov_b64 exec, -1")
    for i in range(NR):
        if i == NR - 1:
            a(f"s_lshl_b32 s{sT0}, s{sW}, 6")
            a(f"s_add_u32 s{sT0}, s{sT0}, {EA_TAIL}")
            a(f"v_add_u32 v{vIdx}, s{sT0}, v{vLane}")
        a(f"v_mov_b32_sdwa v{KEYR+i}, v{vIdx} dst_sel:WORD_0 dst_unused:UNUSED_PRESERVE src0_sel:DWORD")
        if i < NR - 2:
            a(f"v_add_u32 v{vIdx}, {253 if i % 4 == 3 else 1}, v{vIdx}")
    sb_arrive(0)
    a(f"s_cmp_ge_u32 s{sW}, 7")
    a("s_cbranch_scc1 K2_W5")
    a(f"v_cmp_gt_u32 vcc, {BN}, v0")
    a(f"v_lshlrev_b32 v{T}, 2, v0")
    a(f"v_and_b32 v{T+8}, 7, v0")
    a(f"v_lshlrev_b32 v{T+8}, 4, v{T+8}")
    a(f"v_lshl_add_u32 v{T+8}, v0, 7, v{T+8}")
    a(f"s_mov_b64 s[{sSave}:{sSave+1}], vcc")
    sb_wait(0, NKW, "2")
    a.stamp(6)
    a.c("node phase A")
    a(f"s_mov_b64 exec, s[{sSave}:{sSave+1}]")
    a(f"ds_read_b32 v{T+1}, v{T}")
    a("s_waitcnt lgkmcnt(0)")
    a(f"v_lshrrev_b32 v{T+1}, 6, v{T+1}")
    a(f"v_min_u32 v{T+2}, 63, v{T+1}")
    a(f"v_sub_u32 v{T+2}, 63, v{T+2}")
    a(f"v_lshlrev_b32 v{T+2}, 2, v{T+2}")
    a(f"ds_add_rtn_u32 v{T+3}, v{T+2}, v{T+15} offset:{L_DH}")
    a(f"v_add_u32 v{T+7}, 1, v{T+1}")
    a(f"v_lshrrev_b32 v{T+7}, 1, v{T+7}")
    a(f"v_max_u32 v{T+7}, 1, v{T+7}")
    sb_arrive(1)
    sb_wait(1, 7, "3")
    a.stamp(7)
    a.c("node phase B")
    a(f"ds_read_b32 v{T+5}, v{vL4} offset:{L_DH}")
    a("s_waitcnt lgkmcnt(0)")
    a(f"v_mov_b32 v{T+6}, v{T+5}")
    scan64(a, T + 6)
    a(f"v_sub_u32 v{T+6}, v{T+6}, v{T+5}")
    a("s_nop 0")
    a(f"ds_bpermute_b32 v{T+9}, v{T+2}, v{T+6}")
    a("s_waitcnt lgkmcnt(0)")
    a(f"s_mov_b64 exec, s[{sSave}:{sSave+1}]")
    a(f"v_add_u32 v{T+3}, v{T+3}, v{T+9}")
    a(f"v_lshlrev_b32 v{T+9}, 2, v{T+3}")
    a(f"ds_write_b32 v{T+9}, v{T+8} offset:{L_ORD}")
    a(f"v_lshrrev_b32 v{T+10}, 4, v{T+3}")
    a(f"v_lshlrev_b32 v{T+10}, 2, v{T+10}")
    a(f"ds_max_u32 v{T+10}, v{T+7} offset:{L_BST}")
    a(f"v_and_b32 v{T+9}, 60, v{T+9}")
    sb_arrive(2)
    sb_wait(2, 7, "4")
    a.stamp(8)
    a.c("node phase C")
    a(f"ds_read_b32 v{T+5}, v{vL4} offset:{L_BST}")
    a("s_waitcnt lgkmcnt(0)")
    a(f"v_min_u32 v{T+5}, 0x1ff, v{T+5}")
    a(f"v_lshlrev_b32 v{T+5}, 7, v{T+5}")
    a(f"v_mov_b32 v{T+6}, v{T+5}")
    scan64(a, T + 6)
    a("s_nop 0")
    a(f"v_readlane_b32 s{sT0}, v{T+6}, 63")
    a(f"v_sub_u32 v{T+6}, v{T+6}, v{T+5}")
    a(f"v_add_u32 v{T+6}, {L_ELL}, v{T+6}")
    a("s_nop 1")
    a(f"ds_bpermute_b32 v{T+10}, v{T+10}, v{T+6}")
    a(f"s_cmp_le_u32 s{sT0}, {CAP*4}")
    a("s_cbranch_scc1 K2_NC_OK")
    a(f"ds_write_b32 v123, v{T+15} offset:{L_FLAG}")
    a.lab("K2_NC_OK")
    a("s_waitcnt lgkmcnt(0)")
    a(f"s_mov_b64 exec, s[{sSave}:{sSave+1}]")
    a(f"v_add_u32 v{T+10}, v{T+10}, v{T+9}")
    a(f"ds_write_b32 v{T}, v{T+10}")
    sb_arrive(3)
    a.lab("K2_W5")
    sb_wait(3, 8, "5")
    a.stamp(9)
    a(f"ds_read_b32 v{T+8}, v123 offset:{L_FLAG}")
    for i in range(NR):
        a(f"s_mov_b64 exec, s[{sM+2*i}:{sM+2*i+1}]")
        a(f"ds_read_b32 v{HA+i}, v{HA+i}")
    a("s_mov_b64 exec, -1")
    a("s_waitcnt lgkmcnt(0)")
    a(f"v_cmp_ne_u32 vcc, 0, v{T+8}")
    a("s_cbranch_vccnz K2_NOSC")
    for i in range(NR):
        a(f"v_add_u32 v{HA+i}, v{HA+i}, v{RK+i}")
        a(f"s_mov_b64 exec, s[{sM+2*i}:{sM+2*i+1}]")
        a(f"ds_write_b32 v{HA+i}, v{KEYR+i}")
        a("s_mov_b64 exec, -1")
    a.lab("K2_NOSC")
    batchinfo()
    a(f"s_lshl_b32 s{sT2}, s{sW}, 9")
    a(f"s_add_u32 s{sT2}, s{sT2}, {L_EA + EA_TAIL*8}")
    a(f"v_lshl_add_u32 v63, v{vLane}, 3, s{sT2}")
    a(f"ds_write_b64 v63, v[{ET}:{ET+1}]")
    a.stamp(10)
    a("s_branch K2_FINB")
    a.lab("K2_LW")
    a(f"v_lshrrev_b32 v{T+4}, 5, v{vLane}")
    a(f"v_lshlrev_b32 v{T+5}, 2, v{T+4}")
    a(f"v_and_b32 v{T+6}, 31, v{vLane}")
    a(f"v_lshlrev_b32 v{T+7}, 1, v{T+6}")
    a(f"v_lshlrev_b32 v{T+6}, 4, v{T+6}")
    a(f"s_mov_b32 s{sT0}, {CH*8}")
    a(f"v_mad_u32_u24 v{T+6}, v{T+4}, s{sT0}, v{T+6}")
    a(f"s_lshl_b32 s{sT0}, s{sT3}, 9")
    a(f"v_add_u32 v{T+8}, s{sT0}, v{vL16}")
    a("s_waitcnt vmcnt(0)")
    a(f"v_mov_b32 v{vDesc}, v3")
    consts()
    wcloads()
    a(f"s_mul_i32 s{sT2}, s{sT3}, {CH*8}")
    a(f"s_add_u32 s{sT2}, s{sT2}, {EAT_OFF}")
    a.stamp(2)
    a(f"s_cmp_eq_u32 s{sW}, 15")
    a("s_cbranch_scc1 K2_SW")
    BP = 105
    for q in range(8):
        a(f"ds_bpermute_b32 v{BP+q}, v{T+5}, v{vDesc} offset:{8*q}")
    a("s_waitcnt lgkmcnt(0)")
    a("s_barrier")
    a.stamp(1)
    LWD = [16, 20, 24, 28, 32, 36, 40, 44, 48, 52, 56, 60, 96, 100, 6, 10]
    a(f"s_lshl_b32 s{sT0}, s{sT3}, 9")
    a(f"s_add_u32 s{sT0}, s{sT0}, {L_EA}")
    for q in range(16):
        b = BP + (q % 8)
        a(f"v_lshrrev_b32 v{T+9}, 16, v{b}")
        a(f"v_lshlrev_b32_sdwa v{T+10}, 3, v{b} dst_sel:DWORD dst_unused:UNUSED_PAD src0_sel:DWORD src1_sel:WORD_0")
        a(f"v_cmp_gt_u32 vcc, v{T+9}, v{T+7}")
        a(f"v_add_u32 v{T+10}, v{T+10}, v{T+6}")
        if q < 8:
            a(f"ds_bpermute_b32 v{b}, v{T+5}, v{vDesc} offset:{8*(q+8)}")
        a("s_or_b64 exec, vcc, 1")
        if "eadma" in OPTS:
            a(f"s_mov_b32 m0, s{sT0}")
            a(f"s_add_u32 s{sT0}, s{sT0}, 1024")
            a(f"buffer_load_dwordx4 v{T+10}, s[{SWS}:{SWS+3}], s{sT2} offen{LD} lds")
        else:
            a(f"buffer_load_dwordx4 v[{LWD[q]}:{LWD[q]+3}], v{T+10}, s[{SWS}:{SWS+3}], s{sT2} offen{LD}")
        a("s_mov_b64 exec, -1")
        if q < 15:
            a(f"s_add_u32 s{sT2}, s{sT2}, {2*CH*8}")
        if q == 7:
            a("s_waitcnt lgkmcnt(0)")
    a.stamp(5)
    unsafe_or()
    for q in range(16 if "eadma" not in OPTS else 0):
        a(f"s_waitcnt vmcnt({15-q})")
        if TCH and q == TCH[1]:
            sb_arrive(6)
        a(f"ds_write_b128 v{T+8}, v[{LWD[q]}:{LWD[q]+3}] offset:{L_EA + q*1024}")
    if TCH:
        pass
    a.stamp(10)
    a("s_branch K2_FINB")
    a.lab("K2_SW")
    a("s_waitcnt lgkmcnt(0)")
    for i in range(4):
        a(f"v_mov_b32 v{16+i}, {hex(DUMMY)}")
    a("s_barrier")
    a.stamp(1)
    for i in range(33):
        if i == 32:
            a("s_bfm_b64 exec, 32, 0")
        a(f"ds_write_b128 v{vL16}, v[16:19] offset:{L_ELL + i*1024}")
    sb_arrive(3)
    poll(a, "G", 53, 128, None, SLP)
    a(f"v_readfirstlane_b32 s{sT0}, v53")
    a("s_nop 3")
    a(f"s_lshr_b32 s{sT0}, s{sT0}, 16")
    a(f"s_or_b32 s95, s95, s{sT0}")
    unsafe_or()
    if TCH:
        a.c("warm this XCD's L2 with part of the P slice once most of the e_attr records have arrived")
        sb_wait(6, 4, "LI")
        a(f"s_lshr_b32 s{sT0}, s2, 3")
        a(f"s_mul_i32 s{sT0}, s{sT0}, {782*128}")
        a(f"v_lshlrev_b32 v52, 7, v{vLane}")
        for i in range(TCH[0]):
            a(f"buffer_load_dword v{24+i}, v52, s[{SP}:{SP+3}], s{sT0} offen{LD}")
            a(f"s_add_u32 s{sT0}, s{sT0}, 8192")
        a(f"s_waitcnt vmcnt({TCH[0]})")
        a("s_branch K2_FINC")
    a.stamp(10)
    a.lab("K2_FINB")
    a("s_mov_b64 exec, -1")
    a.c("Wc magnitude check (|w| < 2)")
    a("s_waitcnt vmcnt(0)")
    a.lab("K2_FINC")
    a(f"v_or3_b32 v{T}, v{WR}, v{WR+1}, v{WR+2}")
    a(f"v_or3_b32 v{T+1}, v{WR+3}, v{WR+4}, v{WR+5}")
    a(f"v_or3_b32 v{T}, v{WR+6}, v{WR+7}, v{T}")
    a(f"v_or_b32 v{T}, v{T}, v{T+1}")
    a(f"v_and_b32 v{T}, 0x40004000, v{T}")
    a(f"v_cmp_ne_u32 vcc, 0, v{T}")
    a("s_cbranch_vccz K2_WOK")
    a(f"ds_or_b32 v{T+14}, v{T+15} offset:32")
    a.lab("K2_WOK")
    wperm()
    a("s_waitcnt lgkmcnt(0)")
    a.stamp(12)
    a("s_barrier")
    a(f"s_cmp_lt_u32 s{sW}, {NKW}")
    a("s_cbranch_scc1 K2_HAVEBI")
    batchinfo()
    a.lab("K2_HAVEBI")
    a(f"s_cmp_lg_u32 s{sOvf}, 0")
    a("s_cbranch_scc1 K2_FALLBACK")
    a(f"s_mov_b32 s{sKK}, {hex(NL2E)}")
    a(f"s_mov_b32 s{sKK+1}, {hex(NL2E)}")
    a(f"ds_read_b32 v{D+2}, v{T+14} offset:32")
    auread(NA)
    if "span" in OPTS:
        a("s_and_b32 s101, s2, 0x7f")
        a("s_cmp_lg_u32 s101, 5")
        a("s_cbranch_scc1 SPANB")
        a(f"s_cmp_lg_u32 s22, 0")
        a("s_cbranch_scc1 SPANB")
        a("s_memrealtime s[100:101]")
        a("s_waitcnt lgkmcnt(0)")
        a("v_mov_b32 v60, s100")
        a("s_lshr_b32 s101, s2, 7")
        a("s_lshl_b32 s101, s101, 4")
        a("s_mov_b64 exec, 1")
        a(f"buffer_store_dword v60, off, s[{SDB}:{SDB+3}], s101 offset:8 sc1")
        a("s_mov_b64 exec, -1")
        a.lab("SPANB")
    a.stamp(13)
    a.stampc(30)

    sw_sites = []

    def advance(tag):
        a(f"s_add_u32 s{sA}, s{sA}, 128")
        a(f"s_sub_u32 s{sCntS}, s{sCntS}, 1")
        a(f"s_cbranch_scc1 K2_SW{tag}")
        a.lab(f"K2_SWR{tag}")
        sw_sites.append(tag)

    def gathers(P):
        for j in range(4):
            a(f"v_add_u32_dpp v{AD+j}, v{vSrc}, v{vC8} quad_perm:[{j},{j},{j},{j}] row_mask:0xf bank_mask:0xf")
        for j in range(4):
            a(f"buffer_load_dwordx4 v[{P+4*j}:{P+4*j+3}], v{AD+j}, s[{SP}:{SP+3}], 0 offen{G_LD}")

    def split(S):
        a(f"v_lshlrev_b32_sdwa v{vSrc}, 7, v{S} dst_sel:DWORD dst_unused:UNUSED_PAD src0_sel:DWORD src1_sel:WORD_1")
        a(f"v_lshlrev_b32_sdwa v{vEa}, 3, v{S} dst_sel:DWORD dst_unused:UNUSED_PAD src0_sel:DWORD src1_sel:WORD_0")

    def setup_ac():
        for m in range(4):
            a(f"v_cvt_f32_f16 v{AC+4*m}, v{ACC+m}")
            a(f"v_cvt_f32_f16 v{AC+4*m+2}, v{ACC+4+m}")
        for m in range(4):
            a(f"v_mov_b32 v{AC+4*m+1}, v{AC+4*m}")
            a(f"v_mov_b32 v{AC+4*m+3}, v{AC+4*m+2}")

    def compute(P):
        for m in range(4):
            for j in range(4):
                a(f"v_fma_mix_f32 v{D+4*m+j}, v{D+4*m+j}, s{sK}, v{P+4*j+m} op_sel_hi:[0,0,1]")
        for i in range(16):
            a(f"v_exp_f32 v{D+i}, v{D+i}")
        for i in range(8):
            a(f"v_pk_add_f32 v[{D+2*i}:{D+2*i+1}], v[{D+2*i}:{D+2*i+1}], 1.0 op_sel_hi:[1,0]")
        for j in range(4):
            r = R + 4 * (j & 1)
            for m in range(4):
                a(f"v_rcp_f32 v{r+m}, v{D+4*m+j}")
            acc = ACC + 4 * (j >> 1)
            a(f"v_pk_fma_f32 v[{acc}:{acc+1}], v[{P+4*j}:{P+4*j+1}], v[{r}:{r+1}], v[{acc}:{acc+1}]")
            a(f"v_pk_fma_f32 v[{acc+2}:{acc+3}], v[{P+4*j+2}:{P+4*j+3}], v[{r+2}:{r+3}], v[{acc+2}:{acc+3}]")

    def pk(op, d, *src, mod=""):
        a(f"v_pk_{op}_f32 v[{d}:{d+1}], " + ", ".join(x if isinstance(x, str) else f"v[{x}:{x+1}]" for x in src) + mod)

    def compute_fast(P):
        for j in range(4):
            for m in range(4):
                a(f"v_fma_mix_f32 v{D+4*m+j}, v{D+4*m+j}, s{sK}, v{P+4*j+m} op_sel_hi:[0,0,1]")

        def exps(j0):
            for m in range(4):
                a(f"v_exp_f32 v{R+m}, v{D+4*m+j0}")
            for m in range(4):
                a(f"v_exp_f32 v{R+4+m}, v{D+4*m+j0+1}")

        def mid(j0):
            H1, H2 = P + 4 * j0, P + 4 * j0 + 4
            N, Q = (D + j0, D + 4 + j0), (D + 8 + j0, D + 12 + j0)
            for h in range(2):
                pk("add", R + 2 * h, R + 2 * h, "1.0", mod=" op_sel_hi:[1,0]")
            for h in range(2):
                pk("fma", N[h], H2 + 2 * h, R + 2 * h, H1 + 2 * h)
            for h in range(2):
                pk("fma", Q[h], R + 2 * h, R + 4 + 2 * h, R + 2 * h)
            for h in range(2):
                pk("fma", N[h], H1 + 2 * h, R + 4 + 2 * h, N[h])

        def rcps(j0):
            for q in (D + 8 + j0, D + 9 + j0, D + 12 + j0, D + 13 + j0):
                a(f"v_rcp_f32 v{q}, v{q}")

        def fin(j0):
            acc = ACC + 2 * j0
            pk("fma", acc, D + j0, D + 8 + j0, acc)
            pk("fma", acc + 2, D + 4 + j0, D + 12 + j0, acc + 2)
        exps(0)
        mid(0)
        exps(2)
        rcps(0)
        mid(2)
        fin(0)
        rcps(2)
        a("s_nop 0")
        fin(2)

    DP2 = "dp3" not in OPTS
    QUAD = DP2 and "noquad" not in OPTS
    if DP2:
        a(f"v_add_u32 v{vT}, s{sA}, v{vRec4}")
        a(f"ds_read_b32 v{D}, v{vT}")
        advance("F0")
        a(f"v_add_u32 v{vT}, s{sA}, v{vRec4}")
        a(f"ds_read_b32 v{vS}, v{vT}")
        a("s_waitcnt lgkmcnt(1)")
        split(D)
        a("s_nop 0")
        a(f"ds_read_b64 v[{EE}:{EE+1}], v{vEa} offset:{L_EA}")
        gathers(PP[0])
        setup_ac()

        def loop(sfx, comp):
            a.lab(f"K2_LOOP{sfx}")
            for ph in range(2):
                a("s_waitcnt lgkmcnt(0)")
                for m in range(4):
                    a(f"v_mfma_f32_4x4x4_16b_bf16 v[{D+4*m}:{D+4*m+3}], v[{EE}:{EE+1}], v[{WB+2*m}:{WB+2*m+1}], v[{AC+4*m}:{AC+4*m+3}]")
                split(vS)
                advance(f"L{sfx}{ph}")
                a(f"ds_read_b64 v[{EE}:{EE+1}], v{vEa} offset:{L_EA}")
                gathers(PP[ph ^ 1])
                a(f"v_add_u32 v{vT}, s{sA}, v{vRec4}")
                a(f"ds_read_b32 v{vS}, v{vT}")
                a("s_waitcnt vmcnt(4)")
                comp(PP[ph])
                a(f"s_sub_u32 s{sRem}, s{sRem}, 1")
                if ph < 1:
                    a(f"s_cbranch_scc0 K2_C{sfx}{ph}")
                    a(f"s_call_b64 s[{sRet}:{sRet+1}], K2_EPI")
                    a.lab(f"K2_C{sfx}{ph}")
                else:
                    a(f"s_cbranch_scc0 K2_LOOP{sfx}")
                    a(f"s_call_b64 s[{sRet}:{sRet+1}], K2_EPI")
                    a(f"s_branch K2_LOOP{sfx}")
    else:
        a(f"v_add_u32 v{vT}, s{sA}, v{vRec4}")
        a(f"ds_read_b32 v{D}, v{vT}")
        advance("F0")
        a(f"v_add_u32 v{vT}, s{sA}, v{vRec4}")
        a(f"ds_read_b32 v{D+1}, v{vT}")
        advance("F1")
        a(f"v_add_u32 v{vT}, s{sA}, v{vRec4}")
        a(f"ds_read_b32 v{vS}, v{vT}")
        a("s_waitcnt lgkmcnt(2)")
        split(D)
        a("s_nop 0")
        a(f"ds_read_b64 v[{EE}:{EE+1}], v{vEa} offset:{L_EA}")
        gathers(PP[0])
        a("s_waitcnt lgkmcnt(2)")
        split(D + 1)
        a("s_nop 1")
        gathers(PP[1])
        setup_ac()
        def loop(sfx, comp):
            for o in OPTS:
                if o.startswith("al="):
                    a(f".p2align {o[3:]}")
                if o.startswith("pad="):
                    for _ in range(int(o[4:])):
                        a("s_nop 0")
            a.lab(f"K2_LOOP{sfx}")
            for ph in range(3):
                a("s_waitcnt lgkmcnt(0)")
                for m in range(4):
                    a(f"v_mfma_f32_4x4x4_16b_bf16 v[{D+4*m}:{D+4*m+3}], v[{EE}:{EE+1}], v[{WB+2*m}:{WB+2*m+1}], v[{AC+4*m}:{AC+4*m+3}]")
                a(f"ds_read_b64 v[{EE}:{EE+1}], v{vEa} offset:{L_EA}")
                split(vS)
                advance(f"L{sfx}{ph}")
                gathers(PP[(ph + 2) % 3])
                a(f"v_add_u32 v{vT}, s{sA}, v{vRec4}")
                a(f"ds_read_b32 v{vS}, v{vT}")
                a("s_waitcnt vmcnt(8)")
                comp(PP[ph])
                a(f"s_sub_u32 s{sRem}, s{sRem}, 1")
                if ph < 2:
                    a(f"s_cbranch_scc0 K2_C{sfx}{ph}")
                    a(f"s_call_b64 s[{sRet}:{sRet+1}], K2_EPI")
                    a.lab(f"K2_C{sfx}{ph}")
                else:
                    a(f"s_cbranch_scc0 K2_LOOP{sfx}")
                    a(f"s_call_b64 s[{sRet}:{sRet+1}], K2_EPI")
                    a(f"s_branch K2_LOOP{sfx}")
    X = PP[2]

    def quad(P, second):
        for j in range(4):
            for m in range(4):
                a(f"v_fma_mix_f32 v{D+4*m+j}, v{D+4*m+j}, s{sK}, v{P+4*j+m} op_sel_hi:[0,0,1]")

        def exps(j0):
            for m in range(4):
                a(f"v_exp_f32 v{R+m}, v{D+4*m+j0}")
            for m in range(4):
                a(f"v_exp_f32 v{R+4+m}, v{D+4*m+j0+1}")

        def regs(j0):
            n1, q1 = (X + 4 * j0, X + 4 * j0 + 2), (X + 4 * j0 + 4, X + 4 * j0 + 6)
            n2, q2 = (D + j0, D + 4 + j0), (D + 8 + j0, D + 12 + j0)
            return n1, q1, n2, q2

        def mid(j0):
            H1, H2 = P + 4 * j0, P + 4 * j0 + 4
            n1, q1, n2, q2 = regs(j0)
            N, Q = (n2, q2) if second else (n1, q1)
            for h in range(2):
                pk("add", R + 2 * h, R + 2 * h, "1.0", mod=" op_sel_hi:[1,0]")
            for h in range(2):
                pk("fma", N[h], H2 + 2 * h, R + 2 * h, H1 + 2 * h)
            for h in range(2):
                pk("fma", Q[h], R + 2 * h, R + 4 + 2 * h, R + 2 * h)
            for h in range(2):
                pk("fma", N[h], H1 + 2 * h, R + 4 + 2 * h, N[h])

        def comb(j0):
            n1, q1, n2, q2 = regs(j0)
            for h in range(2):
                pk("mul", n1[h], n1[h], q2[h])
            for h in range(2):
                pk("mul", q2[h], q2[h], q1[h])
            for h in range(2):
                pk("fma", n1[h], n2[h], q1[h], n1[h])

        def rcps(j0):
            for q in (D + 8 + j0, D + 9 + j0, D + 12 + j0, D + 13 + j0):
                a(f"v_rcp_f32 v{q}, v{q}")

        def fin(j0):
            n1, q1, n2, q2 = regs(j0)
            acc = ACC + 2 * j0
            pk("fma", acc, n1[0], q2[0], acc)
            pk("fma", acc + 2, n1[1], q2[1], acc + 2)
        def rec(j0):
            n1, q1, n2, q2 = regs(j0)
            for e in range(2):
                H, Tt = P + 4 * (j0 + e), R + 4 * e
                for h in range(2):
                    pk("fma", n1[h], n1[h], Tt + 2 * h, n1[h])
                for h in range(2):
                    pk("fma", n1[h], H + 2 * h, q1[h], n1[h])
                for h in range(2):
                    pk("fma", q1[h], q1[h], Tt + 2 * h, q1[h])

        def rcpq(j0):
            for r in range(4):
                a(f"v_rcp_f32 v{X+4*j0+4+r}, v{X+4*j0+4+r}")

        def finq(j0):
            n1, q1, n2, q2 = regs(j0)
            acc = ACC + 2 * j0
            pk("fma", acc, n1[0], q1[0], acc)
            pk("fma", acc + 2, n1[1], q1[1], acc + 2)
        if second and "tree" not in OPTS:
            exps(0)
            rec(0)
            exps(2)
            rcpq(0)
            rec(2)
            finq(0)
            rcpq(2)
            a("s_nop 0")
            finq(2)
            return
        exps(0)
        mid(0)
        if second:
            comb(0)
        exps(2)
        if second:
            rcps(0)
        mid(2)
        if second:
            comb(2)
            fin(0)
            rcps(2)
            a("s_nop 0")
            fin(2)

    def qloop(name, other, ph0):
        a.lab(name)
        for k in range(2):
            ph = ph0 ^ k
            a("s_waitcnt lgkmcnt(0)")
            for m in range(4):
                a(f"v_mfma_f32_4x4x4_16b_bf16 v[{D+4*m}:{D+4*m+3}], v[{EE}:{EE+1}], v[{WB+2*m}:{WB+2*m+1}], v[{AC+4*m}:{AC+4*m+3}]")
            split(vS)
            advance(f"{name}{k}")
            a(f"ds_read_b64 v[{EE}:{EE+1}], v{vEa} offset:{L_EA}")
            gathers(PP[ph ^ 1])
            a(f"v_add_u32 v{vT}, s{sA}, v{vRec4}")
            a(f"ds_read_b32 v{vS}, v{vT}")
            a("s_waitcnt vmcnt(4)")
            quad(PP[ph], k == 1)
            a(f"s_sub_u32 s{sRem}, s{sRem}, 1")
            if k == 0:
                a(f"s_cbranch_scc0 {name}_C")
                a(f"s_call_b64 s[{sRet}:{sRet+1}], K2_EPIQ")
                a(f"s_branch {other}")
                a.lab(f"{name}_C")
            else:
                a(f"s_cbranch_scc0 {name}")
                a(f"s_call_b64 s[{sRet}:{sRet+1}], K2_EPI")
                a(f"s_branch {name}")
    a(f"v_cmp_ne_u32 vcc, 0, v{D+2}")
    if "safeonly" in OPTS:
        a("s_branch K2_LOOPS")
    a("s_cbranch_vccnz K2_LOOPS")
    if QUAD:
        qloop("K2_QX", "K2_QY", 0)
        qloop("K2_QY", "K2_QX", 1)
    else:
        loop("F", compute_fast)
    loop("S", compute)

    def epilogue(acc, tmp, nregs):
        for i in range(0, nregs, 2):
            a(f"v_pk_mul_f32 v[{tmp+i}:{tmp+i+1}], v[{acc+i}:{acc+i+1}], s[{sKK}:{sKK+1}]")
        for i in range(nregs):
            a(f"v_exp_f32 v{tmp+i}, v{tmp+i}")
        a("s_nop 0")
        for i in range(0, nregs, 2):
            a(f"v_pk_add_f32 v[{tmp+i}:{tmp+i+1}], v[{tmp+i}:{tmp+i+1}], 1.0 op_sel_hi:[1,0]")
        for i in range(nregs):
            a(f"v_rcp_f32 v{tmp+i}, v{tmp+i}")
        a("s_nop 0")
        for i in range(0, nregs, 2):
            a(f"v_pk_mul_f32 v[{tmp+i}:{tmp+i+1}], v[{tmp+i}:{tmp+i+1}], v[{acc+i}:{acc+i+1}]")
        for i in range(0, nregs, 2):
            a(f"v_cvt_pk_bf16_f32 v{tmp+i//2}, v{tmp+i}, v{tmp+i+1}")

    if QUAD:
        a.lab("K2_EPIQ")
        for j0 in (0, 2):
            for r in range(4):
                a(f"v_rcp_f32 v{X+4*j0+4+r}, v{X+4*j0+4+r}")
        for j0 in (0, 2):
            pk("fma", ACC + 2 * j0, X + 4 * j0, X + 4 * j0 + 4, ACC + 2 * j0)
            if j0 == 2:
                pass
            pk("fma", ACC + 2 * j0 + 2, X + 4 * j0 + 2, X + 4 * j0 + 6, ACC + 2 * j0 + 2)
    a.lab("K2_EPI")
    epilogue(ACC, D, 8)
    auread(N2)
    a(f"v_lshrrev_b32 v{AD}, 7, v{NA}")
    a(f"v_lshrrev_b32 v{AD+1}, 7, v{NA+1}")
    a(f"v_lshl_add_u32 v{AD}, v{AD}, 8, v{vCo}")
    a(f"v_lshl_add_u32 v{AD+1}, v{AD+1}, 8, v{vCo}")
    a(f"v_cmp_gt_u32 vcc, {BN*128}, v{NA}")
    a("s_mov_b64 exec, vcc")
    a(f"buffer_store_dwordx2 v[{D}:{D+1}], v{AD}, s[{SO}:{SO+3}], s{sOutOff} offen{K2_ST}")
    a("s_mov_b64 exec, -1")
    a(f"v_cmp_gt_u32 vcc, {BN*128}, v{NA+1}")
    a("s_mov_b64 exec, vcc")
    a(f"buffer_store_dwordx2 v[{D+2}:{D+3}], v{AD+1}, s[{SO}:{SO+3}], s{sOutOff} offen{K2_ST}")
    a("s_mov_b64 exec, -1")
    a(f"s_cmp_eq_u32 s{sN2}, 0")
    a("s_cbranch_scc1 K2_FIN")
    a.stamp(14)
    a(f"s_sub_u32 s{sRem}, s{sN2}, 1")
    a(f"s_mov_b32 s{sN2}, 0")
    a(f"v_mov_b32 v{NA}, v{N2}")
    a(f"v_mov_b32 v{NA+1}, v{N2+1}")
    a("s_waitcnt lgkmcnt(0)")
    setup_ac()
    a(f"s_setpc_b64 s[{sRet}:{sRet+1}]")
    a.lab("K2_FIN")
    if "span" in OPTS:
        a("s_and_b32 s101, s2, 0x7f")
        a("s_cmp_lg_u32 s101, 5")
        a("s_cbranch_scc1 SPANC")
        a(f"s_cmp_lg_u32 s22, 15")
        a("s_cbranch_scc1 SPANC")
        a("s_memrealtime s[100:101]")
        a("s_waitcnt lgkmcnt(0)")
        a("v_mov_b32 v60, s100")
        a("s_lshr_b32 s101, s2, 7")
        a("s_lshl_b32 s101, s101, 4")
        a("s_mov_b64 exec, 1")
        a(f"buffer_store_dword v60, off, s[{SDB}:{SDB+3}], s101 offset:12 sc1")
        a("s_mov_b64 exec, -1")
        a.lab("SPANC")
    a.stamp(15)
    a.stampc(31)
    a.stamp_flush(1, sW)
    a("s_endpgm")

    for tag in sw_sites:
        a.lab(f"K2_SW{tag}")
        a(f"s_mov_b32 s{sA}, s{sNxtA}")
        a(f"s_mov_b32 s{sCntS}, s{sNxtCnt}")
        a(f"s_mov_b32 s{sNxtA}, {L_DUM}")
        a(f"s_mov_b32 s{sNxtCnt}, 100")
        a(f"s_branch K2_SWR{tag}")

    a.lab("K2_TAIL")
    a(f"v_lshlrev_b32 v64, 3, v{vLane}")
    a.lab("K2_TAIL_LOOP")
    a(f"s_ff1_i32_b64 s{sT0}, s[{sTM}:{sTM+1}]")
    a(f"s_bitset0_b64 s[{sTM}:{sTM+1}], s{sT0}")
    a(f"v_readlane_b32 s{sT1}, v{vDesc}, s{sT0}")
    a(f"s_add_u32 s{sT0}, s{sT0}, s{sT3}")
    a(f"s_mul_i32 s{sT0}, s{sT0}, {CH}")
    a(f"s_and_b32 s{sT2}, s{sT1}, 0xffff")
    a(f"s_add_u32 s{sT0}, s{sT0}, s{sT2}")
    a(f"s_add_u32 s{sT0}, s{sT0}, 64")
    a(f"s_sub_u32 s{sT0}, s{sT0}, s{sSp}")
    a(f"s_lshr_b32 s{sT1}, s{sT1}, 16")
    a(f"s_sub_u32 s{sT1}, s{sT1}, 64")
    a(f"s_add_u32 s{sT2}, s{sSp}, s{sT1}")
    a(f"s_cmp_gt_u32 s{sT2}, 63")
    a("s_cbranch_scc1 K2_TAILF")
    a(f"s_bfm_b64 s[{sSave}:{sSave+1}], s{sT1}, s{sSp}")
    a(f"s_or_b64 s[{sM+24}:{sM+25}], s[{sM+24}:{sM+25}], s[{sSave}:{sSave+1}]")
    a(f"s_mov_b32 s{sSp}, s{sT2}")
    a(f"s_lshl_b32 s{sT1}, s{sT0}, 2")
    a(f"s_add_u32 s{sT1}, s{sT1}, {KEY_OFF}")
    a(f"s_lshl_b32 s{sT2}, s{sT0}, 3")
    a(f"s_add_u32 s{sT2}, s{sT2}, {EAT_OFF}")
    a(f"s_mov_b64 exec, s[{sSave}:{sSave+1}]")
    a(f"buffer_load_dword v{KEYR+12}, v{vL4}, s[{SWS}:{SWS+3}], s{sT1} offen{LD}")
    a(f"buffer_load_dwordx2 v[{ET}:{ET+1}], v64, s[{SWS}:{SWS+3}], s{sT2} offen{LD}")
    a("s_mov_b64 exec, -1")
    a(f"s_cmp_lg_u64 s[{sTM}:{sTM+1}], 0")
    a("s_cbranch_scc1 K2_TAIL_LOOP")
    a("s_branch K2_TAILR")
    a.lab("K2_TAILF")
    a(f"s_mov_b32 s{sOvf}, 1")
    a("s_branch K2_TAILR")

    L_AGG = L_EA
    a.lab("K2_FALLBACK")
    a("s_waitcnt vmcnt(0) lgkmcnt(0)")
    a(f"s_mov_b32 s{sKK}, {hex(NL2E)}")
    a(f"s_mov_b32 s{sKK+1}, {hex(NL2E)}")
    a("s_barrier")
    a("v_lshlrev_b32 v51, 4, v0")
    a(f"v_add_u32 v51, {L_AGG}, v51")
    for i in range(4):
        a(f"v_mov_b32 v{56+i}, 0")
    for i in range(4):
        a(f"ds_write_b128 v51, v[56:59] offset:{i*16384}")
    a("s_waitcnt lgkmcnt(0)")
    a("s_barrier")
    srd(a, SF0, 10, E * 4)
    srd(a, SF1, 8, E * 4)
    srd(a, SF2, 6, E * 8)
    a(f"s_mul_i32 s{sT3}, s{sBk}, {BN}")
    a(f"s_mul_i32 s{sT2}, s{sBk}, {BN*128}")
    a(f"s_lshl_b32 s{sT0}, s{sW}, 5")
    a(f"v_lshrrev_b32 v51, 1, v{vG8}")
    a.lab("K2_FB_LOOP")
    a(f"s_lshl_b32 s{sT1}, s{sT0}, 1")
    a(f"buffer_load_dword v52, v51, s[{SF0}:{SF0+3}], s{sT0} offen")
    a(f"buffer_load_dword v53, v51, s[{SF1}:{SF1+3}], s{sT0} offen")
    a(f"buffer_load_dwordx2 v[54:55], v{vG8}, s[{SF2}:{SF2+3}], s{sT1} offen")
    a("s_waitcnt vmcnt(0)")
    a(f"v_subrev_u32 v52, s{sT3}, v52")
    a(f"v_cmp_gt_u32 vcc, {BN}, v52")
    a("s_mov_b64 exec, vcc")
    a("s_cbranch_execz K2_FB_NEXT")
    a(f"v_lshl_add_u32 v53, v53, 7, v{vC8}")
    a("v_and_b32 v56, 7, v52")
    a("v_lshlrev_b32 v56, 4, v56")
    a(f"v_lshl_add_u32 v52, v52, 7, v{vC8}")
    a("v_xor_b32 v56, v56, v52")
    a(f"v_add_u32 v56, {L_AUR}, v56")
    a(f"buffer_load_dwordx4 v[16:19], v53, s[{SP}:{SP+3}], 0 offen{LD}")
    a("ds_read_b128 v[20:23], v56")
    a(f"v_add_u32 v52, {L_AGG}, v52")
    a("s_waitcnt vmcnt(0) lgkmcnt(0)")
    for m in range(4):
        a(f"v_cvt_f32_f16 v{20+m}, v{20+m}")
    for m in range(4):
        a(f"v_dot2_f32_bf16 v{20+m}, v54, v{WB+2*m}, v{20+m}")
    for m in range(4):
        a(f"v_dot2_f32_bf16 v{20+m}, v55, v{WB+2*m+1}, v{20+m}")
    a("s_nop 3")
    for m in range(4):
        a(f"v_fma_mix_f32 v{20+m}, v{20+m}, s{sK}, v{16+m} op_sel_hi:[0,0,1]")
    for m in range(4):
        a(f"v_exp_f32 v{20+m}, v{20+m}")
    a("s_nop 0")
    for m in range(4):
        a(f"v_add_f32 v{20+m}, 1.0, v{20+m}")
    for m in range(4):
        a(f"v_rcp_f32 v{20+m}, v{20+m}")
    a("s_nop 0")
    for m in range(4):
        a(f"v_mul_f32 v{20+m}, v{20+m}, v{16+m}")
    for m in range(4):
        a(f"ds_add_f32 v52, v{20+m} offset:{4*m}")
    a.lab("K2_FB_NEXT")
    a("s_mov_b64 exec, -1")
    a(f"s_add_u32 s{sT0}, s{sT0}, 512")
    a(f"s_cmp_lt_u32 s{sT0}, {E*4}")
    a("s_cbranch_scc1 K2_FB_LOOP")
    a("s_waitcnt lgkmcnt(0)")
    a("s_barrier")
    a(f"s_lshl_b32 s{sT0}, s{sW}, 10")
    a(f"v_lshlrev_b32 v51, 4, v{vG8}")
    a.lab("K2_FB_OUT")
    a(f"v_add_u32 v52, s{sT0}, v51")
    a(f"v_add_u32 v53, v52, v{vC8}")
    a(f"v_lshlrev_b32 v56, 1, v{vG8}")
    a("v_xor_b32 v56, v56, v53")
    a(f"v_min_u32 v56, {399*128+112}, v56")
    a(f"v_add_u32 v56, {L_AUR}, v56")
    a("ds_read_b128 v[16:19], v56")
    a(f"v_add_u32 v53, {L_AGG}, v53")
    a("ds_read_b128 v[20:23], v53")
    a("s_waitcnt vmcnt(0) lgkmcnt(0)")
    for m in range(4):
        a(f"v_add_f32 v{16+m}, v{16+m}, v{20+m}")
    epilogue(16, 24, 4)
    a(f"v_lshl_add_u32 v53, v52, 1, v{vCo}")
    a(f"v_cmp_gt_u32 vcc, {BN*128}, v52")
    a("s_mov_b64 exec, vcc")
    a(f"buffer_store_dwordx2 v[24:25], v53, s[{SO}:{SO+3}], s{sOutOff} offen{K2_ST}")
    a("s_mov_b64 exec, -1")
    a(f"s_add_u32 s{sT0}, s{sT0}, 16384")
    a(f"s_cmp_lt_u32 s{sT0}, {BN*128}")
    a("s_cbranch_scc1 K2_FB_OUT")
    a.lab("K2_END")
    a("s_endpgm")


def kd(name, vgpr, sgpr, extra=""):
    acc = (vgpr + 3) // 4 * 4
    return f""".amdhsa_kernel {name}
  .amdhsa_next_free_vgpr {vgpr}
  .amdhsa_next_free_sgpr {sgpr}
  .amdhsa_accum_offset {acc}
  .amdhsa_group_segment_fixed_size 0
  .amdhsa_kernarg_size 80
  .amdhsa_user_sgpr_count 2
  .amdhsa_user_sgpr_kernarg_segment_ptr 1
  .amdhsa_system_sgpr_workgroup_id_x 1
{extra}.end_amdhsa_kernel
"""


def main():
    out = HEADER
    if FUSED:
        out += f"; @launch grid=(256,1,1) block=(1024,1,1) lds={K1_LDS}\n"
    else:
        out += f"; @launch kernel=k1_kernel grid=(256,1,1) block=(1024,1,1) lds={K1_LDS}\n"
        out += f"; @launch kernel=k2_kernel grid=(256,1,1) block=(1024,1,1) lds={K2_LDS}\n"
    out += '.amdgcn_target "amdgcn-amd-amdhsa--gfx950"\n.text\n'
    for name, g in ((KNAME if FUSED else "k1_kernel", gen_k1), ("k2_kernel", gen_k2)):
        a = A()
        g(a)
        if not (FUSED and g is gen_k2):
            out += f".globl {name}\n.p2align 8\n.type {name},@function\n"
        out += "\n".join(a.l) + "\n"
    out += '.section .rodata,"a"\n.p2align 6\n'
    out += kd(KNAME if FUSED else "k1_kernel", 128, 102, "  .amdhsa_fp16_overflow 1\n")
    if not FUSED:
        out += ".p2align 6\n"
        out += kd("k2_kernel", 128, 102)
    path = sys.argv[1] if len(sys.argv) > 1 else "gather_scatter__edge_featured_mpnn_egc__graph.s"
    open(path, "w").write(out)


if __name__ == "__main__":
    main()
```
